```python
import torch

def _softmax(x, axis=-1):
    return torch.softmax(x, dim=axis)
def _gelu(x):
    return torch.nn.functional.gelu(x, approximate="tanh")
def _silu(x):
    return torch.nn.functional.silu(x)
def _sigmoid(x):
    return torch.sigmoid(x)
def _layernorm(x, axis=-1, eps=1e-5):
    m = x.mean(dim=axis, keepdim=True)
    v = x.var(dim=axis, keepdim=True, unbiased=False)
    return (x - m) / torch.sqrt(v + eps)
def _scatter_add(tgt, idx, src, axis=0):
    return tgt.clone().index_add_(axis, idx, src)
def _segment_sum(src, seg, n):
    out = torch.zeros((n,) + src.shape[1:], dtype=src.dtype)
    return out.index_add_(0, seg, src)
def _pad(x, pw):
    flat = tuple(v for pair in reversed(pw) for v in pair)
    return torch.nn.functional.pad(x, flat)

kernel_name = 'standalone__global_local_windowed_global_tokens__prompt'

def setup_inputs():

    _w = (lambda a: (lambda t: t.to(torch.bfloat16) if t.is_floating_point() else t)(torch.as_tensor(a)))
    B, H, S, D = 1, 32, 2048, 128
    return {
        "q": _w((lambda *s: torch.randn(*s, dtype=torch.bfloat16) * 0.8)(B, H, S, D)),
        "k": _w((lambda *s: torch.randn(*s, dtype=torch.bfloat16) * 0.8)(B, H, S, D)),
        "v": _w((lambda *s: torch.randn(*s, dtype=torch.bfloat16) * 0.05)(B, H, S, D)),
        "window": 32,
        "n_global": 2,
    }

def reference(q, k, v, window, n_global):
    B, H, S, D = q.shape
    scale = D ** -0.5
    scores = torch.einsum("bhqd,bhkd->bhqk", q, k) * scale
    idx = torch.arange(S)
    dist = idx[:, None] - idx[None, :]
    local = (dist <= window) & (dist >= -window)
    is_global_q = (idx < n_global)[:, None]
    is_global_k = (idx < n_global)[None, :]
    mask = local | is_global_q | is_global_k
    scores = torch.where(mask[None, None], scores, -1e9)
    p = _softmax(scores, axis=-1)
    return torch.einsum("bhqk,bhkd->bhqd", p, v)
```

```python
import re
import copy

TRANS = ("v_exp_f32", "v_log_f32", "v_rcp_f32", "v_rsq_f32", "v_sqrt_f32", "v_sin_f32", "v_cos_f32")

_reg_re = re.compile(r"^(-|abs\()?([vsa])(\d+)\)?$")
_rng_re = re.compile(r"^(-)?([vsa])\[(\d+):(\d+)\]$")


def regs_of(tok):
    tok = tok.strip()
    m = _reg_re.match(tok)
    if m:
        return [(m.group(2), int(m.group(3)))]
    m = _rng_re.match(tok)
    if m:
        return [(m.group(2), i) for i in range(int(m.group(3)), int(m.group(4)) + 1)]
    if tok == "vcc":
        return [("s", "vcc_lo"), ("s", "vcc_hi")]
    if tok in ("vcc_lo", "vcc_hi"):
        return [("s", tok)]
    if tok == "exec":
        return [("s", "exec_lo"), ("s", "exec_hi")]
    if tok in ("exec_lo", "exec_hi"):
        return [("s", tok)]
    if tok == "m0":
        return [("s", "m0")]
    return []


def vr(a, n=1):
    return f"v{a}" if n == 1 else f"v[{a}:{a + n - 1}]"


def sr(a, n=1):
    return f"s{a}" if n == 1 else f"s[{a}:{a + n - 1}]"


class Inst:
    def __init__(self, text):
        self.text = text
        body = text.split(";")[0].strip()
        parts = body.split(None, 1)
        self.op = parts[0]
        rest = parts[1] if len(parts) > 1 else ""
        toks = [t.strip() for t in rest.split(",")] if rest else []
        self.mods = []
        if toks:
            last = toks[-1].split()
            toks[-1] = last[0]
            self.mods = last[1:]
        self.toks = toks
        op = self.op
        R = lambda i: regs_of(toks[i]) if i < len(toks) else []
        allr = lambda lo: [r for i in range(lo, len(toks)) for r in R(i)]
        self.kind = None
        self.reads, self.writes = [], []
        self.srcC = []
        if op.startswith("v_mfma"):
            self.kind = "mfma"
            self.writes = R(0)
            self.srcAB = R(1) + R(2)
            self.srcC = R(3)
            self.reads = self.srcAB + self.srcC
            self.passes = 8 if "32x32" in op else 4
        elif op.startswith("v_cmp"):
            self.kind = "valu"
            self.writes = R(0)
            self.reads = allr(1)
        elif op.startswith("v_permlane"):
            self.kind = "valu"
            self.writes = R(0) + R(1)
            self.reads = R(0) + R(1)
        elif op.startswith("v_readfirstlane") or op.startswith("v_readlane"):
            self.kind = "valu"
            self.writes = R(0)
            self.reads = allr(1)
        elif op.startswith("v_"):
            self.kind = "valu"
            self.writes = R(0)
            self.reads = allr(1)
            if op.startswith("v_fmac") or op.startswith("v_pk_fmac"):
                self.reads += R(0)
            if op.startswith("v_cndmask") and len(toks) == 3:
                self.reads += regs_of("vcc")
        elif op.startswith("ds_read") or op.startswith("ds_swizzle") or op.startswith("ds_bpermute"):
            self.kind = "ds"
            self.writes = R(0)
            self.reads = allr(1)
        elif op.startswith("ds_"):
            self.kind = "ds"
            self.reads = allr(0)
        elif op.startswith("buffer_load") or op.startswith("global_load"):
            self.kind = "vmem"
            if "lds" in self.mods:
                self.reads = allr(0) + regs_of("m0")
                self.dma = True
            else:
                self.writes = R(0)
                self.reads = allr(1)
                if "d16" in op:
                    self.reads += R(0)
        elif op.startswith("buffer_store") or op.startswith("global_store"):
            self.kind = "vmem"
            self.reads = allr(0)
            self.store_data = R(0) if op.startswith("buffer") else R(1)
        elif op.startswith("buffer_atomic"):
            self.kind = "vmem"
            self.reads = allr(0)
            if "sc0" in self.mods:
                self.writes = R(0)
        elif op.startswith("buffer_"):
            self.kind = "vmem_misc"
        elif op.startswith("s_load") or op.startswith("s_memtime") or op.startswith("s_memrealtime"):
            self.kind = "smem"
            self.writes = R(0)
            self.reads = allr(1)
        elif op.startswith("s_"):
            self.kind = "salu"
            if op.startswith(("s_cmp", "s_waitcnt", "s_barrier", "s_nop", "s_branch", "s_cbranch", "s_endpgm",
                              "s_setprio", "s_sleep", "s_bitcmp")):
                self.reads = allr(0)
            else:
                self.writes = R(0)
                self.reads = allr(1)
                if "saveexec" in op:
                    self.writes += regs_of("exec")
        else:
            raise ValueError("unknown op " + text)
        self.trans = op.replace("_e32", "").replace("_e64", "") in TRANS


class Emitter:
    def __init__(self):
        self.lines = []
        self.hist = []
        self.ds_q = []
        self.vm_q = []
        self.nops = 0

    def fork(self):
        e = Emitter()
        e.hist = list(self.hist)
        e.ds_q = list(self.ds_q)
        e.vm_q = list(self.vm_q)
        return e

    def raw(self, text):
        self.lines.append(text)

    def comment(self, text):
        self.lines.append("    ; " + text)

    def label(self, name):
        self.flush()
        self.lines.append(name + ":")

    def _push(self, inst, states=1):
        self.lines.append("    " + inst.text)
        self.hist.append((inst, states))
        if len(self.hist) > 40:
            self.hist.pop(0)

    def nop(self, n):
        while n > 0:
            k = min(n, 16)
            self._push(Inst(f"s_nop {k - 1}"), k)
            self.nops += k
            n -= k

    def flush(self):
        need = 0
        dist = 0
        for p, st in reversed(self.hist):
            req = 0
            if p.kind == "mfma":
                req = 8 if p.passes == 4 else 12
            elif p.kind == "valu":
                req = 5 if any(r[0] == "s" for r in p.writes) else 2
            elif p.kind == "salu" and ("s", "m0") in p.writes:
                req = 1
            elif p.kind == "vmem" and hasattr(p, "store_data"):
                req = 2
            need = max(need, req - dist)
            dist += st
        self.nop(need)

    def _hazard(self, c):
        need = 0
        dist = 0
        cr, cw = set(c.reads), set(c.writes)
        for p, st in reversed(self.hist):
            pw = set(p.writes)
            req = 0
            if p.kind == "valu":
                pv = {r for r in pw if r[0] in "va"}
                ps = {r for r in pw if r[0] == "s"}
                if c.kind == "mfma" and pv & cr:
                    req = max(req, 2)
                if c.op.startswith("v_permlane") and pv & cr:
                    req = max(req, 2)
                if c.op.startswith(("v_readfirstlane", "v_readlane")) and pv & cr:
                    req = max(req, 1)
                if p.trans and c.kind in ("valu", "mfma") and not c.trans and pv & cr:
                    req = max(req, 1)
                if p.trans and c.kind in ("ds", "vmem") and pv & cr:
                    req = max(req, 1)
                if "dpp" in c.op or any(m.startswith(("row_", "quad_perm")) for m in c.mods):
                    if pv & cr:
                        req = max(req, 2)
                if ps & cr:
                    if c.kind in ("valu", "mfma"):
                        req = max(req, 2)
                    elif c.kind in ("vmem", "ds"):
                        req = max(req, 5)
                    elif c.kind == "salu":
                        req = max(req, 1)
                if any(r[1] in ("exec_lo", "exec_hi") for r in ps) and c.kind == "mfma":
                    req = max(req, 4)
            elif p.kind == "mfma":
                n_ab = 8 if p.passes == 4 else 12
                n_c = 6 if p.passes == 4 else 10
                if c.kind == "mfma":
                    if pw & set(c.srcAB):
                        req = max(req, n_ab)
                    if pw & set(c.srcC):
                        if not (p.writes == c.srcC and p.passes == c.passes):
                            req = max(req, n_c)
                    if pw & cw and p.writes != c.writes:
                        req = max(req, n_ab)
                    if pw & cw and p.writes == c.writes and c.srcC != c.writes:
                        req = max(req, n_ab)
                elif c.kind in ("valu", "ds", "vmem"):
                    if pw & (cr | cw):
                        req = max(req, n_ab)
                if c.kind in ("valu", "ds", "vmem") and set(p.srcC) & cw:
                    req = max(req, 3 if p.passes == 4 else 7)
            elif p.kind == "salu":
                if ("s", "m0") in pw and c.kind == "vmem" and getattr(c, "dma", False):
                    req = max(req, 1)
            elif p.kind == "vmem" and hasattr(p, "store_data"):
                if len(p.store_data) > 2 and set(p.store_data) & cw:
                    req = max(req, 2)
            need = max(need, req - dist)
            dist += st
            if dist > 20:
                break
        return need

    def _waits(self, c):
        touched = set(c.reads) | set(c.writes)
        lg = None
        for i, (dst, tag) in enumerate(self.ds_q):
            if dst & touched:
                lg = len(self.ds_q) - 1 - i
        vm = None
        for i, (dst, tag) in enumerate(self.vm_q):
            if dst & touched:
                vm = len(self.vm_q) - 1 - i
        self._emit_wait(vm, lg)

    def _emit_wait(self, vm, lg):
        parts = []
        if vm is not None:
            vm = min(vm, 63)
            parts.append(f"vmcnt({vm})")
            self.vm_q = self.vm_q[len(self.vm_q) - vm:] if vm else []
        if lg is not None:
            lg = min(lg, 15)
            parts.append(f"lgkmcnt({lg})")
            self.ds_q = self.ds_q[len(self.ds_q) - lg:] if lg else []
        if parts:
            self._push(Inst("s_waitcnt " + " ".join(parts)))

    def wait_vm_tag(self, tag):
        idx = None
        for i, (dst, t) in enumerate(self.vm_q):
            if t == tag:
                idx = i
        if idx is not None:
            self._emit_wait(len(self.vm_q) - 1 - idx, None)

    def wait_vm_all(self):
        self._emit_wait(0, None)

    def wait_lgkm_all(self):
        self._emit_wait(None, 0)

    def __call__(self, text, tag=None):
        c = Inst(text)
        self._waits(c)
        self.nop(self._hazard(c))
        st = 1
        if c.op == "s_nop":
            st = int(c.toks[0]) + 1
        self._push(c, st)
        if c.kind == "ds":
            self.ds_q.append((set(c.writes), tag))
        elif c.kind in ("vmem",):
            self.vm_q.append((set(c.writes), tag))
            assert len(self.vm_q) <= 63, "too many VMEM ops outstanding"
        return c

    def text(self):
        return "\n".join(self.lines) + "\n"


def interleave(a, b, ratio):
    out = []
    ib = 0
    for i, x in enumerate(a):
        out.append(x)
        if (i + 1) % ratio == 0 and ib < len(b):
            out.append(b[ib])
            ib += 1
    out += b[ib:]
    return out
```

```python
import sys
import math
import struct
from asmgen import Emitter, vr, sr, interleave

NAME = "standalone__global_local_windowed_global_tokens__prompt"

HEADER = """; Kernarg layout for this problem (64 bytes, ptrs only, base s[0:1]):
"""


def f32bits(x):
    return struct.unpack("<I", struct.pack("<f", x))[0]


def gen(opt):
    O_DIRECT = opt.get("o_direct", False)
    LD_NT = " nt" if opt.get("ld_nt", False) else ""
    Q_NT = " nt" if opt.get("q_nt", False) else ""
    ST_MOD = opt.get("st_mod", "")
    NOCOMP = opt.get("nocomp", False)
    STAMP = opt.get("stamp", False)

    TENSOR_BYTES = 32 * 2048 * 256
    VBASE = 81920
    NEG = f32bits(-1.0e30)
    CSCALE = f32bits((128 ** -0.5) * math.log2(math.e))

    S_Q, S_K, S_V, S_O, S_DBG, S_WS = 20, 24, 28, 32, 36, 40
    sWAVE, sHEADOFF, sROW0, sTILE, sT0, sT1 = 44, 45, 46, 47, 48, 49
    sQOFF, sC, sNEG, sQ0, sHEAD, sCHUNK = 50, 51, 52, 53, 54, 55
    sEX = 56
    sREC = 58
    sTS = 60

    vLIN, vKD, vVD, vQ, vKA, vVA, vA, vG4, vT0, vT1, vONE = 1, 2, 6, 7, 8, 12, 16, 17, 18, 19, 20
    vKG, vQR, vS, vOX, vVG, vPOOL = 24, 40, 56, 80, 104, 136

    e = Emitter()

    def stamp(em, i):
        if STAMP:
            em(f"s_memrealtime {sr(sTS + 2 * i, 2)}")

    e.raw(HEADER + "; @launch grid=(256,1,1) block=(640,1,1) lds=163840")
    e.raw('.amdgcn_target "amdgcn-amd-amdhsa--gfx950"')
    e.raw(".text")
    e.raw(f".globl {NAME}_kernel")
    e.raw(".p2align 8")
    e.raw(f".type {NAME}_kernel,@function")
    e.raw(f"{NAME}_kernel:")
    e("s_cmp_ge_u32 s2, 256")
    e("s_cbranch_scc1 L_end")
    e("s_load_dwordx4 s[4:7], s[0:1], 0")
    e("s_load_dwordx2 s[8:9], s[0:1], 16")
    e("s_load_dwordx4 s[12:15], s[0:1], 40")
    e("s_load_dwordx2 s[16:17], s[0:1], 56")
    stamp(e, 0)
    e(f"v_lshrrev_b32 {vr(vLIN)}, 6, v0")
    e(f"v_and_b32 {vr(vT0)}, 15, v0")
    e(f"v_readfirstlane_b32 {sr(sWAVE)}, {vr(vLIN)}")
    e(f"v_bfe_u32 {vr(vT1)}, v0, 4, 2")
    e(f"s_and_b32 {sr(sT0)}, s2, 7")
    e(f"s_lshl_b32 {sr(sT0)}, {sr(sT0)}, 2")
    e(f"s_lshr_b32 {sr(sT1)}, s2, 6")
    e(f"s_add_u32 {sr(sHEAD)}, {sr(sT0)}, {sr(sT1)}")
    e(f"s_bfe_u32 {sr(sCHUNK)}, s2, 0x30003")
    e(f"s_lshl_b32 {sr(sHEADOFF)}, {sr(sHEAD)}, 19")
    e(f"s_lshl_b32 {sr(sT0)}, {sr(sCHUNK)}, 16")
    e(f"s_add_u32 {sr(sROW0)}, {sr(sHEADOFF)}, {sr(sT0)}")
    e(f"v_lshlrev_b32 {vr(vG4)}, 2, {vr(vT1)}")
    e(f"v_lshlrev_b32 v0, 8, {vr(vT1)}")
    for j in range(4):
        e(f"v_add_u32 {vr(vKD + j)}, {4 * j}, {vr(vT1)}")
        e(f"v_xor_b32 {vr(vKD + j)}, {vr(vKD + j)}, {vr(vT0)}")
        e(f"v_lshl_add_u32 {vr(vKD + j)}, {vr(vKD + j)}, 4, v0")
    e(f"v_xor_b32 {vr(vVD)}, {vr(vG4)}, {vr(vT0)}")
    e(f"v_lshl_add_u32 {vr(vVD)}, {vr(vVD)}, 4, v0")
    e(f"s_lshl_b32 {sr(sT0)}, {sr(sWAVE)}, 12")
    e(f"s_add_u32 {sr(sT1)}, {sr(sROW0)}, {sr(sT0)}")
    e(f"s_sub_u32 {sr(sT1)}, {sr(sT1)}, 8192")
    e(f"s_add_u32 s3, {sr(sT1)}, 40960")
    e(f"s_max_i32 {sr(sT1)}, {sr(sT1)}, 0")
    e(f"s_min_i32 s3, s3, {TENSOR_BYTES - 4096}")
    e(f"s_mov_b32 m0, {sr(sT0)}")
    e(f"s_mov_b32 {sr(S_K + 2)}, {TENSOR_BYTES}")
    e(f"s_mov_b32 {sr(S_K + 3)}, 0x20000")
    e(f"s_mov_b32 {sr(S_V + 2)}, {TENSOR_BYTES}")
    e(f"s_mov_b32 {sr(S_V + 3)}, 0x20000")
    e(f"s_mov_b32 {sr(S_Q + 2)}, {TENSOR_BYTES}")
    e(f"s_mov_b32 {sr(S_Q + 3)}, 0x20000")
    e("s_waitcnt lgkmcnt(0)")
    e(f"s_mov_b32 {sr(S_K)}, s6")
    e(f"s_mov_b32 {sr(S_K + 1)}, s7")
    for j in range(4):
        e(f"buffer_load_dwordx4 {vr(vKD + j)}, {sr(S_K, 4)}, {sr(sT1)} offen offset:{1024 * j}{LD_NT} lds", tag="K")
    e(f"s_add_u32 m0, {sr(sT0)}, 40960")
    e(f"s_mov_b32 {sr(S_V)}, s8")
    for j in range(4):
        e(f"buffer_load_dwordx4 {vr(vKD + j)}, {sr(S_K, 4)}, s3 offen offset:{1024 * j}{LD_NT} lds", tag="K")
    e(f"s_mov_b32 {sr(S_V + 1)}, s9")
    e(f"s_mov_b32 {sr(S_Q)}, s4")
    e(f"s_mov_b32 {sr(S_Q + 1)}, s5")
    e(f"s_mov_b32 {sr(S_O)}, s12")
    e(f"s_mov_b32 {sr(S_O + 1)}, s13")
    e(f"s_mov_b32 {sr(S_O + 2)}, {TENSOR_BYTES}")
    e(f"s_mov_b32 {sr(S_O + 3)}, 0x20000")
    e(f"s_mov_b32 {sr(S_DBG)}, s14")
    e(f"s_mov_b32 {sr(S_DBG + 1)}, s15")
    e(f"s_mov_b32 {sr(S_DBG + 2)}, 256")
    e(f"s_mov_b32 {sr(S_DBG + 3)}, 0x20000")
    e(f"s_mov_b32 {sr(S_WS)}, s16")
    e(f"s_mov_b32 {sr(S_WS + 1)}, s17")
    e(f"s_mov_b32 {sr(S_WS + 2)}, {0x1000000}")
    e(f"s_mov_b32 {sr(S_WS + 3)}, 0x20000")
    e(f"s_mov_b32 {sr(sC)}, {CSCALE:#x}")
    e(f"s_mov_b32 {sr(sNEG)}, {NEG:#x}")
    e(f"v_lshlrev_b32 {vr(vQ)}, 4, {vr(vT1)}")
    e(f"v_lshl_add_u32 {vr(vQ)}, {vr(vT0)}, 8, {vr(vQ)}")
    e(f"s_cmp_ge_u32 {sr(sWAVE)}, 8")
    e.flush()
    e("s_cbranch_scc1 L_helper")

    def v_dma(em):
        em(f"s_add_u32 m0, {sr(sT0)}, {VBASE}")
        for j in range(4):
            em(f"buffer_load_dwordx4 {vr(vVD)}, {sr(S_V, 4)}, {sr(sT1)} offen offset:{1024 * j}{LD_NT} lds", tag="V")
        em(f"s_add_u32 m0, {sr(sT0)}, {VBASE + 40960}")
        for j in range(4):
            em(f"buffer_load_dwordx4 {vr(vVD)}, {sr(S_V, 4)}, s3 offen offset:{1024 * j}{LD_NT} lds", tag="V")

    def lds_addrs(em):
        em(f"v_xor_b32 {vr(vKA)}, {vr(vT0)}, {vr(vT1)}")
        em(f"v_lshlrev_b32 {vr(vKA)}, 4, {vr(vKA)}")
        em(f"v_lshl_add_u32 {vr(vKA)}, {vr(vT0)}, 8, {vr(vKA)}")
        em(f"v_add_u32 {vr(vKA)}, {sr(sTILE)}, {vr(vKA)}")
        for s in range(1, 4):
            em(f"v_xor_b32 {vr(vKA + s)}, {64 * s}, {vr(vKA)}")
        em(f"v_lshrrev_b32 {vr(vVA + 1)}, 2, {vr(vT0)}")
        em(f"v_add_u32 {vr(vVA)}, {vr(vG4)}, {vr(vVA + 1)}")
        em(f"v_lshlrev_b32 {vr(vVA)}, 8, {vr(vVA)}")
        em(f"v_lshl_add_u32 {vr(vVA)}, {vr(vT0)}, 4, {vr(vVA)}")
        em(f"s_add_u32 {sr(sT0)}, {sr(sTILE)}, {VBASE}")
        em(f"v_add_u32 {vr(vVA)}, {sr(sT0)}, {vr(vVA)}")
        for u in range(1, 4):
            em(f"v_xor_b32 {vr(vVA + u)}, {64 * u}, {vr(vVA)}")
        for i in range(4):
            em(f"v_mov_b32 {vr(vONE + i)}, 0x3f803f80")

    def allreduce(em, op, x, y):
        em(f"v_mov_b32 {vr(y)}, {vr(x)}")
        em(f"v_permlane32_swap_b32 {vr(x)}, {vr(y)}")
        em(f"{op} {vr(x)}, {vr(x)}, {vr(y)}")
        em(f"v_mov_b32 {vr(y)}, {vr(x)}")
        em(f"v_permlane16_swap_b32 {vr(x)}, {vr(y)}")
        em(f"{op} {vr(x)}, {vr(x)}, {vr(y)}")

    def max_tree(vals, dst):
        ops = []
        vals = list(vals)
        ops.append(f"v_max3_f32 {vr(dst)}, {vr(vals[0])}, {vr(vals[1])}, {vr(vals[2])}")
        i = 3
        while i + 1 < len(vals):
            ops.append(f"v_max3_f32 {vr(dst)}, {vr(dst)}, {vr(vals[i])}, {vr(vals[i + 1])}")
            i += 2
        if i < len(vals):
            ops.append(f"v_max_f32 {vr(dst)}, {vr(dst)}, {vr(vals[i])}")
        return ops

    m = e.fork()
    for i in range(16):
        m(f"v_mov_b32 {vr(vKG + i)}, 0")
    m(f"v_lshrrev_b32 v0, 2, {vr(vT0)}")
    m(f"v_lshlrev_b32 v0, 8, v0")
    m(f"v_lshl_add_u32 v0, {vr(vT1)}, 4, v0")
    m(f"s_lshl_b32 {sr(sTILE)}, {sr(sWAVE)}, 12")
    m(f"s_add_u32 {sr(sQOFF)}, {sr(sROW0)}, {sr(sTILE)}")
    m("s_mov_b32 exec_lo, 0x00110011")
    m("s_mov_b32 exec_hi, 0x00110011")
    for s in range(4):
        m(f"buffer_load_dwordx4 {vr(vKG + 4 * s, 4)}, v0, {sr(S_K, 4)}, {sr(sHEADOFF)} offen offset:{64 * s}", tag="K")
    m("s_mov_b64 exec, -1")
    for s in range(4):
        m(f"buffer_load_dwordx4 {vr(vQR + 4 * s, 4)}, {vr(vQ)}, {sr(S_Q, 4)}, {sr(sQOFF)} offen offset:{64 * s}{Q_NT}", tag="Q")
    v_dma(m)
    for T in range(8):
        m(f"v_mov_b32 {vr(vVG + 4 * T + 2)}, 0")
        m(f"v_mov_b32 {vr(vVG + 4 * T + 3)}, 0")
    m(f"v_lshrrev_b32 v0, 2, {vr(vT0)}")
    m(f"v_lshlrev_b32 v0, 4, v0")
    m(f"v_and_b32 {vr(vVD)}, 3, {vr(vT0)}")
    m(f"v_lshl_add_u32 v0, {vr(vVD)}, 1, v0")
    m(f"v_lshl_add_u32 v0, {vr(vT1)}, 8, v0")
    m("s_mov_b32 exec_hi, 0")
    for T in range(8):
        m(f"buffer_load_ushort {vr(vVG + 4 * T + 2)}, v0, {sr(S_V, 4)}, {sr(sHEADOFF)} offen offset:{64 * (T // 2) + 8 * (T % 2)}", tag="V")
    m("s_mov_b64 exec, -1")
    lds_addrs(m)
    m(f"v_sub_u32 {vr(vA)}, {vr(vG4)}, {vr(vT0)}")
    m(f"v_lshlrev_b32 {vr(vLIN)}, 4, {vr(vT0)}")
    m(f"v_lshl_add_u32 {vr(vLIN)}, {vr(vT1)}, 8, {vr(vLIN)}")
    m(f"s_lshl_b32 {sr(sQ0)}, {sr(sCHUNK)}, 8")
    m(f"s_lshl_b32 {sr(sT0)}, {sr(sWAVE)}, 4")
    m(f"s_add_u32 {sr(sQ0)}, {sr(sQ0)}, {sr(sT0)}")

    def s_init(em, stage):
        em(f"v_mov_b32 {vr(vT0)}, {sr(sNEG)}")
        for r in range(4):
            em(f"v_cmp_le_i32 vcc, {-r}, {vr(vA)}")
            em(f"v_mov_b32 {vr(vS + 4 + r)}, 0")
            em(f"v_mov_b32 {vr(vS + 8 + r)}, 0")
            em(f"v_cndmask_b32 {vr(vS + r)}, {vr(vT0)}, 0, vcc" if False else f"v_cndmask_b32_e64 {vr(vS + r)}, {vr(vT0)}, 0, vcc")
        for r in range(4):
            em(f"v_cmp_ge_i32 vcc, {-r}, {vr(vA)}")
            em(f"v_mov_b32 {vr(vS + 12 + r)}, 0")
            em(f"v_mov_b32 {vr(vS + 20 + r)}, 0")
            em(f"v_cndmask_b32_e64 {vr(vS + 16 + r)}, {vr(vT0)}, 0, vcc")
        em(f"v_cmp_gt_u32 vcc, 8, {vr(vG4)}")
        em(f"s_sub_u32 {sr(sT0)}, {sr(sQ0)}, 34")
        em(f"s_cmp_lt_u32 {sr(sT0)}, {2001 - 34}")
        em(f"v_cndmask_b32_e64 {vr(vS + 20)}, {vr(vT0)}, 0, vcc")
        em.flush()
        em(f"s_cbranch_scc1 L_nofix{stage}")
        em(f"v_add_u32 {vr(vT1)}, {sr(sT0)}, {vr(vG4)}")
        em(f"s_movk_i32 {sr(sT1)}, 2046")
        for t in range(5):
            for r in range(4):
                em(f"v_add_u32 v0, {16 * t + r}, {vr(vT1)}")
                em(f"v_cmp_gt_u32 vcc, {sr(sT1)}, v0")
                em(f"v_cndmask_b32 {vr(vS + 4 * t + r)}, {vr(vT0)}, {vr(vS + 4 * t + r)}, vcc")
        em.label(f"L_nofix{stage}")

    KQUADS = [vPOOL + 4 * i for i in range(8)] + [vOX + 4 * i for i in range(6)]

    def k_read(stage, idx):
        t, s = idx // 4, idx % 4
        q = KQUADS[idx % len(KQUADS)]
        return f"ds_read_b128 {vr(q, 4)}, {vr(vKA + s)} offset:{32768 * stage + 4096 * t}"

    def s_phase(em, stage):
        for s in range(4):
            em(f"v_mfma_f32_16x16x32_bf16 {vr(vS + 20, 4)}, {vr(vKG + 4 * s, 4)}, {vr(vQR + 4 * s, 4)}, {vr(vS + 20, 4)}")
        for idx in range(20):
            t, s = idx // 4, idx % 4
            q = KQUADS[idx % len(KQUADS)]
            em(f"v_mfma_f32_16x16x32_bf16 {vr(vS + 4 * t, 4)}, {vr(q, 4)}, {vr(vQR + 4 * s, 4)}, {vr(vS + 4 * t, 4)}")
            if idx + 14 < 20:
                em(k_read(stage, idx + 14))

    OACC = [vS + 12, vS + 16, vS + 20] + [vOX + 4 * i for i in range(5)]
    vL = vOX + 20

    def v_reads(stage, T):
        u, p = T // 2, T % 2
        q = vPOOL + 8 * (T % 4)
        return [f"ds_read_b64_tr_b16 {vr(q + 2 * t, 2)}, {vr(vVA + u)} offset:{32768 * stage + 4096 * t + 8 * p}" for t in range(4)]

    def v4_read(stage, T):
        u, p = T // 2, T % 2
        return f"ds_read_b64_tr_b16 {vr(vVG + 4 * T, 2)}, {vr(vVA + u)} offset:{32768 * stage + 4096 * 4 + 8 * p}"

    def softmax_ops():
        vals = [vS + i for i in range(21)]
        return vals

    def softmax(em, extra):
        vals = [vS + 20] + [vS + i for i in range(20)]
        for op in max_tree(vals, vT0):
            em(op)
        allreduce(em, "v_max_f32", vT0, vT1)
        em(f"v_mul_f32 {vr(vT0)}, {sr(sC)}, {vr(vT0)}")
        ops = []
        order = list(range(21))
        for i in order:
            ops.append(f"v_fma_f32 {vr(vS + i)}, {vr(vS + i)}, {sr(sC)}, -{vr(vT0)}")
        ex = [f"v_exp_f32 {vr(vS + i)}, {vr(vS + i)}" for i in order]
        seq = ops[:2]
        for i in range(21):
            seq.append(ex[i])
            if i + 2 < 21:
                seq.append(ops[i + 2])
            if i >= 3 and i % 2 == 1:
                k = (i - 3) // 2
                seq.append(f"v_cvt_pk_bf16_f32 {vr(vS + k)}, {vr(vS + 2 * k)}, {vr(vS + 2 * k + 1)}")
        seq.append(f"v_cvt_pk_bf16_f32 {vr(vS + 9)}, {vr(vS + 18)}, {vr(vS + 19)}")
        seq.append(f"v_cvt_pk_bf16_f32 {vr(vS + 10)}, {vr(vS + 20)}, 0")
        seq.append(f"v_mov_b32 {vr(vS + 11)}, 0")
        for op in interleave(seq, extra, 2):
            em(op)

    def pv_phase(em, stage, pre):
        if not pre:
            for T in range(4):
                for op in v_reads(stage, T):
                    em(op)
                em(v4_read(stage, T))
        for k in range(3):
            em(f"v_mfma_f32_16x16x32_bf16 {vr(vL, 4)}, {vr(vONE, 4)}, {vr(vS + 4 * k, 4)}, {'0' if k == 0 else vr(vL, 4)}")
        for T in range(8):
            q = vPOOL + 8 * (T % 4)
            o = vr(OACC[T], 4)
            em(f"v_mfma_f32_16x16x32_bf16 {o}, {vr(q, 4)}, {vr(vS, 4)}, 0")
            em(f"v_mfma_f32_16x16x32_bf16 {o}, {vr(q + 4, 4)}, {vr(vS + 4, 4)}, {o}")
            if T + 4 < 8:
                for op in v_reads(stage, T + 4):
                    em(op)
                if not pre:
                    em(v4_read(stage, T + 4))
            em(f"v_mfma_f32_16x16x32_bf16 {o}, {vr(vVG + 4 * T, 4)}, {vr(vS + 8, 4)}, {o}")

    def epilogue(em, stage):
        em(f"v_rcp_f32 {vr(vT0)}, {vr(vL)}")
        W = vPOOL
        if stage == 0:
            em(f"s_cmp_eq_u32 {sr(sQ0)}, 0")
            if O_DIRECT:
                em(f"s_cselect_b32 {sr(sEX)}, 0xfffcfffc, -1")
                em(f"s_mov_b32 {sr(sEX + 1)}, {sr(sEX)}")
            else:
                em(f"s_cselect_b32 {sr(sEX)}, 0, -1")
                em(f"s_mov_b32 {sr(sEX + 1)}, -1")
        for u in range(4):
            for p in range(2):
                o = OACC[2 * u + p]
                for r in range(4):
                    em(f"v_mul_f32 {vr(o + r)}, {vr(o + r)}, {vr(vT0)}")
                em(f"v_cvt_pk_bf16_f32 {vr(W + 4 * u + 2 * p)}, {vr(o)}, {vr(o + 1)}")
                em(f"v_cvt_pk_bf16_f32 {vr(W + 4 * u + 2 * p + 1)}, {vr(o + 2)}, {vr(o + 3)}")
            if O_DIRECT:
                if stage == 0:
                    em(f"s_mov_b64 exec, {sr(sEX, 2)}")
                em(f"buffer_store_dwordx4 {vr(W + 4 * u, 4)}, {vr(vQ)}, {sr(S_O, 4)}, {sr(sQOFF)} offen offset:{64 * u}{ST_MOD}", tag="O")
                if stage == 0:
                    em("s_mov_b64 exec, -1")
            else:
                em(f"ds_write_b128 {vr(vKA + u)}, {vr(W + 4 * u, 4)}")
        if not O_DIRECT:
            R = vPOOL + 16
            for i in range(4):
                em(f"v_add_u32 {vr(vOX + i)}, {sr(sTILE)}, {vr(vKD + i)}")
            for i in range(4):
                em(f"ds_read_b128 {vr(R + 4 * i, 4)}, {vr(vOX + i)} offset:{1024 * i}")
            for i in range(4):
                if stage == 0 and i == 0:
                    em(f"s_mov_b64 exec, {sr(sEX, 2)}")
                em(f"buffer_store_dwordx4 {vr(R + 4 * i, 4)}, {vr(vLIN)}, {sr(S_O, 4)}, {sr(sQOFF)} offen offset:{1024 * i}{ST_MOD}", tag="O")
                if stage == 0 and i == 0:
                    em("s_mov_b64 exec, -1")

    def q_load(em):
        for s in range(4):
            em(f"buffer_load_dwordx4 {vr(vQR + 4 * s, 4)}, {vr(vQ)}, {sr(S_Q, 4)}, {sr(sT1)} offen offset:{64 * s}{Q_NT}", tag="Q")

    if not NOCOMP:
        s_init(m, 0)
    m.wait_vm_tag("K")
    m("s_barrier")
    stamp(m, 1)
    if not NOCOMP:
        for idx in range(14):
            m(k_read(0, idx))
        s_phase(m, 0)
    else:
        m.wait_vm_tag("Q")
        for i in range(16):
            m(f"v_mov_b32 {vr(vPOOL + i)}, {vr(vQR + i)}")
    m(f"s_add_u32 {sr(sT1)}, {sr(sQOFF)}, 32768")
    q_load(m)
    stamp(m, 2)
    if not NOCOMP:
        softmax(m, [])
    m.wait_vm_tag("V")
    m("s_barrier")
    stamp(m, 3)

    def nocomp_store(em, stage):
        W = vPOOL
        if O_DIRECT:
            for u in range(4):
                em(f"buffer_store_dwordx4 {vr(W + 4 * u, 4)}, {vr(vQ)}, {sr(S_O, 4)}, {sr(sQOFF)} offen offset:{64 * u}{ST_MOD}", tag="O")
        else:
            for i in range(4):
                em(f"buffer_store_dwordx4 {vr(W + 4 * i, 4)}, {vr(vLIN)}, {sr(S_O, 4)}, {sr(sQOFF)} offen offset:{1024 * i}{ST_MOD}", tag="O")

    if not NOCOMP:
        pv_phase(m, 0, False)
        epilogue(m, 0)
    else:
        nocomp_store(m, 0)
    stamp(m, 4)
    m(f"s_add_u32 {sr(sQOFF)}, {sr(sQOFF)}, 32768")
    m(f"s_add_u32 {sr(sQ0)}, {sr(sQ0)}, 128")
    if not NOCOMP:
        s_init(m, 1)
        for idx in range(14):
            m(k_read(1, idx))
        m.wait_vm_tag("Q")
        stamp(m, 5)
        s_phase(m, 1)
        ex = []
        for T in range(4):
            ex += v_reads(1, T)
        ex += [v4_read(1, T) for T in range(8)]
        softmax(m, ex)
        pv_phase(m, 1, True)
        epilogue(m, 1)
    else:
        m.wait_vm_tag("Q")
        stamp(m, 5)
        for i in range(16):
            m(f"v_mov_b32 {vr(vPOOL + 16 + i)}, {vr(vQR + i)}")
        vsave = vPOOL
        W = vPOOL + 16
        if O_DIRECT:
            for u in range(4):
                m(f"buffer_store_dwordx4 {vr(W + 4 * u, 4)}, {vr(vQ)}, {sr(S_O, 4)}, {sr(sQOFF)} offen offset:{64 * u}{ST_MOD}", tag="O")
        else:
            for i in range(4):
                m(f"buffer_store_dwordx4 {vr(W + 4 * i, 4)}, {vr(vLIN)}, {sr(S_O, 4)}, {sr(sQOFF)} offen offset:{1024 * i}{ST_MOD}", tag="O")

    def dump_stamps(em, n):
        if not STAMP:
            return
        stamp(em, n - 2)
        em.wait_vm_all()
        stamp(em, n - 1)
        em("s_waitcnt lgkmcnt(0)")
        em(f"s_mul_i32 {sr(sT0)}, s2, 10")
        em(f"s_add_u32 {sr(sT0)}, {sr(sT0)}, {sr(sWAVE)}")
        em(f"s_lshl_b32 {sr(sT0)}, {sr(sT0)}, 6")
        em(f"s_add_u32 {sr(sT0)}, {sr(sT0)}, {0x800000}")
        for i in range(8):
            em(f"v_mov_b32 {vr(vPOOL + i)}, {sr(sTS + 2 * i)}")
        em("v_mov_b32 v0, 0")
        em("s_mov_b64 exec, 1")
        em(f"buffer_store_dwordx4 {vr(vPOOL, 4)}, v0, {sr(S_WS, 4)}, {sr(sT0)} offen")
        em(f"buffer_store_dwordx4 {vr(vPOOL + 4, 4)}, v0, {sr(S_WS, 4)}, {sr(sT0)} offen offset:16")

    dump_stamps(m, 8)
    m("s_endpgm")

    h = e.fork()
    h.raw("L_helper:")
    hS, hO, hPOOL = 56, 88, 124
    hL = hO + 32
    for i in range(16):
        h(f"v_mov_b32 {vr(vQR + i)}, 0")
    h("s_mov_b32 exec_lo, 0x00030003")
    h("s_mov_b32 exec_hi, 0x00030003")
    for s in range(4):
        h(f"buffer_load_dwordx4 {vr(vQR + 4 * s, 4)}, {vr(vQ)}, {sr(S_Q, 4)}, {sr(sHEADOFF)} offen offset:{64 * s}", tag="K")
    h("s_mov_b64 exec, -1")
    v_dma(h)
    h(f"s_lshl_b32 {sr(sTILE)}, {sr(sWAVE)}, 15")
    h(f"s_sub_u32 {sr(sTILE)}, {sr(sTILE)}, {8 * 32768 - 8192}")
    lds_addrs(h)
    h(f"s_lshl_b32 {sr(sREC)}, {sr(sHEAD)}, 4")
    h(f"s_lshl_b32 {sr(sT0)}, {sr(sCHUNK)}, 1")
    h(f"s_add_u32 {sr(sREC)}, {sr(sREC)}, {sr(sT0)}")
    h(f"s_add_u32 {sr(sREC)}, {sr(sREC)}, {sr(sWAVE)}")
    h(f"s_sub_u32 {sr(sREC)}, {sr(sREC)}, 8")
    h(f"s_lshl_b32 {sr(sREC)}, {sr(sREC)}, 11")
    h(f"v_lshlrev_b32 {vr(vA)}, 5, {vr(vT1)}")
    h(f"v_lshl_add_u32 {vr(vA)}, {vr(vT0)}, 9, {vr(vA)}")
    h(f"v_lshlrev_b32 {vr(vLIN)}, 3, {vr(vT0)}")
    h.wait_vm_tag("K")
    h("s_barrier")
    stamp(h, 1)
    HQ = [hPOOL + 4 * i for i in range(11)]
    if not NOCOMP:
        def hk(idx):
            t, s = idx // 4, idx % 4
            return f"ds_read_b128 {vr(HQ[idx % 11], 4)}, {vr(vKA + s)} offset:{4096 * t}"
        for idx in range(11):
            h(hk(idx))
        for idx in range(32):
            t, s = idx // 4, idx % 4
            h(f"v_mfma_f32_16x16x32_bf16 {vr(hS + 4 * t, 4)}, {vr(HQ[idx % 11], 4)}, {vr(vQR + 4 * s, 4)}, {'0' if s == 0 else vr(hS + 4 * t, 4)}")
            if idx + 11 < 32:
                h(hk(idx + 11))
        for op in max_tree([hS + i for i in range(32)], vT0):
            h(op)
        allreduce(h, "v_max_f32", vT0, vT1)
        h(f"v_mul_f32 {vr(vT0)}, {sr(sC)}, {vr(vT0)}")
        for i in range(32):
            h(f"v_fma_f32 {vr(hS + i)}, {vr(hS + i)}, {sr(sC)}, -{vr(vT0)}")
        for i in range(32):
            h(f"v_exp_f32 {vr(hS + i)}, {vr(hS + i)}")
        for k in range(16):
            h(f"v_cvt_pk_bf16_f32 {vr(hS + k)}, {vr(hS + 2 * k)}, {vr(hS + 2 * k + 1)}")
        for k in range(4):
            h(f"v_mfma_f32_16x16x32_bf16 {vr(hL, 4)}, {vr(vONE, 4)}, {vr(hS + 4 * k, 4)}, {'0' if k == 0 else vr(hL, 4)}")
    stamp(h, 2)
    h.wait_vm_tag("V")
    h("s_barrier")
    stamp(h, 3)
    if not NOCOMP:
        HV = HQ + [hS + 16 + 4 * i for i in range(4)]

        def hv(idx):
            T, k = idx // 4, idx % 4
            u, p = T // 2, T % 2
            q = HV[idx % 15]
            return [f"ds_read_b64_tr_b16 {vr(q + 2 * j, 2)}, {vr(vVA + u)} offset:{4096 * (2 * k + j) + 8 * p}" for j in range(2)]
        for idx in range(7):
            for op in hv(idx):
                h(op)
        for idx in range(32):
            T, k = idx // 4, idx % 4
            o = vr(hO + 4 * T, 4)
            if idx + 7 < 32:
                for op in hv(idx + 7):
                    h(op)
            h(f"v_mfma_f32_16x16x32_bf16 {o}, {vr(HV[idx % 15], 4)}, {vr(hS + 4 * k, 4)}, {'0' if k == 0 else o}")
        h(f"v_mov_b32 {vr(vT1)}, {vr(hL)}")
        h("s_mov_b32 exec_lo, 0x00030003")
        h("s_mov_b32 exec_hi, 0x00030003")
        for T in range(8):
            h(f"buffer_store_dwordx4 {vr(hO + 4 * T, 4)}, {vr(vA)}, {sr(S_WS, 4)}, {sr(sREC)} offen offset:{128 * (T // 2) + 16 * (T % 2)} sc1", tag="P")
        h("s_mov_b64 exec, 3")
        h(f"buffer_store_dwordx2 {vr(vT0, 2)}, {vr(vLIN)}, {sr(S_WS, 4)}, {sr(sREC)} offen offset:1024 sc1", tag="P")
        h("s_mov_b64 exec, 1")
        h(f"s_lshl_b32 {sr(sT0)}, {sr(sHEAD)}, 2")
        h("v_mov_b32 v0, 1")
        h.wait_vm_all()
        stamp(h, 4)
        h(f"buffer_atomic_add v0, off, {sr(S_DBG, 4)}, {sr(sT0)} sc0")
        h(f"v_readfirstlane_b32 {sr(sT1)}, v0")
        h("s_mov_b64 exec, -1")
        stamp(h, 5)
        h(f"s_cmp_eq_u32 {sr(sT1)}, 15")
        h.flush()
        h("s_cbranch_scc0 L_hdone")
        h("v_mbcnt_lo_u32_b32 v0, -1, 0")
        h("v_mbcnt_hi_u32_b32 v0, -1, v0")
        h(f"v_lshlrev_b32 {vr(vA)}, 4, v0")
        h(f"v_lshrrev_b32 {vr(vLIN)}, 5, v0")
        h(f"v_lshlrev_b32 {vr(vLIN)}, 3, {vr(vLIN)}")
        h(f"s_lshl_b32 {sr(sREC)}, {sr(sHEAD)}, 15")
        cO, cS = 56, 120
        for i in range(16):
            if i % 2 == 0 and i:
                h(f"s_add_u32 {sr(sREC)}, {sr(sREC)}, 4096")
            h(f"buffer_load_dwordx2 {vr(cS + 2 * i, 2)}, {vr(vLIN)}, {sr(S_WS, 4)}, {sr(sREC)} offen offset:{2048 * (i % 2) + 1024} sc1")
            h(f"buffer_load_dwordx4 {vr(cO + 4 * i, 4)}, {vr(vA)}, {sr(S_WS, 4)}, {sr(sREC)} offen offset:{2048 * (i % 2)} sc1")
        h.wait_vm_all()
        for op in max_tree([cS + 2 * i for i in range(16)], vT0):
            h(op)
        for i in range(16):
            h(f"v_sub_f32 {vr(cS + 2 * i)}, {vr(cS + 2 * i)}, {vr(vT0)}")
        for i in range(16):
            h(f"v_exp_f32 {vr(cS + 2 * i)}, {vr(cS + 2 * i)}")
        h(f"v_mul_f32 {vr(vT1)}, {vr(cS)}, {vr(cS + 1)}")
        for r in range(4):
            h(f"v_mul_f32 {vr(vKA + r)}, {vr(cS)}, {vr(cO + r)}")
        for i in range(1, 16):
            h(f"v_fmac_f32 {vr(vT1)}, {vr(cS + 2 * i)}, {vr(cS + 2 * i + 1)}")
            for r in range(4):
                h(f"v_fmac_f32 {vr(vKA + r)}, {vr(cS + 2 * i)}, {vr(cO + 4 * i + r)}")
        h(f"v_rcp_f32 {vr(vT1)}, {vr(vT1)}")
        for r in range(4):
            h(f"v_mul_f32 {vr(vKA + r)}, {vr(vKA + r)}, {vr(vT1)}")
        h(f"v_cvt_pk_bf16_f32 {vr(vVA)}, {vr(vKA)}, {vr(vKA + 1)}")
        h(f"v_cvt_pk_bf16_f32 {vr(vVA + 1)}, {vr(vKA + 2)}, {vr(vKA + 3)}")
        h(f"v_lshlrev_b32 v0, 3, v0")
        h(f"buffer_store_dwordx2 {vr(vVA, 2)}, v0, {sr(S_O, 4)}, {sr(sHEADOFF)} offen")
        h.label("L_hdone")
    dump_stamps(h, 8)
    h.raw("L_end:")
    h("s_endpgm")

    tail = f""".section .rodata,"a"
.p2align 6
.amdhsa_kernel {NAME}_kernel
  .amdhsa_next_free_vgpr 168
  .amdhsa_next_free_sgpr 96
  .amdhsa_accum_offset 168
  .amdhsa_group_segment_fixed_size 0
  .amdhsa_kernarg_size 64
  .amdhsa_user_sgpr_count 2
  .amdhsa_user_sgpr_kernarg_segment_ptr 1
  .amdhsa_system_sgpr_workgroup_id_x 1
.end_amdhsa_kernel
"""
    return e.text() + m.text() + h.text() + tail


if __name__ == "__main__":
    out = sys.argv[1]
    opt = {}
    for a in sys.argv[2:]:
        k, _, v = a.partition("=")
        opt[k] = v if v else True
        if k == "st_mod":
            opt[k] = " " + v.replace("+", " ")
    open(out, "w").write(gen(opt))
```

```python
import sys
import math
import struct
from asmgen import Emitter, vr, sr, interleave

NAME = "standalone__global_local_windowed_global_tokens__prompt"

HEADER = """; Kernarg layout for this problem (64 bytes, ptrs only, base s[0:1]):
"""


def f32bits(x):
    return struct.unpack("<I", struct.pack("<f", x))[0]


def gen(opt):
    O_DIRECT = opt.get("o_direct", False)
    LD_NT = " nt" if opt.get("ld_nt", False) else ""
    Q_NT = " nt" if opt.get("q_nt", False) else ""
    ST_MOD = opt.get("st_mod", "")
    NOCOMP = opt.get("nocomp", False)
    STAMP = opt.get("stamp", False) or opt.get("dbgstamp", False)
    DBGSTAMP = opt.get("dbgstamp", False)

    TENSOR_BYTES = 32 * 2048 * 256
    VBASE = 81920
    NEG = f32bits(-1.0e30)
    CSCALE = f32bits((128 ** -0.5) * math.log2(math.e))

    S_Q, S_K, S_V, S_O, S_DBG, S_WS = 20, 24, 28, 32, 36, 40
    sWAVE, sHEADOFF, sROW0, sTILE, sT0, sT1 = 44, 45, 46, 47, 48, 49
    sQOFF, sC, sNEG, sQ0, sHEAD, sCHUNK = 50, 51, 52, 53, 54, 55
    sEX = 56
    sREC = 58
    sTS = 60

    vLIN, vKD, vVD, vQ, vKA, vVA, vA, vG4, vT0, vT1, vONE = 1, 2, 6, 7, 8, 12, 16, 17, 18, 19, 20
    vKG, vQR, vS, vOX, vVG, vPOOL = 24, 40, 56, 80, 104, 136

    e = Emitter()

    def stamp(em, i):
        if STAMP:
            em(f"s_memrealtime {sr(sTS + 2 * i, 2)}")

    e.raw(HEADER + "; @launch grid=(256,1,1) block=(640,1,1) lds=163840")
    e.raw('.amdgcn_target "amdgcn-amd-amdhsa--gfx950"')
    e.raw(".text")
    e.raw(f".globl {NAME}_kernel")
    e.raw(".p2align 8")
    e.raw(f".type {NAME}_kernel,@function")
    e.raw(f"{NAME}_kernel:")
    e("s_cmp_ge_u32 s2, 256")
    e("s_cbranch_scc1 L_end")
    e("s_load_dwordx4 s[4:7], s[0:1], 0")
    e("s_load_dwordx2 s[8:9], s[0:1], 16")
    e("s_load_dwordx4 s[12:15], s[0:1], 40")
    e("s_load_dwordx2 s[16:17], s[0:1], 56")
    stamp(e, 0)
    if STAMP:
        e("s_memtime s[76:77]")
    e(f"v_lshrrev_b32 {vr(vLIN)}, 6, v0")
    e(f"v_and_b32 {vr(vT0)}, 15, v0")
    e(f"v_readfirstlane_b32 {sr(sWAVE)}, {vr(vLIN)}")
    e(f"v_bfe_u32 {vr(vT1)}, v0, 4, 2")
    e(f"s_and_b32 {sr(sT0)}, s2, 7")
    e(f"s_lshl_b32 {sr(sT0)}, {sr(sT0)}, 2")
    e(f"s_lshr_b32 {sr(sT1)}, s2, 6")
    e(f"s_add_u32 {sr(sHEAD)}, {sr(sT0)}, {sr(sT1)}")
    e(f"s_bfe_u32 {sr(sCHUNK)}, s2, 0x30003")
    e(f"s_lshl_b32 {sr(sHEADOFF)}, {sr(sHEAD)}, 19")
    e(f"s_lshl_b32 {sr(sT0)}, {sr(sCHUNK)}, 16")
    e(f"s_add_u32 {sr(sROW0)}, {sr(sHEADOFF)}, {sr(sT0)}")
    e(f"v_lshlrev_b32 {vr(vG4)}, 2, {vr(vT1)}")
    e(f"v_lshlrev_b32 v0, 8, {vr(vT1)}")
    for j in range(4):
        e(f"v_add_u32 {vr(vKD + j)}, {4 * j}, {vr(vT1)}")
        e(f"v_xor_b32 {vr(vKD + j)}, {vr(vKD + j)}, {vr(vT0)}")
        e(f"v_lshl_add_u32 {vr(vKD + j)}, {vr(vKD + j)}, 4, v0")
    e(f"v_xor_b32 {vr(vVD)}, {vr(vG4)}, {vr(vT0)}")
    e(f"v_lshl_add_u32 {vr(vVD)}, {vr(vVD)}, 4, v0")
    e(f"s_lshl_b32 {sr(sT0)}, {sr(sWAVE)}, 12")
    e(f"s_add_u32 {sr(sT1)}, {sr(sROW0)}, {sr(sT0)}")
    e(f"s_sub_u32 {sr(sT1)}, {sr(sT1)}, 8192")
    e(f"s_add_u32 s3, {sr(sT1)}, 40960")
    e(f"s_max_i32 {sr(sT1)}, {sr(sT1)}, 0")
    e(f"s_min_i32 s3, s3, {TENSOR_BYTES - 4096}")
    e(f"s_mov_b32 m0, {sr(sT0)}")
    e(f"s_mov_b32 {sr(S_K + 2)}, {TENSOR_BYTES}")
    e(f"s_mov_b32 {sr(S_K + 3)}, 0x20000")
    e(f"s_mov_b32 {sr(S_V + 2)}, {TENSOR_BYTES}")
    e(f"s_mov_b32 {sr(S_V + 3)}, 0x20000")
    e(f"s_mov_b32 {sr(S_Q + 2)}, {TENSOR_BYTES}")
    e(f"s_mov_b32 {sr(S_Q + 3)}, 0x20000")
    e("s_waitcnt lgkmcnt(0)")
    e(f"s_mov_b32 {sr(S_K)}, s6")
    e(f"s_mov_b32 {sr(S_K + 1)}, s7")
    for j in range(4):
        e(f"buffer_load_dwordx4 {vr(vKD + j)}, {sr(S_K, 4)}, {sr(sT1)} offen offset:{1024 * j}{LD_NT} lds", tag="K")
    e(f"s_add_u32 m0, {sr(sT0)}, 40960")
    e(f"s_mov_b32 {sr(S_V)}, s8")
    for j in range(4):
        e(f"buffer_load_dwordx4 {vr(vKD + j)}, {sr(S_K, 4)}, s3 offen offset:{1024 * j}{LD_NT} lds", tag="K")
    e(f"s_mov_b32 {sr(S_V + 1)}, s9")
    e(f"s_mov_b32 {sr(S_Q)}, s4")
    e(f"s_mov_b32 {sr(S_Q + 1)}, s5")
    e(f"s_mov_b32 {sr(S_O)}, s12")
    e(f"s_mov_b32 {sr(S_O + 1)}, s13")
    e(f"s_mov_b32 {sr(S_O + 2)}, {TENSOR_BYTES}")
    e(f"s_mov_b32 {sr(S_O + 3)}, 0x20000")
    e(f"s_mov_b32 {sr(S_DBG)}, s14")
    e(f"s_mov_b32 {sr(S_DBG + 1)}, s15")
    e(f"s_mov_b32 {sr(S_DBG + 2)}, 256")
    e(f"s_mov_b32 {sr(S_DBG + 3)}, 0x20000")
    e(f"s_mov_b32 {sr(S_WS)}, s16")
    e(f"s_mov_b32 {sr(S_WS + 1)}, s17")
    e(f"s_mov_b32 {sr(S_WS + 2)}, {0x1000000}")
    e(f"s_mov_b32 {sr(S_WS + 3)}, 0x20000")
    e(f"s_mov_b32 {sr(sC)}, {CSCALE:#x}")
    e(f"s_mov_b32 {sr(sNEG)}, {NEG:#x}")
    e(f"v_lshlrev_b32 {vr(vQ)}, 4, {vr(vT1)}")
    e(f"v_lshl_add_u32 {vr(vQ)}, {vr(vT0)}, 8, {vr(vQ)}")
    e(f"s_cmp_ge_u32 {sr(sWAVE)}, 8")
    e.flush()
    e("s_cbranch_scc1 L_helper")

    def v_dma(em):
        em(f"s_add_u32 m0, {sr(sT0)}, {VBASE}")
        for j in range(4):
            em(f"buffer_load_dwordx4 {vr(vVD)}, {sr(S_V, 4)}, {sr(sT1)} offen offset:{1024 * j}{LD_NT} lds", tag="V")
        em(f"s_add_u32 m0, {sr(sT0)}, {VBASE + 40960}")
        for j in range(4):
            em(f"buffer_load_dwordx4 {vr(vVD)}, {sr(S_V, 4)}, s3 offen offset:{1024 * j}{LD_NT} lds", tag="V")

    def lds_addrs(em):
        em(f"v_xor_b32 {vr(vKA)}, {vr(vT0)}, {vr(vT1)}")
        em(f"v_lshlrev_b32 {vr(vKA)}, 4, {vr(vKA)}")
        em(f"v_lshl_add_u32 {vr(vKA)}, {vr(vT0)}, 8, {vr(vKA)}")
        em(f"v_add_u32 {vr(vKA)}, {sr(sTILE)}, {vr(vKA)}")
        for s in range(1, 4):
            em(f"v_xor_b32 {vr(vKA + s)}, {64 * s}, {vr(vKA)}")
        em(f"v_lshrrev_b32 {vr(vVA + 1)}, 2, {vr(vT0)}")
        em(f"v_add_u32 {vr(vVA)}, {vr(vG4)}, {vr(vVA + 1)}")
        em(f"v_lshlrev_b32 {vr(vVA)}, 8, {vr(vVA)}")
        em(f"v_lshl_add_u32 {vr(vVA)}, {vr(vT0)}, 4, {vr(vVA)}")
        em(f"s_add_u32 {sr(sT0)}, {sr(sTILE)}, {VBASE}")
        em(f"v_add_u32 {vr(vVA)}, {sr(sT0)}, {vr(vVA)}")
        for u in range(1, 4):
            em(f"v_xor_b32 {vr(vVA + u)}, {64 * u}, {vr(vVA)}")
        for i in range(4):
            em(f"v_mov_b32 {vr(vONE + i)}, 0x3f803f80")

    def allreduce(em, op, x, y):
        em(f"v_mov_b32 {vr(y)}, {vr(x)}")
        em(f"v_permlane32_swap_b32 {vr(x)}, {vr(y)}")
        em(f"{op} {vr(x)}, {vr(x)}, {vr(y)}")
        em(f"v_mov_b32 {vr(y)}, {vr(x)}")
        em(f"v_permlane16_swap_b32 {vr(x)}, {vr(y)}")
        em(f"{op} {vr(x)}, {vr(x)}, {vr(y)}")

    def max_tree(vals, dst):
        ops = []
        vals = list(vals)
        ops.append(f"v_max3_f32 {vr(dst)}, {vr(vals[0])}, {vr(vals[1])}, {vr(vals[2])}")
        i = 3
        while i + 1 < len(vals):
            ops.append(f"v_max3_f32 {vr(dst)}, {vr(dst)}, {vr(vals[i])}, {vr(vals[i + 1])}")
            i += 2
        if i < len(vals):
            ops.append(f"v_max_f32 {vr(dst)}, {vr(dst)}, {vr(vals[i])}")
        return ops

    m = e.fork()
    for i in range(16):
        m(f"v_mov_b32 {vr(vKG + i)}, 0")
    m(f"v_lshrrev_b32 v0, 2, {vr(vT0)}")
    m(f"v_lshlrev_b32 v0, 8, v0")
    m(f"v_lshl_add_u32 v0, {vr(vT1)}, 4, v0")
    m(f"s_lshl_b32 {sr(sTILE)}, {sr(sWAVE)}, 12")
    m(f"s_add_u32 {sr(sQOFF)}, {sr(sROW0)}, {sr(sTILE)}")
    m("s_mov_b32 exec_lo, 0x00110011")
    m("s_mov_b32 exec_hi, 0x00110011")
    for s in range(4):
        m(f"buffer_load_dwordx4 {vr(vKG + 4 * s, 4)}, v0, {sr(S_K, 4)}, {sr(sHEADOFF)} offen offset:{64 * s}", tag="K")
    m("s_mov_b64 exec, -1")
    for s in range(4):
        m(f"buffer_load_dwordx4 {vr(vQR + 4 * s, 4)}, {vr(vQ)}, {sr(S_Q, 4)}, {sr(sQOFF)} offen offset:{64 * s}{Q_NT}", tag="Q")
    v_dma(m)
    for T in range(8):
        m(f"v_mov_b32 {vr(vVG + 4 * T + 2)}, 0")
        m(f"v_mov_b32 {vr(vVG + 4 * T + 3)}, 0")
    m(f"v_lshrrev_b32 v0, 2, {vr(vT0)}")
    m(f"v_lshlrev_b32 v0, 4, v0")
    m(f"v_and_b32 {vr(vVD)}, 3, {vr(vT0)}")
    m(f"v_lshl_add_u32 v0, {vr(vVD)}, 1, v0")
    m(f"v_lshl_add_u32 v0, {vr(vT1)}, 8, v0")
    m("s_mov_b32 exec_hi, 0")
    for T in range(8):
        m(f"buffer_load_ushort {vr(vVG + 4 * T + 2)}, v0, {sr(S_V, 4)}, {sr(sHEADOFF)} offen offset:{64 * (T // 2) + 8 * (T % 2)}", tag="V")
    m("s_mov_b64 exec, -1")
    lds_addrs(m)
    m(f"v_sub_u32 {vr(vA)}, {vr(vG4)}, {vr(vT0)}")
    m(f"v_lshlrev_b32 {vr(vLIN)}, 4, {vr(vT0)}")
    m(f"v_lshl_add_u32 {vr(vLIN)}, {vr(vT1)}, 8, {vr(vLIN)}")
    m(f"s_lshl_b32 {sr(sQ0)}, {sr(sCHUNK)}, 8")
    m(f"s_lshl_b32 {sr(sT0)}, {sr(sWAVE)}, 4")
    m(f"s_add_u32 {sr(sQ0)}, {sr(sQ0)}, {sr(sT0)}")

    def s_init(em, stage):
        em(f"v_mov_b32 {vr(vT0)}, {sr(sNEG)}")
        for r in range(4):
            em(f"v_cmp_le_i32 vcc, {-r}, {vr(vA)}")
            em(f"v_mov_b32 {vr(vS + 4 + r)}, 0")
            em(f"v_mov_b32 {vr(vS + 8 + r)}, 0")
            em(f"v_cndmask_b32 {vr(vS + r)}, {vr(vT0)}, 0, vcc" if False else f"v_cndmask_b32_e64 {vr(vS + r)}, {vr(vT0)}, 0, vcc")
        for r in range(4):
            em(f"v_cmp_ge_i32 vcc, {-r}, {vr(vA)}")
            em(f"v_mov_b32 {vr(vS + 12 + r)}, 0")
            em(f"v_mov_b32 {vr(vS + 20 + r)}, 0")
            em(f"v_cndmask_b32_e64 {vr(vS + 16 + r)}, {vr(vT0)}, 0, vcc")
        em(f"v_cmp_gt_u32 vcc, 8, {vr(vG4)}")
        em(f"s_sub_u32 {sr(sT0)}, {sr(sQ0)}, 34")
        em(f"s_cmp_lt_u32 {sr(sT0)}, {2001 - 34}")
        em(f"v_cndmask_b32_e64 {vr(vS + 20)}, {vr(vT0)}, 0, vcc")
        em.flush()
        em(f"s_cbranch_scc1 L_nofix{stage}")
        em(f"v_add_u32 {vr(vT1)}, {sr(sT0)}, {vr(vG4)}")
        em(f"s_movk_i32 {sr(sT1)}, 2046")
        for t in range(5):
            for r in range(4):
                em(f"v_add_u32 v0, {16 * t + r}, {vr(vT1)}")
                em(f"v_cmp_gt_u32 vcc, {sr(sT1)}, v0")
                em(f"v_cndmask_b32 {vr(vS + 4 * t + r)}, {vr(vT0)}, {vr(vS + 4 * t + r)}, vcc")
        em.label(f"L_nofix{stage}")

    KQUADS = [vPOOL + 4 * i for i in range(8)] + [vOX + 4 * i for i in range(6)]

    def k_read(stage, idx):
        t, s = idx // 4, idx % 4
        q = KQUADS[idx % len(KQUADS)]
        return f"ds_read_b128 {vr(q, 4)}, {vr(vKA + s)} offset:{32768 * stage + 4096 * t}"

    def s_phase(em, stage):
        for s in range(4):
            em(f"v_mfma_f32_16x16x32_bf16 {vr(vS + 20, 4)}, {vr(vKG + 4 * s, 4)}, {vr(vQR + 4 * s, 4)}, {vr(vS + 20, 4)}")
        for idx in range(20):
            t, s = idx // 4, idx % 4
            q = KQUADS[idx % len(KQUADS)]
            em(f"v_mfma_f32_16x16x32_bf16 {vr(vS + 4 * t, 4)}, {vr(q, 4)}, {vr(vQR + 4 * s, 4)}, {vr(vS + 4 * t, 4)}")
            if idx + 14 < 20:
                em(k_read(stage, idx + 14))

    OACC = [vS + 12, vS + 16, vS + 20] + [vOX + 4 * i for i in range(5)]
    vL = vOX + 20

    def v_reads(stage, T):
        u, p = T // 2, T % 2
        q = vPOOL + 8 * (T % 4)
        return [f"ds_read_b64_tr_b16 {vr(q + 2 * t, 2)}, {vr(vVA + u)} offset:{32768 * stage + 4096 * t + 8 * p}" for t in range(4)]

    def v4_read(stage, T):
        u, p = T // 2, T % 2
        return f"ds_read_b64_tr_b16 {vr(vVG + 4 * T, 2)}, {vr(vVA + u)} offset:{32768 * stage + 4096 * 4 + 8 * p}"

    def softmax_ops():
        vals = [vS + i for i in range(21)]
        return vals

    def softmax(em, extra):
        vals = [vS + 20] + [vS + i for i in range(20)]
        for op in max_tree(vals, vT0):
            em(op)
        allreduce(em, "v_max_f32", vT0, vT1)
        em(f"v_mul_f32 {vr(vT0)}, {sr(sC)}, {vr(vT0)}")
        ops = []
        order = list(range(21))
        for i in order:
            ops.append(f"v_fma_f32 {vr(vS + i)}, {vr(vS + i)}, {sr(sC)}, -{vr(vT0)}")
        ex = [f"v_exp_f32 {vr(vS + i)}, {vr(vS + i)}" for i in order]
        seq = ops[:2]
        for i in range(21):
            seq.append(ex[i])
            if i + 2 < 21:
                seq.append(ops[i + 2])
            if i >= 3 and i % 2 == 1:
                k = (i - 3) // 2
                seq.append(f"v_cvt_pk_bf16_f32 {vr(vS + k)}, {vr(vS + 2 * k)}, {vr(vS + 2 * k + 1)}")
        seq.append(f"v_cvt_pk_bf16_f32 {vr(vS + 9)}, {vr(vS + 18)}, {vr(vS + 19)}")
        seq.append(f"v_cvt_pk_bf16_f32 {vr(vS + 10)}, {vr(vS + 20)}, 0")
        seq.append(f"v_mov_b32 {vr(vS + 11)}, 0")
        for op in interleave(seq, extra, 2):
            em(op)

    def pv_phase(em, stage, pre):
        if not pre:
            for T in range(4):
                for op in v_reads(stage, T):
                    em(op)
                em(v4_read(stage, T))
        for k in range(3):
            em(f"v_mfma_f32_16x16x32_bf16 {vr(vL, 4)}, {vr(vONE, 4)}, {vr(vS + 4 * k, 4)}, {'0' if k == 0 else vr(vL, 4)}")
        for T in range(8):
            q = vPOOL + 8 * (T % 4)
            o = vr(OACC[T], 4)
            em(f"v_mfma_f32_16x16x32_bf16 {o}, {vr(q, 4)}, {vr(vS, 4)}, 0")
            em(f"v_mfma_f32_16x16x32_bf16 {o}, {vr(q + 4, 4)}, {vr(vS + 4, 4)}, {o}")
            if T + 4 < 8:
                for op in v_reads(stage, T + 4):
                    em(op)
                if not pre:
                    em(v4_read(stage, T + 4))
            em(f"v_mfma_f32_16x16x32_bf16 {o}, {vr(vVG + 4 * T, 4)}, {vr(vS + 8, 4)}, {o}")

    def epilogue(em, stage):
        em(f"v_rcp_f32 {vr(vT0)}, {vr(vL)}")
        W = vPOOL
        if stage == 0:
            em(f"s_cmp_eq_u32 {sr(sQ0)}, 0")
            if O_DIRECT:
                em(f"s_cselect_b32 {sr(sEX)}, 0xfffcfffc, -1")
                em(f"s_mov_b32 {sr(sEX + 1)}, {sr(sEX)}")
            else:
                em(f"s_cselect_b32 {sr(sEX)}, 0, -1")
                em(f"s_mov_b32 {sr(sEX + 1)}, -1")
        for u in range(4):
            for p in range(2):
                o = OACC[2 * u + p]
                for r in range(4):
                    em(f"v_mul_f32 {vr(o + r)}, {vr(o + r)}, {vr(vT0)}")
                em(f"v_cvt_pk_bf16_f32 {vr(W + 4 * u + 2 * p)}, {vr(o)}, {vr(o + 1)}")
                em(f"v_cvt_pk_bf16_f32 {vr(W + 4 * u + 2 * p + 1)}, {vr(o + 2)}, {vr(o + 3)}")
            if O_DIRECT:
                if stage == 0:
                    em(f"s_mov_b64 exec, {sr(sEX, 2)}")
                em(f"buffer_store_dwordx4 {vr(W + 4 * u, 4)}, {vr(vQ)}, {sr(S_O, 4)}, {sr(sQOFF)} offen offset:{64 * u}{ST_MOD}", tag="O")
                if stage == 0:
                    em("s_mov_b64 exec, -1")
            else:
                em(f"ds_write_b128 {vr(vKA + u)}, {vr(W + 4 * u, 4)}")
        if not O_DIRECT:
            R = vPOOL + 16
            for i in range(4):
                em(f"v_add_u32 {vr(vOX + i)}, {sr(sTILE)}, {vr(vKD + i)}")
            for i in range(4):
                em(f"ds_read_b128 {vr(R + 4 * i, 4)}, {vr(vOX + i)} offset:{1024 * i}")
            for i in range(4):
                if stage == 0 and i == 0:
                    em(f"s_mov_b64 exec, {sr(sEX, 2)}")
                em(f"buffer_store_dwordx4 {vr(R + 4 * i, 4)}, {vr(vLIN)}, {sr(S_O, 4)}, {sr(sQOFF)} offen offset:{1024 * i}{ST_MOD}", tag="O")
                if stage == 0 and i == 0:
                    em("s_mov_b64 exec, -1")

    def q_load(em):
        for s in range(4):
            em(f"buffer_load_dwordx4 {vr(vQR + 4 * s, 4)}, {vr(vQ)}, {sr(S_Q, 4)}, {sr(sT1)} offen offset:{64 * s}{Q_NT}", tag="Q")

    if not NOCOMP:
        s_init(m, 0)
    m.wait_vm_tag("K")
    m("s_barrier")
    stamp(m, 1)
    if not NOCOMP:
        for idx in range(14):
            m(k_read(0, idx))
        s_phase(m, 0)
    else:
        m.wait_vm_tag("Q")
        for i in range(16):
            m(f"v_mov_b32 {vr(vPOOL + i)}, {vr(vQR + i)}")
    m(f"s_add_u32 {sr(sT1)}, {sr(sQOFF)}, 32768")
    q_load(m)
    stamp(m, 2)
    if not NOCOMP:
        softmax(m, [])
    m.wait_vm_tag("V")
    m("s_barrier")
    stamp(m, 3)

    def nocomp_store(em, stage):
        W = vPOOL
        if O_DIRECT:
            for u in range(4):
                em(f"buffer_store_dwordx4 {vr(W + 4 * u, 4)}, {vr(vQ)}, {sr(S_O, 4)}, {sr(sQOFF)} offen offset:{64 * u}{ST_MOD}", tag="O")
        else:
            for i in range(4):
                em(f"buffer_store_dwordx4 {vr(W + 4 * i, 4)}, {vr(vLIN)}, {sr(S_O, 4)}, {sr(sQOFF)} offen offset:{1024 * i}{ST_MOD}", tag="O")

    if not NOCOMP:
        pv_phase(m, 0, False)
        epilogue(m, 0)
    else:
        nocomp_store(m, 0)
    stamp(m, 4)
    m(f"s_add_u32 {sr(sQOFF)}, {sr(sQOFF)}, 32768")
    m(f"s_add_u32 {sr(sQ0)}, {sr(sQ0)}, 128")
    if not NOCOMP:
        s_init(m, 1)
        for idx in range(14):
            m(k_read(1, idx))
        m.wait_vm_tag("Q")
        stamp(m, 5)
        s_phase(m, 1)
        ex = []
        for T in range(4):
            ex += v_reads(1, T)
        ex += [v4_read(1, T) for T in range(8)]
        softmax(m, ex)
        pv_phase(m, 1, True)
        epilogue(m, 1)
    else:
        m.wait_vm_tag("Q")
        stamp(m, 5)
        for i in range(16):
            m(f"v_mov_b32 {vr(vPOOL + 16 + i)}, {vr(vQR + i)}")
        vsave = vPOOL
        W = vPOOL + 16
        if O_DIRECT:
            for u in range(4):
                m(f"buffer_store_dwordx4 {vr(W + 4 * u, 4)}, {vr(vQ)}, {sr(S_O, 4)}, {sr(sQOFF)} offen offset:{64 * u}{ST_MOD}", tag="O")
        else:
            for i in range(4):
                m(f"buffer_store_dwordx4 {vr(W + 4 * i, 4)}, {vr(vLIN)}, {sr(S_O, 4)}, {sr(sQOFF)} offen offset:{1024 * i}{ST_MOD}", tag="O")

    def dump_stamps(em, n):
        if not STAMP:
            return
        stamp(em, n - 2)
        em.wait_vm_all()
        stamp(em, n - 1)
        em("s_memtime s[78:79]")
        em("s_waitcnt lgkmcnt(0)")
        if DBGSTAMP:
            em("s_mov_b64 exec, 1")
            em(f"s_not_b32 {sr(sT0)}, {sr(sTS)}")
            em(f"v_mov_b32 v0, {sr(sT0)}")
            em(f"buffer_atomic_umax v0, off, {sr(S_DBG, 4)}, 0")
            for i in range(1, 8):
                em(f"v_mov_b32 {vr(vPOOL + i)}, {sr(sTS + 2 * i)}")
                em(f"buffer_atomic_umax {vr(vPOOL + i)}, off, {sr(S_DBG, 4)}, 0 offset:{4 * i}")
                em(f"s_not_b32 {sr(sT0)}, {sr(sTS + 2 * i)}")
                em(f"v_mov_b32 {vr(vPOOL + 8 + i)}, {sr(sT0)}")
                em(f"buffer_atomic_umax {vr(vPOOL + 8 + i)}, off, {sr(S_DBG, 4)}, 0 offset:{28 + 4 * i}")
            em(f"s_sub_u32 {sr(sT0)}, s78, s76")
            em(f"s_lshl_b32 {sr(sT0)}, {sr(sT0)}, 14")
            em(f"s_sub_u32 {sr(sT1)}, {sr(sTS + 14)}, {sr(sTS)}")
            em(f"s_or_b32 {sr(sT0)}, {sr(sT0)}, {sr(sT1)}")
            em(f"v_mov_b32 v1, {sr(sT0)}")
            em(f"buffer_atomic_umax v1, off, {sr(S_DBG, 4)}, 0 offset:60")
            return
        em(f"s_sub_u32 {sr(sTS + 16)}, s78, s76")
        em(f"s_mul_i32 {sr(sT0)}, s2, 10")
        em(f"s_add_u32 {sr(sT0)}, {sr(sT0)}, {sr(sWAVE)}")
        em(f"s_lshl_b32 {sr(sT0)}, {sr(sT0)}, 6")
        em(f"s_add_u32 {sr(sT0)}, {sr(sT0)}, {0x800000}")
        for i in range(9):
            em(f"v_mov_b32 {vr(vPOOL + i)}, {sr(sTS + 2 * i)}")
        em("v_mov_b32 v0, 0")
        em("s_mov_b64 exec, 1")
        em(f"buffer_store_dwordx4 {vr(vPOOL, 4)}, v0, {sr(S_WS, 4)}, {sr(sT0)} offen")
        em(f"buffer_store_dwordx4 {vr(vPOOL + 4, 4)}, v0, {sr(S_WS, 4)}, {sr(sT0)} offen offset:16")
        em(f"buffer_store_dword {vr(vPOOL + 8)}, v0, {sr(S_WS, 4)}, {sr(sT0)} offen offset:32")

    dump_stamps(m, 8)
    m("s_endpgm")

    h = e.fork()
    h.raw("L_helper:")
    hS, hO, hPOOL = 56, 88, 124
    hL = hO + 32
    for i in range(16):
        h(f"v_mov_b32 {vr(vQR + i)}, 0")
    h("s_mov_b32 exec_lo, 0x00030003")
    h("s_mov_b32 exec_hi, 0x00030003")
    for s in range(4):
        h(f"buffer_load_dwordx4 {vr(vQR + 4 * s, 4)}, {vr(vQ)}, {sr(S_Q, 4)}, {sr(sHEADOFF)} offen offset:{64 * s}", tag="K")
    h("s_mov_b64 exec, -1")
    v_dma(h)
    h(f"s_lshl_b32 {sr(sTILE)}, {sr(sWAVE)}, 15")
    h(f"s_sub_u32 {sr(sTILE)}, {sr(sTILE)}, {8 * 32768 - 8192}")
    lds_addrs(h)
    h(f"s_lshl_b32 {sr(sREC)}, {sr(sHEAD)}, 4")
    h(f"s_lshl_b32 {sr(sT0)}, {sr(sCHUNK)}, 1")
    h(f"s_add_u32 {sr(sREC)}, {sr(sREC)}, {sr(sT0)}")
    h(f"s_add_u32 {sr(sREC)}, {sr(sREC)}, {sr(sWAVE)}")
    h(f"s_sub_u32 {sr(sREC)}, {sr(sREC)}, 8")
    h(f"s_lshl_b32 {sr(sREC)}, {sr(sREC)}, 11")
    h(f"v_lshlrev_b32 {vr(vA)}, 5, {vr(vT1)}")
    h(f"v_lshl_add_u32 {vr(vA)}, {vr(vT0)}, 9, {vr(vA)}")
    h(f"v_lshlrev_b32 {vr(vLIN)}, 3, {vr(vT0)}")
    h.wait_vm_tag("K")
    h("s_barrier")
    stamp(h, 1)
    HQ = [hPOOL + 4 * i for i in range(11)]
    if not NOCOMP:
        def hk(idx):
            t, s = idx // 4, idx % 4
            return f"ds_read_b128 {vr(HQ[idx % 11], 4)}, {vr(vKA + s)} offset:{4096 * t}"
        for idx in range(11):
            h(hk(idx))
        for idx in range(32):
            t, s = idx // 4, idx % 4
            h(f"v_mfma_f32_16x16x32_bf16 {vr(hS + 4 * t, 4)}, {vr(HQ[idx % 11], 4)}, {vr(vQR + 4 * s, 4)}, {'0' if s == 0 else vr(hS + 4 * t, 4)}")
            if idx + 11 < 32:
                h(hk(idx + 11))
        for op in max_tree([hS + i for i in range(32)], vT0):
            h(op)
        allreduce(h, "v_max_f32", vT0, vT1)
        h(f"v_mul_f32 {vr(vT0)}, {sr(sC)}, {vr(vT0)}")
        for i in range(32):
            h(f"v_fma_f32 {vr(hS + i)}, {vr(hS + i)}, {sr(sC)}, -{vr(vT0)}")
        for i in range(32):
            h(f"v_exp_f32 {vr(hS + i)}, {vr(hS + i)}")
        for k in range(16):
            h(f"v_cvt_pk_bf16_f32 {vr(hS + k)}, {vr(hS + 2 * k)}, {vr(hS + 2 * k + 1)}")
        for k in range(4):
            h(f"v_mfma_f32_16x16x32_bf16 {vr(hL, 4)}, {vr(vONE, 4)}, {vr(hS + 4 * k, 4)}, {'0' if k == 0 else vr(hL, 4)}")
    stamp(h, 2)
    h.wait_vm_tag("V")
    h("s_barrier")
    stamp(h, 3)
    if not NOCOMP:
        HV = HQ + [hS + 16 + 4 * i for i in range(4)]

        def hv(idx):
            T, k = idx // 4, idx % 4
            u, p = T // 2, T % 2
            q = HV[idx % 15]
            return [f"ds_read_b64_tr_b16 {vr(q + 2 * j, 2)}, {vr(vVA + u)} offset:{4096 * (2 * k + j) + 8 * p}" for j in range(2)]
        for idx in range(7):
            for op in hv(idx):
                h(op)
        for idx in range(32):
            T, k = idx // 4, idx % 4
            o = vr(hO + 4 * T, 4)
            if idx + 7 < 32:
                for op in hv(idx + 7):
                    h(op)
            h(f"v_mfma_f32_16x16x32_bf16 {o}, {vr(HV[idx % 15], 4)}, {vr(hS + 4 * k, 4)}, {'0' if k == 0 else o}")
        h(f"v_mov_b32 {vr(vT1)}, {vr(hL)}")
        h("s_mov_b32 exec_lo, 0x00030003")
        h("s_mov_b32 exec_hi, 0x00030003")
        for T in range(8):
            h(f"buffer_store_dwordx4 {vr(hO + 4 * T, 4)}, {vr(vA)}, {sr(S_WS, 4)}, {sr(sREC)} offen offset:{128 * (T // 2) + 16 * (T % 2)} sc1", tag="P")
        h("s_mov_b64 exec, 3")
        h(f"buffer_store_dwordx2 {vr(vT0, 2)}, {vr(vLIN)}, {sr(S_WS, 4)}, {sr(sREC)} offen offset:1024 sc1", tag="P")
        h("s_mov_b64 exec, 1")
        h(f"s_lshl_b32 {sr(sT0)}, {sr(sHEAD)}, 2")
        h(f"s_add_u32 {sr(sT0)}, {sr(sT0)}, 128")
        h("v_mov_b32 v0, 1")
        h.wait_vm_all()
        stamp(h, 4)
        h(f"buffer_atomic_add v0, off, {sr(S_DBG, 4)}, {sr(sT0)} sc0")
        h(f"v_readfirstlane_b32 {sr(sT1)}, v0")
        h("s_mov_b64 exec, -1")
        stamp(h, 5)
        h(f"s_cmp_eq_u32 {sr(sT1)}, 15")
        h.flush()
        h("s_cbranch_scc0 L_hdone")
        h("v_mbcnt_lo_u32_b32 v0, -1, 0")
        h("v_mbcnt_hi_u32_b32 v0, -1, v0")
        h(f"v_lshlrev_b32 {vr(vA)}, 4, v0")
        h(f"v_lshrrev_b32 {vr(vLIN)}, 5, v0")
        h(f"v_lshlrev_b32 {vr(vLIN)}, 3, {vr(vLIN)}")
        h(f"s_lshl_b32 {sr(sREC)}, {sr(sHEAD)}, 15")
        cO, cS = 56, 120
        for i in range(16):
            if i % 2 == 0 and i:
                h(f"s_add_u32 {sr(sREC)}, {sr(sREC)}, 4096")
            h(f"buffer_load_dwordx2 {vr(cS + 2 * i, 2)}, {vr(vLIN)}, {sr(S_WS, 4)}, {sr(sREC)} offen offset:{2048 * (i % 2) + 1024} sc1")
            h(f"buffer_load_dwordx4 {vr(cO + 4 * i, 4)}, {vr(vA)}, {sr(S_WS, 4)}, {sr(sREC)} offen offset:{2048 * (i % 2)} sc1")
        h.wait_vm_all()
        for op in max_tree([cS + 2 * i for i in range(16)], vT0):
            h(op)
        for i in range(16):
            h(f"v_sub_f32 {vr(cS + 2 * i)}, {vr(cS + 2 * i)}, {vr(vT0)}")
        for i in range(16):
            h(f"v_exp_f32 {vr(cS + 2 * i)}, {vr(cS + 2 * i)}")
        h(f"v_mul_f32 {vr(vT1)}, {vr(cS)}, {vr(cS + 1)}")
        for r in range(4):
            h(f"v_mul_f32 {vr(vKA + r)}, {vr(cS)}, {vr(cO + r)}")
        for i in range(1, 16):
            h(f"v_fmac_f32 {vr(vT1)}, {vr(cS + 2 * i)}, {vr(cS + 2 * i + 1)}")
            for r in range(4):
                h(f"v_fmac_f32 {vr(vKA + r)}, {vr(cS + 2 * i)}, {vr(cO + 4 * i + r)}")
        h(f"v_rcp_f32 {vr(vT1)}, {vr(vT1)}")
        for r in range(4):
            h(f"v_mul_f32 {vr(vKA + r)}, {vr(vKA + r)}, {vr(vT1)}")
        h(f"v_cvt_pk_bf16_f32 {vr(vVA)}, {vr(vKA)}, {vr(vKA + 1)}")
        h(f"v_cvt_pk_bf16_f32 {vr(vVA + 1)}, {vr(vKA + 2)}, {vr(vKA + 3)}")
        h(f"v_lshlrev_b32 v0, 3, v0")
        h(f"buffer_store_dwordx2 {vr(vVA, 2)}, v0, {sr(S_O, 4)}, {sr(sHEADOFF)} offen")
        h.label("L_hdone")
    dump_stamps(h, 8)
    h.raw("L_end:")
    h("s_endpgm")

    tail = f""".section .rodata,"a"
.p2align 6
.amdhsa_kernel {NAME}_kernel
  .amdhsa_next_free_vgpr 168
  .amdhsa_next_free_sgpr 96
  .amdhsa_accum_offset 168
  .amdhsa_group_segment_fixed_size 0
  .amdhsa_kernarg_size 64
  .amdhsa_user_sgpr_count 2
  .amdhsa_user_sgpr_kernarg_segment_ptr 1
  .amdhsa_system_sgpr_workgroup_id_x 1
.end_amdhsa_kernel
"""
    return e.text() + m.text() + h.text() + tail


if __name__ == "__main__":
    out = sys.argv[1]
    opt = {}
    for a in sys.argv[2:]:
        k, _, v = a.partition("=")
        opt[k] = v if v else True
        if k == "st_mod":
            opt[k] = " " + v.replace("+", " ")
    open(out, "w").write(gen(opt))
```

```python
import sys
import math
import struct
from asmgen import Emitter, vr, sr, interleave

NAME = "standalone__global_local_windowed_global_tokens__prompt"

HEADER = """; Kernarg layout for this problem (64 bytes, ptrs only, base s[0:1]):
"""


def f32bits(x):
    return struct.unpack("<I", struct.pack("<f", x))[0]


def gen(opt):
    O_DIRECT = opt.get("o_direct", False)
    LD_NT = " nt" if opt.get("ld_nt", False) else ""
    Q_NT = " nt" if opt.get("q_nt", False) else ""
    ST_MOD = opt.get("st_mod", "")
    NOCOMP = opt.get("nocomp", False)
    PROBE = opt.get("probe", None)
    STAMP = opt.get("stamp", False) or opt.get("dbgstamp", False) or PROBE
    DBGSTAMP = opt.get("dbgstamp", False)

    TENSOR_BYTES = 32 * 2048 * 256
    VBASE = 81920
    NEG = f32bits(-1.0e30)
    CSCALE = f32bits((128 ** -0.5) * math.log2(math.e))

    S_Q, S_K, S_V, S_O, S_DBG, S_WS = 20, 24, 28, 32, 36, 40
    sWAVE, sHEADOFF, sROW0, sTILE, sT0, sT1 = 44, 45, 46, 47, 48, 49
    sQOFF, sC, sNEG, sQ0, sHEAD, sCHUNK = 50, 51, 52, 53, 54, 55
    sEX = 56
    sREC = 58
    sTS = 60

    vLIN, vKD, vVD, vQ, vKA, vVA, vA, vG4, vT0, vT1, vONE = 1, 2, 6, 7, 8, 12, 16, 17, 18, 19, 20
    vKG, vQR, vS, vOX, vVG, vPOOL = 24, 40, 56, 80, 104, 136

    e = Emitter()

    def stamp(em, i):
        if STAMP:
            em(f"s_memrealtime {sr(sTS + 2 * i, 2)}")

    e.raw(HEADER + "; @launch grid=(256,1,1) block=(640,1,1) lds=163840")
    e.raw('.amdgcn_target "amdgcn-amd-amdhsa--gfx950"')
    e.raw(".text")
    e.raw(f".globl {NAME}_kernel")
    e.raw(".p2align 8")
    e.raw(f".type {NAME}_kernel,@function")
    e.raw(f"{NAME}_kernel:")
    e("s_cmp_ge_u32 s2, 256")
    e("s_cbranch_scc1 L_end")
    e("s_load_dwordx4 s[4:7], s[0:1], 0")
    e("s_load_dwordx2 s[8:9], s[0:1], 16")
    e("s_load_dwordx4 s[12:15], s[0:1], 40")
    e("s_load_dwordx2 s[16:17], s[0:1], 56")
    stamp(e, 0)
    if STAMP:
        e("s_memtime s[76:77]")
    e(f"v_lshrrev_b32 {vr(vLIN)}, 6, v0")
    e(f"v_and_b32 {vr(vT0)}, 15, v0")
    e(f"v_readfirstlane_b32 {sr(sWAVE)}, {vr(vLIN)}")
    e(f"v_bfe_u32 {vr(vT1)}, v0, 4, 2")
    e(f"s_and_b32 {sr(sT0)}, s2, 7")
    e(f"s_lshl_b32 {sr(sT0)}, {sr(sT0)}, 2")
    e(f"s_lshr_b32 {sr(sT1)}, s2, 6")
    e(f"s_add_u32 {sr(sHEAD)}, {sr(sT0)}, {sr(sT1)}")
    e(f"s_bfe_u32 {sr(sCHUNK)}, s2, 0x30003")
    e(f"s_lshl_b32 {sr(sHEADOFF)}, {sr(sHEAD)}, 19")
    e(f"s_lshl_b32 {sr(sT0)}, {sr(sCHUNK)}, 16")
    e(f"s_add_u32 {sr(sROW0)}, {sr(sHEADOFF)}, {sr(sT0)}")
    e(f"v_lshlrev_b32 {vr(vG4)}, 2, {vr(vT1)}")
    e(f"v_lshlrev_b32 v0, 8, {vr(vT1)}")
    for j in range(4):
        e(f"v_add_u32 {vr(vKD + j)}, {4 * j}, {vr(vT1)}")
        e(f"v_xor_b32 {vr(vKD + j)}, {vr(vKD + j)}, {vr(vT0)}")
        e(f"v_lshl_add_u32 {vr(vKD + j)}, {vr(vKD + j)}, 4, v0")
    e(f"v_xor_b32 {vr(vVD)}, {vr(vG4)}, {vr(vT0)}")
    e(f"v_lshl_add_u32 {vr(vVD)}, {vr(vVD)}, 4, v0")
    e(f"s_lshl_b32 {sr(sT0)}, {sr(sWAVE)}, 12")
    e(f"s_add_u32 {sr(sT1)}, {sr(sROW0)}, {sr(sT0)}")
    e(f"s_sub_u32 {sr(sT1)}, {sr(sT1)}, 8192")
    e(f"s_add_u32 s3, {sr(sT1)}, 40960")
    e(f"s_max_i32 {sr(sT1)}, {sr(sT1)}, 0")
    e(f"s_min_i32 s3, s3, {TENSOR_BYTES - 4096}")
    e(f"s_mov_b32 m0, {sr(sT0)}")
    e(f"s_mov_b32 {sr(S_K + 2)}, {TENSOR_BYTES}")
    e(f"s_mov_b32 {sr(S_K + 3)}, 0x20000")
    e(f"s_mov_b32 {sr(S_V + 2)}, {TENSOR_BYTES}")
    e(f"s_mov_b32 {sr(S_V + 3)}, 0x20000")
    e(f"s_mov_b32 {sr(S_Q + 2)}, {TENSOR_BYTES}")
    e(f"s_mov_b32 {sr(S_Q + 3)}, 0x20000")
    e("s_waitcnt lgkmcnt(0)")
    e(f"s_mov_b32 {sr(S_K)}, s6")
    e(f"s_mov_b32 {sr(S_K + 1)}, s7")
    for j in range(4):
        e(f"buffer_load_dwordx4 {vr(vKD + j)}, {sr(S_K, 4)}, {sr(sT1)} offen offset:{1024 * j}{LD_NT} lds", tag="K")
    e(f"s_add_u32 m0, {sr(sT0)}, 40960")
    e(f"s_mov_b32 {sr(S_V)}, s8")
    for j in range(4):
        e(f"buffer_load_dwordx4 {vr(vKD + j)}, {sr(S_K, 4)}, s3 offen offset:{1024 * j}{LD_NT} lds", tag="K")
    e(f"s_mov_b32 {sr(S_V + 1)}, s9")
    e(f"s_mov_b32 {sr(S_Q)}, s4")
    e(f"s_mov_b32 {sr(S_Q + 1)}, s5")
    e(f"s_mov_b32 {sr(S_O)}, s12")
    e(f"s_mov_b32 {sr(S_O + 1)}, s13")
    e(f"s_mov_b32 {sr(S_O + 2)}, {TENSOR_BYTES}")
    e(f"s_mov_b32 {sr(S_O + 3)}, 0x20000")
    e(f"s_mov_b32 {sr(S_DBG)}, s14")
    e(f"s_mov_b32 {sr(S_DBG + 1)}, s15")
    e(f"s_mov_b32 {sr(S_DBG + 2)}, 256")
    e(f"s_mov_b32 {sr(S_DBG + 3)}, 0x20000")
    e(f"s_mov_b32 {sr(S_WS)}, s16")
    e(f"s_mov_b32 {sr(S_WS + 1)}, s17")
    e(f"s_mov_b32 {sr(S_WS + 2)}, {0x1000000}")
    e(f"s_mov_b32 {sr(S_WS + 3)}, 0x20000")
    e(f"s_mov_b32 {sr(sC)}, {CSCALE:#x}")
    e(f"s_mov_b32 {sr(sNEG)}, {NEG:#x}")
    e(f"v_lshlrev_b32 {vr(vQ)}, 4, {vr(vT1)}")
    e(f"v_lshl_add_u32 {vr(vQ)}, {vr(vT0)}, 8, {vr(vQ)}")
    e(f"s_cmp_ge_u32 {sr(sWAVE)}, 8")
    e.flush()
    e("s_cbranch_scc1 L_helper")

    def v_dma(em):
        em(f"s_add_u32 m0, {sr(sT0)}, {VBASE}")
        for j in range(4):
            em(f"buffer_load_dwordx4 {vr(vVD)}, {sr(S_V, 4)}, {sr(sT1)} offen offset:{1024 * j}{LD_NT} lds", tag="V")
        em(f"s_add_u32 m0, {sr(sT0)}, {VBASE + 40960}")
        for j in range(4):
            em(f"buffer_load_dwordx4 {vr(vVD)}, {sr(S_V, 4)}, s3 offen offset:{1024 * j}{LD_NT} lds", tag="V")

    def lds_addrs(em):
        em(f"v_xor_b32 {vr(vKA)}, {vr(vT0)}, {vr(vT1)}")
        em(f"v_lshlrev_b32 {vr(vKA)}, 4, {vr(vKA)}")
        em(f"v_lshl_add_u32 {vr(vKA)}, {vr(vT0)}, 8, {vr(vKA)}")
        em(f"v_add_u32 {vr(vKA)}, {sr(sTILE)}, {vr(vKA)}")
        for s in range(1, 4):
            em(f"v_xor_b32 {vr(vKA + s)}, {64 * s}, {vr(vKA)}")
        em(f"v_lshrrev_b32 {vr(vVA + 1)}, 2, {vr(vT0)}")
        em(f"v_add_u32 {vr(vVA)}, {vr(vG4)}, {vr(vVA + 1)}")
        em(f"v_lshlrev_b32 {vr(vVA)}, 8, {vr(vVA)}")
        em(f"v_lshl_add_u32 {vr(vVA)}, {vr(vT0)}, 4, {vr(vVA)}")
        em(f"s_add_u32 {sr(sT0)}, {sr(sTILE)}, {VBASE}")
        em(f"v_add_u32 {vr(vVA)}, {sr(sT0)}, {vr(vVA)}")
        for u in range(1, 4):
            em(f"v_xor_b32 {vr(vVA + u)}, {64 * u}, {vr(vVA)}")
        for i in range(4):
            em(f"v_mov_b32 {vr(vONE + i)}, 0x3f803f80")

    def allreduce(em, op, x, y):
        em(f"v_mov_b32 {vr(y)}, {vr(x)}")
        em(f"v_permlane32_swap_b32 {vr(x)}, {vr(y)}")
        em(f"{op} {vr(x)}, {vr(x)}, {vr(y)}")
        em(f"v_mov_b32 {vr(y)}, {vr(x)}")
        em(f"v_permlane16_swap_b32 {vr(x)}, {vr(y)}")
        em(f"{op} {vr(x)}, {vr(x)}, {vr(y)}")

    def max_tree(vals, dst):
        ops = []
        vals = list(vals)
        ops.append(f"v_max3_f32 {vr(dst)}, {vr(vals[0])}, {vr(vals[1])}, {vr(vals[2])}")
        i = 3
        while i + 1 < len(vals):
            ops.append(f"v_max3_f32 {vr(dst)}, {vr(dst)}, {vr(vals[i])}, {vr(vals[i + 1])}")
            i += 2
        if i < len(vals):
            ops.append(f"v_max_f32 {vr(dst)}, {vr(dst)}, {vr(vals[i])}")
        return ops

    m = e.fork()
    for i in range(16):
        m(f"v_mov_b32 {vr(vKG + i)}, 0")
    m(f"v_lshrrev_b32 v0, 2, {vr(vT0)}")
    m(f"v_lshlrev_b32 v0, 8, v0")
    m(f"v_lshl_add_u32 v0, {vr(vT1)}, 4, v0")
    m(f"s_lshl_b32 {sr(sTILE)}, {sr(sWAVE)}, 12")
    m(f"s_add_u32 {sr(sQOFF)}, {sr(sROW0)}, {sr(sTILE)}")
    m("s_mov_b32 exec_lo, 0x00110011")
    m("s_mov_b32 exec_hi, 0x00110011")
    for s in range(4):
        m(f"buffer_load_dwordx4 {vr(vKG + 4 * s, 4)}, v0, {sr(S_K, 4)}, {sr(sHEADOFF)} offen offset:{64 * s}", tag="K")
    m("s_mov_b64 exec, -1")
    for s in range(4):
        m(f"buffer_load_dwordx4 {vr(vQR + 4 * s, 4)}, {vr(vQ)}, {sr(S_Q, 4)}, {sr(sQOFF)} offen offset:{64 * s}{Q_NT}", tag="Q")
    v_dma(m)
    for T in range(8):
        m(f"v_mov_b32 {vr(vVG + 4 * T + 2)}, 0")
        m(f"v_mov_b32 {vr(vVG + 4 * T + 3)}, 0")
    m(f"v_lshrrev_b32 v0, 2, {vr(vT0)}")
    m(f"v_lshlrev_b32 v0, 4, v0")
    m(f"v_and_b32 {vr(vVD)}, 3, {vr(vT0)}")
    m(f"v_lshl_add_u32 v0, {vr(vVD)}, 1, v0")
    m(f"v_lshl_add_u32 v0, {vr(vT1)}, 8, v0")
    m("s_mov_b32 exec_hi, 0")
    for T in range(8):
        m(f"buffer_load_ushort {vr(vVG + 4 * T + 2)}, v0, {sr(S_V, 4)}, {sr(sHEADOFF)} offen offset:{64 * (T // 2) + 8 * (T % 2)}", tag="V")
    m("s_mov_b64 exec, -1")
    lds_addrs(m)
    m(f"v_sub_u32 {vr(vA)}, {vr(vG4)}, {vr(vT0)}")
    m(f"v_lshlrev_b32 {vr(vLIN)}, 4, {vr(vT0)}")
    m(f"v_lshl_add_u32 {vr(vLIN)}, {vr(vT1)}, 8, {vr(vLIN)}")
    m(f"s_lshl_b32 {sr(sQ0)}, {sr(sCHUNK)}, 8")
    m(f"s_lshl_b32 {sr(sT0)}, {sr(sWAVE)}, 4")
    m(f"s_add_u32 {sr(sQ0)}, {sr(sQ0)}, {sr(sT0)}")

    def s_init(em, stage):
        em(f"v_mov_b32 {vr(vT0)}, {sr(sNEG)}")
        for r in range(4):
            em(f"v_cmp_le_i32 vcc, {-r}, {vr(vA)}")
            em(f"v_mov_b32 {vr(vS + 4 + r)}, 0")
            em(f"v_mov_b32 {vr(vS + 8 + r)}, 0")
            em(f"v_cndmask_b32 {vr(vS + r)}, {vr(vT0)}, 0, vcc" if False else f"v_cndmask_b32_e64 {vr(vS + r)}, {vr(vT0)}, 0, vcc")
        for r in range(4):
            em(f"v_cmp_ge_i32 vcc, {-r}, {vr(vA)}")
            em(f"v_mov_b32 {vr(vS + 12 + r)}, 0")
            em(f"v_mov_b32 {vr(vS + 20 + r)}, 0")
            em(f"v_cndmask_b32_e64 {vr(vS + 16 + r)}, {vr(vT0)}, 0, vcc")
        em(f"v_cmp_gt_u32 vcc, 8, {vr(vG4)}")
        em(f"s_sub_u32 {sr(sT0)}, {sr(sQ0)}, 34")
        em(f"s_cmp_lt_u32 {sr(sT0)}, {2001 - 34}")
        em(f"v_cndmask_b32_e64 {vr(vS + 20)}, {vr(vT0)}, 0, vcc")
        em.flush()
        em(f"s_cbranch_scc1 L_nofix{stage}")
        em(f"v_add_u32 {vr(vT1)}, {sr(sT0)}, {vr(vG4)}")
        em(f"s_movk_i32 {sr(sT1)}, 2046")
        for t in range(5):
            for r in range(4):
                em(f"v_add_u32 v0, {16 * t + r}, {vr(vT1)}")
                em(f"v_cmp_gt_u32 vcc, {sr(sT1)}, v0")
                em(f"v_cndmask_b32 {vr(vS + 4 * t + r)}, {vr(vT0)}, {vr(vS + 4 * t + r)}, vcc")
        em.label(f"L_nofix{stage}")

    KQUADS = [vPOOL + 4 * i for i in range(8)] + [vOX + 4 * i for i in range(6)]

    def k_read(stage, idx):
        t, s = idx // 4, idx % 4
        q = KQUADS[idx % len(KQUADS)]
        return f"ds_read_b128 {vr(q, 4)}, {vr(vKA + s)} offset:{32768 * stage + 4096 * t}"

    def s_phase(em, stage):
        for s in range(4):
            em(f"v_mfma_f32_16x16x32_bf16 {vr(vS + 20, 4)}, {vr(vKG + 4 * s, 4)}, {vr(vQR + 4 * s, 4)}, {vr(vS + 20, 4)}")
        for idx in range(20):
            t, s = idx // 4, idx % 4
            q = KQUADS[idx % len(KQUADS)]
            em(f"v_mfma_f32_16x16x32_bf16 {vr(vS + 4 * t, 4)}, {vr(q, 4)}, {vr(vQR + 4 * s, 4)}, {vr(vS + 4 * t, 4)}")
            if idx + 14 < 20:
                em(k_read(stage, idx + 14))

    OACC = [vS + 12, vS + 16, vS + 20] + [vOX + 4 * i for i in range(5)]
    vL = vOX + 20

    def v_reads(stage, T):
        u, p = T // 2, T % 2
        q = vPOOL + 8 * (T % 4)
        return [f"ds_read_b64_tr_b16 {vr(q + 2 * t, 2)}, {vr(vVA + u)} offset:{32768 * stage + 4096 * t + 8 * p}" for t in range(4)]

    def v4_read(stage, T):
        u, p = T // 2, T % 2
        return f"ds_read_b64_tr_b16 {vr(vVG + 4 * T, 2)}, {vr(vVA + u)} offset:{32768 * stage + 4096 * 4 + 8 * p}"

    def softmax_ops():
        vals = [vS + i for i in range(21)]
        return vals

    def softmax(em, extra):
        vals = [vS + 20] + [vS + i for i in range(20)]
        for op in max_tree(vals, vT0):
            em(op)
        allreduce(em, "v_max_f32", vT0, vT1)
        em(f"v_mul_f32 {vr(vT0)}, {sr(sC)}, {vr(vT0)}")
        ops = []
        order = list(range(21))
        for i in order:
            ops.append(f"v_fma_f32 {vr(vS + i)}, {vr(vS + i)}, {sr(sC)}, -{vr(vT0)}")
        ex = [f"v_exp_f32 {vr(vS + i)}, {vr(vS + i)}" for i in order]
        seq = ops[:2]
        for i in range(21):
            seq.append(ex[i])
            if i + 2 < 21:
                seq.append(ops[i + 2])
            if i >= 3 and i % 2 == 1:
                k = (i - 3) // 2
                seq.append(f"v_cvt_pk_bf16_f32 {vr(vS + k)}, {vr(vS + 2 * k)}, {vr(vS + 2 * k + 1)}")
        seq.append(f"v_cvt_pk_bf16_f32 {vr(vS + 9)}, {vr(vS + 18)}, {vr(vS + 19)}")
        seq.append(f"v_cvt_pk_bf16_f32 {vr(vS + 10)}, {vr(vS + 20)}, 0")
        seq.append(f"v_mov_b32 {vr(vS + 11)}, 0")
        for op in interleave(seq, extra, 2):
            em(op)

    def pv_phase(em, stage, pre):
        if not pre:
            for T in range(4):
                for op in v_reads(stage, T):
                    em(op)
                em(v4_read(stage, T))
        for k in range(3):
            em(f"v_mfma_f32_16x16x32_bf16 {vr(vL, 4)}, {vr(vONE, 4)}, {vr(vS + 4 * k, 4)}, {'0' if k == 0 else vr(vL, 4)}")
        for T in range(8):
            q = vPOOL + 8 * (T % 4)
            o = vr(OACC[T], 4)
            em(f"v_mfma_f32_16x16x32_bf16 {o}, {vr(q, 4)}, {vr(vS, 4)}, 0")
            em(f"v_mfma_f32_16x16x32_bf16 {o}, {vr(q + 4, 4)}, {vr(vS + 4, 4)}, {o}")
            if T + 4 < 8:
                for op in v_reads(stage, T + 4):
                    em(op)
                if not pre:
                    em(v4_read(stage, T + 4))
            em(f"v_mfma_f32_16x16x32_bf16 {o}, {vr(vVG + 4 * T, 4)}, {vr(vS + 8, 4)}, {o}")

    def epilogue(em, stage):
        em(f"v_rcp_f32 {vr(vT0)}, {vr(vL)}")
        W = vPOOL
        if stage == 0:
            em(f"s_cmp_eq_u32 {sr(sQ0)}, 0")
            if O_DIRECT:
                em(f"s_cselect_b32 {sr(sEX)}, 0xfffcfffc, -1")
                em(f"s_mov_b32 {sr(sEX + 1)}, {sr(sEX)}")
            else:
                em(f"s_cselect_b32 {sr(sEX)}, 0, -1")
                em(f"s_mov_b32 {sr(sEX + 1)}, -1")
        for u in range(4):
            for p in range(2):
                o = OACC[2 * u + p]
                for r in range(4):
                    em(f"v_mul_f32 {vr(o + r)}, {vr(o + r)}, {vr(vT0)}")
                em(f"v_cvt_pk_bf16_f32 {vr(W + 4 * u + 2 * p)}, {vr(o)}, {vr(o + 1)}")
                em(f"v_cvt_pk_bf16_f32 {vr(W + 4 * u + 2 * p + 1)}, {vr(o + 2)}, {vr(o + 3)}")
            if O_DIRECT:
                if stage == 0:
                    em(f"s_mov_b64 exec, {sr(sEX, 2)}")
                em(f"buffer_store_dwordx4 {vr(W + 4 * u, 4)}, {vr(vQ)}, {sr(S_O, 4)}, {sr(sQOFF)} offen offset:{64 * u}{ST_MOD}", tag="O")
                if stage == 0:
                    em("s_mov_b64 exec, -1")
            else:
                em(f"ds_write_b128 {vr(vKA + u)}, {vr(W + 4 * u, 4)}")
        if not O_DIRECT:
            R = vPOOL + 16
            for i in range(4):
                em(f"v_add_u32 {vr(vOX + i)}, {sr(sTILE)}, {vr(vKD + i)}")
            for i in range(4):
                em(f"ds_read_b128 {vr(R + 4 * i, 4)}, {vr(vOX + i)} offset:{1024 * i}")
            for i in range(4):
                if stage == 0 and i == 0:
                    em(f"s_mov_b64 exec, {sr(sEX, 2)}")
                em(f"buffer_store_dwordx4 {vr(R + 4 * i, 4)}, {vr(vLIN)}, {sr(S_O, 4)}, {sr(sQOFF)} offen offset:{1024 * i}{ST_MOD}", tag="O")
                if stage == 0 and i == 0:
                    em("s_mov_b64 exec, -1")

    def q_load(em):
        for s in range(4):
            em(f"buffer_load_dwordx4 {vr(vQR + 4 * s, 4)}, {vr(vQ)}, {sr(S_Q, 4)}, {sr(sT1)} offen offset:{64 * s}{Q_NT}", tag="Q")

    if not NOCOMP:
        s_init(m, 0)
    m.wait_vm_tag("K")
    m("s_barrier")
    stamp(m, 1)
    if not NOCOMP:
        for idx in range(14):
            m(k_read(0, idx))
        s_phase(m, 0)
    else:
        m.wait_vm_tag("Q")
        for i in range(16):
            m(f"v_mov_b32 {vr(vPOOL + i)}, {vr(vQR + i)}")
    m(f"s_add_u32 {sr(sT1)}, {sr(sQOFF)}, 32768")
    q_load(m)
    stamp(m, 2)
    if not NOCOMP:
        softmax(m, [])
    m.wait_vm_tag("V")
    m("s_barrier")
    stamp(m, 3)

    def nocomp_store(em, stage):
        W = vPOOL
        if O_DIRECT:
            for u in range(4):
                em(f"buffer_store_dwordx4 {vr(W + 4 * u, 4)}, {vr(vQ)}, {sr(S_O, 4)}, {sr(sQOFF)} offen offset:{64 * u}{ST_MOD}", tag="O")
        else:
            for i in range(4):
                em(f"buffer_store_dwordx4 {vr(W + 4 * i, 4)}, {vr(vLIN)}, {sr(S_O, 4)}, {sr(sQOFF)} offen offset:{1024 * i}{ST_MOD}", tag="O")

    if not NOCOMP:
        pv_phase(m, 0, False)
        epilogue(m, 0)
    else:
        nocomp_store(m, 0)
    stamp(m, 4)
    m(f"s_add_u32 {sr(sQOFF)}, {sr(sQOFF)}, 32768")
    m(f"s_add_u32 {sr(sQ0)}, {sr(sQ0)}, 128")
    if not NOCOMP:
        s_init(m, 1)
        for idx in range(14):
            m(k_read(1, idx))
        m.wait_vm_tag("Q")
        stamp(m, 5)
        s_phase(m, 1)
        ex = []
        for T in range(4):
            ex += v_reads(1, T)
        ex += [v4_read(1, T) for T in range(8)]
        softmax(m, ex)
        pv_phase(m, 1, True)
        epilogue(m, 1)
    else:
        m.wait_vm_tag("Q")
        stamp(m, 5)
        for i in range(16):
            m(f"v_mov_b32 {vr(vPOOL + 16 + i)}, {vr(vQR + i)}")
        vsave = vPOOL
        W = vPOOL + 16
        if O_DIRECT:
            for u in range(4):
                m(f"buffer_store_dwordx4 {vr(W + 4 * u, 4)}, {vr(vQ)}, {sr(S_O, 4)}, {sr(sQOFF)} offen offset:{64 * u}{ST_MOD}", tag="O")
        else:
            for i in range(4):
                m(f"buffer_store_dwordx4 {vr(W + 4 * i, 4)}, {vr(vLIN)}, {sr(S_O, 4)}, {sr(sQOFF)} offen offset:{1024 * i}{ST_MOD}", tag="O")

    def dump_stamps(em, n):
        if not STAMP:
            return
        stamp(em, n - 2)
        em.wait_vm_all()
        stamp(em, n - 1)
        em("s_memtime s[78:79]")
        em("s_waitcnt lgkmcnt(0)")
        if PROBE:
            which, fac = (int(x) for x in PROBE.split(","))
            tagn = "m" if em is m else "h"
            em("s_cmp_eq_u32 s2, 100")
            em(f"s_cbranch_scc0 L_probe_done{tagn}")
            em(f"s_cmp_eq_u32 {sr(sWAVE)}, 0")
            em(f"s_cbranch_scc0 L_probe_done{tagn}")
            em(f"s_sub_u32 {sr(sT0)}, {sr(sTS + 2 * which)}, {sr(sTS)}")
            em(f"s_mul_i32 {sr(sT0)}, {sr(sT0)}, {fac}")
            em(f"s_add_u32 {sr(sT0)}, {sr(sT0)}, 5000")
            em.label(f"L_probe{tagn}")
            em("s_memrealtime s[78:79]")
            em("s_waitcnt lgkmcnt(0)")
            em(f"s_sub_u32 {sr(sT1)}, s78, {sr(sTS)}")
            em(f"s_cmp_lt_u32 {sr(sT1)}, {sr(sT0)}")
            em(f"s_cbranch_scc1 L_probe{tagn}")
            em.label(f"L_probe_done{tagn}")
            return
        if DBGSTAMP:
            em("s_mov_b64 exec, 1")
            em(f"s_not_b32 {sr(sT0)}, {sr(sTS)}")
            em(f"v_mov_b32 v0, {sr(sT0)}")
            em(f"buffer_atomic_umax v0, off, {sr(S_DBG, 4)}, 0")
            for i in range(1, 8):
                em(f"v_mov_b32 {vr(vPOOL + i)}, {sr(sTS + 2 * i)}")
                em(f"buffer_atomic_umax {vr(vPOOL + i)}, off, {sr(S_DBG, 4)}, 0 offset:{4 * i}")
                em(f"s_not_b32 {sr(sT0)}, {sr(sTS + 2 * i)}")
                em(f"v_mov_b32 {vr(vPOOL + 8 + i)}, {sr(sT0)}")
                em(f"buffer_atomic_umax {vr(vPOOL + 8 + i)}, off, {sr(S_DBG, 4)}, 0 offset:{28 + 4 * i}")
            em(f"s_sub_u32 {sr(sT0)}, s78, s76")
            em(f"s_lshl_b32 {sr(sT0)}, {sr(sT0)}, 14")
            em(f"s_sub_u32 {sr(sT1)}, {sr(sTS + 14)}, {sr(sTS)}")
            em(f"s_or_b32 {sr(sT0)}, {sr(sT0)}, {sr(sT1)}")
            em(f"v_mov_b32 v1, {sr(sT0)}")
            em(f"buffer_atomic_umax v1, off, {sr(S_DBG, 4)}, 0 offset:60")
            return
        em(f"s_sub_u32 {sr(sTS + 16)}, s78, s76")
        em(f"s_mul_i32 {sr(sT0)}, s2, 10")
        em(f"s_add_u32 {sr(sT0)}, {sr(sT0)}, {sr(sWAVE)}")
        em(f"s_lshl_b32 {sr(sT0)}, {sr(sT0)}, 6")
        em(f"s_add_u32 {sr(sT0)}, {sr(sT0)}, {0x800000}")
        for i in range(9):
            em(f"v_mov_b32 {vr(vPOOL + i)}, {sr(sTS + 2 * i)}")
        em("v_mov_b32 v0, 0")
        em("s_mov_b64 exec, 1")
        em(f"buffer_store_dwordx4 {vr(vPOOL, 4)}, v0, {sr(S_WS, 4)}, {sr(sT0)} offen")
        em(f"buffer_store_dwordx4 {vr(vPOOL + 4, 4)}, v0, {sr(S_WS, 4)}, {sr(sT0)} offen offset:16")
        em(f"buffer_store_dword {vr(vPOOL + 8)}, v0, {sr(S_WS, 4)}, {sr(sT0)} offen offset:32")

    dump_stamps(m, 8)
    m("s_endpgm")

    h = e.fork()
    h.raw("L_helper:")
    hS, hO, hPOOL = 56, 88, 124
    hL = hO + 32
    for i in range(16):
        h(f"v_mov_b32 {vr(vQR + i)}, 0")
    h("s_mov_b32 exec_lo, 0x00030003")
    h("s_mov_b32 exec_hi, 0x00030003")
    for s in range(4):
        h(f"buffer_load_dwordx4 {vr(vQR + 4 * s, 4)}, {vr(vQ)}, {sr(S_Q, 4)}, {sr(sHEADOFF)} offen offset:{64 * s}", tag="K")
    h("s_mov_b64 exec, -1")
    v_dma(h)
    h(f"s_lshl_b32 {sr(sTILE)}, {sr(sWAVE)}, 15")
    h(f"s_sub_u32 {sr(sTILE)}, {sr(sTILE)}, {8 * 32768 - 8192}")
    lds_addrs(h)
    h(f"s_lshl_b32 {sr(sREC)}, {sr(sHEAD)}, 4")
    h(f"s_lshl_b32 {sr(sT0)}, {sr(sCHUNK)}, 1")
    h(f"s_add_u32 {sr(sREC)}, {sr(sREC)}, {sr(sT0)}")
    h(f"s_add_u32 {sr(sREC)}, {sr(sREC)}, {sr(sWAVE)}")
    h(f"s_sub_u32 {sr(sREC)}, {sr(sREC)}, 8")
    h(f"s_lshl_b32 {sr(sREC)}, {sr(sREC)}, 11")
    h(f"v_lshlrev_b32 {vr(vA)}, 5, {vr(vT1)}")
    h(f"v_lshl_add_u32 {vr(vA)}, {vr(vT0)}, 9, {vr(vA)}")
    h(f"v_lshlrev_b32 {vr(vLIN)}, 3, {vr(vT0)}")
    h.wait_vm_tag("K")
    h("s_barrier")
    stamp(h, 1)
    HQ = [hPOOL + 4 * i for i in range(11)]
    if not NOCOMP:
        def hk(idx):
            t, s = idx // 4, idx % 4
            return f"ds_read_b128 {vr(HQ[idx % 11], 4)}, {vr(vKA + s)} offset:{4096 * t}"
        for idx in range(11):
            h(hk(idx))
        for idx in range(32):
            t, s = idx // 4, idx % 4
            h(f"v_mfma_f32_16x16x32_bf16 {vr(hS + 4 * t, 4)}, {vr(HQ[idx % 11], 4)}, {vr(vQR + 4 * s, 4)}, {'0' if s == 0 else vr(hS + 4 * t, 4)}")
            if idx + 11 < 32:
                h(hk(idx + 11))
        for op in max_tree([hS + i for i in range(32)], vT0):
            h(op)
        allreduce(h, "v_max_f32", vT0, vT1)
        h(f"v_mul_f32 {vr(vT0)}, {sr(sC)}, {vr(vT0)}")
        for i in range(32):
            h(f"v_fma_f32 {vr(hS + i)}, {vr(hS + i)}, {sr(sC)}, -{vr(vT0)}")
        for i in range(32):
            h(f"v_exp_f32 {vr(hS + i)}, {vr(hS + i)}")
        for k in range(16):
            h(f"v_cvt_pk_bf16_f32 {vr(hS + k)}, {vr(hS + 2 * k)}, {vr(hS + 2 * k + 1)}")
        for k in range(4):
            h(f"v_mfma_f32_16x16x32_bf16 {vr(hL, 4)}, {vr(vONE, 4)}, {vr(hS + 4 * k, 4)}, {'0' if k == 0 else vr(hL, 4)}")
    stamp(h, 2)
    h.wait_vm_tag("V")
    h("s_barrier")
    stamp(h, 3)
    if not NOCOMP:
        HV = HQ + [hS + 16 + 4 * i for i in range(4)]

        def hv(idx):
            T, k = idx // 4, idx % 4
            u, p = T // 2, T % 2
            q = HV[idx % 15]
            return [f"ds_read_b64_tr_b16 {vr(q + 2 * j, 2)}, {vr(vVA + u)} offset:{4096 * (2 * k + j) + 8 * p}" for j in range(2)]
        for idx in range(7):
            for op in hv(idx):
                h(op)
        for idx in range(32):
            T, k = idx // 4, idx % 4
            o = vr(hO + 4 * T, 4)
            if idx + 7 < 32:
                for op in hv(idx + 7):
                    h(op)
            h(f"v_mfma_f32_16x16x32_bf16 {o}, {vr(HV[idx % 15], 4)}, {vr(hS + 4 * k, 4)}, {'0' if k == 0 else o}")
        h(f"v_mov_b32 {vr(vT1)}, {vr(hL)}")
        h("s_mov_b32 exec_lo, 0x00030003")
        h("s_mov_b32 exec_hi, 0x00030003")
        for T in range(8):
            h(f"buffer_store_dwordx4 {vr(hO + 4 * T, 4)}, {vr(vA)}, {sr(S_WS, 4)}, {sr(sREC)} offen offset:{128 * (T // 2) + 16 * (T % 2)} sc1", tag="P")
        h("s_mov_b64 exec, 3")
        h(f"buffer_store_dwordx2 {vr(vT0, 2)}, {vr(vLIN)}, {sr(S_WS, 4)}, {sr(sREC)} offen offset:1024 sc1", tag="P")
        h("s_mov_b64 exec, 1")
        h(f"s_lshl_b32 {sr(sT0)}, {sr(sHEAD)}, 2")
        h(f"s_add_u32 {sr(sT0)}, {sr(sT0)}, 128")
        h("v_mov_b32 v0, 1")
        h.wait_vm_all()
        stamp(h, 4)
        h(f"buffer_atomic_add v0, off, {sr(S_DBG, 4)}, {sr(sT0)} sc0")
        h(f"v_readfirstlane_b32 {sr(sT1)}, v0")
        h("s_mov_b64 exec, -1")
        stamp(h, 5)
        h(f"s_cmp_eq_u32 {sr(sT1)}, 15")
        h.flush()
        h("s_cbranch_scc0 L_hdone")
        h("v_mbcnt_lo_u32_b32 v0, -1, 0")
        h("v_mbcnt_hi_u32_b32 v0, -1, v0")
        h(f"v_lshlrev_b32 {vr(vA)}, 4, v0")
        h(f"v_lshrrev_b32 {vr(vLIN)}, 5, v0")
        h(f"v_lshlrev_b32 {vr(vLIN)}, 3, {vr(vLIN)}")
        h(f"s_lshl_b32 {sr(sREC)}, {sr(sHEAD)}, 15")
        cO, cS = 56, 120
        for i in range(16):
            if i % 2 == 0 and i:
                h(f"s_add_u32 {sr(sREC)}, {sr(sREC)}, 4096")
            h(f"buffer_load_dwordx2 {vr(cS + 2 * i, 2)}, {vr(vLIN)}, {sr(S_WS, 4)}, {sr(sREC)} offen offset:{2048 * (i % 2) + 1024} sc1")
            h(f"buffer_load_dwordx4 {vr(cO + 4 * i, 4)}, {vr(vA)}, {sr(S_WS, 4)}, {sr(sREC)} offen offset:{2048 * (i % 2)} sc1")
        h.wait_vm_all()
        for op in max_tree([cS + 2 * i for i in range(16)], vT0):
            h(op)
        for i in range(16):
            h(f"v_sub_f32 {vr(cS + 2 * i)}, {vr(cS + 2 * i)}, {vr(vT0)}")
        for i in range(16):
            h(f"v_exp_f32 {vr(cS + 2 * i)}, {vr(cS + 2 * i)}")
        h(f"v_mul_f32 {vr(vT1)}, {vr(cS)}, {vr(cS + 1)}")
        for r in range(4):
            h(f"v_mul_f32 {vr(vKA + r)}, {vr(cS)}, {vr(cO + r)}")
        for i in range(1, 16):
            h(f"v_fmac_f32 {vr(vT1)}, {vr(cS + 2 * i)}, {vr(cS + 2 * i + 1)}")
            for r in range(4):
                h(f"v_fmac_f32 {vr(vKA + r)}, {vr(cS + 2 * i)}, {vr(cO + 4 * i + r)}")
        h(f"v_rcp_f32 {vr(vT1)}, {vr(vT1)}")
        for r in range(4):
            h(f"v_mul_f32 {vr(vKA + r)}, {vr(vKA + r)}, {vr(vT1)}")
        h(f"v_cvt_pk_bf16_f32 {vr(vVA)}, {vr(vKA)}, {vr(vKA + 1)}")
        h(f"v_cvt_pk_bf16_f32 {vr(vVA + 1)}, {vr(vKA + 2)}, {vr(vKA + 3)}")
        h(f"v_lshlrev_b32 v0, 3, v0")
        h(f"buffer_store_dwordx2 {vr(vVA, 2)}, v0, {sr(S_O, 4)}, {sr(sHEADOFF)} offen")
        h.label("L_hdone")
    dump_stamps(h, 8)
    h.raw("L_end:")
    h("s_endpgm")

    tail = f""".section .rodata,"a"
.p2align 6
.amdhsa_kernel {NAME}_kernel
  .amdhsa_next_free_vgpr 168
  .amdhsa_next_free_sgpr 96
  .amdhsa_accum_offset 168
  .amdhsa_group_segment_fixed_size 0
  .amdhsa_kernarg_size 64
  .amdhsa_user_sgpr_count 2
  .amdhsa_user_sgpr_kernarg_segment_ptr 1
  .amdhsa_system_sgpr_workgroup_id_x 1
.end_amdhsa_kernel
"""
    return e.text() + m.text() + h.text() + tail


if __name__ == "__main__":
    out = sys.argv[1]
    opt = {}
    for a in sys.argv[2:]:
        k, _, v = a.partition("=")
        opt[k] = v if v else True
        if k == "st_mod":
            opt[k] = " " + v.replace("+", " ")
    open(out, "w").write(gen(opt))
```

```python
import sys
import math
import struct
from asmgen import Emitter, vr, sr, interleave

NAME = "standalone__global_local_windowed_global_tokens__prompt"

HEADER = """; Kernarg layout for this problem (64 bytes, ptrs only, base s[0:1]):
;   offset   0: d_in[0] q  shape=(1, 32, 2048, 128) dtype=bfloat16 strides=(16777216, 524288, 256, 2) contiguous=True
;   offset   8: d_in[1] k  shape=(1, 32, 2048, 128) dtype=bfloat16 strides=(16777216, 524288, 256, 2) contiguous=True
;   offset  16: d_in[2] v  shape=(1, 32, 2048, 128) dtype=bfloat16 strides=(16777216, 524288, 256, 2) contiguous=True
;   offset  24: d_in[3] window  shape=(1,) dtype=int32 strides=(4,) contiguous=True
;   offset  32: d_in[4] n_global  shape=(1,) dtype=int32 strides=(4,) contiguous=True
"""


def f32bits(x):
    return struct.unpack("<I", struct.pack("<f", x))[0]


def gen(opt):
    O_DIRECT = opt.get("o_direct", False)
    LD = opt.get("ld", "")
    QLD = opt.get("qld", "")
    ST = opt.get("st", " sc1")
    NOCOMP = opt.get("nocomp", False)
    PROBE = opt.get("probe", None)
    STAMP = opt.get("stamp", False) or PROBE
    D = int(opt.get("depth", 4))
    THR = int(opt.get("thr", 18 - D))
    EARLY = int(opt.get("early", THR - 1))
    THR2 = int(opt.get("thr2", 18))
    NODIR = opt.get("nodir", False)
    SLEEP = int(opt.get("sleep", 1))
    PRIO = opt.get("prio", False)
    QCO = not opt.get("qdirect", False)
    assert not (QCO and O_DIRECT)

    TB = 32 * 2048 * 256
    HEADB = 2048 * 256
    L_STAGE, L_GK, L_GV, L_FLAG, L_K, L_V = 0, 8192, 9216, 10240, 13824, 79360
    VT, VP = 4224, 1056
    NH = 2
    NWAVE = 9 + NH
    QLEAD = int(opt.get("qlead", 0))
    NEG = f32bits(-1.0e30)
    CSCALE = f32bits((128 ** -0.5) * math.log2(math.e))

    S_Q, S_K, S_V, S_O, S_DBG, S_WS = 20, 24, 28, 32, 36, 40
    sWAVE, sHEADOFF, sROW0, sT0, sT1, sT2 = 44, 45, 46, 47, 48, 49
    sQOFF, sC, sNEG, sQ0, sHEAD, sCHUNK = 50, 51, 52, 53, 54, 55
    sEX = 56
    sB, sIT, sNEED, sDESC = 58, 59, 80, 81
    sX, sCNT, sW, sHI, sREC, sSTEP, sXV, sSTEPV = 82, 83, 84, 85, 86, 87, 88, 89
    sTS = 60

    vQ, vKA, vVA, vSW0, vSW1, vGK, vN, vA, vG4, vFLAG, vSW, vT0, vT1, vONE = 1, 2, 6, 10, 11, 12, 13, 14, 15, 16, 17, 18, 19, 20
    vSR, vSO, vG, vT2 = 24, 25, 26, 27
    vQR, vS, vOX, vPOOL, vGV = 28, 44, 68, 92, 164

    e = Emitter()
    uid = [0]

    def stamp(em, i):
        if STAMP:
            em(f"s_memrealtime {sr(sTS + 2 * i, 2)}")

    PTS = opt.get("pts", "A1,A2,A7,B1,B2").split(",")
    assert len(PTS) == 5

    def stamp_it(em, k):
        if not STAMP:
            return
        for it, nm in ((0, f"A{k}"), (1, f"B{k}")):
            if nm in PTS:
                uid[0] += 1
                u = uid[0]
                em(f"s_cmp_eq_u32 {sr(sIT)}, {it}")
                em(f"s_cbranch_scc0 L_sa{u}")
                stamp(em, PTS.index(nm) + 1)
                em.raw(f"L_sa{u}:")

    def poll(em, need):
        uid[0] += 1
        u = uid[0]
        em.label(f"L_poll{u}")
        em(f"ds_read_b32 {vr(vT2)}, {vr(vFLAG)}")
        em(f"v_readfirstlane_b32 {sr(sT0)}, {vr(vT2)}")
        em(f"s_cmp_ge_i32 {sr(sT0)}, {need}")
        em(f"s_cbranch_scc1 L_pdone{u}")
        if SLEEP:
            em(f"s_sleep {SLEEP}")
        em(f"s_branch L_poll{u}")
        em.raw(f"L_pdone{u}:")

    e.raw(HEADER + "; @launch grid=(256,1,1) block=(704,1,1) lds=163840")
    e.raw('.amdgcn_target "amdgcn-amd-amdhsa--gfx950"')
    e.raw(".text")
    e.raw(f".globl {NAME}_kernel")
    e.raw(".p2align 8")
    e.raw(f".type {NAME}_kernel,@function")
    e.raw(f"{NAME}_kernel:")
    e("s_load_dwordx4 s[4:7], s[0:1], 0")
    e("s_load_dwordx2 s[8:9], s[0:1], 16")
    e("s_load_dwordx4 s[12:15], s[0:1], 40")
    e("s_load_dwordx2 s[16:17], s[0:1], 56")
    e("s_cmp_ge_u32 s2, 256")
    e("s_cbranch_scc1 L_end")
    stamp(e, 0)
    if STAMP:
        e("s_memtime s[76:77]")
    e(f"v_lshrrev_b32 {vr(vT0)}, 6, v0")
    e(f"v_and_b32 {vr(vN)}, 15, v0")
    e(f"v_readfirstlane_b32 {sr(sWAVE)}, {vr(vT0)}")
    e(f"v_bfe_u32 {vr(vG)}, v0, 4, 2")
    e(f"s_and_b32 {sr(sT0)}, s2, 7")
    e(f"s_lshl_b32 {sr(sT0)}, {sr(sT0)}, 2")
    e(f"s_lshr_b32 {sr(sT1)}, s2, 6")
    e(f"s_add_u32 {sr(sHEAD)}, {sr(sT0)}, {sr(sT1)}")
    e(f"s_bfe_u32 {sr(sCHUNK)}, s2, 0x30003")
    e(f"s_lshl_b32 {sr(sHEADOFF)}, {sr(sHEAD)}, 19")
    e(f"s_lshl_b32 {sr(sT0)}, {sr(sCHUNK)}, 16")
    e(f"s_add_u32 {sr(sROW0)}, {sr(sHEADOFF)}, {sr(sT0)}")
    e(f"s_add_u32 {sr(sHI)}, {sr(sHEADOFF)}, {HEADB - 4096}")
    if NODIR:
        e(f"s_mov_b32 {sr(sDESC)}, 0")
    else:
        e(f"s_and_b32 {sr(sDESC)}, {sr(sCHUNK)}, 1")
    e(f"v_lshlrev_b32 {vr(vG4)}, 2, {vr(vG)}")
    e(f"v_mov_b32 {vr(vFLAG)}, {L_FLAG}")
    for b in (S_Q, S_K, S_V, S_O):
        e(f"s_mov_b32 {sr(b + 2)}, {TB}")
        e(f"s_mov_b32 {sr(b + 3)}, 0x20000")
    e(f"s_mov_b32 {sr(S_DBG + 2)}, 256")
    e(f"s_mov_b32 {sr(S_DBG + 3)}, 0x20000")
    e(f"s_mov_b32 {sr(S_WS + 2)}, {0x1000000}")
    e(f"s_mov_b32 {sr(S_WS + 3)}, 0x20000")
    e(f"s_cmp_lg_u32 {sr(sWAVE)}, 0")
    e("s_waitcnt lgkmcnt(0)")
    for b, src in ((S_K, 6), (S_V, 8), (S_Q, 4), (S_O, 12), (S_DBG, 14), (S_WS, 16)):
        e(f"s_mov_b64 {sr(b, 2)}, {sr(src, 2)}")
    e.flush()
    e("s_cbranch_scc1 L_notloader")

    def dump_stamps(em, tagn):
        if not STAMP:
            return
        stamp(em, 6)
        em("s_waitcnt vmcnt(0)")
        stamp(em, 7)
        em("s_memtime s[78:79]")
        em("s_waitcnt lgkmcnt(0)")
        if PROBE:
            which, fac, pw = (int(x) for x in PROBE.split(","))
            em("s_cmp_eq_u32 s2, 100")
            em(f"s_cbranch_scc0 L_probe_done{tagn}")
            em(f"s_cmp_eq_u32 {sr(sWAVE)}, {pw}")
            em(f"s_cbranch_scc0 L_probe_done{tagn}")
            em(f"s_sub_u32 {sr(sT0)}, {sr(sTS + 2 * which)}, {sr(sTS)}")
            em(f"s_mul_i32 {sr(sT0)}, {sr(sT0)}, {fac}")
            em(f"s_add_u32 {sr(sT0)}, {sr(sT0)}, 5000")
            em.label(f"L_probe{tagn}")
            em("s_memrealtime s[78:79]")
            em("s_waitcnt lgkmcnt(0)")
            em(f"s_sub_u32 {sr(sT1)}, s78, {sr(sTS)}")
            em(f"s_cmp_lt_u32 {sr(sT1)}, {sr(sT0)}")
            em(f"s_cbranch_scc1 L_probe{tagn}")
            em.label(f"L_probe_done{tagn}")
            return
        em(f"s_sub_u32 s76, s78, s76")
        em(f"s_add_u32 {sr(sT1)}, {sr(sWAVE)}, 8")
        em(f"s_cmp_ge_u32 {sr(sT1)}, {NWAVE}")
        em(f"s_cselect_b32 {sr(sT2)}, {NWAVE}, 0")
        em(f"s_sub_u32 {sr(sT1)}, {sr(sT1)}, {sr(sT2)}")
        em(f"s_mul_i32 {sr(sT0)}, s2, {NWAVE}")
        em(f"s_add_u32 {sr(sT0)}, {sr(sT0)}, {sr(sT1)}")
        em(f"s_lshl_b32 {sr(sT0)}, {sr(sT0)}, 6")
        em(f"s_add_u32 {sr(sT0)}, {sr(sT0)}, {0x800000}")
        for i in range(9):
            em(f"v_mov_b32 {vr(vPOOL + i)}, {sr(sTS + 2 * i)}")
        em("v_mov_b32 v0, 0")
        em("s_mov_b64 exec, 1")
        em(f"buffer_store_dwordx4 {vr(vPOOL, 4)}, v0, {sr(S_WS, 4)}, {sr(sT0)} offen")
        em(f"buffer_store_dwordx4 {vr(vPOOL + 4, 4)}, v0, {sr(S_WS, 4)}, {sr(sT0)} offen offset:16")
        em(f"buffer_store_dword {vr(vPOOL + 8)}, v0, {sr(S_WS, 4)}, {sr(sT0)} offen offset:32")

    ld = e.fork()
    vKD, vVD, vCNT = 2, 6, 7
    if PRIO:
        ld("s_setprio 3")
    ld(f"v_lshlrev_b32 v0, 8, {vr(vG)}")
    ld(f"v_xor_b32 {vr(vVD)}, {vr(vG4)}, {vr(vN)}")
    ld(f"v_lshl_add_u32 {vr(vVD)}, {vr(vVD)}, 4, v0")
    for j in range(4):
        ld(f"v_add_u32 {vr(vKD + j)}, {4 * j}, {vr(vG)}")
        ld(f"v_xor_b32 {vr(vKD + j)}, {vr(vKD + j)}, {vr(vN)}")
        ld(f"v_lshl_add_u32 {vr(vKD + j)}, {vr(vKD + j)}, 4, v0")

    def v_halo(em, hi_when_desc):
        em(f"s_cmp_eq_u32 {sr(sDESC)}, {1 if hi_when_desc else 0}")
        em(f"s_cselect_b32 {sr(sT0)}, {18 * VT}, 0")
        em(f"s_cselect_b32 {sr(sT1)}, {18 * 4096}, 0")
        em(f"s_add_u32 {sr(sT1)}, {sr(sT1)}, {sr(sROW0)}")
        em(f"s_sub_u32 {sr(sT1)}, {sr(sT1)}, 8192")
        for k in range(2):
            em(f"s_max_i32 {sr(sT2)}, {sr(sT1)}, {sr(sHEADOFF)}")
            em(f"s_min_i32 {sr(sT2)}, {sr(sT2)}, {sr(sHI)}")
            for j in range(4):
                em(f"s_add_u32 m0, {sr(sT0)}, {L_V + VT * k + 32 * j}")
                if k == 0 and j == 0:
                    em(f"s_add_u32 {sr(sT1)}, {sr(sT1)}, 4096")
                em(f"buffer_load_dwordx4 {vr(vVD)}, {sr(S_V, 4)}, {sr(sT2)} offen offset:{1024 * j}{LD} lds")

    ld(f"s_mov_b32 m0, {L_GK}")
    ld(f"buffer_load_dwordx4 {vr(vKD)}, {sr(S_K, 4)}, {sr(sHEADOFF)} offen lds")
    ld(f"s_mov_b32 m0, {L_GV}")
    ld(f"buffer_load_dwordx4 {vr(vVD)}, {sr(S_V, 4)}, {sr(sHEADOFF)} offen lds")
    v_halo(ld, True)
    ld(f"s_mul_i32 {sr(sX)}, {sr(sDESC)}, {15 * 4096}")
    ld(f"s_mul_i32 {sr(sSTEP)}, {sr(sDESC)}, -8192")
    ld(f"s_add_u32 {sr(sSTEP)}, {sr(sSTEP)}, 4096")
    ld(f"s_mul_i32 {sr(sXV)}, {sr(sDESC)}, {15 * VT}")
    ld(f"s_add_u32 {sr(sXV)}, {sr(sXV)}, {L_V + 2 * VT}")
    ld(f"s_mul_i32 {sr(sSTEPV)}, {sr(sDESC)}, {-2 * VT}")
    ld(f"s_add_u32 {sr(sSTEPV)}, {sr(sSTEPV)}, {VT}")
    ld(f"s_mov_b32 {sr(sCNT)}, {1 - D}")
    assert D >= 2
    ld.vm_q = []
    ld.label("L_ldloop")
    ld(f"s_add_u32 {sr(sT1)}, {sr(sX)}, {sr(sROW0)}")
    ld(f"s_add_u32 m0, {sr(sX)}, {L_K}")
    for j in range(4):
        ld(f"buffer_load_dwordx4 {vr(vKD + j)}, {sr(S_K, 4)}, {sr(sT1)} offen offset:{1024 * j}{LD} lds")
    for j in range(4):
        ld(f"s_add_u32 m0, {sr(sXV)}, {32 * j}")
        if j == 0:
            ld(f"s_add_u32 {sr(sX)}, {sr(sX)}, {sr(sSTEP)}")
        ld(f"buffer_load_dwordx4 {vr(vVD)}, {sr(S_V, 4)}, {sr(sT1)} offen offset:{1024 * j}{LD} lds")
    ld(f"s_add_u32 {sr(sXV)}, {sr(sXV)}, {sr(sSTEPV)}")
    ld(f"s_cmp_eq_u32 {sr(sCNT)}, 0")
    ld("s_cbranch_scc0 L_ldnobar")
    ld("s_waitcnt lgkmcnt(0)")
    ld("s_barrier")
    ld.raw("L_ldnobar:")
    ld(f"s_add_u32 {sr(sCNT)}, {sr(sCNT)}, 1")
    ld(f"v_mov_b32 {vr(vCNT)}, {sr(sCNT)}")
    ld(f"s_cmp_lt_i32 {sr(sCNT)}, {17 - D}")
    ld(f"s_waitcnt vmcnt({8 * D})")
    ld(f"ds_write_b32 {vr(vFLAG)}, {vr(vCNT)}")
    ld("s_cbranch_scc1 L_ldloop")
    stamp(ld, 1)
    ld.vm_q = []
    v_halo(ld, False)
    stamp(ld, 2)
    for k in range(D, -1, -1):
        ld(f"v_mov_b32 {vr(vCNT)}, {18 - k}")
        ld(f"s_waitcnt vmcnt({8 * k})")
        ld(f"ds_write_b32 {vr(vFLAG)}, {vr(vCNT)}")
        if k == 1:
            stamp(ld, 3)
    ld.vm_q = []
    if STAMP:
        ld(f"s_mov_b64 {sr(sTS + 8, 2)}, {sr(sTS, 2)}")
        ld(f"s_mov_b64 {sr(sTS + 10, 2)}, {sr(sTS, 2)}")
    dump_stamps(ld, "l")
    ld("s_endpgm")
    ld.raw("L_notloader:")

    c = e.fork()
    c(f"v_lshlrev_b32 {vr(vQ)}, 4, {vr(vG)}")
    c(f"v_lshl_add_u32 {vr(vQ)}, {vr(vN)}, 8, {vr(vQ)}")
    c(f"s_mov_b32 {sr(sC)}, {CSCALE:#x}")
    c(f"s_mov_b32 {sr(sNEG)}, {NEG:#x}")
    c(f"s_cmp_le_u32 {sr(sWAVE)}, {NH}")
    c.flush()
    c("s_cbranch_scc1 L_helper")

    def lane_addrs(em):
        em(f"v_xor_b32 {vr(vKA)}, {vr(vN)}, {vr(vG)}")
        em(f"v_lshlrev_b32 {vr(vKA)}, 4, {vr(vKA)}")
        em(f"v_lshl_add_u32 {vr(vKA)}, {vr(vN)}, 8, {vr(vKA)}")
        em(f"v_lshrrev_b32 {vr(vT0)}, 2, {vr(vN)}")
        em(f"v_and_b32 {vr(vT1)}, 3, {vr(vN)}")
        em(f"v_mul_u32_u24 {vr(vGV)}, {256 + 64}, {vr(vT0)}")
        em(f"v_lshl_add_u32 {vr(vGV)}, {vr(vT1)}, 3, {vr(vGV)}")
        em(f"v_mul_u32_u24 {vr(vT2)}, {VP}, {vr(vG)}")
        for s in range(1, 4):
            em(f"v_xor_b32 {vr(vKA + s)}, {64 * s}, {vr(vKA)}")
            em(f"v_xor_b32 {vr(vGV + s)}, {64 * s}, {vr(vGV)}")
        for s in range(4):
            em(f"v_add_u32 {vr(vVA + s)}, {vr(vT2)}, {vr(vGV + s)}")
        for i in range(4):
            em(f"v_mov_b32 {vr(vONE + i)}, 0x3f803f80")

    def tile_addrs(em, skoff, svoff):
        for s in range(4):
            em(f"v_add_u32 {vr(vKA + s)}, {skoff}, {vr(vKA + s)}")
            em(f"v_add_u32 {vr(vVA + s)}, {svoff}, {vr(vVA + s)}")

    def allreduce(em, op, x, y):
        em(f"v_mov_b32 {vr(y)}, {vr(x)}")
        em(f"v_permlane32_swap_b32 {vr(x)}, {vr(y)}")
        em(f"{op} {vr(x)}, {vr(x)}, {vr(y)}")
        em(f"v_mov_b32 {vr(y)}, {vr(x)}")
        em(f"v_permlane16_swap_b32 {vr(x)}, {vr(y)}")
        em(f"{op} {vr(x)}, {vr(x)}, {vr(y)}")

    def max_tree(vals, dst):
        ops = []
        vals = list(vals)
        ops.append(f"v_max3_f32 {vr(dst)}, {vr(vals[0])}, {vr(vals[1])}, {vr(vals[2])}")
        i = 3
        while i + 1 < len(vals):
            ops.append(f"v_max3_f32 {vr(dst)}, {vr(dst)}, {vr(vals[i])}, {vr(vals[i + 1])}")
            i += 2
        if i < len(vals):
            ops.append(f"v_max_f32 {vr(dst)}, {vr(dst)}, {vr(vals[i])}")
        return ops

    m = c.fork()
    KQ = [vOX + 4 * i for i in range(6)] + [vPOOL + 4 * i for i in range(18)]

    def q_load(em, sb):
        em(f"s_lshl_b32 {sr(sT1)}, {sb}, 12")
        em(f"s_add_u32 {sr(sT1)}, {sr(sT1)}, {sr(sROW0)}")
        for s in range(4):
            em(f"buffer_load_dwordx4 {vr(vQR + 4 * s, 4)}, {vr(vSO if QCO else vQ)}, {sr(S_Q, 4)}, {sr(sT1)} offen offset:{64 * s}{QLD}")
        em.vm_q = []

    def k_halo(em, sb):
        uid[0] += 1
        u = uid[0]
        em(f"s_sub_u32 {sr(sT0)}, {sb}, 2")
        em(f"s_cmp_lt_u32 {sr(sT0)}, 12")
        em.flush()
        em(f"s_cbranch_scc1 L_kh{u}")
        for t in (0, 1, 3, 4):
            em(f"s_add_u32 {sr(sT0)}, {sb}, {t - 2}")
            em(f"s_cmp_lt_u32 {sr(sT0)}, 16")
            em(f"s_cbranch_scc1 L_kh{u}_{t}")
            em(f"s_lshl_b32 {sr(sT0)}, {sr(sT0)}, 12")
            em(f"s_add_u32 {sr(sT0)}, {sr(sT0)}, {sr(sROW0)}")
            em(f"s_max_i32 {sr(sT0)}, {sr(sT0)}, {sr(sHEADOFF)}")
            em(f"s_min_i32 {sr(sT0)}, {sr(sT0)}, {sr(sHI)}")
            for s in range(4):
                em(f"buffer_load_dwordx4 {vr(KQ[4 + 4 * t + s], 4)}, {vr(vSO if QCO else vQ)}, {sr(S_K, 4)}, {sr(sT0)} offen offset:{64 * s}")
            em.raw(f"L_kh{u}_{t}:")
        em.raw(f"L_kh{u}:")
        em.vm_q = []

    m(f"s_sub_u32 {sr(sW)}, {sr(sWAVE)}, {1 + NH}")
    m(f"s_sub_u32 {sr(sT0)}, 15, {sr(sW)}")
    m(f"s_cmp_eq_u32 {sr(sDESC)}, 0")
    m(f"s_cselect_b32 {sr(sB)}, {sr(sW)}, {sr(sT0)}")
    m(f"v_lshrrev_b32 {vr(vT0)}, 2, {vr(vN)}")
    m(f"v_add_u32 {vr(vT2)}, {vr(vG4)}, {vr(vT0)}")
    m(f"v_and_b32 {vr(vT1)}, 3, {vr(vN)}")
    m(f"v_lshlrev_b32 {vr(vSO)}, 4, {vr(vT1)}")
    m(f"v_lshl_add_u32 {vr(vSO)}, {vr(vT2)}, 8, {vr(vSO)}")
    k_halo(m, sr(sB))
    m(f"s_cmp_gt_u32 {sr(sW)}, {QLEAD}")
    m("s_cbranch_scc1 L_qa_later")
    q_load(m, sr(sB))
    m.raw("L_qa_later:")
    lane_addrs(m)
    m(f"v_sub_u32 {vr(vA)}, {vr(vG4)}, {vr(vN)}")
    m(f"v_and_b32 {vr(vT1)}, 3, {vr(vN)}")
    m(f"v_xor_b32 {vr(vGK)}, {vr(vT1)}, {vr(vG)}")
    m(f"v_lshlrev_b32 {vr(vGK)}, 4, {vr(vGK)}")
    m(f"v_lshl_add_u32 {vr(vGK)}, {vr(vT1)}, 8, {vr(vGK)}")
    m(f"v_add_u32 {vr(vGK)}, {L_GK}, {vr(vGK)}")
    for u in range(4):
        m(f"v_add_u32 {vr(vGV + u)}, {L_GV}, {vr(vGV + u)}")
    if not O_DIRECT:
        m(f"s_lshl_b32 {sr(sT0)}, {sr(sW)}, 10")
        m(f"v_bfe_u32 {vr(vSW)}, {vr(vN)}, 1, 2")
        m(f"v_xor_b32 {vr(vSW)}, {vr(vSW)}, {vr(vG)}")
        m(f"v_lshlrev_b32 {vr(vSW)}, 4, {vr(vSW)}")
        m(f"v_lshl_add_u32 {vr(vSW)}, {vr(vN)}, 6, {vr(vSW)}")
        m(f"v_add_u32 {vr(vSW)}, {sr(sT0)}, {vr(vSW)}")
        m(f"v_bfe_u32 {vr(vSW0)}, {vr(vN)}, 1, 2")
        m(f"v_lshrrev_b32 {vr(vSW1)}, 1, {vr(vG)}")
        m(f"v_xor_b32 {vr(vSW0)}, {vr(vSW0)}, {vr(vSW1)}")
        m(f"v_lshlrev_b32 {vr(vSW0)}, 4, {vr(vSW0)}")
        m(f"v_lshl_add_u32 {vr(vSW0)}, {vr(vN)}, 6, {vr(vSW0)}")
        m(f"v_and_b32 {vr(vSW1)}, 1, {vr(vG)}")
        m(f"v_lshl_add_u32 {vr(vSW0)}, {vr(vSW1)}, 3, {vr(vSW0)}")
        m(f"v_add_u32 {vr(vSW0)}, {sr(sT0)}, {vr(vSW0)}")
        m(f"v_xor_b32 {vr(vSW1)}, 32, {vr(vSW0)}")
        m(f"v_add_u32 {vr(vT2)}, {vr(vG4)}, {vr(vT0)}")
        m(f"v_bfe_u32 {vr(vSR)}, {vr(vT2)}, 1, 2")
        m(f"v_xor_b32 {vr(vSR)}, {vr(vSR)}, {vr(vT1)}")
        m(f"v_lshlrev_b32 {vr(vSR)}, 4, {vr(vSR)}")
        m(f"v_lshl_add_u32 {vr(vSR)}, {vr(vT2)}, 6, {vr(vSR)}")
        m(f"v_add_u32 {vr(vSR)}, {sr(sT0)}, {vr(vSR)}")
    m(f"s_mov_b32 {sr(sIT)}, 0")
    m(f"s_mov_b32 {sr(sX)}, 0")
    m(f"s_add_u32 {sr(sNEED)}, {sr(sW)}, 4")
    m(f"s_lshl_b32 {sr(sSTEP)}, {sr(sB)}, 12")
    m(f"s_add_u32 {sr(sSTEP)}, {sr(sSTEP)}, {L_K - 8192}")
    m(f"s_mul_i32 {sr(sSTEPV)}, {sr(sB)}, {VT}")
    m(f"s_add_u32 {sr(sSTEPV)}, {sr(sSTEPV)}, {L_V}")
    m("s_barrier")
    m(f"s_cmp_gt_u32 {sr(sW)}, {QLEAD}")
    m("s_cbranch_scc0 L_block")
    m(f"s_sub_u32 {sr(sT2)}, {sr(sW)}, {QLEAD}")
    poll(m, sr(sT2))
    q_load(m, sr(sB))
    m.label("L_block")
    m(f"s_lshl_b32 {sr(sT0)}, {sr(sB)}, 12")
    m(f"s_add_u32 {sr(sQOFF)}, {sr(sT0)}, {sr(sROW0)}")
    tile_addrs(m, sr(sSTEP), sr(sSTEPV))
    m(f"s_lshl_b32 {sr(sT1)}, {sr(sB)}, 1")
    m(f"s_sub_u32 {sr(sT1)}, 15, {sr(sT1)}")
    m(f"s_lshl_b32 {sr(sSTEP)}, {sr(sT1)}, 12")
    m(f"s_mul_i32 {sr(sSTEPV)}, {sr(sT1)}, {VT}")
    m(f"s_lshl_b32 {sr(sQ0)}, {sr(sCHUNK)}, 8")
    m(f"s_lshl_b32 {sr(sT0)}, {sr(sB)}, 4")
    m(f"s_add_u32 {sr(sQ0)}, {sr(sQ0)}, {sr(sT0)}")

    def s_init(em):
        em(f"v_mov_b32 {vr(vT0)}, {sr(sNEG)}")
        for r in range(4):
            em(f"v_cmp_le_i32 vcc, {-r}, {vr(vA)}")
            em(f"v_mov_b32 {vr(vS + 4 + r)}, 0")
            em(f"v_mov_b32 {vr(vS + 8 + r)}, 0")
            em(f"v_cndmask_b32_e64 {vr(vS + r)}, {vr(vT0)}, 0, vcc")
        for r in range(4):
            em(f"v_cmp_ge_i32 vcc, {-r}, {vr(vA)}")
            em(f"v_mov_b32 {vr(vS + 12 + r)}, 0")
            em(f"v_mov_b32 {vr(vS + 20 + r)}, 0")
            em(f"v_cndmask_b32_e64 {vr(vS + 16 + r)}, {vr(vT0)}, 0, vcc")
        em(f"v_cmp_eq_u32 vcc, 0, {vr(vG4)}")
        em(f"s_sub_u32 {sr(sT0)}, {sr(sQ0)}, 34")
        em(f"s_cmp_lt_u32 {sr(sT0)}, {2001 - 34}")
        em(f"v_cndmask_b32_e64 {vr(vS + 20)}, {vr(vT0)}, 0, vcc")
        em(f"v_cndmask_b32_e64 {vr(vS + 21)}, {vr(vT0)}, 0, vcc")
        em.flush()
        em(f"s_cbranch_scc1 L_nofix")
        em(f"v_add_u32 {vr(vT1)}, {sr(sT0)}, {vr(vG4)}")
        em(f"s_movk_i32 {sr(sT1)}, 2046")
        for t in range(5):
            for r in range(4):
                em(f"v_add_u32 v0, {16 * t + r}, {vr(vT1)}")
                em(f"v_cmp_gt_u32 vcc, {sr(sT1)}, v0")
                em(f"v_cndmask_b32 {vr(vS + 4 * t + r)}, {vr(vT0)}, {vr(vS + 4 * t + r)}, vcc")
        em.label(f"L_nofix")

    OACC = [vS + 12, vS + 16, vS + 20] + [vOX + 4 * i for i in range(5)]
    vL = vOX + 20

    def v_reads(T):
        u, p = T // 2, T % 2
        q = vPOOL + 12 * (T % 6)
        r = [f"ds_read_b64_tr_b16 {vr(q + 2 * t, 2)}, {vr(vVA + u)} offset:{VT * t + 32 * p}" for t in range(5)]
        r.append(f"ds_read_b64_tr_b16 {vr(q + 10, 2)}, {vr(vGV + u)} offset:{32 * p}")
        return r

    if not NOCOMP:
        s_init(m)
    poll(m, sr(sNEED))
    stamp_it(m, 1)
    if not NOCOMP:
        for s in range(4):
            if s:
                m(f"v_xor_b32 {vr(KQ[s])}, {64 * s}, {vr(vGK)}")
            m(f"ds_read_b128 {vr(KQ[s], 4)}, {vr(KQ[s]) if s else vr(vGK)}")
        for t in (2, 0, 1, 3, 4):
            if t != 2:
                m(f"s_add_u32 {sr(sT0)}, {sr(sB)}, {t - 2}")
                m(f"s_cmp_lt_u32 {sr(sT0)}, 16")
                m(f"s_cbranch_scc0 L_skipk{t}")
            for s in range(4):
                m(f"ds_read_b128 {vr(KQ[4 + 4 * t + s], 4)}, {vr(vKA + s)} offset:{4096 * t}")
            if t != 2:
                m.raw(f"L_skipk{t}:")
        m.wait_lgkm_all()
    def relayout(q):
        m(f"ds_write_b128 {vr(vSR)}, {vr(q, 4)}")
        m(f"ds_read_b128 {vr(q, 4)}, {vr(vSW)}")
    if not NOCOMP:
        m(f"s_sub_u32 {sr(sT0)}, {sr(sB)}, 2")
        m(f"s_cmp_lt_u32 {sr(sT0)}, 12")
        m(f"s_cbranch_scc1 L_nohalo")
        m(f"s_cmp_lg_u32 {sr(sIT)}, 0")
        m("s_cbranch_scc1 L_wh8")
        m("s_waitcnt vmcnt(4)")
        m.raw("L_wh8:")
        m("s_waitcnt vmcnt(8)")
        if QCO:
            for t in (0, 1, 3, 4):
                m(f"s_add_u32 {sr(sT0)}, {sr(sB)}, {t - 2}")
                m(f"s_cmp_lt_u32 {sr(sT0)}, 16")
                m(f"s_cbranch_scc1 L_rl{t}")
                for s in range(4):
                    relayout(KQ[4 + 4 * t + s])
                m.raw(f"L_rl{t}:")
            m.wait_lgkm_all()
        m.raw("L_nohalo:")
    m(f"s_cmp_lg_u32 {sr(sIT)}, 0")
    m("s_cbranch_scc1 L_wq4")
    m("s_waitcnt vmcnt(0)")
    m.raw("L_wq4:")
    m("s_waitcnt vmcnt(4)")
    stamp_it(m, 2)
    if QCO and not NOCOMP:
        for s in range(4):
            relayout(vQR + 4 * s)
    if not NOCOMP:
        for s in range(4):
            m(f"v_mfma_f32_16x16x32_bf16 {vr(vS + 20, 4)}, {vr(KQ[s], 4)}, {vr(vQR + 4 * s, 4)}, {vr(vS + 20, 4)}")
        for t in range(5):
            for s in range(4):
                m(f"v_mfma_f32_16x16x32_bf16 {vr(vS + 4 * t, 4)}, {vr(KQ[4 + 4 * t + s], 4)}, {vr(vQR + 4 * s, 4)}, {vr(vS + 4 * t, 4)}")
    else:
        for i in range(16):
            m(f"v_mov_b32 {vr(vPOOL + i)}, {vr(vQR + i)}")
    m(f"s_xor_b32 {sr(sB)}, {sr(sB)}, 15")
    m(f"s_cmp_ge_u32 {sr(sNEED)}, {EARLY}")
    m(f"s_cselect_b32 {sr(sX)}, 1, 0")
    m(f"s_cmp_gt_u32 {sr(sX)}, {sr(sIT)}")
    m.flush()
    m("s_cbranch_scc0 L_noearly")
    q_load(m, sr(sB))
    m.raw("L_noearly:")
    stamp_it(m, 3)
    if not NOCOMP:
        vals = [vS + 20, vS + 21] + [vS + i for i in range(20)]
        pre = []
        for T in range(6):
            pre += v_reads(T)
        seq = max_tree(vals, vT0)
        for op in interleave(seq, pre[:6], 2):
            m(op)
        allreduce(m, "v_max_f32", vT0, vT1)
        m(f"v_mul_f32 {vr(vT0)}, {sr(sC)}, {vr(vT0)}")
        NV = 22
        fm = [f"v_fma_f32 {vr(vS + i)}, {vr(vS + i)}, {sr(sC)}, -{vr(vT0)}" for i in range(NV)]
        ex = [f"v_exp_f32 {vr(vS + i)}, {vr(vS + i)}" for i in range(NV)]
        seq = fm[:2]
        for i in range(NV):
            seq.append(ex[i])
            if i + 2 < NV:
                seq.append(fm[i + 2])
            if i >= 3 and i % 2 == 1:
                k = (i - 3) // 2
                seq.append(f"v_cvt_pk_bf16_f32 {vr(vS + k)}, {vr(vS + 2 * k)}, {vr(vS + 2 * k + 1)}")
        seq.append(f"v_mov_b32 {vr(vS + 11)}, 0")
        seq.append(f"v_cvt_pk_bf16_f32 {vr(vS + 10)}, {vr(vS + 20)}, {vr(vS + 21)}")
        for op in interleave(seq, pre[6:], 2):
            m(op)
        stamp_it(m, 4)
        for k in range(3):
            m(f"v_mfma_f32_16x16x32_bf16 {vr(vL, 4)}, {vr(vONE, 4)}, {vr(vS + 4 * k, 4)}, {'0' if k == 0 else vr(vL, 4)}")
        for T in range(8):
            q = vPOOL + 12 * (T % 6)
            o = vr(OACC[T], 4)
            for k in range(3):
                m(f"v_mfma_f32_16x16x32_bf16 {o}, {vr(q + 4 * k, 4)}, {vr(vS + 4 * k, 4)}, {'0' if k == 0 else o}")
            if T + 6 < 8:
                for op in v_reads(T + 6):
                    m(op)
            if T == 2:
                m(f"v_rcp_f32 {vr(vT0)}, {vr(vL)}")
    stamp_it(m, 5)
    m(f"s_cmp_eq_u32 {sr(sQ0)}, 0")
    if O_DIRECT:
        m(f"s_cselect_b32 {sr(sEX)}, 0xfffcfffc, -1")
        m(f"s_mov_b32 {sr(sEX + 1)}, {sr(sEX)}")
    else:
        m(f"s_cselect_b32 {sr(sEX)}, 0xffffff00, -1")
        m(f"s_mov_b32 {sr(sEX + 1)}, -1")
    W = vPOOL + 40
    R = vPOOL + 24
    if NOCOMP:
        W = R = vPOOL
    for u in range(4):
        if not NOCOMP:
            for p in range(2):
                o = OACC[2 * u + p]
                for r in range(4):
                    m(f"v_mul_f32 {vr(o + r)}, {vr(o + r)}, {vr(vT0)}")
                m(f"v_cvt_pk_bf16_f32 {vr(W + 4 * u + 2 * p)}, {vr(o)}, {vr(o + 1)}")
                m(f"v_cvt_pk_bf16_f32 {vr(W + 4 * u + 2 * p + 1)}, {vr(o + 2)}, {vr(o + 3)}")
                m(f"ds_write_b64 {vr(vSW1 if p else vSW0)}, {vr(W + 4 * u + 2 * p, 2)}")
        if O_DIRECT:
            m(f"s_mov_b64 exec, {sr(sEX, 2)}")
            m(f"buffer_store_dwordx4 {vr(W + 4 * u, 4)}, {vr(vQ)}, {sr(S_O, 4)}, {sr(sQOFF)} offen offset:{64 * u}{ST}")
            m("s_mov_b64 exec, -1")
        elif not NOCOMP:
            m(f"ds_read_b128 {vr(R + 4 * u, 4)}, {vr(vSR)}")
    assert not O_DIRECT
    m.wait_lgkm_all()
    stamp_it(m, 6)
    m(f"s_cmp_lg_u32 {sr(sIT)}, 0")
    m.flush()
    m("s_cbranch_scc1 L_store")
    if not NOCOMP:
        k_halo(m, sr(sB))
    m(f"s_cmp_lg_u32 {sr(sX)}, 0")
    m("s_cbranch_scc1 L_qdone")
    poll(m, THR)
    q_load(m, sr(sB))
    m.raw("L_qdone:")
    poll(m, THR2)
    m.raw("L_store:")
    m(f"s_mov_b64 exec, {sr(sEX, 2)}")
    for u in range(4):
        m(f"buffer_store_dwordx4 {vr(R + 4 * u, 4)}, {vr(vSO)}, {sr(S_O, 4)}, {sr(sQOFF)} offen offset:{64 * u}{ST}")
    m("s_mov_b64 exec, -1")
    m.vm_q = []
    stamp_it(m, 7)
    m(f"s_mov_b32 {sr(sNEED)}, 18")
    m(f"s_add_u32 {sr(sIT)}, {sr(sIT)}, 1")
    m(f"s_cmp_eq_u32 {sr(sIT)}, 1")
    m.flush()
    m("s_cbranch_scc1 L_block")
    m.raw("L_mdone:")
    dump_stamps(m, "m")
    m("s_endpgm")

    h = c.fork()
    h.raw("L_helper:")
    hS, hO, hK, hV, vM = 44, 56, 92, 124, 156
    hL = hO + 32
    for i in range(16):
        h(f"v_mov_b32 {vr(vQR + i)}, 0")
    h("s_mov_b32 exec_lo, 0x00030003")
    h("s_mov_b32 exec_hi, 0x00030003")
    for s in range(4):
        h(f"buffer_load_dwordx4 {vr(vQR + 4 * s, 4)}, {vr(vQ)}, {sr(S_Q, 4)}, {sr(sHEADOFF)} offen offset:{64 * s}")
    h("s_mov_b64 exec, -1")
    lane_addrs(h)
    h(f"v_lshlrev_b32 {vr(vA)}, 4, {vr(vG)}")
    h(f"v_lshl_add_u32 {vr(vA)}, {vr(vN)}, 9, {vr(vA)}")
    h(f"v_lshlrev_b32 {vr(vSR)}, 3, {vr(vN)}")
    for i in range(36):
        h(f"v_mov_b32 {vr(hO + i)}, 0")
    h(f"v_mov_b32 {vr(vM)}, {sr(sNEG)}")
    h(f"s_sub_u32 {sr(sW)}, {sr(sWAVE)}, 1")
    h(f"s_lshl_b32 {sr(sT0)}, {sr(sW)}, 1")
    h(f"s_add_u32 {sr(sNEED)}, {sr(sT0)}, 3")
    h(f"s_sub_u32 {sr(sT1)}, 14, {sr(sT0)}")
    h(f"s_cmp_eq_u32 {sr(sDESC)}, 0")
    h(f"s_cselect_b32 {sr(sT0)}, {sr(sT0)}, {sr(sT1)}")
    h(f"s_cselect_b32 {sr(sSTEPV)}, 1, -1")
    h(f"s_mul_i32 {sr(sSTEP)}, {sr(sSTEPV)}, {2 * NH * 4096}")
    h(f"s_mul_i32 {sr(sSTEPV)}, {sr(sSTEPV)}, {2 * NH * VT}")
    h(f"s_lshl_b32 {sr(sT1)}, {sr(sT0)}, 12")
    h(f"s_add_u32 {sr(sT1)}, {sr(sT1)}, {L_K}")
    h(f"s_mul_i32 {sr(sT2)}, {sr(sT0)}, {VT}")
    h(f"s_add_u32 {sr(sT2)}, {sr(sT2)}, {L_V + 2 * VT}")
    tile_addrs(h, sr(sT1), sr(sT2))
    h(f"s_lshl_b32 {sr(sREC)}, {sr(sHEAD)}, 3")
    h(f"s_add_u32 {sr(sREC)}, {sr(sREC)}, {sr(sCHUNK)}")
    h(f"s_mul_i32 {sr(sREC)}, {sr(sREC)}, {NH}")
    h(f"s_add_u32 {sr(sREC)}, {sr(sREC)}, {sr(sW)}")
    h(f"s_lshl_b32 {sr(sREC)}, {sr(sREC)}, 11")
    h("s_barrier")
    h.wait_vm_all()
    h.label("L_hloop")
    poll(h, sr(sNEED))
    if not NOCOMP:
        for i in range(8):
            h(f"ds_read_b128 {vr(hK + 4 * i, 4)}, {vr(vKA + i % 4)} offset:{4096 * (i // 4)}")
        hvr = []
        for T in range(8):
            for j in range(2):
                hvr.append(f"ds_read_b64_tr_b16 {vr(hV + 4 * T + 2 * j, 2)}, {vr(vVA + T // 2)} offset:{VT * j + 32 * (T % 2)}")
        for i in range(8):
            t, s = i // 4, i % 4
            h(f"v_mfma_f32_16x16x32_bf16 {vr(hS + 4 * t, 4)}, {vr(hK + 4 * i, 4)}, {vr(vQR + 4 * s, 4)}, {'0' if s == 0 else vr(hS + 4 * t, 4)}")
            h(hvr[2 * i])
            h(hvr[2 * i + 1])
        for op in max_tree([hS + i for i in range(8)], vT0):
            h(op)
        allreduce(h, "v_max_f32", vT0, vT1)
        h(f"v_mul_f32 {vr(vT0)}, {sr(sC)}, {vr(vT0)}")
        h(f"v_max_f32 {vr(vT0)}, {vr(vT0)}, {vr(vM)}")
        h(f"v_sub_f32 {vr(vT1)}, {vr(vM)}, {vr(vT0)}")
        h(f"v_exp_f32 {vr(vT1)}, {vr(vT1)}")
        h(f"v_mov_b32 {vr(vM)}, {vr(vT0)}")
        for i in range(8):
            h(f"v_fma_f32 {vr(hS + i)}, {vr(hS + i)}, {sr(sC)}, -{vr(vT0)}")
        for i in range(8):
            h(f"v_exp_f32 {vr(hS + i)}, {vr(hS + i)}")
        for i in range(33):
            h(f"v_mul_f32 {vr(hO + i)}, {vr(hO + i)}, {vr(vT1)}")
        for k in range(4):
            h(f"v_cvt_pk_bf16_f32 {vr(hS + k)}, {vr(hS + 2 * k)}, {vr(hS + 2 * k + 1)}")
        h(f"v_mfma_f32_16x16x32_bf16 {vr(hL, 4)}, {vr(vONE, 4)}, {vr(hS, 4)}, {vr(hL, 4)}")
        for T in range(8):
            o = vr(hO + 4 * T, 4)
            h(f"v_mfma_f32_16x16x32_bf16 {o}, {vr(hV + 4 * T, 4)}, {vr(hS, 4)}, {o}")
    tile_addrs(h, sr(sSTEP), sr(sSTEPV))
    h(f"s_add_u32 {sr(sNEED)}, {sr(sNEED)}, {2 * NH}")
    h(f"s_cmp_le_u32 {sr(sNEED)}, 17")
    h.flush()
    h("s_cbranch_scc1 L_hloop")
    stamp(h, 1)
    if STAMP:
        for i in (2, 3, 4, 5):
            h(f"s_mov_b64 {sr(sTS + 2 * i, 2)}, {sr(sTS, 2)}")
    if not NOCOMP:
        h(f"v_mov_b32 {vr(vM + 1)}, {vr(hL)}")
        h("s_mov_b32 exec_lo, 0x00030003")
        h("s_mov_b32 exec_hi, 0x00030003")
        for T in range(8):
            h(f"buffer_store_dwordx4 {vr(hO + 4 * T, 4)}, {vr(vA)}, {sr(S_WS, 4)}, {sr(sREC)} offen offset:{64 * T} sc1")
        h("s_mov_b64 exec, 3")
        h(f"buffer_store_dwordx2 {vr(vM, 2)}, {vr(vSR)}, {sr(S_WS, 4)}, {sr(sREC)} offen offset:1024 sc1")
        h("s_mov_b64 exec, 1")
        h(f"s_lshl_b32 {sr(sT0)}, {sr(sHEAD)}, 2")
        h("v_mov_b32 v0, 1")
        h.wait_vm_all()
        stamp(h, 2)
        h(f"buffer_atomic_add v0, off, {sr(S_DBG, 4)}, {sr(sT0)} sc0")
        h(f"v_readfirstlane_b32 {sr(sT1)}, v0")
        h("s_mov_b64 exec, -1")
        stamp(h, 3)
        h(f"s_cmp_eq_u32 {sr(sT1)}, {8 * NH - 1}")
        h.flush()
        h("s_cbranch_scc0 L_hdone")
        h(f"v_lshlrev_b32 v0, 4, {vr(vG)}")
        h(f"v_add_u32 v0, v0, {vr(vN)}")
        h(f"v_lshlrev_b32 {vr(vA)}, 4, v0")
        h(f"v_lshrrev_b32 {vr(vSR)}, 5, v0")
        h(f"v_lshlrev_b32 {vr(vSR)}, 3, {vr(vSR)}")
        h(f"s_mul_i32 {sr(sREC)}, {sr(sHEAD)}, {NH * 16384}")
        cO, cS = 56, 120
        NR = 8 * NH
        for i in range(NR):
            if i % 2 == 0 and i:
                h(f"s_add_u32 {sr(sREC)}, {sr(sREC)}, 4096")
            h(f"buffer_load_dwordx2 {vr(cS + 2 * i, 2)}, {vr(vSR)}, {sr(S_WS, 4)}, {sr(sREC)} offen offset:{2048 * (i % 2) + 1024} sc1")
            h(f"buffer_load_dwordx4 {vr(cO + 4 * i, 4)}, {vr(vA)}, {sr(S_WS, 4)}, {sr(sREC)} offen offset:{2048 * (i % 2)} sc1")
        h(f"v_lshlrev_b32 v0, 3, v0")
        h.wait_vm_all()
        stamp(h, 4)
        for op in max_tree([cS + 2 * i for i in range(NR)], vT0):
            h(op)
        for i in range(NR):
            h(f"v_sub_f32 {vr(cS + 2 * i)}, {vr(cS + 2 * i)}, {vr(vT0)}")
        for i in range(NR):
            h(f"v_exp_f32 {vr(cS + 2 * i)}, {vr(cS + 2 * i)}")
        h(f"v_mul_f32 {vr(vT1)}, {vr(cS)}, {vr(cS + 1)}")
        for r in range(4):
            h(f"v_mul_f32 {vr(vKA + r)}, {vr(cS)}, {vr(cO + r)}")
        for i in range(1, NR):
            h(f"v_fmac_f32 {vr(vT1)}, {vr(cS + 2 * i)}, {vr(cS + 2 * i + 1)}")
            for r in range(4):
                h(f"v_fmac_f32 {vr(vKA + r)}, {vr(cS + 2 * i)}, {vr(cO + 4 * i + r)}")
        h(f"v_rcp_f32 {vr(vT1)}, {vr(vT1)}")
        for r in range(4):
            h(f"v_mul_f32 {vr(vKA + r)}, {vr(vKA + r)}, {vr(vT1)}")
        h(f"v_cvt_pk_bf16_f32 {vr(vVA)}, {vr(vKA)}, {vr(vKA + 1)}")
        h(f"v_cvt_pk_bf16_f32 {vr(vVA + 1)}, {vr(vKA + 2)}, {vr(vKA + 3)}")
        h(f"buffer_store_dwordx2 {vr(vVA, 2)}, v0, {sr(S_O, 4)}, {sr(sHEADOFF)} offen sc1")
        h.label("L_hdone")
    dump_stamps(h, "h")
    h.raw("L_end:")
    h("s_endpgm")

    tail = f""".section .rodata,"a"
.p2align 6
.amdhsa_kernel {NAME}_kernel
  .amdhsa_next_free_vgpr 168
  .amdhsa_next_free_sgpr 96
  .amdhsa_accum_offset 168
  .amdhsa_group_segment_fixed_size 0
  .amdhsa_kernarg_size 64
  .amdhsa_user_sgpr_count 2
  .amdhsa_user_sgpr_kernarg_segment_ptr 1
  .amdhsa_system_sgpr_workgroup_id_x 1
.end_amdhsa_kernel
"""
    return e.text() + ld.text() + c.text() + m.text() + h.text() + tail


if __name__ == "__main__":
    out = sys.argv[1]
    opt = {}
    for a in sys.argv[2:]:
        k, _, v = a.partition("=")
        opt[k] = v if v else True
        if k in ("st", "ld", "qld"):
            opt[k] = (" " + v.replace("+", " ")) if v != "none" else ""
    open(out, "w").write(gen(opt))
```

```python
import sys
import math
import struct
from asmgen import Emitter, vr, sr

NAME = "standalone__global_local_windowed_global_tokens__prompt"

HEADER = """; Kernarg layout for this problem (64 bytes, ptrs only, base s[0:1]):
;   offset   0: d_in[0] q  shape=(1, 32, 2048, 128) dtype=bfloat16 strides=(16777216, 524288, 256, 2) contiguous=True
;   offset   8: d_in[1] k  shape=(1, 32, 2048, 128) dtype=bfloat16 strides=(16777216, 524288, 256, 2) contiguous=True
;   offset  16: d_in[2] v  shape=(1, 32, 2048, 128) dtype=bfloat16 strides=(16777216, 524288, 256, 2) contiguous=True
;   offset  24: d_in[3] window  shape=(1,) dtype=int32 strides=(4,) contiguous=True
;   offset  32: d_in[4] n_global  shape=(1,) dtype=int32 strides=(4,) contiguous=True
"""


def f32bits(x):
    return struct.unpack("<I", struct.pack("<f", x))[0]


def merge(a, b):
    out, nb = [], 0
    for i, x in enumerate(a):
        out.append(x)
        want = (i + 1) * len(b) // len(a)
        out += b[nb:want]
        nb = want
    return out + b[nb:]


def gen(opt):
    LD = opt.get("ld", "")
    QLD = opt.get("qld", "")
    ST = opt.get("st", " sc1")
    STB = opt.get("stb", ST)
    NOCOMP = opt.get("nocomp", False)
    PROBE = opt.get("probe", None)
    STAMP = opt.get("stamp", False) or PROBE
    D = int(opt.get("depth", 3))
    SLEEP = int(opt.get("sleep", 1))
    QLEAD = int(opt.get("qlead", 0))
    QL2 = int(opt.get("ql2", 0))
    THRMIN = int(opt.get("thrmin", 0))
    EW = int(opt.get("ew", 6))
    PST = int(opt.get("pst", 32))
    DUAL = opt.get("dual", "plain")
    PRIOW = int(opt.get("priow", 99))
    PRIOH = int(opt.get("prioh", 0))
    ROT = int(opt.get("rot", 6))
    PK = opt.get("pk", False)
    CPF = int(opt.get("cpf", 0))
    PTS = opt.get("pts", "A2,A6,B1,B2,B6").split(",")
    assert len(PTS) == 5 and D >= 2
    assert all(((w + ROT) & 7) < 6 for w in range(EW, 8))

    TB = 32 * 2048 * 256
    HEADB = 2048 * 256
    L_STAGE, L_GK, L_GV, L_FLAG, L_K, L_V = 0, 8192, 9216, 10240, 13824, 79360
    L_MRG = 10368
    VT, VP = 4224, 1056
    NH = 2
    NWAVE = 9 + NH
    NEG = f32bits(-1.0e30)
    CSCALE = f32bits((128 ** -0.5) * math.log2(math.e))

    S_Q, S_K, S_V, S_O, S_DBG, S_WS = 20, 24, 28, 32, 36, 40
    sWAVE, sHEADOFF, sROW0, sT0, sT1, sT2 = 44, 45, 46, 47, 48, 49
    sQOFF, sNEG, sQ0, sHEAD, sCHUNK, sDESC = 50, 51, 52, 53, 54, 55
    sEX = 56
    sC = 58
    sTS = 60
    sB, sIT, sNEED, sX, sCNT, sW, sHI, sREC, sSTEP, sXV, sSTEPV, sPARK, sREQ, sB2 = range(80, 94)
    sMASK = 2

    vKA, vVA, vSW0, vSW1, vGK, vN, vG, vG4 = 2, 6, 10, 11, 12, 13, 14, 15
    vFLAG, vSW, vT0, vT1, vONE, vSR, vSO, vT3, vT2 = 16, 17, 18, 19, 20, 24, 25, 26, 27
    vQR, vS, vOX, vPOOL, vGV = 28, 44, 68, 92, 164

    uid = [0]

    def newid():
        uid[0] += 1
        return uid[0]

    def stamp(em, i):
        if STAMP:
            em(f"s_memrealtime {sr(sTS + 2 * i, 2)}")

    def stamp_it(em, k, only=None):
        if not STAMP:
            return
        for it, nm in ((0, f"A{k}"), (1, f"B{k}")):
            if nm in PTS and only in (None, it):
                if only is None:
                    u = newid()
                    em(f"s_cmp_eq_u32 {sr(sIT)}, {it}")
                    em(f"s_cbranch_scc0 L_sa{u}")
                stamp(em, PTS.index(nm) + 1)
                if only is None:
                    em.raw(f"L_sa{u}:")

    def poll(em, need):
        u = newid()
        em.label(f"L_poll{u}")
        em(f"ds_read_b32 {vr(vT2)}, {vr(vFLAG)}")
        em(f"v_readfirstlane_b32 {sr(sT0)}, {vr(vT2)}")
        em(f"s_cmp_ge_i32 {sr(sT0)}, {need}")
        em(f"s_cbranch_scc1 L_pdone{u}")
        if SLEEP:
            em(f"s_sleep {SLEEP}")
        em(f"s_branch L_poll{u}")
        em.raw(f"L_pdone{u}:")

    def poll_bits(em, smask, first_read_done=False):
        u = newid()
        if first_read_done:
            em(f"v_readfirstlane_b32 {sr(sT0)}, {vr(vT2)}")
            em(f"s_andn2_b32 {sr(sT0)}, {smask}, {sr(sT0)}")
            em(f"s_cbranch_scc0 L_pdone{u}")
            keep = (list(em.ds_q), list(em.hist))
            em.lines.append(f"L_poll{u}:")
        else:
            em.label(f"L_poll{u}")
        em(f"ds_read_b32 {vr(vT2)}, {vr(vFLAG)} offset:4")
        em(f"v_readfirstlane_b32 {sr(sT0)}, {vr(vT2)}")
        em(f"s_andn2_b32 {sr(sT0)}, {smask}, {sr(sT0)}")
        em(f"s_cbranch_scc0 L_pdone{u}")
        if SLEEP:
            em(f"s_sleep {SLEEP}")
        em(f"s_branch L_poll{u}")
        em.raw(f"L_pdone{u}:")
        if first_read_done:
            em.ds_q, em.hist = keep

    def set_bit(em, sbit):
        em(f"s_lshl_b32 {sr(sT0)}, 1, {sbit}")
        em(f"v_mov_b32 {vr(vT2)}, {sr(sT0)}")
        em("s_mov_b64 exec, 1")
        em(f"ds_or_b32 {vr(vFLAG)}, {vr(vT2)} offset:4")
        em("s_mov_b64 exec, -1")

    def park_addr(em, sw, dst):
        em(f"s_sub_u32 {sr(sT1)}, 19, {sw}")
        em(f"s_cmp_eq_u32 {sr(sDESC)}, 0")
        em(f"s_cselect_b32 {sr(sT1)}, {sw}, {sr(sT1)}")
        em(f"s_mul_i32 {sr(sT2)}, {sr(sT1)}, {VT}")
        em(f"s_add_u32 {sr(sT2)}, {sr(sT2)}, {L_V}")
        em(f"s_lshl_b32 {sr(sT1)}, {sr(sT1)}, 12")
        em(f"s_add_u32 {sr(sT1)}, {sr(sT1)}, {L_K - 8192}")
        em(f"s_cmp_lt_u32 {sw}, 2")
        em(f"s_cselect_b32 {dst}, {sr(sT2)}, {sr(sT1)}")

    def stage_read_addrs(em):
        em(f"v_lshrrev_b32 {vr(vT0)}, 2, {vr(vN)}")
        em(f"v_add_u32 {vr(vT2)}, {vr(vG4)}, {vr(vT0)}")
        em(f"v_and_b32 {vr(vT1)}, 3, {vr(vN)}")
        em(f"v_lshlrev_b32 {vr(vSO)}, 4, {vr(vT1)}")
        em(f"v_lshl_add_u32 {vr(vSO)}, {vr(vT2)}, 8, {vr(vSO)}")
        em(f"v_bfe_u32 {vr(vSR)}, {vr(vT2)}, 1, 2")
        em(f"v_xor_b32 {vr(vSR)}, {vr(vSR)}, {vr(vT1)}")
        em(f"v_lshlrev_b32 {vr(vSR)}, 4, {vr(vSR)}")
        em(f"v_lshl_add_u32 {vr(vSR)}, {vr(vT2)}, 6, {vr(vSR)}")

    def dump_stamps(em, tagn):
        if not STAMP:
            return
        stamp(em, 6)
        em("s_waitcnt vmcnt(0)")
        stamp(em, 7)
        em("s_memtime s[78:79]")
        em("s_waitcnt lgkmcnt(0)")
        if PROBE:
            which, fac, pw = (int(x) for x in PROBE.split(","))
            em(f"s_cmp_eq_u32 {sr(sWG)}, 100")
            em(f"s_cbranch_scc0 L_probe_done{tagn}")
            em(f"s_cmp_eq_u32 {sr(sWAVE)}, {pw}")
            em(f"s_cbranch_scc0 L_probe_done{tagn}")
            em(f"s_sub_u32 {sr(sT0)}, {sr(sTS + 2 * which)}, {sr(sTS)}")
            em(f"s_mul_i32 {sr(sT0)}, {sr(sT0)}, {fac}")
            em(f"s_add_u32 {sr(sT0)}, {sr(sT0)}, 5000")
            em.label(f"L_probe{tagn}")
            em("s_memrealtime s[78:79]")
            em("s_waitcnt lgkmcnt(0)")
            em(f"s_sub_u32 {sr(sT1)}, s78, {sr(sTS)}")
            em(f"s_cmp_lt_u32 {sr(sT1)}, {sr(sT0)}")
            em(f"s_cbranch_scc1 L_probe{tagn}")
            em.label(f"L_probe_done{tagn}")
            return
        em("s_sub_u32 s76, s78, s76")
        em(f"s_add_u32 {sr(sT1)}, {sr(sWAVE)}, 8")
        em(f"s_cmp_ge_u32 {sr(sT1)}, {NWAVE}")
        em(f"s_cselect_b32 {sr(sT2)}, {NWAVE}, 0")
        em(f"s_sub_u32 {sr(sT1)}, {sr(sT1)}, {sr(sT2)}")
        em(f"s_mul_i32 {sr(sT0)}, {sr(sWG)}, {NWAVE}")
        em(f"s_add_u32 {sr(sT0)}, {sr(sT0)}, {sr(sT1)}")
        em(f"s_lshl_b32 {sr(sT0)}, {sr(sT0)}, 6")
        em(f"s_add_u32 {sr(sT0)}, {sr(sT0)}, {0x800000}")
        for i in range(9):
            em(f"v_mov_b32 {vr(vPOOL + i)}, {sr(sTS + 2 * i)}")
        em("v_mov_b32 v0, 0")
        em("s_mov_b64 exec, 1")
        em(f"buffer_store_dwordx4 {vr(vPOOL, 4)}, v0, {sr(S_WS, 4)}, {sr(sT0)} offen")
        em(f"buffer_store_dwordx4 {vr(vPOOL + 4, 4)}, v0, {sr(S_WS, 4)}, {sr(sT0)} offen offset:16")
        em(f"buffer_store_dword {vr(vPOOL + 8)}, v0, {sr(S_WS, 4)}, {sr(sT0)} offen offset:32")

    sWG = 94

    e = Emitter()
    e.raw(HEADER + f"; @launch grid=(256,1,1) block=({64 * NWAVE},1,1) lds=163840")
    e.raw('.amdgcn_target "amdgcn-amd-amdhsa--gfx950"')
    e.raw(".text")
    e.raw(f".globl {NAME}_kernel")
    e.raw(".p2align 8")
    e.raw(f".type {NAME}_kernel,@function")
    e.raw(f"{NAME}_kernel:")
    e("s_load_dwordx4 s[4:7], s[0:1], 0")
    e("s_load_dwordx2 s[8:9], s[0:1], 16")
    e("s_load_dwordx4 s[12:15], s[0:1], 40")
    e("s_load_dwordx2 s[16:17], s[0:1], 56")
    e("s_cmp_ge_u32 s2, 256")
    e("s_cbranch_scc1 L_end")
    stamp(e, 0)
    if STAMP:
        e("s_memtime s[76:77]")
        e(f"s_mov_b32 {sr(sWG)}, s2")
        for i in range(1, 6):
            e(f"s_mov_b64 {sr(sTS + 2 * i, 2)}, 0")
    e(f"v_lshrrev_b32 {vr(vT0)}, 6, v0")
    e(f"v_and_b32 {vr(vN)}, 15, v0")
    e(f"v_readfirstlane_b32 {sr(sWAVE)}, {vr(vT0)}")
    e(f"v_bfe_u32 {vr(vG)}, v0, 4, 2")
    e(f"s_and_b32 {sr(sT0)}, s2, 7")
    e(f"s_lshl_b32 {sr(sT0)}, {sr(sT0)}, 2")
    e(f"s_lshr_b32 {sr(sT1)}, s2, 6")
    e(f"s_add_u32 {sr(sHEAD)}, {sr(sT0)}, {sr(sT1)}")
    e(f"s_bfe_u32 {sr(sCHUNK)}, s2, 0x30003")
    e(f"s_lshl_b32 {sr(sHEADOFF)}, {sr(sHEAD)}, 19")
    e(f"s_lshl_b32 {sr(sT0)}, {sr(sCHUNK)}, 16")
    e(f"s_add_u32 {sr(sROW0)}, {sr(sHEADOFF)}, {sr(sT0)}")
    e(f"s_add_u32 {sr(sHI)}, {sr(sHEADOFF)}, {HEADB - 4096}")
    e(f"s_and_b32 {sr(sDESC)}, {sr(sCHUNK)}, 1")
    e(f"v_lshlrev_b32 {vr(vG4)}, 2, {vr(vG)}")
    e(f"v_mov_b32 {vr(vFLAG)}, {L_FLAG}")
    for b in (S_Q, S_K, S_V, S_O):
        e(f"s_mov_b32 {sr(b + 2)}, {TB}")
        e(f"s_mov_b32 {sr(b + 3)}, 0x20000")
    e(f"s_mov_b32 {sr(S_DBG + 2)}, 256")
    e(f"s_mov_b32 {sr(S_DBG + 3)}, 0x20000")
    e(f"s_mov_b32 {sr(S_WS + 2)}, {0x1000000}")
    e(f"s_mov_b32 {sr(S_WS + 3)}, 0x20000")
    e(f"s_cmp_lg_u32 {sr(sWAVE)}, 0")
    e("s_waitcnt lgkmcnt(0)")
    for b, src in ((S_K, 6), (S_V, 8), (S_Q, 4), (S_O, 12), (S_DBG, 14), (S_WS, 16)):
        e(f"s_mov_b64 {sr(b, 2)}, {sr(src, 2)}")
    e.flush()
    e("s_cbranch_scc1 L_notloader")

    ld = e.fork()
    vKD, vVD, vCNT = 2, 6, 7
    ld(f"v_lshlrev_b32 v0, 8, {vr(vG)}")
    ld(f"v_xor_b32 {vr(vVD)}, {vr(vG4)}, {vr(vN)}")
    ld(f"v_lshl_add_u32 {vr(vVD)}, {vr(vVD)}, 4, v0")
    for j in range(4):
        ld(f"v_add_u32 {vr(vKD + j)}, {4 * j}, {vr(vG)}")
        ld(f"v_xor_b32 {vr(vKD + j)}, {vr(vKD + j)}, {vr(vN)}")
        ld(f"v_lshl_add_u32 {vr(vKD + j)}, {vr(vKD + j)}, 4, v0")

    def v_halo(em, hi_when_desc):
        em(f"s_cmp_eq_u32 {sr(sDESC)}, {1 if hi_when_desc else 0}")
        em(f"s_cselect_b32 {sr(sT0)}, {18 * VT}, 0")
        em(f"s_cselect_b32 {sr(sT1)}, {18 * 4096}, 0")
        em(f"s_add_u32 {sr(sT1)}, {sr(sT1)}, {sr(sROW0)}")
        em(f"s_sub_u32 {sr(sT1)}, {sr(sT1)}, 8192")
        for k in range(2):
            em(f"s_max_i32 {sr(sT2)}, {sr(sT1)}, {sr(sHEADOFF)}")
            em(f"s_min_i32 {sr(sT2)}, {sr(sT2)}, {sr(sHI)}")
            for j in range(4):
                em(f"s_add_u32 m0, {sr(sT0)}, {L_V + VT * k + 32 * j}")
                if k == 0 and j == 0:
                    em(f"s_add_u32 {sr(sT1)}, {sr(sT1)}, 4096")
                em(f"buffer_load_dwordx4 {vr(vVD)}, {sr(S_V, 4)}, {sr(sT2)} offen offset:{1024 * j}{LD} lds")

    ld(f"s_mov_b32 m0, {L_GK}")
    ld(f"buffer_load_dwordx4 {vr(vKD)}, {sr(S_K, 4)}, {sr(sHEADOFF)} offen lds")
    ld(f"s_mov_b32 m0, {L_GV}")
    ld(f"buffer_load_dwordx4 {vr(vVD)}, {sr(S_V, 4)}, {sr(sHEADOFF)} offen lds")
    v_halo(ld, True)
    ld(f"s_mul_i32 {sr(sX)}, {sr(sDESC)}, {15 * 4096}")
    ld(f"s_mul_i32 {sr(sSTEP)}, {sr(sDESC)}, -8192")
    ld(f"s_add_u32 {sr(sSTEP)}, {sr(sSTEP)}, 4096")
    ld(f"s_mul_i32 {sr(sXV)}, {sr(sDESC)}, {15 * VT}")
    ld(f"s_add_u32 {sr(sXV)}, {sr(sXV)}, {L_V + 2 * VT}")
    ld(f"s_mul_i32 {sr(sSTEPV)}, {sr(sDESC)}, {-2 * VT}")
    ld(f"s_add_u32 {sr(sSTEPV)}, {sr(sSTEPV)}, {VT}")
    ld(f"s_mov_b32 {sr(sCNT)}, {1 - D}")
    ld(f"v_mov_b32 {vr(vCNT)}, 0")
    ld(f"ds_write_b32 {vr(vFLAG)}, {vr(vCNT)} offset:4")
    ld.vm_q = []
    ld.label("L_ldloop")
    ld(f"s_add_u32 {sr(sT1)}, {sr(sX)}, {sr(sROW0)}")
    ld(f"s_add_u32 m0, {sr(sX)}, {L_K}")
    for j in range(4):
        ld(f"buffer_load_dwordx4 {vr(vKD + j)}, {sr(S_K, 4)}, {sr(sT1)} offen offset:{1024 * j}{LD} lds")
    for j in range(4):
        ld(f"s_add_u32 m0, {sr(sXV)}, {32 * j}")
        if j == 0:
            ld(f"s_add_u32 {sr(sX)}, {sr(sX)}, {sr(sSTEP)}")
        ld(f"buffer_load_dwordx4 {vr(vVD)}, {sr(S_V, 4)}, {sr(sT1)} offen offset:{1024 * j}{LD} lds")
    ld(f"s_add_u32 {sr(sXV)}, {sr(sXV)}, {sr(sSTEPV)}")
    ld(f"s_cmp_eq_u32 {sr(sCNT)}, 0")
    ld("s_cbranch_scc0 L_ldnobar")
    ld("s_waitcnt lgkmcnt(0)")
    ld("s_barrier")
    ld.raw("L_ldnobar:")
    ld(f"s_add_u32 {sr(sCNT)}, {sr(sCNT)}, 1")
    ld(f"v_mov_b32 {vr(vCNT)}, {sr(sCNT)}")
    ld(f"s_cmp_lt_i32 {sr(sCNT)}, {17 - D}")
    ld(f"s_waitcnt vmcnt({8 * D})")
    ld(f"ds_write_b32 {vr(vFLAG)}, {vr(vCNT)}")
    ld("s_cbranch_scc1 L_ldloop")
    stamp(ld, 1)
    ld.vm_q = []
    v_halo(ld, False)
    stamp(ld, 2)
    stage_read_addrs(ld)
    for k in range(D, -1, -1):
        ld(f"v_mov_b32 {vr(vCNT)}, {18 - k}")
        ld(f"s_waitcnt vmcnt({8 * k})")
        ld(f"ds_write_b32 {vr(vFLAG)}, {vr(vCNT)}")
        if k == 1:
            stamp(ld, 3)
    ld.vm_q = []
    stamp(ld, 4)
    ld(f"s_mov_b32 {sr(sW)}, 0")
    ld.label("L_stloop")
    park_addr(ld, sr(sW), sr(sPARK))
    ld(f"s_xor_b32 {sr(sB)}, {sr(sW)}, 15")
    ld(f"s_cmp_eq_u32 {sr(sDESC)}, 0")
    ld(f"s_cselect_b32 {sr(sB)}, {sr(sW)}, {sr(sB)}")
    ld(f"s_lshl_b32 {sr(sB)}, {sr(sB)}, 12")
    ld(f"s_add_u32 {sr(sQOFF)}, {sr(sB)}, {sr(sROW0)}")
    ld(f"s_cmp_eq_u32 {sr(sQOFF)}, {sr(sHEADOFF)}")
    ld(f"s_cselect_b32 {sr(sEX)}, 0xffffff00, -1")
    ld(f"s_mov_b32 {sr(sEX + 1)}, -1")
    ld(f"s_lshl_b32 {sr(sREQ)}, 256, {sr(sW)}")
    ld(f"v_add_u32 v0, {sr(sPARK)}, {vr(vSR)}")
    poll_bits(ld, sr(sREQ))
    if PST < 32:
        ld(f"s_waitcnt vmcnt({PST - 4})")
    for u in range(4):
        ld(f"ds_read_b128 {vr(vPOOL + 4 * u, 4)}, v0 offset:{1024 * u}")
    ld(f"s_mov_b64 exec, {sr(sEX, 2)}")
    for u in range(4):
        ld(f"buffer_store_dwordx4 {vr(vPOOL + 4 * u, 4)}, {vr(vSO)}, {sr(S_O, 4)}, {sr(sQOFF)} offen offset:{64 * u}{ST}")
    ld("s_mov_b64 exec, -1")
    ld.vm_q = []
    ld(f"s_add_u32 {sr(sW)}, {sr(sW)}, 1")
    ld(f"s_cmp_lt_u32 {sr(sW)}, 8")
    ld.flush()
    ld("s_cbranch_scc1 L_stloop")
    dump_stamps(ld, "l")
    ld("s_endpgm")
    ld.raw("L_notloader:")

    c = e.fork()
    c(f"s_mov_b32 {sr(sC)}, {CSCALE:#x}")
    c(f"s_mov_b32 {sr(sC + 1)}, {CSCALE:#x}")
    c(f"s_mov_b32 {sr(sNEG)}, {NEG:#x}")
    c(f"s_cmp_le_u32 {sr(sWAVE)}, {NH}")
    c("s_cbranch_scc1 L_helper")

    def lane_addrs(em):
        em(f"v_xor_b32 {vr(vKA)}, {vr(vN)}, {vr(vG)}")
        em(f"v_lshlrev_b32 {vr(vKA)}, 4, {vr(vKA)}")
        em(f"v_lshl_add_u32 {vr(vKA)}, {vr(vN)}, 8, {vr(vKA)}")
        em(f"v_lshrrev_b32 {vr(vT0)}, 2, {vr(vN)}")
        em(f"v_and_b32 {vr(vT1)}, 3, {vr(vN)}")
        em(f"v_mul_u32_u24 {vr(vGV)}, {256 + 64}, {vr(vT0)}")
        em(f"v_lshl_add_u32 {vr(vGV)}, {vr(vT1)}, 3, {vr(vGV)}")
        em(f"v_mul_u32_u24 {vr(vT2)}, {VP}, {vr(vG)}")
        for s in range(1, 4):
            em(f"v_xor_b32 {vr(vKA + s)}, {64 * s}, {vr(vKA)}")
            em(f"v_xor_b32 {vr(vGV + s)}, {64 * s}, {vr(vGV)}")
        for s in range(4):
            em(f"v_add_u32 {vr(vVA + s)}, {vr(vT2)}, {vr(vGV + s)}")
        for i in range(4):
            em(f"v_mov_b32 {vr(vONE + i)}, 0x3f803f80")

    def tile_addrs(em, skoff, svoff):
        for s in range(4):
            em(f"v_add_u32 {vr(vKA + s)}, {skoff}, {vr(vKA + s)}")
            em(f"v_add_u32 {vr(vVA + s)}, {svoff}, {vr(vVA + s)}")

    def allreduce_ops(op, x, y):
        return [f"v_mov_b32 {vr(y)}, {vr(x)}", f"v_permlane32_swap_b32 {vr(x)}, {vr(y)}", f"{op} {vr(x)}, {vr(x)}, {vr(y)}",
                f"v_mov_b32 {vr(y)}, {vr(x)}", f"v_permlane16_swap_b32 {vr(x)}, {vr(y)}", f"{op} {vr(x)}, {vr(x)}, {vr(y)}"]

    def max_tree(vals, dst):
        vals = list(vals)
        ops = [f"v_max3_f32 {vr(dst)}, {vr(vals[0])}, {vr(vals[1])}, {vr(vals[2])}"]
        i = 3
        while i + 1 < len(vals):
            ops.append(f"v_max3_f32 {vr(dst)}, {vr(dst)}, {vr(vals[i])}, {vr(vals[i + 1])}")
            i += 2
        if i < len(vals):
            ops.append(f"v_max_f32 {vr(dst)}, {vr(dst)}, {vr(vals[i])}")
        return ops

    def mfma(d, a, b, cc):
        return f"v_mfma_f32_16x16x32_bf16 {vr(d, 4)}, {vr(a, 4)}, {vr(b, 4)}, {'0' if cc is None else vr(cc, 4)}"

    m = c.fork()
    KQ = [vOX + 4 * i for i in range(6)] + [vPOOL + 4 * i for i in range(18)]
    OACC = [vOX + 4 * i for i in range(5)] + [vS + 12, vS + 16, vS + 20]
    vL = vOX + 20

    def q_load(em, sb):
        em(f"s_lshl_b32 {sr(sT1)}, {sb}, 12")
        em(f"s_add_u32 {sr(sT1)}, {sr(sT1)}, {sr(sROW0)}")
        for s in range(4):
            em(f"buffer_load_dwordx4 {vr(vQR + 4 * s, 4)}, {vr(vSO)}, {sr(S_Q, 4)}, {sr(sT1)} offen offset:{64 * s}{QLD}")
        em.vm_q = []

    def k_halo(em, sb):
        u = newid()
        em(f"s_sub_u32 {sr(sT0)}, {sb}, 2")
        em(f"s_cmp_lt_u32 {sr(sT0)}, 12")
        em.flush()
        em(f"s_cbranch_scc1 L_kh{u}")
        for t in (0, 1, 3, 4):
            em(f"s_add_u32 {sr(sT0)}, {sb}, {t - 2}")
            em(f"s_cmp_lt_u32 {sr(sT0)}, 16")
            em(f"s_cbranch_scc1 L_kh{u}_{t}")
            em(f"s_lshl_b32 {sr(sT0)}, {sr(sT0)}, 12")
            em(f"s_add_u32 {sr(sT0)}, {sr(sT0)}, {sr(sROW0)}")
            em(f"s_max_i32 {sr(sT0)}, {sr(sT0)}, {sr(sHEADOFF)}")
            em(f"s_min_i32 {sr(sT0)}, {sr(sT0)}, {sr(sHI)}")
            for s in range(4):
                em(f"buffer_load_dwordx4 {vr(KQ[4 + 4 * t + s], 4)}, {vr(vSO)}, {sr(S_K, 4)}, {sr(sT0)} offen offset:{64 * s}")
            em.raw(f"L_kh{u}_{t}:")
        em.raw(f"L_kh{u}:")
        em.vm_q = []

    m(f"s_sub_u32 {sr(sW)}, {sr(sWAVE)}, {1 + NH}")
    m(f"s_mul_i32 {sr(sT2)}, {sr(sDESC)}, 15")
    m(f"s_xor_b32 {sr(sB)}, {sr(sW)}, {sr(sT2)}")
    stage_read_addrs(m)
    k_halo(m, sr(sB))
    m(f"s_cmp_gt_u32 {sr(sW)}, {QLEAD}")
    m("s_cbranch_scc1 L_qa_later")
    q_load(m, sr(sB))
    m.raw("L_qa_later:")
    if PRIOW < 8:
        m(f"s_cmp_lt_u32 {sr(sW)}, {PRIOW}")
        m("s_cbranch_scc1 L_noprio")
        m("s_setprio 2")
        m.raw("L_noprio:")
    lane_addrs(m)
    m(f"v_xor_b32 {vr(vGK)}, {vr(vT1)}, {vr(vG)}")
    m(f"v_lshlrev_b32 {vr(vGK)}, 4, {vr(vGK)}")
    m(f"v_lshl_add_u32 {vr(vGK)}, {vr(vT1)}, 8, {vr(vGK)}")
    m(f"v_add_u32 {vr(vGK)}, {L_GK}, {vr(vGK)}")
    for u in range(4):
        m(f"v_add_u32 {vr(vGV + u)}, {L_GV}, {vr(vGV + u)}")
    m(f"s_lshl_b32 {sr(sREQ)}, {sr(sW)}, 10")
    m(f"v_bfe_u32 {vr(vT0)}, {vr(vN)}, 1, 2")
    m(f"v_lshlrev_b32 {vr(vT2)}, 6, {vr(vN)}")
    m(f"v_add_u32 {vr(vT2)}, {sr(sREQ)}, {vr(vT2)}")
    m(f"v_xor_b32 {vr(vSW)}, {vr(vT0)}, {vr(vG)}")
    m(f"v_lshl_add_u32 {vr(vSW)}, {vr(vSW)}, 4, {vr(vT2)}")
    m(f"v_lshrrev_b32 {vr(vSW1)}, 1, {vr(vG)}")
    m(f"v_xor_b32 {vr(vSW0)}, {vr(vT0)}, {vr(vSW1)}")
    m(f"v_lshl_add_u32 {vr(vSW0)}, {vr(vSW0)}, 4, {vr(vT2)}")
    m(f"v_and_b32 {vr(vSW1)}, 1, {vr(vG)}")
    m(f"v_lshl_add_u32 {vr(vSW0)}, {vr(vSW1)}, 3, {vr(vSW0)}")
    m(f"v_xor_b32 {vr(vSW1)}, 32, {vr(vSW0)}")
    m(f"v_add_u32 {vr(vSR)}, {sr(sREQ)}, {vr(vSR)}")
    m(f"v_sub_u32 {vr(vT0)}, {vr(vG4)}, {vr(vN)}")
    for r in range(4):
        m(f"v_cmp_le_i32 {sr(sMASK + 2 * r, 2)}, {-r}, {vr(vT0)}")
        m(f"v_cmp_ge_i32 {sr(sMASK + 8 + 2 * r, 2)}, {-r}, {vr(vT0)}")
    m(f"v_cmp_eq_u32 {sr(sMASK + 16, 2)}, 0, {vr(vG4)}")
    park_addr(m, sr(sW), sr(sPARK))
    m(f"s_sub_u32 {sr(sPARK)}, {sr(sPARK)}, {sr(sREQ)}")
    m(f"s_lshl_b32 {sr(sREQ)}, 15, {sr(sW)}")
    m(f"s_lshr_b32 {sr(sREQ)}, {sr(sREQ)}, 4")
    m(f"s_lshr_b32 {sr(sT1)}, {sr(sW)}, 1")
    m(f"s_lshl_b32 {sr(sT1)}, 0x8000, {sr(sT1)}")
    m(f"s_or_b32 {sr(sREQ)}, {sr(sREQ)}, {sr(sT1)}")
    m(f"s_lshl_b32 {sr(sT1)}, {sr(sW)}, 8")
    m(f"s_cmp_lt_u32 {sr(sW)}, 2")
    m(f"s_cselect_b32 {sr(sREQ)}, {sr(sT1)}, {sr(sREQ)}")
    m(f"s_mov_b32 {sr(sIT)}, 0")
    m(f"s_add_u32 {sr(sNEED)}, {sr(sW)}, 4")
    m(f"s_add_u32 {sr(sX)}, {sr(sW)}, {ROT}")
    m(f"s_and_b32 {sr(sX)}, {sr(sX)}, 7")
    m(f"s_add_u32 {sr(sX)}, {sr(sX)}, 8")
    m(f"s_mul_i32 {sr(sT2)}, {sr(sDESC)}, 15")
    m(f"s_xor_b32 {sr(sB2)}, {sr(sX)}, {sr(sT2)}")
    m(f"s_lshl_b32 {sr(sSTEP)}, {sr(sB)}, 12")
    m(f"s_add_u32 {sr(sSTEP)}, {sr(sSTEP)}, {L_K - 8192}")
    m(f"s_mul_i32 {sr(sSTEPV)}, {sr(sB)}, {VT}")
    m(f"s_add_u32 {sr(sSTEPV)}, {sr(sSTEPV)}, {L_V}")
    m("s_barrier")
    m(f"s_cmp_gt_u32 {sr(sW)}, {QLEAD}")
    m("s_cbranch_scc0 L_block")
    m(f"s_sub_u32 {sr(sT2)}, {sr(sW)}, {QLEAD}")
    poll(m, sr(sT2))
    q_load(m, sr(sB))
    m.label("L_block")
    m(f"s_lshl_b32 {sr(sT0)}, {sr(sB)}, 12")
    m(f"s_add_u32 {sr(sQOFF)}, {sr(sT0)}, {sr(sROW0)}")
    m(f"v_mov_b32 {vr(vT0)}, {sr(sNEG)}")
    tile_addrs(m, sr(sSTEP), sr(sSTEPV))
    m(f"s_lshl_b32 {sr(sQ0)}, {sr(sCHUNK)}, 8")
    m(f"s_lshl_b32 {sr(sT0)}, {sr(sB)}, 4")
    m(f"s_add_u32 {sr(sQ0)}, {sr(sQ0)}, {sr(sT0)}")
    for r in range(4):
        m(f"v_cndmask_b32_e64 {vr(vS + r)}, {vr(vT0)}, 0, {sr(sMASK + 2 * r, 2)}")
        m(f"v_cndmask_b32_e64 {vr(vS + 16 + r)}, {vr(vT0)}, 0, {sr(sMASK + 8 + 2 * r, 2)}")
    m(f"v_cndmask_b32_e64 {vr(vS + 20)}, {vr(vT0)}, 0, {sr(sMASK + 16, 2)}")
    m(f"v_cndmask_b32_e64 {vr(vS + 21)}, {vr(vT0)}, 0, {sr(sMASK + 16, 2)}")
    poll(m, sr(sNEED))
    stamp_it(m, 1)

    def relayout(q):
        m(f"ds_write_b128 {vr(vSR)}, {vr(q, 4)}")
        m(f"ds_read_b128 {vr(q, 4)}, {vr(vSW)}")

    def v_read(T, k):
        u, p = T // 2, T % 2
        q = vPOOL + 12 * (T % 6) + 4 * k
        r = [f"ds_read_b64_tr_b16 {vr(q + 2 * j, 2)}, {vr(vVA + u)} offset:{VT * (2 * k + j) + 32 * p}" for j in range(2)]
        if k == 2:
            r[1] = f"ds_read_b64_tr_b16 {vr(q + 2, 2)}, {vr(vGV + u)} offset:{32 * p}"
        return r

    if not NOCOMP:
        for s in range(4):
            if s:
                m(f"v_xor_b32 {vr(KQ[s])}, {64 * s}, {vr(vGK)}")
            m(f"ds_read_b128 {vr(KQ[s], 4)}, {vr(KQ[s]) if s else vr(vGK)}")
        for t in (2, 0, 1, 3, 4):
            if t != 2:
                m(f"s_add_u32 {sr(sT0)}, {sr(sB)}, {t - 2}")
                m(f"s_cmp_lt_u32 {sr(sT0)}, 16")
                m(f"s_cbranch_scc0 L_skipk{t}")
            for s in range(4):
                m(f"ds_read_b128 {vr(KQ[4 + 4 * t + s], 4)}, {vr(vKA + s)} offset:{4096 * t}")
            if t != 2:
                m.raw(f"L_skipk{t}:")
        m(f"s_sub_u32 {sr(sT0)}, {sr(sB)}, 2")
        m(f"s_cmp_lt_u32 {sr(sT0)}, 12")
        m("s_cbranch_scc1 L_nohalo")
        keep = list(m.ds_q)
        m.ds_q = []
        m("s_waitcnt vmcnt(4)")
        for t in (0, 1, 3, 4):
            m(f"s_add_u32 {sr(sT0)}, {sr(sB)}, {t - 2}")
            m(f"s_cmp_lt_u32 {sr(sT0)}, 16")
            m(f"s_cbranch_scc1 L_rl{t}")
            for s in range(4):
                relayout(KQ[4 + 4 * t + s])
            m.raw(f"L_rl{t}:")
        m.ds_q = keep
        m.raw("L_nohalo:")
    m("s_waitcnt vmcnt(0)")
    stamp_it(m, 2)
    if NOCOMP:
        for i in range(16):
            m(f"v_mov_b32 {vr(vPOOL + i)}, {vr(vQR + i)}")
        set_bit(m, sr(sW))
    else:
        for s in range(4):
            relayout(vQR + 4 * s)
        m(f"s_sub_u32 {sr(sT1)}, {sr(sQ0)}, 34")
        for s in range(4):
            m(mfma(vS + 20, KQ[s], vQR + 4 * s, vS + 20))
        set_bit(m, sr(sW))
        m(f"s_cmp_lt_u32 {sr(sT1)}, {2001 - 34}")

        def s_tile(t):
            return [mfma(vS + 4 * t, KQ[4 + 4 * t + s], vQR + 4 * s, None if (s == 0 and t in (1, 2, 3)) else vS + 4 * t) for s in range(4)]

        VR = [op for k in range(3) for T in range(6) for op in v_read(T, k)]
        mx = max_tree([vS + 20, vS + 21] + [vS + i for i in range(20)], vT0)
        m("s_cbranch_scc0 L_edge")
        ed = m.fork()
        for op in s_tile(0) + s_tile(1) + s_tile(2) + merge(s_tile(3), mx[:2]) + merge(s_tile(4), mx[2:5]):
            m(op)
        for op in VR[:4] + mx[5:7] + VR[4:8] + mx[7:]:
            m(op)
        m.raw("L_join:")
        ed.raw("L_edge:")
        for t in range(5):
            for op in s_tile(t):
                ed(op)
        ed(f"v_add_u32 {vr(vT1)}, {sr(sT1)}, {vr(vG4)}")
        ed(f"s_movk_i32 {sr(sT1)}, 2046")
        for t in range(5):
            for r in range(4):
                ed(f"v_add_u32 v0, {16 * t + r}, {vr(vT1)}")
                ed(f"v_cmp_gt_u32 vcc, {sr(sT1)}, v0")
                ed(f"v_cndmask_b32 {vr(vS + 4 * t + r)}, {vr(vT0)}, {vr(vS + 4 * t + r)}, vcc")
        for op in VR[:8] + mx:
            ed(op)
        ed.flush()
        ed("s_branch L_join")
    m(f"s_lshl_b32 {sr(sT0)}, {sr(sIT)}, 4")
    m(f"s_add_u32 {sr(sT0)}, {sr(sT0)}, {EW}")
    m(f"s_cmp_ge_u32 {sr(sW)}, {sr(sT0)}")
    m("s_cbranch_scc0 L_noearly")
    q_load(m, sr(sB2))
    m.raw("L_noearly:")
    stamp_it(m, 3)

    W = vPOOL + 40
    R = vPOOL + 24

    def p_ops(lo, hi):
        fm, ex, cv = [], [], []
        for i in range(lo, hi):
            if PK and i % 2 == 0:
                fm.append(f"v_pk_fma_f32 {vr(vS + i, 2)}, {vr(vS + i, 2)}, {sr(sC, 2)}, {vr(vT0, 2)} neg_lo:[0,0,1] neg_hi:[0,0,1]")
            elif not PK:
                fm.append(f"v_fma_f32 {vr(vS + i)}, {vr(vS + i)}, {sr(sC)}, -{vr(vT0)}")
            ex.append(f"v_exp_f32 {vr(vS + i)}, {vr(vS + i)}")
        for i in range(lo // 2, hi // 2):
            cv.append(f"v_cvt_pk_bf16_f32 {vr(vS + i)}, {vr(vS + 2 * i)}, {vr(vS + 2 * i + 1)}")
        per = 2 if PK else 1
        seq = fm[:2 // per]
        nf = 2 // per
        for j, x in enumerate(ex):
            seq.append(x)
            if nf < len(fm) and (j + 1) % per == 0:
                seq.append(fm[nf])
                nf += 1
            if j >= 2 and j % 2 == 0:
                seq.append(cv[(j - 2) // 2])
        seq.append(cv[-1])
        return seq

    def pv(T, k):
        return mfma(OACC[T], vPOOL + 12 * (T % 6) + 4 * k, vS + 4 * k, None if k == 0 else OACC[T])

    def lsum(k):
        return mfma(vL, vONE, vS + 4 * k, None if k == 0 else vL)

    def fin(T, park):
        u, p = T // 2, T % 2
        o = OACC[T]
        w = W + 4 * u + 2 * p
        if PK:
            ops = [f"v_pk_mul_f32 {vr(o + r, 2)}, {vr(o + r, 2)}, {vr(vT0, 2)} op_sel_hi:[1,0]" for r in (0, 2)]
        else:
            ops = [f"v_mul_f32 {vr(o + r)}, {vr(o + r)}, {vr(vT0)}" for r in range(4)]
        ops += [f"v_cvt_pk_bf16_f32 {vr(w)}, {vr(o)}, {vr(o + 1)}", f"v_cvt_pk_bf16_f32 {vr(w + 1)}, {vr(o + 2)}, {vr(o + 3)}"]
        if NOCOMP:
            ops = []
        if park:
            ops.append(f"ds_write_b64 {vr(vT3 if p else 0)}, {vr(w, 2)} offset:{1024 * u}")
        else:
            ops.append(f"ds_write_b64 {vr(vSW1 if p else vSW0)}, {vr(w, 2)}")
            if p:
                ops.append(f"ds_read_b128 {vr(R + 4 * u, 4)}, {vr(vSR)}")
        return ops

    if not NOCOMP:
        for op in merge(allreduce_ops("v_max_f32", vT0, vT1), VR[8:14]):
            m(op)
        m(f"v_mul_f32 {vr(vT0)}, {sr(sC)}, {vr(vT0)}")
        if PK:
            m(f"v_mov_b32 {vr(vT1)}, {vr(vT0)}")
        for op in merge(p_ops(0, 8), VR[14:24]):
            m(op)
        for op in merge(merge(p_ops(8, 16), VR[24:36]), [lsum(0)] + [pv(T, 0) for T in range(5)]):
            m(op)
        for op in merge(p_ops(16, 22) + [f"v_mov_b32 {vr(vS + 11)}, 0"], [pv(5, 0), lsum(1)] + [pv(T, 1) for T in range(6)]):
            m(op)
    stamp_it(m, 4)

    def tail(em, park):
        if park:
            em(f"v_add_u32 v0, {sr(sPARK)}, {vr(vSW0)}")
            em(f"v_add_u32 {vr(vT3)}, {sr(sPARK)}, {vr(vSW1)}")
            em(f"ds_read_b32 {vr(vT2)}, {vr(vFLAG)} offset:4")
        if NOCOMP:
            if park:
                poll_bits(em, sr(sREQ), True)
            for T in range(8):
                for op in fin(T, park):
                    em(op)
            return
        em(lsum(2))
        em(pv(0, 2))
        for k in range(3):
            for op in v_read(6, k):
                em(op)
        em(pv(1, 2))
        for k in range(3):
            for op in v_read(7, k):
                em(op)
        em(pv(2, 2))
        em(f"v_rcp_f32 {vr(vT0)}, {vr(vL)}")
        em(pv(3, 2))
        if park:
            poll_bits(em, sr(sREQ), True)
        em(pv(4, 2))
        em(pv(5, 2))
        for op in merge(fin(0, park) + fin(1, park) + fin(2, park), [pv(6, k) for k in range(3)] + [pv(7, k) for k in range(3)]):
            em(op)
        for T in range(3, 8):
            for op in fin(T, park):
                em(op)

    m(f"s_cmp_lg_u32 {sr(sIT)}, 0")
    m("s_cbranch_scc1 L_last")
    b2 = m.fork()
    tail(m, True)
    m(f"s_add_u32 {sr(sT1)}, {sr(sW)}, 8")
    m.wait_lgkm_all()
    set_bit(m, sr(sT1))
    stamp_it(m, 6, 0)
    m(f"s_sub_u32 {sr(sT1)}, {sr(sB2)}, {sr(sB)}")
    m(f"s_lshl_b32 {sr(sSTEP)}, {sr(sT1)}, 12")
    m(f"s_mul_i32 {sr(sSTEPV)}, {sr(sT1)}, {VT}")
    m(f"s_mov_b32 {sr(sB)}, {sr(sB2)}")
    if not NOCOMP:
        k_halo(m, sr(sB))
    m(f"s_add_u32 {sr(sNEED)}, {sr(sX)}, 4")
    m(f"s_min_u32 {sr(sNEED)}, {sr(sNEED)}, 18")
    m(f"s_mov_b32 {sr(sIT)}, 1")
    m(f"s_cmp_ge_u32 {sr(sW)}, {EW}")
    m.flush()
    m("s_cbranch_scc1 L_block")
    m(f"s_sub_u32 {sr(sT2)}, {sr(sNEED)}, {D + QL2}")
    m(f"s_max_u32 {sr(sT2)}, {sr(sT2)}, {THRMIN}")
    poll(m, sr(sT2))
    q_load(m, sr(sB))
    m("s_branch L_block")
    b2.raw("L_last:")
    tail(b2, False)
    if STAMP and "B6" in PTS:
        b2.wait_lgkm_all()
        stamp_it(b2, 6, 1)
    for u in range(4):
        b2(f"buffer_store_dwordx4 {vr(R + 4 * u, 4)}, {vr(vSO)}, {sr(S_O, 4)}, {sr(sQOFF)} offen offset:{64 * u}{STB}")
    dump_stamps(b2, "m")
    b2("s_endpgm")

    h = c.fork()
    h.raw("L_helper:")
    hS, hO, hK, hV, vM, vA = 44, 56, 92, 124, 156, 1
    hL = hO + 32
    if PRIOH:
        h(f"s_setprio {PRIOH}")
    if CPF:
        h("s_getpc_b64 s[2:3]")
        h.raw("L_pc:")
        h(f"v_lshl_add_u32 v0, {vr(vG)}, 4, {vr(vN)}")
        h("v_lshlrev_b32 v0, 7, v0")
        h(f"s_sub_u32 s2, s2, L_pc-{NAME}_kernel")
        h("s_subb_u32 s3, s3, 0")
        for i in range(CPF):
            if i:
                h("v_add_u32 v0, 0x2000, v0")
            h(f"v_min_u32 v1, L_codeend-{NAME}_kernel-4, v0")
            h(f"global_load_dword {vr(160 + i)}, v1, s[2:3]")
    h(f"v_lshlrev_b32 {vr(vA)}, 4, {vr(vG)}")
    h(f"v_lshl_add_u32 v0, {vr(vN)}, 8, {vr(vA)}")
    for i in range(16):
        h(f"v_mov_b32 {vr(vQR + i)}, 0")
    h("s_mov_b32 exec_lo, 0x00030003")
    h("s_mov_b32 exec_hi, 0x00030003")
    for s in range(4):
        h(f"buffer_load_dwordx4 {vr(vQR + 4 * s, 4)}, v0, {sr(S_Q, 4)}, {sr(sHEADOFF)} offen offset:{64 * s}")
    h("s_mov_b64 exec, -1")
    lane_addrs(h)
    h(f"s_mul_i32 {sr(sPARK)}, {sr(sWAVE)}, 1056")
    h(f"s_add_u32 {sr(sPARK)}, {sr(sPARK)}, {L_MRG - 1056}")
    h(f"v_lshl_add_u32 {vr(vA)}, {vr(vN)}, 9, {vr(vA)}")
    h(f"v_add_u32 {vr(vA)}, {sr(sPARK)}, {vr(vA)}")
    h(f"v_lshlrev_b32 {vr(vSR)}, 3, {vr(vN)}")
    h(f"v_add_u32 {vr(vSR)}, {sr(sPARK)}, {vr(vSR)}")
    h(f"v_lshl_add_u32 {vr(vSO)}, {vr(vG)}, 4, {vr(vN)}")
    h(f"v_lshrrev_b32 {vr(vSW)}, 5, {vr(vSO)}")
    h(f"v_lshlrev_b32 {vr(vSW)}, 3, {vr(vSW)}")
    h(f"v_lshlrev_b32 {vr(vSW0)}, 4, {vr(vSO)}")
    h(f"v_and_b32 {vr(vSW1)}, 7, {vr(vSO)}")
    h(f"v_lshl_add_u32 {vr(vSW1)}, {vr(vSW1)}, 11, {vr(vSW)}")
    h(f"v_lshlrev_b32 {vr(vSO)}, 3, {vr(vSO)}")
    for i in range(36):
        h(f"v_mov_b32 {vr(hO + i)}, 0")
    h(f"v_mov_b32 {vr(vM)}, {sr(sNEG)}")
    h(f"s_sub_u32 {sr(sW)}, {sr(sWAVE)}, 1")
    h(f"s_lshl_b32 {sr(sT0)}, {sr(sW)}, 1")
    h(f"s_add_u32 {sr(sNEED)}, {sr(sT0)}, 3")
    h(f"s_sub_u32 {sr(sT1)}, 14, {sr(sT0)}")
    h(f"s_cmp_eq_u32 {sr(sDESC)}, 0")
    h(f"s_cselect_b32 {sr(sT0)}, {sr(sT0)}, {sr(sT1)}")
    h(f"s_cselect_b32 {sr(sSTEPV)}, 1, -1")
    h(f"s_mul_i32 {sr(sSTEP)}, {sr(sSTEPV)}, {2 * NH * 4096}")
    h(f"s_mul_i32 {sr(sSTEPV)}, {sr(sSTEPV)}, {2 * NH * VT}")
    h(f"s_lshl_b32 {sr(sT1)}, {sr(sT0)}, 12")
    h(f"s_add_u32 {sr(sT1)}, {sr(sT1)}, {L_K}")
    h(f"s_mul_i32 {sr(sT2)}, {sr(sT0)}, {VT}")
    h(f"s_add_u32 {sr(sT2)}, {sr(sT2)}, {L_V + 2 * VT}")
    tile_addrs(h, sr(sT1), sr(sT2))
    h(f"s_lshl_b32 {sr(sREC)}, {sr(sHEAD)}, 3")
    h(f"s_add_u32 {sr(sREC)}, {sr(sREC)}, {sr(sCHUNK)}")
    h(f"s_lshl_b32 {sr(sREC)}, {sr(sREC)}, 11")
    h(f"s_getreg_b32 {sr(sX)}, hwreg(HW_REG_XCC_ID, 0, 4)")
    h(f"s_mul_i32 {sr(sT2)}, {sr(sX)}, {sr(sX)}")
    h(f"s_lshl_b32 {sr(sT2)}, {sr(sT2)}, 13")
    h(f"s_lshl_b32 {sr(sX)}, {sr(sX)}, 5")
    h(f"s_add_u32 {sr(sX)}, {sr(sX)}, {sr(sT2)}")
    h(f"s_add_u32 {sr(sX)}, {sr(sX)}, 1")
    h(f"s_add_u32 {sr(sREQ)}, {sr(sREC)}, {1 << 20}")
    if opt.get("tlbw"):
        h(f"s_lshl_b32 {sr(sT0)}, {sr(sHEAD)}, 14")
        h(f"buffer_load_dword v162, {vr(vSW1)}, {sr(S_WS, 4)}, {sr(sT0)} offen offset:1536")
        h(f"s_add_u32 {sr(sT0)}, {sr(sT0)}, {1 << 20}")
        h(f"buffer_load_dword v163, {vr(vSW1)}, {sr(S_WS, 4)}, {sr(sT0)} offen offset:1536")
    h("s_barrier")
    h.wait_vm_all()
    h.label("L_hloop")
    poll(h, sr(sNEED))
    h(f"s_lshr_b32 {sr(sT1)}, {sr(sNEED)}, 1")
    h(f"s_add_u32 {sr(sT1)}, {sr(sT1)}, 15")
    if not NOCOMP:
        for i in range(8):
            h(f"ds_read_b128 {vr(hK + 4 * i, 4)}, {vr(vKA + i % 4)} offset:{4096 * (i // 4)}")
        hvr = [f"ds_read_b64_tr_b16 {vr(hV + 4 * T + 2 * j, 2)}, {vr(vVA + T // 2)} offset:{VT * j + 32 * (T % 2)}" for T in range(8) for j in range(2)]
        for i in range(8):
            t, s = i // 4, i % 4
            h(mfma(hS + 4 * t, hK + 4 * i, vQR + 4 * s, None if s == 0 else hS + 4 * t))
            h(hvr[2 * i])
            h(hvr[2 * i + 1])
    set_bit(h, sr(sT1))
    tile_addrs(h, sr(sSTEP), sr(sSTEPV))
    if not NOCOMP:
        for op in max_tree([hS + i for i in range(8)], vT0) + allreduce_ops("v_max_f32", vT0, vT1):
            h(op)
        h(f"v_mul_f32 {vr(vT0)}, {sr(sC)}, {vr(vT0)}")
        h(f"v_max_f32 {vr(vT0)}, {vr(vT0)}, {vr(vM)}")
        h(f"v_sub_f32 {vr(vT1)}, {vr(vM)}, {vr(vT0)}")
        h(f"v_exp_f32 {vr(vT1)}, {vr(vT1)}")
        h(f"v_mov_b32 {vr(vM)}, {vr(vT0)}")
        for i in range(8):
            h(f"v_fma_f32 {vr(hS + i)}, {vr(hS + i)}, {sr(sC)}, -{vr(vT0)}")
        for i in range(8):
            h(f"v_exp_f32 {vr(hS + i)}, {vr(hS + i)}")
        h(f"v_mul_f32 {vr(hL)}, {vr(hL)}, {vr(vT1)}")
        for i in range(4):
            h(f"v_mul_f32 {vr(hO + i)}, {vr(hO + i)}, {vr(vT1)}")
        for k in range(4):
            h(f"v_cvt_pk_bf16_f32 {vr(hS + k)}, {vr(hS + 2 * k)}, {vr(hS + 2 * k + 1)}")
        for T in range(8):
            if T < 7:
                for i in range(4):
                    h(f"v_mul_f32 {vr(hO + 4 * T + 4 + i)}, {vr(hO + 4 * T + 4 + i)}, {vr(vT1)}")
            if T == 0:
                h(mfma(hL, vONE, hS, hL))
            h(mfma(hO + 4 * T, hV + 4 * T, hS, hO + 4 * T))
    h(f"s_add_u32 {sr(sNEED)}, {sr(sNEED)}, {2 * NH}")
    h(f"s_cmp_le_u32 {sr(sNEED)}, 17")
    h.flush()
    h("s_cbranch_scc1 L_hloop")
    stamp(h, 1)
    if not NOCOMP:
        h(f"v_mov_b32 {vr(vM + 1)}, {vr(hL)}")
        h("s_mov_b32 exec_lo, 0x00030003")
        h("s_mov_b32 exec_hi, 0x00030003")
        for T in range(8):
            h(f"ds_write_b128 {vr(vA)}, {vr(hO + 4 * T, 4)} offset:{64 * T}")
        h("s_mov_b64 exec, 3")
        h(f"ds_write_b64 {vr(vSR)}, {vr(vM, 2)} offset:1024")
        h("s_mov_b64 exec, -1")
        h(f"s_cmp_lg_u32 {sr(sW)}, 0")
        h("s_cbranch_scc1 L_hmerge")
        h0 = h.fork()
        keepq = list(h.ds_q)
        h.wait_lgkm_all()
        set_bit(h, 24)
        h("s_branch L_hdone")
        h.raw("L_hmerge:")
        h.ds_q = keepq
        h(f"s_mov_b32 {sr(sT2)}, {1 << 24}")
        poll_bits(h, sr(sT2))
        cA, cB, cM = 56, 60, 64
        h(f"ds_read_b64 {vr(cM, 2)}, {vr(vSW)} offset:{L_MRG + 1024}")
        h(f"ds_read_b64 {vr(cM + 2, 2)}, {vr(vSW)} offset:{L_MRG + 1056 + 1024}")
        h(f"ds_read_b128 {vr(cA, 4)}, {vr(vSW0)} offset:{L_MRG}")
        h(f"ds_read_b128 {vr(cB, 4)}, {vr(vSW0)} offset:{L_MRG + 1056}")
        h(f"s_lshl_b32 {sr(sT0)}, {sr(sHEAD)}, 2")
        h(f"v_mov_b32 v0, {sr(sX)}")
        h(f"v_max_f32 {vr(vM)}, {vr(cM)}, {vr(cM + 2)}")
        h(f"v_sub_f32 {vr(cM)}, {vr(cM)}, {vr(vM)}")
        h(f"v_sub_f32 {vr(cM + 2)}, {vr(cM + 2)}, {vr(vM)}")
        h(f"v_exp_f32 {vr(cM)}, {vr(cM)}")
        h(f"v_exp_f32 {vr(cM + 2)}, {vr(cM + 2)}")
        for r in range(4):
            h(f"v_mul_f32 {vr(cA + r)}, {vr(cA + r)}, {vr(cM)}")
        h(f"v_mul_f32 {vr(vM + 1)}, {vr(cM + 1)}, {vr(cM)}")
        for r in range(4):
            h(f"v_fmac_f32 {vr(cA + r)}, {vr(cB + r)}, {vr(cM + 2)}")
        h(f"v_fmac_f32 {vr(vM + 1)}, {vr(cM + 3)}, {vr(cM + 2)}")
        h(f"buffer_store_dwordx4 {vr(cA, 4)}, {vr(vSW0)}, {sr(S_WS, 4)}, {sr(sREC)} offen sc1")
        if DUAL != "none":
            h(f"buffer_store_dwordx4 {vr(cA, 4)}, {vr(vSW0)}, {sr(S_WS, 4)}, {sr(sREQ)} offen")
        h("s_mov_b32 exec_lo, 1")
        h("s_mov_b32 exec_hi, 1")
        h(f"buffer_store_dwordx2 {vr(vM, 2)}, {vr(vSW)}, {sr(S_WS, 4)}, {sr(sREC)} offen offset:1024 sc1")
        if DUAL != "none":
            h(f"buffer_store_dwordx2 {vr(vM, 2)}, {vr(vSW)}, {sr(S_WS, 4)}, {sr(sREQ)} offen offset:1024")
        h("s_mov_b64 exec, 1")
        h.wait_vm_all()
        stamp(h, 2)
        h(f"buffer_atomic_add v0, off, {sr(S_DBG, 4)}, {sr(sT0)} sc0")
        h(f"v_readfirstlane_b32 {sr(sT1)}, v0")
        h("s_mov_b64 exec, -1")
        stamp(h, 3)
        h(f"s_and_b32 {sr(sT2)}, {sr(sT1)}, 31")
        h(f"s_cmp_eq_u32 {sr(sT2)}, 7")
        h.flush()
        h("s_cbranch_scc0 L_hdone")
        cO, cW = 56, 96
        h(f"s_lshl_b32 {sr(sREC)}, {sr(sHEAD)}, 14")

        def rec_loads(mod):
            h.vm_q = []
            h(f"buffer_load_dwordx2 {vr(vM, 2)}, {vr(vSW1)}, {sr(S_WS, 4)}, {sr(sREC)} offen offset:1024{mod}")
            for i in range(8):
                if i % 2 == 0 and i:
                    h(f"s_add_u32 {sr(sREC)}, {sr(sREC)}, 4096")
                h(f"buffer_load_dwordx4 {vr(cO + 4 * i, 4)}, {vr(vSW0)}, {sr(S_WS, 4)}, {sr(sREC)} offen offset:{2048 * (i % 2)}{mod}")
        if DUAL != "none":
            h(f"s_mul_i32 {sr(sX)}, {sr(sX)}, 7")
            h(f"s_cmp_eq_u32 {sr(sX)}, {sr(sT1)}")
            h("s_cbranch_scc0 L_far")
            h(f"s_add_u32 {sr(sREC)}, {sr(sREC)}, {1 << 20}")
            rec_loads("" if DUAL == "plain" else " " + DUAL)
            h("s_branch L_got")
            h.raw("L_far:")
        rec_loads(" sc1")
        h.raw("L_got:")
        SWZ = (0x041F, 0x081F, 0x101F)
        h(f"v_mov_b32 {vr(vT0)}, {vr(vM)}")
        stamp(h, 5)
        for x in SWZ:
            h(f"ds_swizzle_b32 {vr(vT1)}, {vr(vT0)} offset:{x:#x}")
            h(f"v_max_f32 {vr(vT0)}, {vr(vT0)}, {vr(vT1)}")
        h(f"v_sub_f32 {vr(vM)}, {vr(vM)}, {vr(vT0)}")
        h(f"v_exp_f32 {vr(vM)}, {vr(vM)}")
        h(f"v_mul_f32 {vr(vT0)}, {vr(vM)}, {vr(vM + 1)}")
        for i in range(8):
            h(f"ds_swizzle_b32 {vr(cW + i)}, {vr(vM)} offset:{(i << 5) | 0x18:#x}")
        for x in SWZ:
            h(f"ds_swizzle_b32 {vr(vT1)}, {vr(vT0)} offset:{x:#x}")
            h(f"v_add_f32 {vr(vT0)}, {vr(vT0)}, {vr(vT1)}")
        h(f"v_rcp_f32 {vr(vT0)}, {vr(vT0)}")
        if STAMP:
            h.wait_vm_all()
            stamp(h, 4)
        for i in range(8):
            for r in range(4):
                h(f"{'v_fmac_f32' if i else 'v_mul_f32'} {vr(vKA + r)}, {vr(cW + i)}, {vr(cO + 4 * i + r)}")
        for r in range(4):
            h(f"v_mul_f32 {vr(vKA + r)}, {vr(vKA + r)}, {vr(vT0)}")
        h(f"v_cvt_pk_bf16_f32 {vr(vVA)}, {vr(vKA)}, {vr(vKA + 1)}")
        h(f"v_cvt_pk_bf16_f32 {vr(vVA + 1)}, {vr(vKA + 2)}, {vr(vKA + 3)}")
        h(f"buffer_store_dwordx2 {vr(vVA, 2)}, {vr(vSO)}, {sr(S_O, 4)}, {sr(sHEADOFF)} offen sc1")
        h.label("L_hdone")
    dump_stamps(h, "h")
    h.raw("L_end:")
    h("s_endpgm")

    tailtxt = f""".section .rodata,"a"
.p2align 6
.amdhsa_kernel {NAME}_kernel
  .amdhsa_next_free_vgpr 168
  .amdhsa_next_free_sgpr 96
  .amdhsa_accum_offset 168
  .amdhsa_group_segment_fixed_size 0
  .amdhsa_kernarg_size 64
  .amdhsa_user_sgpr_count 2
  .amdhsa_user_sgpr_kernarg_segment_ptr 1
  .amdhsa_system_sgpr_workgroup_id_x 1
.end_amdhsa_kernel
"""
    txt = e.text() + ld.text() + c.text() + m.text() + b2.text() + h.text()
    if not NOCOMP:
        txt += ed.text()
    return txt + "L_codeend:\n" + tailtxt


if __name__ == "__main__":
    out = sys.argv[1]
    opt = {}
    for a in sys.argv[2:]:
        k, _, v = a.partition("=")
        opt[k] = v if v else True
        if k in ("st", "stb", "ld", "qld"):
            opt[k] = (" " + v.replace("+", " ")) if v != "none" else ""
    open(out, "w").write(gen(opt))
```

```python
import sys
import math
import struct
from asmgen import Emitter, vr, sr

NAME = "standalone__global_local_windowed_global_tokens__prompt"

HEADER = """; Kernarg layout for this problem (64 bytes, ptrs only, base s[0:1]):
;   offset   0: d_in[0] q  shape=(1, 32, 2048, 128) dtype=bfloat16 strides=(16777216, 524288, 256, 2) contiguous=True
;   offset   8: d_in[1] k  shape=(1, 32, 2048, 128) dtype=bfloat16 strides=(16777216, 524288, 256, 2) contiguous=True
;   offset  16: d_in[2] v  shape=(1, 32, 2048, 128) dtype=bfloat16 strides=(16777216, 524288, 256, 2) contiguous=True
;   offset  24: d_in[3] window  shape=(1,) dtype=int32 strides=(4,) contiguous=True
;   offset  32: d_in[4] n_global  shape=(1,) dtype=int32 strides=(4,) contiguous=True
"""


def f32bits(x):
    return struct.unpack("<I", struct.pack("<f", x))[0]


def merge(a, b):
    out, nb = [], 0
    for i, x in enumerate(a):
        out.append(x)
        want = (i + 1) * len(b) // len(a)
        out += b[nb:want]
        nb = want
    return out + b[nb:]


def gen(opt):
    LD = opt.get("ld", "")
    QLD = opt.get("qld", "")
    ST = opt.get("st", " sc1")
    STB = opt.get("stb", ST)
    NOCOMP = opt.get("nocomp", False)
    PROBE = opt.get("probe", None)
    STAMP = opt.get("stamp", False) or PROBE
    D = int(opt.get("depth", 3))
    SLEEP = int(opt.get("sleep", 1))
    QLEAD = int(opt.get("qlead", 0))
    QL2 = int(opt.get("ql2", 0))
    THRMIN = int(opt.get("thrmin", 0))
    EW = int(opt.get("ew", 6))
    PST = int(opt.get("pst", 32))
    DUAL = opt.get("dual", "plain")
    PRIOW = int(opt.get("priow", 99))
    PRIOH = int(opt.get("prioh", 0))
    ROT = int(opt.get("rot", 6))
    PK = opt.get("pk", False)
    WX = int(opt.get("wx", 0))
    PRIOV = int(opt.get("priov", 2))
    CPF = int(opt.get("cpf", 0))
    PTS = opt.get("pts", "A2,A6,B1,B2,B6").split(",")
    assert len(PTS) == 5 and D >= 2 and QLEAD <= 1
    assert all(((w + ROT) & 7) < 6 for w in range(EW, 8))

    TB = 32 * 2048 * 256
    HEADB = 2048 * 256
    L_STAGE, L_GK, L_GV, L_FLAG, L_K, L_V = 0, 8192, 9216, 10240, 13824, 79360
    L_MRG = 10368
    VT, VP = 4224, 1056
    NH = 2
    NWAVE = 9 + NH
    NEG = f32bits(-1.0e30)
    CSCALE = f32bits((128 ** -0.5) * math.log2(math.e))

    S_Q, S_K, S_V, S_O, S_DBG, S_WS = 20, 24, 28, 32, 36, 40
    sWAVE, sHEADOFF, sROW0, sT0, sT1, sT2 = 44, 45, 46, 47, 48, 49
    sQOFF, sNEG, sQ0, sHEAD, sCHUNK, sDESC = 50, 51, 52, 53, 54, 55
    sEX = 56
    sC = 58
    sTS = 60
    sB, sIT, sNEED, sX, sCNT, sW, sHI, sREC, sSTEP, sXV, sSTEPV, sPARK, sREQ, sB2 = range(80, 94)
    sMASK = 2

    vKA, vVA, vSW0, vSW1, vGK, vN, vG, vG4 = 2, 6, 10, 11, 12, 13, 14, 15
    vFLAG, vSW, vT0, vT1, vONE, vSR, vSO, vT3, vT2 = 16, 17, 18, 19, 20, 24, 25, 26, 27
    vQR, vS, vOX, vPOOL, vGV = 28, 44, 68, 92, 164

    uid = [0]

    def newid():
        uid[0] += 1
        return uid[0]

    def stamp(em, i):
        if STAMP:
            em(f"s_memrealtime {sr(sTS + 2 * i, 2)}")

    def stamp_it(em, k, only=None):
        if not STAMP:
            return
        for it, nm in ((0, f"A{k}"), (1, f"B{k}")):
            if nm in PTS and only in (None, it):
                if only is None:
                    u = newid()
                    em(f"s_cmp_eq_u32 {sr(sIT)}, {it}")
                    em(f"s_cbranch_scc0 L_sa{u}")
                stamp(em, PTS.index(nm) + 1)
                if only is None:
                    em.raw(f"L_sa{u}:")

    def poll(em, need):
        u = newid()
        em.label(f"L_poll{u}")
        em(f"ds_read_b32 {vr(vT2)}, {vr(vFLAG)}")
        em(f"v_readfirstlane_b32 {sr(sT0)}, {vr(vT2)}")
        em(f"s_cmp_ge_i32 {sr(sT0)}, {need}")
        em(f"s_cbranch_scc1 L_pdone{u}")
        if SLEEP:
            em(f"s_sleep {SLEEP}")
        em(f"s_branch L_poll{u}")
        em.raw(f"L_pdone{u}:")

    def poll_bits(em, smask, first_read_done=False):
        u = newid()
        if first_read_done:
            em(f"v_readfirstlane_b32 {sr(sT0)}, {vr(vT2)}")
            em(f"s_andn2_b32 {sr(sT0)}, {smask}, {sr(sT0)}")
            em(f"s_cbranch_scc0 L_pdone{u}")
            keep = (list(em.ds_q), list(em.hist))
            em.lines.append(f"L_poll{u}:")
        else:
            em.label(f"L_poll{u}")
        em(f"ds_read_b32 {vr(vT2)}, {vr(vFLAG)} offset:4")
        em(f"v_readfirstlane_b32 {sr(sT0)}, {vr(vT2)}")
        em(f"s_andn2_b32 {sr(sT0)}, {smask}, {sr(sT0)}")
        em(f"s_cbranch_scc0 L_pdone{u}")
        if SLEEP:
            em(f"s_sleep {SLEEP}")
        em(f"s_branch L_poll{u}")
        em.raw(f"L_pdone{u}:")
        if first_read_done:
            em.ds_q, em.hist = keep

    def set_bit(em, sbit):
        em(f"s_lshl_b32 {sr(sT0)}, 1, {sbit}")
        em(f"v_mov_b32 {vr(vT2)}, {sr(sT0)}")
        em("s_mov_b64 exec, 1")
        em(f"ds_or_b32 {vr(vFLAG)}, {vr(vT2)} offset:4")
        em("s_mov_b64 exec, -1")

    def park_addr(em, sw, dst):
        em(f"s_sub_u32 {sr(sT1)}, 19, {sw}")
        em(f"s_cmp_eq_u32 {sr(sDESC)}, 0")
        em(f"s_cselect_b32 {sr(sT1)}, {sw}, {sr(sT1)}")
        em(f"s_mul_i32 {sr(sT2)}, {sr(sT1)}, {VT}")
        em(f"s_add_u32 {sr(sT2)}, {sr(sT2)}, {L_V}")
        em(f"s_lshl_b32 {sr(sT1)}, {sr(sT1)}, 12")
        em(f"s_add_u32 {sr(sT1)}, {sr(sT1)}, {L_K - 8192}")
        em(f"s_cmp_lt_u32 {sw}, 2")
        em(f"s_cselect_b32 {dst}, {sr(sT2)}, {sr(sT1)}")

    def stage_read_addrs(em):
        em(f"v_lshrrev_b32 {vr(vT0)}, 2, {vr(vN)}")
        em(f"v_add_u32 {vr(vT2)}, {vr(vG4)}, {vr(vT0)}")
        em(f"v_and_b32 {vr(vT1)}, 3, {vr(vN)}")
        em(f"v_lshlrev_b32 {vr(vSO)}, 4, {vr(vT1)}")
        em(f"v_lshl_add_u32 {vr(vSO)}, {vr(vT2)}, 8, {vr(vSO)}")
        em(f"v_bfe_u32 {vr(vSR)}, {vr(vT2)}, 1, 2")
        em(f"v_xor_b32 {vr(vSR)}, {vr(vSR)}, {vr(vT1)}")
        em(f"v_lshlrev_b32 {vr(vSR)}, 4, {vr(vSR)}")
        em(f"v_lshl_add_u32 {vr(vSR)}, {vr(vT2)}, 6, {vr(vSR)}")

    def dump_stamps(em, tagn):
        if not STAMP:
            return
        stamp(em, 6)
        em("s_waitcnt vmcnt(0)")
        stamp(em, 7)
        em("s_memtime s[78:79]")
        em("s_waitcnt lgkmcnt(0)")
        if PROBE:
            which, fac, pw = (int(x) for x in PROBE.split(","))
            em(f"s_cmp_eq_u32 {sr(sWG)}, 100")
            em(f"s_cbranch_scc0 L_probe_done{tagn}")
            em(f"s_cmp_eq_u32 {sr(sWAVE)}, {pw}")
            em(f"s_cbranch_scc0 L_probe_done{tagn}")
            em(f"s_sub_u32 {sr(sT0)}, {sr(sTS + 2 * which)}, {sr(sTS)}")
            em(f"s_mul_i32 {sr(sT0)}, {sr(sT0)}, {fac}")
            em(f"s_add_u32 {sr(sT0)}, {sr(sT0)}, 5000")
            em.label(f"L_probe{tagn}")
            em("s_memrealtime s[78:79]")
            em("s_waitcnt lgkmcnt(0)")
            em(f"s_sub_u32 {sr(sT1)}, s78, {sr(sTS)}")
            em(f"s_cmp_lt_u32 {sr(sT1)}, {sr(sT0)}")
            em(f"s_cbranch_scc1 L_probe{tagn}")
            em.label(f"L_probe_done{tagn}")
            return
        em("s_sub_u32 s76, s78, s76")
        if tagn == "m":
            em(f"s_mov_b32 {sr(sT1)}, {sr(sW)}")
        else:
            em(f"s_add_u32 {sr(sT1)}, {sr(sWAVE)}, 8")
        em(f"s_mul_i32 {sr(sT0)}, {sr(sWG)}, {NWAVE}")
        em(f"s_add_u32 {sr(sT0)}, {sr(sT0)}, {sr(sT1)}")
        em(f"s_lshl_b32 {sr(sT0)}, {sr(sT0)}, 6")
        em(f"s_add_u32 {sr(sT0)}, {sr(sT0)}, {0x800000}")
        for i in range(9):
            em(f"v_mov_b32 {vr(vPOOL + i)}, {sr(sTS + 2 * i)}")
        em("v_mov_b32 v0, 0")
        em("s_mov_b64 exec, 1")
        em(f"buffer_store_dwordx4 {vr(vPOOL, 4)}, v0, {sr(S_WS, 4)}, {sr(sT0)} offen")
        em(f"buffer_store_dwordx4 {vr(vPOOL + 4, 4)}, v0, {sr(S_WS, 4)}, {sr(sT0)} offen offset:16")
        em(f"buffer_store_dword {vr(vPOOL + 8)}, v0, {sr(S_WS, 4)}, {sr(sT0)} offen offset:32")

    sWG = 94

    e = Emitter()
    e.raw(HEADER + f"; @launch grid=(256,1,1) block=({64 * NWAVE},1,1) lds=163840")
    e.raw('.amdgcn_target "amdgcn-amd-amdhsa--gfx950"')
    e.raw(".text")
    e.raw(f".globl {NAME}_kernel")
    e.raw(".p2align 8")
    e.raw(f".type {NAME}_kernel,@function")
    e.raw(f"{NAME}_kernel:")
    e("s_load_dwordx4 s[4:7], s[0:1], 0")
    e("s_load_dwordx2 s[8:9], s[0:1], 16")
    e("s_cmp_ge_u32 s2, 256")
    e("s_cbranch_scc1 L_end")
    stamp(e, 0)
    if STAMP:
        e("s_memtime s[76:77]")
        e(f"s_mov_b32 {sr(sWG)}, s2")
        for i in range(1, 6):
            e(f"s_mov_b64 {sr(sTS + 2 * i, 2)}, 0")
    e(f"v_readfirstlane_b32 {sr(sWAVE)}, v0")
    e(f"v_and_b32 {vr(vN)}, 15, v0")
    e(f"v_bfe_u32 {vr(vG)}, v0, 4, 2")
    e(f"s_and_b32 {sr(sT0)}, s2, 7")
    e(f"s_lshr_b32 {sr(sT1)}, s2, 6")
    e(f"s_lshl2_add_u32 {sr(sHEAD)}, {sr(sT0)}, {sr(sT1)}")
    e(f"s_bfe_u32 {sr(sCHUNK)}, s2, 0x30003")
    e(f"s_lshl_b32 {sr(sHEADOFF)}, {sr(sHEAD)}, 19")
    e(f"s_lshl_b32 {sr(sT0)}, {sr(sCHUNK)}, 16")
    e(f"s_add_u32 {sr(sROW0)}, {sr(sHEADOFF)}, {sr(sT0)}")
    e(f"s_add_u32 {sr(sHI)}, {sr(sHEADOFF)}, {HEADB - 4096}")
    e(f"s_and_b32 {sr(sDESC)}, {sr(sCHUNK)}, 1")
    e(f"v_lshlrev_b32 {vr(vG4)}, 2, {vr(vG)}")
    e(f"v_mov_b32 {vr(vFLAG)}, {L_FLAG}")
    e(f"s_mov_b32 {sr(S_K + 2)}, {TB}")
    e(f"s_mov_b32 {sr(S_K + 3)}, 0x20000")
    e(f"s_lshr_b32 {sr(sWAVE)}, {sr(sWAVE)}, 6")
    e("s_cbranch_scc1 L_notloader")

    def other_srds(em, which):
        em("s_load_dwordx4 s[12:15], s[0:1], 40")
        em("s_load_dwordx2 s[16:17], s[0:1], 56")
        em(f"s_mov_b32 {sr(S_O + 2)}, {TB}")
        em(f"s_mov_b32 {sr(S_O + 3)}, 0x20000")
        em(f"s_mov_b32 {sr(S_DBG + 2)}, 256")
        em(f"s_mov_b32 {sr(S_DBG + 3)}, 0x20000")
        em(f"s_mov_b32 {sr(S_WS + 2)}, {0x1000000}")
        em(f"s_mov_b32 {sr(S_WS + 3)}, 0x20000")

    def other_srds_done(em):
        em("s_waitcnt lgkmcnt(0)")
        for b, src in ((S_O, 12), (S_DBG, 14), (S_WS, 16)):
            em(f"s_mov_b64 {sr(b, 2)}, {sr(src, 2)}")

    ld = e.fork()
    vKD, vVD, vCNT = 2, 6, 8
    ld(f"v_lshlrev_b32 v0, 8, {vr(vG)}")
    ld(f"v_xor_b32 {vr(vVD)}, {vr(vG4)}, {vr(vN)}")
    ld(f"v_lshl_add_u32 {vr(vVD)}, {vr(vVD)}, 4, v0")
    ld(f"v_xor_b32 {vr(vKD)}, {vr(vG)}, {vr(vN)}")
    ld(f"v_lshl_add_u32 {vr(vKD)}, {vr(vKD)}, 4, v0")
    ld(f"s_mov_b32 {sr(S_V + 2)}, {TB}")
    ld(f"s_mov_b32 {sr(S_V + 3)}, 0x20000")
    ld(f"v_mov_b32 {vr(vCNT)}, 0")
    ld(f"v_mov_b32 {vr(vCNT + 1)}, 0")
    ld(f"s_mov_b32 m0, {L_GK}")
    ld("s_waitcnt lgkmcnt(0)")
    ld(f"s_mov_b64 {sr(S_K, 2)}, s[6:7]")
    ld(f"s_mov_b64 {sr(S_V, 2)}, s[8:9]")

    def v_halo(em, hi_when_desc):
        em(f"s_cmp_eq_u32 {sr(sDESC)}, {1 if hi_when_desc else 0}")
        em(f"s_cselect_b32 {sr(sT0)}, {18 * VT}, 0")
        em(f"s_cselect_b32 {sr(sT1)}, {18 * 4096}, 0")
        em(f"s_add_u32 {sr(sT1)}, {sr(sT1)}, {sr(sROW0)}")
        em(f"s_sub_u32 {sr(sT1)}, {sr(sT1)}, 8192")
        for k in range(2):
            em(f"s_max_i32 {sr(sT2)}, {sr(sT1)}, {sr(sHEADOFF)}")
            em(f"s_min_i32 {sr(sT2)}, {sr(sT2)}, {sr(sHI)}")
            for j in range(4):
                em(f"s_add_u32 m0, {sr(sT0)}, {L_V + VT * k + 32 * j}")
                if k == 0 and j == 0:
                    em(f"s_add_u32 {sr(sT1)}, {sr(sT1)}, 4096")
                em(f"buffer_load_dwordx4 {vr(vVD)}, {sr(S_V, 4)}, {sr(sT2)} offen offset:{1024 * j}{LD} lds")

    ld(f"buffer_load_dwordx4 {vr(vKD)}, {sr(S_K, 4)}, {sr(sHEADOFF)} offen lds")
    stamp(ld, 5)
    ld(f"s_mov_b32 m0, {L_GV}")
    ld(f"buffer_load_dwordx4 {vr(vVD)}, {sr(S_V, 4)}, {sr(sHEADOFF)} offen lds")
    ld(f"ds_write_b64 {vr(vFLAG)}, {vr(vCNT, 2)}")
    v_halo(ld, True)
    for j in range(1, 4):
        ld(f"v_xor_b32 {vr(vKD + j)}, {64 * j}, {vr(vKD)}")
    ld("s_waitcnt lgkmcnt(0)")
    if opt.get("stbar"):
        stamp(ld, 1)
    ld("s_barrier")
    if opt.get("stbar"):
        stamp(ld, 2)
    ld(f"s_mul_i32 {sr(sX)}, {sr(sDESC)}, {15 * 4096}")
    ld(f"s_mul_i32 {sr(sSTEP)}, {sr(sDESC)}, -8192")
    ld(f"s_add_u32 {sr(sSTEP)}, {sr(sSTEP)}, 4096")
    ld(f"s_mul_i32 {sr(sXV)}, {sr(sDESC)}, {15 * VT}")
    ld(f"s_add_u32 {sr(sXV)}, {sr(sXV)}, {L_V + 2 * VT}")
    ld(f"s_mul_i32 {sr(sSTEPV)}, {sr(sDESC)}, {-2 * VT}")
    ld(f"s_add_u32 {sr(sSTEPV)}, {sr(sSTEPV)}, {VT}")
    ld(f"s_mov_b32 {sr(sCNT)}, {1 - D}")
    ld.vm_q = []
    ld.label("L_ldloop")
    ld(f"s_add_u32 {sr(sT1)}, {sr(sX)}, {sr(sROW0)}")
    ld(f"s_add_u32 m0, {sr(sX)}, {L_K}")
    for j in range(4):
        ld(f"buffer_load_dwordx4 {vr(vKD + j)}, {sr(S_K, 4)}, {sr(sT1)} offen offset:{1024 * j}{LD} lds")
    for j in range(4):
        ld(f"s_add_u32 m0, {sr(sXV)}, {32 * j}")
        if j == 0:
            ld(f"s_add_u32 {sr(sX)}, {sr(sX)}, {sr(sSTEP)}")
        ld(f"buffer_load_dwordx4 {vr(vVD)}, {sr(S_V, 4)}, {sr(sT1)} offen offset:{1024 * j}{LD} lds")
    ld(f"s_add_u32 {sr(sXV)}, {sr(sXV)}, {sr(sSTEPV)}")
    ld(f"s_add_u32 {sr(sCNT)}, {sr(sCNT)}, 1")
    ld(f"v_mov_b32 {vr(vCNT)}, {sr(sCNT)}")
    ld(f"s_cmp_lt_i32 {sr(sCNT)}, {17 - D}")
    ld(f"s_waitcnt vmcnt({8 * D})")
    ld(f"ds_write_b32 {vr(vFLAG)}, {vr(vCNT)}")
    ld("s_cbranch_scc1 L_ldloop")
    if not opt.get("stbar"):
        stamp(ld, 1)
    ld.vm_q = []
    v_halo(ld, False)
    if not opt.get("stbar"):
        stamp(ld, 2)
    other_srds(ld, None)
    stage_read_addrs(ld)
    other_srds_done(ld)
    for k in range(D, -1, -1):
        ld(f"v_mov_b32 {vr(vCNT)}, {18 - k}")
        ld(f"s_waitcnt vmcnt({8 * k})")
        ld(f"ds_write_b32 {vr(vFLAG)}, {vr(vCNT)}")
        if k == 1:
            stamp(ld, 3)
    ld.vm_q = []
    stamp(ld, 4)
    ld(f"s_mov_b32 {sr(sW)}, 0")
    ld.label("L_stloop")
    park_addr(ld, sr(sW), sr(sPARK))
    ld(f"s_xor_b32 {sr(sB)}, {sr(sW)}, 15")
    ld(f"s_cmp_eq_u32 {sr(sDESC)}, 0")
    ld(f"s_cselect_b32 {sr(sB)}, {sr(sW)}, {sr(sB)}")
    ld(f"s_lshl_b32 {sr(sB)}, {sr(sB)}, 12")
    ld(f"s_add_u32 {sr(sQOFF)}, {sr(sB)}, {sr(sROW0)}")
    ld(f"s_cmp_eq_u32 {sr(sQOFF)}, {sr(sHEADOFF)}")
    ld(f"s_cselect_b32 {sr(sEX)}, 0xffffff00, -1")
    ld(f"s_mov_b32 {sr(sEX + 1)}, -1")
    ld(f"s_lshl_b32 {sr(sREQ)}, 256, {sr(sW)}")
    ld(f"v_add_u32 v0, {sr(sPARK)}, {vr(vSR)}")
    poll_bits(ld, sr(sREQ))
    if PST < 32:
        ld(f"s_waitcnt vmcnt({PST - 4})")
    for u in range(4):
        ld(f"ds_read_b128 {vr(vPOOL + 4 * u, 4)}, v0 offset:{1024 * u}")
    ld(f"s_mov_b64 exec, {sr(sEX, 2)}")
    for u in range(4):
        ld(f"buffer_store_dwordx4 {vr(vPOOL + 4 * u, 4)}, {vr(vSO)}, {sr(S_O, 4)}, {sr(sQOFF)} offen offset:{64 * u}{ST}")
    ld("s_mov_b64 exec, -1")
    ld.vm_q = []
    ld(f"s_add_u32 {sr(sW)}, {sr(sW)}, 1")
    ld(f"s_cmp_lt_u32 {sr(sW)}, 8")
    ld.flush()
    ld("s_cbranch_scc1 L_stloop")
    dump_stamps(ld, "l")
    ld("s_endpgm")
    ld.raw("L_notloader:")

    c = e.fork()
    other_srds(c, None)
    c(f"s_mov_b32 {sr(S_Q + 2)}, {TB}")
    c(f"s_mov_b32 {sr(S_Q + 3)}, 0x20000")
    stage_read_addrs(c)
    c("s_barrier")
    other_srds_done(c)
    c(f"s_mov_b64 {sr(S_K, 2)}, s[6:7]")
    c(f"s_mov_b64 {sr(S_Q, 2)}, s[4:5]")
    c(f"s_mov_b32 {sr(sC)}, {CSCALE:#x}")
    c(f"s_mov_b32 {sr(sC + 1)}, {CSCALE:#x}")
    c(f"s_mov_b32 {sr(sNEG)}, {NEG:#x}")
    c(f"s_cmp_le_u32 {sr(sWAVE)}, {NH}")
    c("s_cbranch_scc1 L_helper")

    def lane_addrs(em):
        em(f"v_xor_b32 {vr(vKA)}, {vr(vN)}, {vr(vG)}")
        em(f"v_lshlrev_b32 {vr(vKA)}, 4, {vr(vKA)}")
        em(f"v_lshl_add_u32 {vr(vKA)}, {vr(vN)}, 8, {vr(vKA)}")
        em(f"v_lshrrev_b32 {vr(vT0)}, 2, {vr(vN)}")
        em(f"v_and_b32 {vr(vT1)}, 3, {vr(vN)}")
        em(f"v_mul_u32_u24 {vr(vGV)}, {256 + 64}, {vr(vT0)}")
        em(f"v_lshl_add_u32 {vr(vGV)}, {vr(vT1)}, 3, {vr(vGV)}")
        em(f"v_mul_u32_u24 {vr(vT2)}, {VP}, {vr(vG)}")
        for s in range(1, 4):
            em(f"v_xor_b32 {vr(vKA + s)}, {64 * s}, {vr(vKA)}")
            em(f"v_xor_b32 {vr(vGV + s)}, {64 * s}, {vr(vGV)}")
        for s in range(4):
            em(f"v_add_u32 {vr(vVA + s)}, {vr(vT2)}, {vr(vGV + s)}")
        for i in range(4):
            em(f"v_mov_b32 {vr(vONE + i)}, 0x3f803f80")

    def tile_addrs(em, skoff, svoff):
        for s in range(4):
            em(f"v_add_u32 {vr(vKA + s)}, {skoff}, {vr(vKA + s)}")
            em(f"v_add_u32 {vr(vVA + s)}, {svoff}, {vr(vVA + s)}")

    def allreduce_ops(op, x, y):
        return [f"v_mov_b32 {vr(y)}, {vr(x)}", f"v_permlane32_swap_b32 {vr(x)}, {vr(y)}", f"{op} {vr(x)}, {vr(x)}, {vr(y)}",
                f"v_mov_b32 {vr(y)}, {vr(x)}", f"v_permlane16_swap_b32 {vr(x)}, {vr(y)}", f"{op} {vr(x)}, {vr(x)}, {vr(y)}"]

    def max_tree(vals, dst):
        vals = list(vals)
        ops = [f"v_max3_f32 {vr(dst)}, {vr(vals[0])}, {vr(vals[1])}, {vr(vals[2])}"]
        i = 3
        while i + 1 < len(vals):
            ops.append(f"v_max3_f32 {vr(dst)}, {vr(dst)}, {vr(vals[i])}, {vr(vals[i + 1])}")
            i += 2
        if i < len(vals):
            ops.append(f"v_max_f32 {vr(dst)}, {vr(dst)}, {vr(vals[i])}")
        return ops

    def mfma(d, a, b, cc):
        return f"v_mfma_f32_16x16x32_bf16 {vr(d, 4)}, {vr(a, 4)}, {vr(b, 4)}, {'0' if cc is None else vr(cc, 4)}"

    m = c.fork()
    KQ = [vOX + 4 * i for i in range(6)] + [vPOOL + 4 * i for i in range(18)]
    OACC = [vOX + 4 * i for i in range(5)] + [vS + 12, vS + 16, vS + 20]
    vL = vOX + 20

    def q_load(em, sb):
        em(f"s_lshl_b32 {sr(sT1)}, {sb}, 12")
        em(f"s_add_u32 {sr(sT1)}, {sr(sT1)}, {sr(sROW0)}")
        for s in range(4):
            em(f"buffer_load_dwordx4 {vr(vQR + 4 * s, 4)}, {vr(vSO)}, {sr(S_Q, 4)}, {sr(sT1)} offen offset:{64 * s}{QLD}")
        em.vm_q = []

    def k_halo(em, sb):
        u = newid()
        em(f"s_sub_u32 {sr(sT0)}, {sb}, 2")
        em(f"s_cmp_lt_u32 {sr(sT0)}, 12")
        em.flush()
        em(f"s_cbranch_scc1 L_kh{u}")
        for t in (0, 1, 3, 4):
            em(f"s_add_u32 {sr(sT0)}, {sb}, {t - 2}")
            em(f"s_cmp_lt_u32 {sr(sT0)}, 16")
            em(f"s_cbranch_scc1 L_kh{u}_{t}")
            em(f"s_lshl_b32 {sr(sT0)}, {sr(sT0)}, 12")
            em(f"s_add_u32 {sr(sT0)}, {sr(sT0)}, {sr(sROW0)}")
            em(f"s_max_i32 {sr(sT0)}, {sr(sT0)}, {sr(sHEADOFF)}")
            em(f"s_min_i32 {sr(sT0)}, {sr(sT0)}, {sr(sHI)}")
            for s in range(4):
                em(f"buffer_load_dwordx4 {vr(KQ[4 + 4 * t + s], 4)}, {vr(vSO)}, {sr(S_K, 4)}, {sr(sT0)} offen offset:{64 * s}")
            em.raw(f"L_kh{u}_{t}:")
        em.raw(f"L_kh{u}:")
        em.vm_q = []

    m(f"s_sub_u32 {sr(sW)}, {sr(sWAVE)}, {1 + NH}")
    if WX:
        m(f"s_xor_b32 {sr(sW)}, {sr(sW)}, {WX}")
    m(f"s_mul_i32 {sr(sT2)}, {sr(sDESC)}, 15")
    m(f"s_xor_b32 {sr(sB)}, {sr(sW)}, {sr(sT2)}")
    m(f"s_cmp_gt_u32 {sr(sW)}, 1")
    m("s_cbranch_scc1 L_qa_later")
    k_halo(m, sr(sB))
    m(f"s_cmp_gt_u32 {sr(sW)}, {QLEAD}")
    m("s_cbranch_scc1 L_qa_later")
    q_load(m, sr(sB))
    m.raw("L_qa_later:")
    if PRIOW < 8:
        m(f"s_cmp_lt_u32 {sr(sW)}, {PRIOW}")
        m("s_cbranch_scc1 L_noprio")
        m(f"s_setprio {PRIOV}")
        m.raw("L_noprio:")
    lane_addrs(m)
    m(f"v_xor_b32 {vr(vGK)}, {vr(vT1)}, {vr(vG)}")
    m(f"v_lshlrev_b32 {vr(vGK)}, 4, {vr(vGK)}")
    m(f"v_lshl_add_u32 {vr(vGK)}, {vr(vT1)}, 8, {vr(vGK)}")
    m(f"v_add_u32 {vr(vGK)}, {L_GK}, {vr(vGK)}")
    for u in range(4):
        m(f"v_add_u32 {vr(vGV + u)}, {L_GV}, {vr(vGV + u)}")
    m(f"s_lshl_b32 {sr(sREQ)}, {sr(sW)}, 10")
    m(f"v_bfe_u32 {vr(vT0)}, {vr(vN)}, 1, 2")
    m(f"v_lshlrev_b32 {vr(vT2)}, 6, {vr(vN)}")
    m(f"v_add_u32 {vr(vT2)}, {sr(sREQ)}, {vr(vT2)}")
    m(f"v_xor_b32 {vr(vSW)}, {vr(vT0)}, {vr(vG)}")
    m(f"v_lshl_add_u32 {vr(vSW)}, {vr(vSW)}, 4, {vr(vT2)}")
    m(f"v_lshrrev_b32 {vr(vSW1)}, 1, {vr(vG)}")
    m(f"v_xor_b32 {vr(vSW0)}, {vr(vT0)}, {vr(vSW1)}")
    m(f"v_lshl_add_u32 {vr(vSW0)}, {vr(vSW0)}, 4, {vr(vT2)}")
    m(f"v_and_b32 {vr(vSW1)}, 1, {vr(vG)}")
    m(f"v_lshl_add_u32 {vr(vSW0)}, {vr(vSW1)}, 3, {vr(vSW0)}")
    m(f"v_xor_b32 {vr(vSW1)}, 32, {vr(vSW0)}")
    m(f"v_add_u32 {vr(vSR)}, {sr(sREQ)}, {vr(vSR)}")
    m(f"v_sub_u32 {vr(vT0)}, {vr(vG4)}, {vr(vN)}")
    for r in range(4):
        m(f"v_cmp_le_i32 {sr(sMASK + 2 * r, 2)}, {-r}, {vr(vT0)}")
        m(f"v_cmp_ge_i32 {sr(sMASK + 8 + 2 * r, 2)}, {-r}, {vr(vT0)}")
    m(f"v_cmp_eq_u32 {sr(sMASK + 16, 2)}, 0, {vr(vG4)}")
    park_addr(m, sr(sW), sr(sPARK))
    m(f"s_sub_u32 {sr(sPARK)}, {sr(sPARK)}, {sr(sREQ)}")
    m(f"s_lshl_b32 {sr(sREQ)}, 15, {sr(sW)}")
    m(f"s_lshr_b32 {sr(sREQ)}, {sr(sREQ)}, 4")
    m(f"s_lshr_b32 {sr(sT1)}, {sr(sW)}, 1")
    m(f"s_lshl_b32 {sr(sT1)}, 0x8000, {sr(sT1)}")
    m(f"s_or_b32 {sr(sREQ)}, {sr(sREQ)}, {sr(sT1)}")
    m(f"s_lshl_b32 {sr(sT1)}, {sr(sW)}, 8")
    m(f"s_cmp_lt_u32 {sr(sW)}, 2")
    m(f"s_cselect_b32 {sr(sREQ)}, {sr(sT1)}, {sr(sREQ)}")
    m(f"s_mov_b32 {sr(sIT)}, 0")
    m(f"s_add_u32 {sr(sNEED)}, {sr(sW)}, 4")
    m(f"s_add_u32 {sr(sX)}, {sr(sW)}, {ROT}")
    m(f"s_and_b32 {sr(sX)}, {sr(sX)}, 7")
    m(f"s_add_u32 {sr(sX)}, {sr(sX)}, 8")
    m(f"s_mul_i32 {sr(sT2)}, {sr(sDESC)}, 15")
    m(f"s_xor_b32 {sr(sB2)}, {sr(sX)}, {sr(sT2)}")
    m(f"s_lshl_b32 {sr(sSTEP)}, {sr(sB)}, 12")
    m(f"s_add_u32 {sr(sSTEP)}, {sr(sSTEP)}, {L_K - 8192}")
    m(f"s_mul_i32 {sr(sSTEPV)}, {sr(sB)}, {VT}")
    m(f"s_add_u32 {sr(sSTEPV)}, {sr(sSTEPV)}, {L_V}")
    m(f"s_cmp_gt_u32 {sr(sW)}, {QLEAD}")
    m("s_cbranch_scc0 L_block")
    m(f"s_sub_u32 {sr(sT2)}, {sr(sW)}, {QLEAD}")
    poll(m, sr(sT2))
    q_load(m, sr(sB))
    m.label("L_block")
    m(f"s_lshl_b32 {sr(sT0)}, {sr(sB)}, 12")
    m(f"s_add_u32 {sr(sQOFF)}, {sr(sT0)}, {sr(sROW0)}")
    m(f"v_mov_b32 {vr(vT0)}, {sr(sNEG)}")
    tile_addrs(m, sr(sSTEP), sr(sSTEPV))
    m(f"s_lshl_b32 {sr(sQ0)}, {sr(sCHUNK)}, 8")
    m(f"s_lshl_b32 {sr(sT0)}, {sr(sB)}, 4")
    m(f"s_add_u32 {sr(sQ0)}, {sr(sQ0)}, {sr(sT0)}")
    for r in range(4):
        m(f"v_cndmask_b32_e64 {vr(vS + r)}, {vr(vT0)}, 0, {sr(sMASK + 2 * r, 2)}")
        m(f"v_cndmask_b32_e64 {vr(vS + 16 + r)}, {vr(vT0)}, 0, {sr(sMASK + 8 + 2 * r, 2)}")
    m(f"v_cndmask_b32_e64 {vr(vS + 20)}, {vr(vT0)}, 0, {sr(sMASK + 16, 2)}")
    m(f"v_cndmask_b32_e64 {vr(vS + 21)}, {vr(vT0)}, 0, {sr(sMASK + 16, 2)}")
    poll(m, sr(sNEED))
    stamp_it(m, 1)

    def relayout(q):
        m(f"ds_write_b128 {vr(vSR)}, {vr(q, 4)}")
        m(f"ds_read_b128 {vr(q, 4)}, {vr(vSW)}")

    def v_read(T, k):
        u, p = T // 2, T % 2
        q = vPOOL + 12 * (T % 6) + 4 * k
        r = [f"ds_read_b64_tr_b16 {vr(q + 2 * j, 2)}, {vr(vVA + u)} offset:{VT * (2 * k + j) + 32 * p}" for j in range(2)]
        if k == 2:
            r[1] = f"ds_read_b64_tr_b16 {vr(q + 2, 2)}, {vr(vGV + u)} offset:{32 * p}"
        return r

    if not NOCOMP:
        for s in range(4):
            if s:
                m(f"v_xor_b32 {vr(KQ[s])}, {64 * s}, {vr(vGK)}")
            m(f"ds_read_b128 {vr(KQ[s], 4)}, {vr(KQ[s]) if s else vr(vGK)}")
        for t in (2, 0, 1, 3, 4):
            if t != 2:
                m(f"s_add_u32 {sr(sT0)}, {sr(sB)}, {t - 2}")
                m(f"s_cmp_lt_u32 {sr(sT0)}, 16")
                m(f"s_cbranch_scc0 L_skipk{t}")
            for s in range(4):
                m(f"ds_read_b128 {vr(KQ[4 + 4 * t + s], 4)}, {vr(vKA + s)} offset:{4096 * t}")
            if t != 2:
                m.raw(f"L_skipk{t}:")
        m(f"s_sub_u32 {sr(sT0)}, {sr(sB)}, 2")
        m(f"s_cmp_lt_u32 {sr(sT0)}, 12")
        m("s_cbranch_scc1 L_nohalo")
        keep = list(m.ds_q)
        m.ds_q = []
        m("s_waitcnt vmcnt(4)")
        for t in (0, 1, 3, 4):
            m(f"s_add_u32 {sr(sT0)}, {sr(sB)}, {t - 2}")
            m(f"s_cmp_lt_u32 {sr(sT0)}, 16")
            m(f"s_cbranch_scc1 L_rl{t}")
            for s in range(4):
                relayout(KQ[4 + 4 * t + s])
            m.raw(f"L_rl{t}:")
        m.ds_q = keep
        m.raw("L_nohalo:")
    m("s_waitcnt vmcnt(0)")
    stamp_it(m, 2)
    if NOCOMP:
        for i in range(16):
            m(f"v_mov_b32 {vr(vPOOL + i)}, {vr(vQR + i)}")
        set_bit(m, sr(sW))
    else:
        for s in range(4):
            relayout(vQR + 4 * s)
        m(f"s_sub_u32 {sr(sT1)}, {sr(sQ0)}, 34")
        for s in range(4):
            m(mfma(vS + 20, KQ[s], vQR + 4 * s, vS + 20))
        set_bit(m, sr(sW))
        m(f"s_cmp_lt_u32 {sr(sT1)}, {2001 - 34}")

        def s_tile(t):
            return [mfma(vS + 4 * t, KQ[4 + 4 * t + s], vQR + 4 * s, None if (s == 0 and t in (1, 2, 3)) else vS + 4 * t) for s in range(4)]

        VR = [op for k in range(3) for T in range(6) for op in v_read(T, k)]
        mx = max_tree([vS + 20, vS + 21] + [vS + i for i in range(20)], vT0)
        m("s_cbranch_scc0 L_edge")
        ed = m.fork()
        for op in s_tile(0) + s_tile(1) + s_tile(2) + merge(s_tile(3), mx[:2]) + merge(s_tile(4), mx[2:5]):
            m(op)
        for op in VR[:4] + mx[5:7] + VR[4:8] + mx[7:]:
            m(op)
        m.raw("L_join:")
        ed.raw("L_edge:")
        for t in range(5):
            for op in s_tile(t):
                ed(op)
        ed(f"v_add_u32 {vr(vT1)}, {sr(sT1)}, {vr(vG4)}")
        ed(f"s_movk_i32 {sr(sT1)}, 2046")
        for t in range(5):
            for r in range(4):
                ed(f"v_add_u32 v0, {16 * t + r}, {vr(vT1)}")
                ed(f"v_cmp_gt_u32 vcc, {sr(sT1)}, v0")
                ed(f"v_cndmask_b32 {vr(vS + 4 * t + r)}, {vr(vT0)}, {vr(vS + 4 * t + r)}, vcc")
        for op in VR[:8] + mx:
            ed(op)
        ed.flush()
        ed("s_branch L_join")
    m(f"s_lshl_b32 {sr(sT0)}, {sr(sIT)}, 4")
    m(f"s_add_u32 {sr(sT0)}, {sr(sT0)}, {EW}")
    m(f"s_cmp_ge_u32 {sr(sW)}, {sr(sT0)}")
    m("s_cbranch_scc0 L_noearly")
    q_load(m, sr(sB2))
    m.raw("L_noearly:")
    stamp_it(m, 3)

    W = vPOOL + 40
    R = vPOOL + 24

    def p_ops(lo, hi):
        fm, ex, cv = [], [], []
        for i in range(lo, hi):
            if PK and i % 2 == 0:
                fm.append(f"v_pk_fma_f32 {vr(vS + i, 2)}, {vr(vS + i, 2)}, {sr(sC, 2)}, {vr(vT0, 2)} neg_lo:[0,0,1] neg_hi:[0,0,1]")
            elif not PK:
                fm.append(f"v_fma_f32 {vr(vS + i)}, {vr(vS + i)}, {sr(sC)}, -{vr(vT0)}")
            ex.append(f"v_exp_f32 {vr(vS + i)}, {vr(vS + i)}")
        for i in range(lo // 2, hi // 2):
            cv.append(f"v_cvt_pk_bf16_f32 {vr(vS + i)}, {vr(vS + 2 * i)}, {vr(vS + 2 * i + 1)}")
        per = 2 if PK else 1
        seq = fm[:2 // per]
        nf = 2 // per
        for j, x in enumerate(ex):
            seq.append(x)
            if nf < len(fm) and (j + 1) % per == 0:
                seq.append(fm[nf])
                nf += 1
            if j >= 2 and j % 2 == 0:
                seq.append(cv[(j - 2) // 2])
        seq.append(cv[-1])
        return seq

    def pv(T, k):
        return mfma(OACC[T], vPOOL + 12 * (T % 6) + 4 * k, vS + 4 * k, None if k == 0 else OACC[T])

    def lsum(k):
        return mfma(vL, vONE, vS + 4 * k, None if k == 0 else vL)

    def fin(T, park):
        u, p = T // 2, T % 2
        o = OACC[T]
        w = W + 4 * u + 2 * p
        if PK:
            ops = [f"v_pk_mul_f32 {vr(o + r, 2)}, {vr(o + r, 2)}, {vr(vT0, 2)} op_sel_hi:[1,0]" for r in (0, 2)]
        else:
            ops = [f"v_mul_f32 {vr(o + r)}, {vr(o + r)}, {vr(vT0)}" for r in range(4)]
        ops += [f"v_cvt_pk_bf16_f32 {vr(w)}, {vr(o)}, {vr(o + 1)}", f"v_cvt_pk_bf16_f32 {vr(w + 1)}, {vr(o + 2)}, {vr(o + 3)}"]
        if NOCOMP:
            ops = []
        if park:
            ops.append(f"ds_write_b64 {vr(vT3 if p else 0)}, {vr(w, 2)} offset:{1024 * u}")
        else:
            ops.append(f"ds_write_b64 {vr(vSW1 if p else vSW0)}, {vr(w, 2)}")
            if p:
                ops.append(f"ds_read_b128 {vr(R + 4 * u, 4)}, {vr(vSR)}")
        return ops

    if not NOCOMP:
        for op in merge(allreduce_ops("v_max_f32", vT0, vT1), VR[8:14]):
            m(op)
        m(f"v_mul_f32 {vr(vT0)}, {sr(sC)}, {vr(vT0)}")
        if PK:
            m(f"v_mov_b32 {vr(vT1)}, {vr(vT0)}")
        for op in merge(p_ops(0, 8), VR[14:24]):
            m(op)
        for op in merge(merge(p_ops(8, 16), VR[24:36]), [lsum(0)] + [pv(T, 0) for T in range(5)]):
            m(op)
        for op in merge(p_ops(16, 22) + [f"v_mov_b32 {vr(vS + 11)}, 0"], [pv(5, 0), lsum(1)] + [pv(T, 1) for T in range(6)]):
            m(op)
    stamp_it(m, 4)

    def tail(em, park):
        if park:
            em(f"v_add_u32 v0, {sr(sPARK)}, {vr(vSW0)}")
            em(f"v_add_u32 {vr(vT3)}, {sr(sPARK)}, {vr(vSW1)}")
            em(f"ds_read_b32 {vr(vT2)}, {vr(vFLAG)} offset:4")
        if NOCOMP:
            if park:
                poll_bits(em, sr(sREQ), True)
            for T in range(8):
                for op in fin(T, park):
                    em(op)
            return
        em(lsum(2))
        em(pv(0, 2))
        for k in range(3):
            for op in v_read(6, k):
                em(op)
        em(pv(1, 2))
        for k in range(3):
            for op in v_read(7, k):
                em(op)
        em(pv(2, 2))
        em(f"v_rcp_f32 {vr(vT0)}, {vr(vL)}")
        em(pv(3, 2))
        if park:
            poll_bits(em, sr(sREQ), True)
        em(pv(4, 2))
        em(pv(5, 2))
        for op in merge(fin(0, park) + fin(1, park) + fin(2, park), [pv(6, k) for k in range(3)] + [pv(7, k) for k in range(3)]):
            em(op)
        for T in range(3, 8):
            for op in fin(T, park):
                em(op)

    m(f"s_cmp_lg_u32 {sr(sIT)}, 0")
    m("s_cbranch_scc1 L_last")
    b2 = m.fork()
    tail(m, True)
    m(f"s_add_u32 {sr(sT1)}, {sr(sW)}, 8")
    m.wait_lgkm_all()
    set_bit(m, sr(sT1))
    stamp_it(m, 6, 0)
    m(f"s_sub_u32 {sr(sT1)}, {sr(sB2)}, {sr(sB)}")
    m(f"s_lshl_b32 {sr(sSTEP)}, {sr(sT1)}, 12")
    m(f"s_mul_i32 {sr(sSTEPV)}, {sr(sT1)}, {VT}")
    m(f"s_mov_b32 {sr(sB)}, {sr(sB2)}")
    if not NOCOMP:
        k_halo(m, sr(sB))
    m(f"s_add_u32 {sr(sNEED)}, {sr(sX)}, 4")
    m(f"s_min_u32 {sr(sNEED)}, {sr(sNEED)}, 18")
    m(f"s_mov_b32 {sr(sIT)}, 1")
    m(f"s_cmp_ge_u32 {sr(sW)}, {EW}")
    m.flush()
    m("s_cbranch_scc1 L_block")
    m(f"s_sub_u32 {sr(sT2)}, {sr(sNEED)}, {D + QL2}")
    m(f"s_max_u32 {sr(sT2)}, {sr(sT2)}, {THRMIN}")
    poll(m, sr(sT2))
    q_load(m, sr(sB))
    m("s_branch L_block")
    b2.raw("L_last:")
    tail(b2, False)
    if STAMP and "B6" in PTS:
        b2.wait_lgkm_all()
        stamp_it(b2, 6, 1)
    for u in range(4):
        b2(f"buffer_store_dwordx4 {vr(R + 4 * u, 4)}, {vr(vSO)}, {sr(S_O, 4)}, {sr(sQOFF)} offen offset:{64 * u}{STB}")
    dump_stamps(b2, "m")
    b2("s_endpgm")

    h = c.fork()
    h.raw("L_helper:")
    hS, hO, hK, hV, vM, vA = 44, 56, 92, 124, 156, 1
    hL = hO + 32
    if PRIOH:
        h(f"s_setprio {PRIOH}")
    if CPF:
        h("s_getpc_b64 s[2:3]")
        h.raw("L_pc:")
        h(f"v_lshl_add_u32 v0, {vr(vG)}, 4, {vr(vN)}")
        h("v_lshlrev_b32 v0, 7, v0")
        h(f"s_sub_u32 s2, s2, L_pc-{NAME}_kernel")
        h("s_subb_u32 s3, s3, 0")
        for i in range(CPF):
            if i:
                h("v_add_u32 v0, 0x2000, v0")
            h(f"v_min_u32 v1, L_codeend-{NAME}_kernel-4, v0")
            h(f"global_load_dword {vr(160 + i)}, v1, s[2:3]")
    h(f"v_lshlrev_b32 {vr(vA)}, 4, {vr(vG)}")
    h(f"v_lshl_add_u32 v0, {vr(vN)}, 8, {vr(vA)}")
    for i in range(16):
        h(f"v_mov_b32 {vr(vQR + i)}, 0")
    h("s_mov_b32 exec_lo, 0x00030003")
    h("s_mov_b32 exec_hi, 0x00030003")
    for s in range(4):
        h(f"buffer_load_dwordx4 {vr(vQR + 4 * s, 4)}, v0, {sr(S_Q, 4)}, {sr(sHEADOFF)} offen offset:{64 * s}")
    h("s_mov_b64 exec, -1")
    lane_addrs(h)
    h(f"s_mul_i32 {sr(sPARK)}, {sr(sWAVE)}, 1056")
    h(f"s_add_u32 {sr(sPARK)}, {sr(sPARK)}, {L_MRG - 1056}")
    h(f"v_lshl_add_u32 {vr(vA)}, {vr(vN)}, 9, {vr(vA)}")
    h(f"v_add_u32 {vr(vA)}, {sr(sPARK)}, {vr(vA)}")
    h(f"v_lshlrev_b32 {vr(vSR)}, 3, {vr(vN)}")
    h(f"v_add_u32 {vr(vSR)}, {sr(sPARK)}, {vr(vSR)}")
    h(f"v_lshl_add_u32 {vr(vSO)}, {vr(vG)}, 4, {vr(vN)}")
    h(f"v_lshrrev_b32 {vr(vSW)}, 5, {vr(vSO)}")
    h(f"v_lshlrev_b32 {vr(vSW)}, 3, {vr(vSW)}")
    h(f"v_lshlrev_b32 {vr(vSW0)}, 4, {vr(vSO)}")
    h(f"v_and_b32 {vr(vSW1)}, 7, {vr(vSO)}")
    h(f"v_lshlrev_b32 {vr(vT0)}, 3, {vr(vSW)}")
    h(f"v_lshl_add_u32 {vr(vGK)}, {vr(vSW1)}, 3, {vr(vT0)}")
    h(f"v_lshl_add_u32 {vr(vSW1)}, {vr(vSW1)}, 11, {vr(vT0)}")
    h(f"v_lshlrev_b32 {vr(vSO)}, 3, {vr(vSO)}")
    for i in range(36):
        h(f"v_mov_b32 {vr(hO + i)}, 0")
    h(f"v_mov_b32 {vr(vM)}, {sr(sNEG)}")
    h(f"s_sub_u32 {sr(sW)}, {sr(sWAVE)}, 1")
    h(f"s_lshl_b32 {sr(sT0)}, {sr(sW)}, 1")
    h(f"s_add_u32 {sr(sNEED)}, {sr(sT0)}, 3")
    h(f"s_sub_u32 {sr(sT1)}, 14, {sr(sT0)}")
    h(f"s_cmp_eq_u32 {sr(sDESC)}, 0")
    h(f"s_cselect_b32 {sr(sT0)}, {sr(sT0)}, {sr(sT1)}")
    h(f"s_cselect_b32 {sr(sSTEPV)}, 1, -1")
    h(f"s_mul_i32 {sr(sSTEP)}, {sr(sSTEPV)}, {2 * NH * 4096}")
    h(f"s_mul_i32 {sr(sSTEPV)}, {sr(sSTEPV)}, {2 * NH * VT}")
    h(f"s_lshl_b32 {sr(sT1)}, {sr(sT0)}, 12")
    h(f"s_add_u32 {sr(sT1)}, {sr(sT1)}, {L_K}")
    h(f"s_mul_i32 {sr(sT2)}, {sr(sT0)}, {VT}")
    h(f"s_add_u32 {sr(sT2)}, {sr(sT2)}, {L_V + 2 * VT}")
    tile_addrs(h, sr(sT1), sr(sT2))
    h(f"s_lshl_b32 {sr(sREC)}, {sr(sHEAD)}, 3")
    h(f"s_add_u32 {sr(sREC)}, {sr(sREC)}, {sr(sCHUNK)}")
    h(f"s_lshl_b32 {sr(sREC)}, {sr(sREC)}, 11")
    h(f"s_getreg_b32 {sr(sX)}, hwreg(HW_REG_XCC_ID, 0, 4)")
    h(f"s_mul_i32 {sr(sT2)}, {sr(sX)}, {sr(sX)}")
    h(f"s_lshl_b32 {sr(sT2)}, {sr(sT2)}, 13")
    h(f"s_lshl_b32 {sr(sX)}, {sr(sX)}, 5")
    h(f"s_add_u32 {sr(sX)}, {sr(sX)}, {sr(sT2)}")
    h(f"s_add_u32 {sr(sX)}, {sr(sX)}, 1")
    h(f"s_add_u32 {sr(sREQ)}, {sr(sREC)}, {1 << 20}")
    if opt.get("tlbw"):
        h(f"s_lshl_b32 {sr(sT0)}, {sr(sHEAD)}, 14")
        h(f"buffer_load_dword v162, {vr(vSW1)}, {sr(S_WS, 4)}, {sr(sT0)} offen offset:1536")
        h(f"s_add_u32 {sr(sT0)}, {sr(sT0)}, {1 << 20}")
        h(f"buffer_load_dword v163, {vr(vSW1)}, {sr(S_WS, 4)}, {sr(sT0)} offen offset:1536")
    h.wait_vm_all()
    h.label("L_hloop")
    poll(h, sr(sNEED))
    h(f"s_lshr_b32 {sr(sT1)}, {sr(sNEED)}, 1")
    h(f"s_add_u32 {sr(sT1)}, {sr(sT1)}, 15")
    if not NOCOMP:
        for i in range(8):
            h(f"ds_read_b128 {vr(hK + 4 * i, 4)}, {vr(vKA + i % 4)} offset:{4096 * (i // 4)}")
        hvr = [f"ds_read_b64_tr_b16 {vr(hV + 4 * T + 2 * j, 2)}, {vr(vVA + T // 2)} offset:{VT * j + 32 * (T % 2)}" for T in range(8) for j in range(2)]
        for i in range(8):
            t, s = i // 4, i % 4
            h(mfma(hS + 4 * t, hK + 4 * i, vQR + 4 * s, None if s == 0 else hS + 4 * t))
            h(hvr[2 * i])
            h(hvr[2 * i + 1])
    set_bit(h, sr(sT1))
    tile_addrs(h, sr(sSTEP), sr(sSTEPV))
    if not NOCOMP:
        for op in max_tree([hS + i for i in range(8)], vT0) + allreduce_ops("v_max_f32", vT0, vT1):
            h(op)
        h(f"v_mul_f32 {vr(vT0)}, {sr(sC)}, {vr(vT0)}")
        h(f"v_max_f32 {vr(vT0)}, {vr(vT0)}, {vr(vM)}")
        h(f"v_sub_f32 {vr(vT1)}, {vr(vM)}, {vr(vT0)}")
        h(f"v_exp_f32 {vr(vT1)}, {vr(vT1)}")
        h(f"v_mov_b32 {vr(vM)}, {vr(vT0)}")
        for i in range(8):
            h(f"v_fma_f32 {vr(hS + i)}, {vr(hS + i)}, {sr(sC)}, -{vr(vT0)}")
        for i in range(8):
            h(f"v_exp_f32 {vr(hS + i)}, {vr(hS + i)}")
        h(f"v_mul_f32 {vr(hL)}, {vr(hL)}, {vr(vT1)}")
        for i in range(4):
            h(f"v_mul_f32 {vr(hO + i)}, {vr(hO + i)}, {vr(vT1)}")
        for k in range(4):
            h(f"v_cvt_pk_bf16_f32 {vr(hS + k)}, {vr(hS + 2 * k)}, {vr(hS + 2 * k + 1)}")
        for T in range(8):
            if T < 7:
                for i in range(4):
                    h(f"v_mul_f32 {vr(hO + 4 * T + 4 + i)}, {vr(hO + 4 * T + 4 + i)}, {vr(vT1)}")
            if T == 0:
                h(mfma(hL, vONE, hS, hL))
            h(mfma(hO + 4 * T, hV + 4 * T, hS, hO + 4 * T))
    h(f"s_add_u32 {sr(sNEED)}, {sr(sNEED)}, {2 * NH}")
    h(f"s_cmp_le_u32 {sr(sNEED)}, 17")
    h.flush()
    h("s_cbranch_scc1 L_hloop")
    stamp(h, 1)
    if not NOCOMP:
        h(f"v_mov_b32 {vr(vM + 1)}, {vr(hL)}")
        h("s_mov_b32 exec_lo, 0x00030003")
        h("s_mov_b32 exec_hi, 0x00030003")
        for T in range(8):
            h(f"ds_write_b128 {vr(vA)}, {vr(hO + 4 * T, 4)} offset:{64 * T}")
        h("s_mov_b64 exec, 3")
        h(f"ds_write_b64 {vr(vSR)}, {vr(vM, 2)} offset:1024")
        h("s_mov_b64 exec, -1")
        h(f"s_cmp_lg_u32 {sr(sW)}, 0")
        h("s_cbranch_scc1 L_hmerge")
        h0 = h.fork()
        keepq = list(h.ds_q)
        h.wait_lgkm_all()
        set_bit(h, 24)
        h("s_branch L_hdone")
        h.raw("L_hmerge:")
        h.ds_q = keepq
        h(f"s_mov_b32 {sr(sT2)}, {1 << 24}")
        poll_bits(h, sr(sT2))
        cA, cB, cM = 56, 60, 64
        h(f"ds_read_b64 {vr(cM, 2)}, {vr(vSW)} offset:{L_MRG + 1024}")
        h(f"ds_read_b64 {vr(cM + 2, 2)}, {vr(vSW)} offset:{L_MRG + 1056 + 1024}")
        h(f"ds_read_b128 {vr(cA, 4)}, {vr(vSW0)} offset:{L_MRG}")
        h(f"ds_read_b128 {vr(cB, 4)}, {vr(vSW0)} offset:{L_MRG + 1056}")
        h(f"s_lshl_b32 {sr(sT0)}, {sr(sHEAD)}, 2")
        h(f"v_mov_b32 v0, {sr(sX)}")
        h(f"v_max_f32 {vr(vM)}, {vr(cM)}, {vr(cM + 2)}")
        h(f"v_sub_f32 {vr(cM)}, {vr(cM)}, {vr(vM)}")
        h(f"v_sub_f32 {vr(cM + 2)}, {vr(cM + 2)}, {vr(vM)}")
        h(f"v_exp_f32 {vr(cM)}, {vr(cM)}")
        h(f"v_exp_f32 {vr(cM + 2)}, {vr(cM + 2)}")
        for r in range(4):
            h(f"v_mul_f32 {vr(cA + r)}, {vr(cA + r)}, {vr(cM)}")
        h(f"v_mul_f32 {vr(vM + 1)}, {vr(cM + 1)}, {vr(cM)}")
        for r in range(4):
            h(f"v_fmac_f32 {vr(cA + r)}, {vr(cB + r)}, {vr(cM + 2)}")
        h(f"v_fmac_f32 {vr(vM + 1)}, {vr(cM + 3)}, {vr(cM + 2)}")
        h(f"buffer_store_dwordx4 {vr(cA, 4)}, {vr(vSW0)}, {sr(S_WS, 4)}, {sr(sREC)} offen sc1")
        if DUAL != "none":
            h(f"buffer_store_dwordx4 {vr(cA, 4)}, {vr(vSW0)}, {sr(S_WS, 4)}, {sr(sREQ)} offen")
        h("s_mov_b32 exec_lo, 0xff")
        h("s_mov_b32 exec_hi, 0xff")
        h(f"buffer_store_dwordx2 {vr(vM, 2)}, {vr(vGK)}, {sr(S_WS, 4)}, {sr(sREC)} offen offset:1024 sc1")
        if DUAL != "none":
            h(f"buffer_store_dwordx2 {vr(vM, 2)}, {vr(vGK)}, {sr(S_WS, 4)}, {sr(sREQ)} offen offset:1024")
        h("s_mov_b64 exec, 1")
        h.wait_vm_all()
        stamp(h, 2)
        h(f"buffer_atomic_add v0, off, {sr(S_DBG, 4)}, {sr(sT0)} sc0")
        h(f"v_readfirstlane_b32 {sr(sT1)}, v0")
        h("s_mov_b64 exec, -1")
        stamp(h, 3)
        h(f"s_and_b32 {sr(sT2)}, {sr(sT1)}, 31")
        h(f"s_cmp_eq_u32 {sr(sT2)}, 7")
        h.flush()
        h("s_cbranch_scc0 L_hdone")
        cO, cW = 56, 96
        h(f"s_lshl_b32 {sr(sREC)}, {sr(sHEAD)}, 14")

        def rec_loads(mod):
            h.vm_q = []
            h(f"buffer_load_dwordx2 {vr(vM, 2)}, {vr(vSW1)}, {sr(S_WS, 4)}, {sr(sREC)} offen offset:1024{mod}")
            for i in range(8):
                if i % 2 == 0 and i:
                    h(f"s_add_u32 {sr(sREC)}, {sr(sREC)}, 4096")
                h(f"buffer_load_dwordx4 {vr(cO + 4 * i, 4)}, {vr(vSW0)}, {sr(S_WS, 4)}, {sr(sREC)} offen offset:{2048 * (i % 2)}{mod}")
        if DUAL != "none":
            h(f"s_mul_i32 {sr(sX)}, {sr(sX)}, 7")
            h(f"s_cmp_eq_u32 {sr(sX)}, {sr(sT1)}")
            h("s_cbranch_scc0 L_far")
            h(f"s_add_u32 {sr(sREC)}, {sr(sREC)}, {1 << 20}")
            rec_loads("" if DUAL == "plain" else " " + DUAL)
            h("s_branch L_got")
            h.raw("L_far:")
        rec_loads(" sc1")
        h.raw("L_got:")
        SWZ = (0x041F, 0x081F, 0x101F)
        h(f"v_mov_b32 {vr(vT0)}, {vr(vM)}")
        stamp(h, 5)
        for x in SWZ:
            h(f"ds_swizzle_b32 {vr(vT1)}, {vr(vT0)} offset:{x:#x}")
            h(f"v_max_f32 {vr(vT0)}, {vr(vT0)}, {vr(vT1)}")
        h(f"v_sub_f32 {vr(vM)}, {vr(vM)}, {vr(vT0)}")
        h(f"v_exp_f32 {vr(vM)}, {vr(vM)}")
        h(f"v_mul_f32 {vr(vT0)}, {vr(vM)}, {vr(vM + 1)}")
        for i in range(8):
            h(f"ds_swizzle_b32 {vr(cW + i)}, {vr(vM)} offset:{(i << 5) | 0x18:#x}")
        for x in SWZ:
            h(f"ds_swizzle_b32 {vr(vT1)}, {vr(vT0)} offset:{x:#x}")
            h(f"v_add_f32 {vr(vT0)}, {vr(vT0)}, {vr(vT1)}")
        h(f"v_rcp_f32 {vr(vT0)}, {vr(vT0)}")
        if STAMP:
            h.wait_vm_all()
            stamp(h, 4)
        for i in range(8):
            for r in range(4):
                h(f"{'v_fmac_f32' if i else 'v_mul_f32'} {vr(vKA + r)}, {vr(cW + i)}, {vr(cO + 4 * i + r)}")
        for r in range(4):
            h(f"v_mul_f32 {vr(vKA + r)}, {vr(vKA + r)}, {vr(vT0)}")
        h(f"v_cvt_pk_bf16_f32 {vr(vVA)}, {vr(vKA)}, {vr(vKA + 1)}")
        h(f"v_cvt_pk_bf16_f32 {vr(vVA + 1)}, {vr(vKA + 2)}, {vr(vKA + 3)}")
        h(f"buffer_store_dwordx2 {vr(vVA, 2)}, {vr(vSO)}, {sr(S_O, 4)}, {sr(sHEADOFF)} offen sc1")
        h.label("L_hdone")
    dump_stamps(h, "h")
    h.raw("L_end:")
    h("s_endpgm")

    tailtxt = f""".section .rodata,"a"
.p2align 6
.amdhsa_kernel {NAME}_kernel
  .amdhsa_next_free_vgpr 168
  .amdhsa_next_free_sgpr 96
  .amdhsa_accum_offset 168
  .amdhsa_group_segment_fixed_size 0
  .amdhsa_kernarg_size 64
  .amdhsa_user_sgpr_count 2
  .amdhsa_user_sgpr_kernarg_segment_ptr 1
  .amdhsa_system_sgpr_workgroup_id_x 1
.end_amdhsa_kernel
"""
    txt = e.text() + ld.text() + c.text() + m.text() + b2.text() + h.text()
    if not NOCOMP:
        txt += ed.text()
    return txt + "L_codeend:\n" + tailtxt


if __name__ == "__main__":
    out = sys.argv[1]
    opt = {}
    for a in sys.argv[2:]:
        k, _, v = a.partition("=")
        opt[k] = v if v else True
        if k in ("st", "stb", "ld", "qld"):
            opt[k] = (" " + v.replace("+", " ")) if v != "none" else ""
    open(out, "w").write(gen(opt))
```

```python
import sys
import math
import struct
from asmgen import Emitter, vr, sr

NAME = "standalone__global_local_windowed_global_tokens__prompt"

HEADER = """; Kernarg layout for this problem (64 bytes, ptrs only, base s[0:1]):
;   offset   0: d_in[0] q  shape=(1, 32, 2048, 128) dtype=bfloat16 strides=(16777216, 524288, 256, 2) contiguous=True
;   offset   8: d_in[1] k  shape=(1, 32, 2048, 128) dtype=bfloat16 strides=(16777216, 524288, 256, 2) contiguous=True
;   offset  16: d_in[2] v  shape=(1, 32, 2048, 128) dtype=bfloat16 strides=(16777216, 524288, 256, 2) contiguous=True
;   offset  24: d_in[3] window  shape=(1,) dtype=int32 strides=(4,) contiguous=True
;   offset  32: d_in[4] n_global  shape=(1,) dtype=int32 strides=(4,) contiguous=True
"""


def f32bits(x):
    return struct.unpack("<I", struct.pack("<f", x))[0]


def merge(a, b):
    out, nb = [], 0
    for i, x in enumerate(a):
        out.append(x)
        want = (i + 1) * len(b) // len(a)
        out += b[nb:want]
        nb = want
    return out + b[nb:]


def gen(opt):
    LD = opt.get("ld", "")
    QLD = opt.get("qld", "")
    ST = opt.get("st", " sc1")
    STB = opt.get("stb", ST)
    NOCOMP = opt.get("nocomp", False)
    PROBE = opt.get("probe", None)
    STAMP = opt.get("stamp", False) or PROBE
    D = int(opt.get("depth", 3))
    SLEEP = int(opt.get("sleep", 1))
    QLEAD = int(opt.get("qlead", 0))
    QL2 = int(opt.get("ql2", 0))
    THRMIN = int(opt.get("thrmin", 0))
    EW = int(opt.get("ew", 6))
    PST = int(opt.get("pst", 32))
    DUAL = opt.get("dual", "plain")
    PRIOW = int(opt.get("priow", 99))
    PRIOH = int(opt.get("prioh", 0))
    ROT = int(opt.get("rot", 6))
    PK = opt.get("pk", False)
    GATE = int(opt.get("gate", -1))
    GATEP = opt.get("gatep", False)
    WX = int(opt.get("wx", 0))
    PRIOV = int(opt.get("priov", 2))
    CPF = int(opt.get("cpf", 0))
    PTS = opt.get("pts", "A2,A6,B1,B2,B6").split(",")
    assert len(PTS) == 5 and D >= 2 and QLEAD <= 1
    assert all(((w + ROT) & 7) < 6 for w in range(EW, 8))

    TB = 32 * 2048 * 256
    HEADB = 2048 * 256
    L_STAGE, L_GK, L_GV, L_FLAG, L_K, L_V = 0, 8192, 9216, 10240, 13824, 79360
    L_MRG = 10368
    VT, VP = 4224, 1056
    NH = 2
    NWAVE = 9 + NH
    NEG = f32bits(-1.0e30)
    CSCALE = f32bits((128 ** -0.5) * math.log2(math.e))

    S_Q, S_K, S_V, S_O, S_DBG, S_WS = 20, 24, 28, 32, 36, 40
    sWAVE, sHEADOFF, sROW0, sT0, sT1, sT2 = 44, 45, 46, 47, 48, 49
    sQOFF, sNEG, sQ0, sHEAD, sCHUNK, sDESC = 50, 51, 52, 53, 54, 55
    sEX = 56
    sC = 58
    sTS = 60
    sB, sIT, sNEED, sX, sCNT, sW, sHI, sREC, sSTEP, sXV, sSTEPV, sPARK, sREQ, sB2 = range(80, 94)
    sNEEDV = 95
    sMASK = 2

    vKA, vVA, vSW0, vSW1, vGK, vN, vG, vG4 = 2, 6, 10, 11, 12, 13, 14, 15
    vFLAG, vSW, vT0, vT1, vONE, vSR, vSO, vT3, vT2 = 16, 17, 18, 19, 20, 24, 25, 26, 27
    vQR, vS, vOX, vPOOL, vGV = 28, 44, 68, 92, 164

    uid = [0]

    def newid():
        uid[0] += 1
        return uid[0]

    def stamp(em, i):
        if STAMP:
            em(f"s_memrealtime {sr(sTS + 2 * i, 2)}")

    def stamp_it(em, k, only=None):
        if not STAMP:
            return
        for it, nm in ((0, f"A{k}"), (1, f"B{k}")):
            if nm in PTS and only in (None, it):
                if only is None:
                    u = newid()
                    em(f"s_cmp_eq_u32 {sr(sIT)}, {it}")
                    em(f"s_cbranch_scc0 L_sa{u}")
                stamp(em, PTS.index(nm) + 1)
                if only is None:
                    em.raw(f"L_sa{u}:")

    def poll(em, need):
        u = newid()
        em.label(f"L_poll{u}")
        em(f"ds_read_b32 {vr(vT2)}, {vr(vFLAG)}")
        em(f"v_readfirstlane_b32 {sr(sT0)}, {vr(vT2)}")
        em(f"s_cmp_ge_i32 {sr(sT0)}, {need}")
        em(f"s_cbranch_scc1 L_pdone{u}")
        if SLEEP:
            em(f"s_sleep {SLEEP}")
        em(f"s_branch L_poll{u}")
        em.raw(f"L_pdone{u}:")

    def poll_pre(em, need, reg):
        u = newid()
        em(f"v_readfirstlane_b32 {sr(sT0)}, {vr(reg)}")
        em(f"s_cmp_ge_i32 {sr(sT0)}, {need}")
        em(f"s_cbranch_scc1 L_pdone{u}")
        keep = (list(em.ds_q), list(em.hist))
        em.lines.append(f"L_poll{u}:")
        em(f"ds_read_b32 {vr(reg)}, {vr(vFLAG)}")
        em(f"v_readfirstlane_b32 {sr(sT0)}, {vr(reg)}")
        em(f"s_cmp_ge_i32 {sr(sT0)}, {need}")
        em(f"s_cbranch_scc0 L_poll{u}")
        em.raw(f"L_pdone{u}:")
        em.ds_q, em.hist = keep

    def poll_bits(em, smask, first_read_done=False):
        u = newid()
        if first_read_done:
            em(f"v_readfirstlane_b32 {sr(sT0)}, {vr(vT2)}")
            em(f"s_andn2_b32 {sr(sT0)}, {smask}, {sr(sT0)}")
            em(f"s_cbranch_scc0 L_pdone{u}")
            keep = (list(em.ds_q), list(em.hist))
            em.lines.append(f"L_poll{u}:")
        else:
            em.label(f"L_poll{u}")
        em(f"ds_read_b32 {vr(vT2)}, {vr(vFLAG)} offset:4")
        em(f"v_readfirstlane_b32 {sr(sT0)}, {vr(vT2)}")
        em(f"s_andn2_b32 {sr(sT0)}, {smask}, {sr(sT0)}")
        em(f"s_cbranch_scc0 L_pdone{u}")
        if SLEEP:
            em(f"s_sleep {SLEEP}")
        em(f"s_branch L_poll{u}")
        em.raw(f"L_pdone{u}:")
        if first_read_done:
            em.ds_q, em.hist = keep

    def set_bit(em, sbit):
        em(f"s_lshl_b32 {sr(sT0)}, 1, {sbit}")
        em(f"v_mov_b32 {vr(vT2)}, {sr(sT0)}")
        em("s_mov_b64 exec, 1")
        em(f"ds_or_b32 {vr(vFLAG)}, {vr(vT2)} offset:4")
        em("s_mov_b64 exec, -1")

    def park_addr(em, sw, dst):
        em(f"s_sub_u32 {sr(sT1)}, 19, {sw}")
        em(f"s_cmp_eq_u32 {sr(sDESC)}, 0")
        em(f"s_cselect_b32 {sr(sT1)}, {sw}, {sr(sT1)}")
        em(f"s_mul_i32 {sr(sT2)}, {sr(sT1)}, {VT}")
        em(f"s_add_u32 {sr(sT2)}, {sr(sT2)}, {L_V}")
        em(f"s_lshl_b32 {sr(sT1)}, {sr(sT1)}, 12")
        em(f"s_add_u32 {sr(sT1)}, {sr(sT1)}, {L_K - 8192}")
        em(f"s_cmp_lt_u32 {sw}, 2")
        em(f"s_cselect_b32 {dst}, {sr(sT2)}, {sr(sT1)}")

    def stage_read_addrs(em):
        em(f"v_lshrrev_b32 {vr(vT0)}, 2, {vr(vN)}")
        em(f"v_add_u32 {vr(vT2)}, {vr(vG4)}, {vr(vT0)}")
        em(f"v_and_b32 {vr(vT1)}, 3, {vr(vN)}")
        em(f"v_lshlrev_b32 {vr(vSO)}, 4, {vr(vT1)}")
        em(f"v_lshl_add_u32 {vr(vSO)}, {vr(vT2)}, 8, {vr(vSO)}")
        em(f"v_bfe_u32 {vr(vSR)}, {vr(vT2)}, 1, 2")
        em(f"v_xor_b32 {vr(vSR)}, {vr(vSR)}, {vr(vT1)}")
        em(f"v_lshlrev_b32 {vr(vSR)}, 4, {vr(vSR)}")
        em(f"v_lshl_add_u32 {vr(vSR)}, {vr(vT2)}, 6, {vr(vSR)}")

    def dump_stamps(em, tagn):
        if not STAMP:
            return
        stamp(em, 6)
        em("s_waitcnt vmcnt(0)")
        stamp(em, 7)
        em("s_memtime s[78:79]")
        em("s_waitcnt lgkmcnt(0)")
        if PROBE:
            which, fac, pw = (int(x) for x in PROBE.split(","))
            em(f"s_cmp_eq_u32 {sr(sWG)}, 100")
            em(f"s_cbranch_scc0 L_probe_done{tagn}")
            em(f"s_cmp_eq_u32 {sr(sWAVE)}, {pw}")
            em(f"s_cbranch_scc0 L_probe_done{tagn}")
            em(f"s_sub_u32 {sr(sT0)}, {sr(sTS + 2 * which)}, {sr(sTS)}")
            em(f"s_mul_i32 {sr(sT0)}, {sr(sT0)}, {fac}")
            em(f"s_add_u32 {sr(sT0)}, {sr(sT0)}, 5000")
            em.label(f"L_probe{tagn}")
            em("s_memrealtime s[78:79]")
            em("s_waitcnt lgkmcnt(0)")
            em(f"s_sub_u32 {sr(sT1)}, s78, {sr(sTS)}")
            em(f"s_cmp_lt_u32 {sr(sT1)}, {sr(sT0)}")
            em(f"s_cbranch_scc1 L_probe{tagn}")
            em.label(f"L_probe_done{tagn}")
            return
        em("s_sub_u32 s76, s78, s76")
        if tagn == "m":
            em(f"s_mov_b32 {sr(sT1)}, {sr(sW)}")
        else:
            em(f"s_add_u32 {sr(sT1)}, {sr(sWAVE)}, 8")
        em(f"s_mul_i32 {sr(sT0)}, {sr(sWG)}, {NWAVE}")
        em(f"s_add_u32 {sr(sT0)}, {sr(sT0)}, {sr(sT1)}")
        em(f"s_lshl_b32 {sr(sT0)}, {sr(sT0)}, 6")
        em(f"s_add_u32 {sr(sT0)}, {sr(sT0)}, {0x800000}")
        for i in range(9):
            em(f"v_mov_b32 {vr(vPOOL + i)}, {sr(sTS + 2 * i)}")
        em("v_mov_b32 v0, 0")
        em("s_mov_b64 exec, 1")
        em(f"buffer_store_dwordx4 {vr(vPOOL, 4)}, v0, {sr(S_WS, 4)}, {sr(sT0)} offen")
        em(f"buffer_store_dwordx4 {vr(vPOOL + 4, 4)}, v0, {sr(S_WS, 4)}, {sr(sT0)} offen offset:16")
        em(f"buffer_store_dword {vr(vPOOL + 8)}, v0, {sr(S_WS, 4)}, {sr(sT0)} offen offset:32")

    sWG = 94

    e = Emitter()
    e.raw(HEADER + f"; @launch grid=(256,1,1) block=({64 * NWAVE},1,1) lds=163840")
    e.raw('.amdgcn_target "amdgcn-amd-amdhsa--gfx950"')
    e.raw(".text")
    e.raw(f".globl {NAME}_kernel")
    e.raw(".p2align 8")
    e.raw(f".type {NAME}_kernel,@function")
    e.raw(f"{NAME}_kernel:")
    e("s_load_dwordx4 s[4:7], s[0:1], 0")
    e("s_load_dwordx2 s[8:9], s[0:1], 16")
    e("s_cmp_ge_u32 s2, 256")
    e("s_cbranch_scc1 L_end")
    stamp(e, 0)
    if STAMP:
        e("s_memtime s[76:77]")
        e(f"s_mov_b32 {sr(sWG)}, s2")
        for i in range(1, 6):
            e(f"s_mov_b64 {sr(sTS + 2 * i, 2)}, 0")
    e(f"v_readfirstlane_b32 {sr(sWAVE)}, v0")
    e(f"v_and_b32 {vr(vN)}, 15, v0")
    e(f"v_bfe_u32 {vr(vG)}, v0, 4, 2")
    e(f"s_and_b32 {sr(sT0)}, s2, 7")
    e(f"s_lshr_b32 {sr(sT1)}, s2, 6")
    e(f"s_lshl2_add_u32 {sr(sHEAD)}, {sr(sT0)}, {sr(sT1)}")
    e(f"s_bfe_u32 {sr(sCHUNK)}, s2, 0x30003")
    e(f"s_lshl_b32 {sr(sHEADOFF)}, {sr(sHEAD)}, 19")
    e(f"s_lshl_b32 {sr(sT0)}, {sr(sCHUNK)}, 16")
    e(f"s_add_u32 {sr(sROW0)}, {sr(sHEADOFF)}, {sr(sT0)}")
    e(f"s_add_u32 {sr(sHI)}, {sr(sHEADOFF)}, {HEADB - 4096}")
    e(f"s_and_b32 {sr(sDESC)}, {sr(sCHUNK)}, 1")
    e(f"v_lshlrev_b32 {vr(vG4)}, 2, {vr(vG)}")
    e(f"v_mov_b32 {vr(vFLAG)}, {L_FLAG}")
    e(f"s_mov_b32 {sr(S_K + 2)}, {TB}")
    e(f"s_mov_b32 {sr(S_K + 3)}, 0x20000")
    e(f"s_lshr_b32 {sr(sWAVE)}, {sr(sWAVE)}, 6")
    e("s_cbranch_scc1 L_notloader")

    def other_srds(em, which):
        em("s_load_dwordx4 s[12:15], s[0:1], 40")
        em("s_load_dwordx2 s[16:17], s[0:1], 56")
        em(f"s_mov_b32 {sr(S_O + 2)}, {TB}")
        em(f"s_mov_b32 {sr(S_O + 3)}, 0x20000")
        em(f"s_mov_b32 {sr(S_DBG + 2)}, 256")
        em(f"s_mov_b32 {sr(S_DBG + 3)}, 0x20000")
        em(f"s_mov_b32 {sr(S_WS + 2)}, {0x1000000}")
        em(f"s_mov_b32 {sr(S_WS + 3)}, 0x20000")

    def other_srds_done(em):
        em("s_waitcnt lgkmcnt(0)")
        for b, src in ((S_O, 12), (S_DBG, 14), (S_WS, 16)):
            em(f"s_mov_b64 {sr(b, 2)}, {sr(src, 2)}")

    ld = e.fork()
    vKD, vVD, vCNT = 2, 6, 8
    ld(f"v_lshlrev_b32 v0, 8, {vr(vG)}")
    ld(f"v_xor_b32 {vr(vVD)}, {vr(vG4)}, {vr(vN)}")
    ld(f"v_lshl_add_u32 {vr(vVD)}, {vr(vVD)}, 4, v0")
    ld(f"v_xor_b32 {vr(vKD)}, {vr(vG)}, {vr(vN)}")
    ld(f"v_lshl_add_u32 {vr(vKD)}, {vr(vKD)}, 4, v0")
    ld(f"s_mov_b32 {sr(S_V + 2)}, {TB}")
    ld(f"s_mov_b32 {sr(S_V + 3)}, 0x20000")
    ld(f"v_mov_b32 {vr(vCNT)}, 0")
    ld(f"v_mov_b32 {vr(vCNT + 1)}, 0")
    ld(f"s_mov_b32 m0, {L_GK}")
    ld("s_waitcnt lgkmcnt(0)")
    ld(f"s_mov_b64 {sr(S_K, 2)}, s[6:7]")
    ld(f"s_mov_b64 {sr(S_V, 2)}, s[8:9]")

    def v_halo(em, hi_when_desc):
        em(f"s_cmp_eq_u32 {sr(sDESC)}, {1 if hi_when_desc else 0}")
        em(f"s_cselect_b32 {sr(sT0)}, {18 * VT}, 0")
        em(f"s_cselect_b32 {sr(sT1)}, {18 * 4096}, 0")
        em(f"s_add_u32 {sr(sT1)}, {sr(sT1)}, {sr(sROW0)}")
        em(f"s_sub_u32 {sr(sT1)}, {sr(sT1)}, 8192")
        for k in range(2):
            em(f"s_max_i32 {sr(sT2)}, {sr(sT1)}, {sr(sHEADOFF)}")
            em(f"s_min_i32 {sr(sT2)}, {sr(sT2)}, {sr(sHI)}")
            for j in range(4):
                em(f"s_add_u32 m0, {sr(sT0)}, {L_V + VT * k + 32 * j}")
                if k == 0 and j == 0:
                    em(f"s_add_u32 {sr(sT1)}, {sr(sT1)}, 4096")
                em(f"buffer_load_dwordx4 {vr(vVD)}, {sr(S_V, 4)}, {sr(sT2)} offen offset:{1024 * j}{LD} lds")

    ld(f"buffer_load_dwordx4 {vr(vKD)}, {sr(S_K, 4)}, {sr(sHEADOFF)} offen lds")
    stamp(ld, 5)
    ld(f"s_mov_b32 m0, {L_GV}")
    ld(f"buffer_load_dwordx4 {vr(vVD)}, {sr(S_V, 4)}, {sr(sHEADOFF)} offen lds")
    ld(f"ds_write_b64 {vr(vFLAG)}, {vr(vCNT, 2)}")
    v_halo(ld, True)
    for j in range(1, 4):
        ld(f"v_xor_b32 {vr(vKD + j)}, {64 * j}, {vr(vKD)}")
    ld("s_waitcnt lgkmcnt(0)")
    if opt.get("stbar"):
        stamp(ld, 1)
    ld("s_barrier")
    if opt.get("stbar"):
        stamp(ld, 2)
    ld(f"s_mul_i32 {sr(sX)}, {sr(sDESC)}, {15 * 4096}")
    ld(f"s_mul_i32 {sr(sSTEP)}, {sr(sDESC)}, -8192")
    ld(f"s_add_u32 {sr(sSTEP)}, {sr(sSTEP)}, 4096")
    ld(f"s_mul_i32 {sr(sXV)}, {sr(sDESC)}, {15 * VT}")
    ld(f"s_add_u32 {sr(sXV)}, {sr(sXV)}, {L_V + 2 * VT}")
    ld(f"s_mul_i32 {sr(sSTEPV)}, {sr(sDESC)}, {-2 * VT}")
    ld(f"s_add_u32 {sr(sSTEPV)}, {sr(sSTEPV)}, {VT}")
    def k_tile():
        ld(f"s_add_u32 {sr(sT1)}, {sr(sX)}, {sr(sROW0)}")
        ld(f"s_add_u32 m0, {sr(sX)}, {L_K}")
        ld(f"s_add_u32 {sr(sX)}, {sr(sX)}, {sr(sSTEP)}")
        for j in range(4):
            ld(f"buffer_load_dwordx4 {vr(vKD + j)}, {sr(S_K, 4)}, {sr(sT1)} offen offset:{1024 * j}{LD} lds")

    def v_tile():
        for j in range(4):
            ld(f"s_add_u32 m0, {sr(sXV)}, {32 * j}")
            ld(f"buffer_load_dwordx4 {vr(vVD)}, {sr(S_V, 4)}, {sr(sB)} offen offset:{1024 * j}{LD} lds")
        ld(f"s_add_u32 {sr(sXV)}, {sr(sXV)}, {sr(sSTEPV)}")
        ld(f"s_add_u32 {sr(sB)}, {sr(sB)}, {sr(sSTEP)}")

    ld(f"s_add_u32 {sr(sB)}, {sr(sX)}, {sr(sROW0)}")
    k_tile()
    k_tile()
    ld(f"s_mov_b32 {sr(sCNT)}, {2 - D}")
    ld.vm_q = []
    ld.label("L_ldloop")
    k_tile()
    v_tile()
    ld(f"s_add_u32 {sr(sCNT)}, {sr(sCNT)}, 1")
    ld(f"v_mov_b32 {vr(vCNT)}, {sr(sCNT)}")
    ld(f"s_cmp_lt_i32 {sr(sCNT)}, {16 - D}")
    ld(f"s_waitcnt vmcnt({8 * D})")
    ld(f"ds_write_b32 {vr(vFLAG)}, {vr(vCNT)}")
    ld("s_cbranch_scc1 L_ldloop")
    ld.vm_q = []
    v_tile()
    v_tile()
    ld(f"v_mov_b32 {vr(vCNT)}, {17 - D}")
    ld(f"s_waitcnt vmcnt({8 * D})")
    ld(f"ds_write_b32 {vr(vFLAG)}, {vr(vCNT)}")
    if not opt.get("stbar"):
        stamp(ld, 1)
    ld.vm_q = []
    v_halo(ld, False)
    if not opt.get("stbar"):
        stamp(ld, 2)
    other_srds(ld, None)
    stage_read_addrs(ld)
    other_srds_done(ld)
    ld(f"s_mul_i32 {sr(sXV)}, {sr(sDESC)}, {19 * VT}")
    ld(f"s_add_u32 {sr(sXV)}, {sr(sXV)}, {L_V}")
    ld(f"s_mul_i32 {sr(sX)}, {sr(sDESC)}, {15 * 4096}")
    ld(f"s_add_u32 {sr(sQOFF)}, {sr(sX)}, {sr(sROW0)}")
    ld(f"s_add_u32 {sr(sX)}, {sr(sX)}, {L_K}")
    ld(f"s_cmp_eq_u32 {sr(sQOFF)}, {sr(sHEADOFF)}")
    ld(f"s_cselect_b32 {sr(sEX)}, 0xffffff00, -1")
    ld(f"s_mov_b32 {sr(sEX + 1)}, -1")
    ld(f"s_mov_b32 {sr(sREQ)}, 0")
    for k in range(D, -1, -1):
        ld(f"v_mov_b32 {vr(vCNT)}, {18 - k}")
        ld(f"s_waitcnt vmcnt({8 * k})")
        ld(f"ds_write_b32 {vr(vFLAG)}, {vr(vCNT)}")
        if k == 1:
            stamp(ld, 3)
    ld.vm_q = []
    stamp(ld, 4)
    def park_fetch(w):
        u = newid()
        ld(f"s_bitcmp1_b32 {sr(sREQ)}, {8 + w}")
        ld(f"s_cbranch_scc1 L_have{u}")
        keep = (list(ld.ds_q), list(ld.hist))
        ld.raw(f"L_poll{u}:")
        ld(f"ds_read_b32 {vr(vT2)}, {vr(vFLAG)} offset:4")
        ld(f"v_readfirstlane_b32 {sr(sREQ)}, {vr(vT2)}")
        ld(f"s_bitcmp1_b32 {sr(sREQ)}, {8 + w}")
        ld(f"s_cbranch_scc1 L_have{u}")
        ld(f"s_sleep {SLEEP}")
        ld(f"s_branch L_poll{u}")
        ld.raw(f"L_have{u}:")
        ld.ds_q, ld.hist = keep
        ld(f"v_add_u32 v0, {sr(sXV if w < 2 else sX)}, {vr(vSR)}")
        if w < 2:
            ld(f"s_add_u32 {sr(sXV)}, {sr(sXV)}, {sr(sSTEPV)}")
        else:
            ld(f"s_add_u32 {sr(sX)}, {sr(sX)}, {sr(sSTEP)}")
        for k in range(4):
            ld(f"ds_read_b128 {vr(vPOOL + 16 * (w % 2) + 4 * k, 4)}, v0 offset:{1024 * k}")

    park_fetch(0)
    for w in range(8):
        if w < 7:
            park_fetch(w + 1)
        if PST < 32 and 4 * w >= PST:
            ld(f"s_waitcnt vmcnt({PST - 4})")
        if w == GATE and not NOCOMP:
            ld(f"s_mov_b32 {sr(sT2)}, {1 << 25}")
            poll_bits(ld, sr(sT2))
        if w == 0:
            ld(f"s_mov_b64 exec, {sr(sEX, 2)}")
        for k in range(4):
            ld(f"buffer_store_dwordx4 {vr(vPOOL + 16 * (w % 2) + 4 * k, 4)}, {vr(vSO)}, {sr(S_O, 4)}, {sr(sQOFF)} offen offset:{64 * k}{ST}")
        if w == 0:
            ld("s_mov_b64 exec, -1")
        ld(f"s_add_u32 {sr(sQOFF)}, {sr(sQOFF)}, {sr(sSTEP)}")
    dump_stamps(ld, "l")
    ld("s_endpgm")
    ld.raw("L_notloader:")

    c = e.fork()
    other_srds(c, None)
    c(f"s_mov_b32 {sr(S_Q + 2)}, {TB}")
    c(f"s_mov_b32 {sr(S_Q + 3)}, 0x20000")
    stage_read_addrs(c)
    c("s_barrier")
    other_srds_done(c)
    c(f"s_mov_b64 {sr(S_K, 2)}, s[6:7]")
    c(f"s_mov_b64 {sr(S_Q, 2)}, s[4:5]")
    c(f"s_mov_b32 {sr(sC)}, {CSCALE:#x}")
    c(f"s_mov_b32 {sr(sC + 1)}, {CSCALE:#x}")
    c(f"s_mov_b32 {sr(sNEG)}, {NEG:#x}")
    c(f"s_cmp_le_u32 {sr(sWAVE)}, {NH}")
    c("s_cbranch_scc1 L_helper")

    def lane_addrs(em):
        em(f"v_xor_b32 {vr(vKA)}, {vr(vN)}, {vr(vG)}")
        em(f"v_lshlrev_b32 {vr(vKA)}, 4, {vr(vKA)}")
        em(f"v_lshl_add_u32 {vr(vKA)}, {vr(vN)}, 8, {vr(vKA)}")
        em(f"v_lshrrev_b32 {vr(vT0)}, 2, {vr(vN)}")
        em(f"v_and_b32 {vr(vT1)}, 3, {vr(vN)}")
        em(f"v_mul_u32_u24 {vr(vGV)}, {256 + 64}, {vr(vT0)}")
        em(f"v_lshl_add_u32 {vr(vGV)}, {vr(vT1)}, 3, {vr(vGV)}")
        em(f"v_mul_u32_u24 {vr(vT2)}, {VP}, {vr(vG)}")
        for s in range(1, 4):
            em(f"v_xor_b32 {vr(vKA + s)}, {64 * s}, {vr(vKA)}")
            em(f"v_xor_b32 {vr(vGV + s)}, {64 * s}, {vr(vGV)}")
        for s in range(4):
            em(f"v_add_u32 {vr(vVA + s)}, {vr(vT2)}, {vr(vGV + s)}")
        for i in range(4):
            em(f"v_mov_b32 {vr(vONE + i)}, 0x3f803f80")

    def tile_addrs(em, skoff, svoff):
        for s in range(4):
            em(f"v_add_u32 {vr(vKA + s)}, {skoff}, {vr(vKA + s)}")
            em(f"v_add_u32 {vr(vVA + s)}, {svoff}, {vr(vVA + s)}")

    def allreduce_ops(op, x, y):
        return [f"v_mov_b32 {vr(y)}, {vr(x)}", f"v_permlane32_swap_b32 {vr(x)}, {vr(y)}", f"{op} {vr(x)}, {vr(x)}, {vr(y)}",
                f"v_mov_b32 {vr(y)}, {vr(x)}", f"v_permlane16_swap_b32 {vr(x)}, {vr(y)}", f"{op} {vr(x)}, {vr(x)}, {vr(y)}"]

    def max_tree(vals, dst):
        vals = list(vals)
        ops = [f"v_max3_f32 {vr(dst)}, {vr(vals[0])}, {vr(vals[1])}, {vr(vals[2])}"]
        i = 3
        while i + 1 < len(vals):
            ops.append(f"v_max3_f32 {vr(dst)}, {vr(dst)}, {vr(vals[i])}, {vr(vals[i + 1])}")
            i += 2
        if i < len(vals):
            ops.append(f"v_max_f32 {vr(dst)}, {vr(dst)}, {vr(vals[i])}")
        return ops

    def mfma(d, a, b, cc):
        return f"v_mfma_f32_16x16x32_bf16 {vr(d, 4)}, {vr(a, 4)}, {vr(b, 4)}, {'0' if cc is None else vr(cc, 4)}"

    m = c.fork()
    KQ = [vOX + 4 * i for i in range(6)] + [vPOOL + 4 * i for i in range(18)]
    OACC = [vOX + 4 * i for i in range(5)] + [vS + 12, vS + 16, vS + 20]
    vL = vOX + 20

    def q_load(em, sb):
        em(f"s_lshl_b32 {sr(sT1)}, {sb}, 12")
        em(f"s_add_u32 {sr(sT1)}, {sr(sT1)}, {sr(sROW0)}")
        for s in range(4):
            em(f"buffer_load_dwordx4 {vr(vQR + 4 * s, 4)}, {vr(vSO)}, {sr(S_Q, 4)}, {sr(sT1)} offen offset:{64 * s}{QLD}")
        em.vm_q = []

    def k_halo(em, sb):
        u = newid()
        em(f"s_sub_u32 {sr(sT0)}, {sb}, 2")
        em(f"s_cmp_lt_u32 {sr(sT0)}, 12")
        em.flush()
        em(f"s_cbranch_scc1 L_kh{u}")
        for t in (0, 1, 3, 4):
            em(f"s_add_u32 {sr(sT0)}, {sb}, {t - 2}")
            em(f"s_cmp_lt_u32 {sr(sT0)}, 16")
            em(f"s_cbranch_scc1 L_kh{u}_{t}")
            em(f"s_lshl_b32 {sr(sT0)}, {sr(sT0)}, 12")
            em(f"s_add_u32 {sr(sT0)}, {sr(sT0)}, {sr(sROW0)}")
            em(f"s_max_i32 {sr(sT0)}, {sr(sT0)}, {sr(sHEADOFF)}")
            em(f"s_min_i32 {sr(sT0)}, {sr(sT0)}, {sr(sHI)}")
            for s in range(4):
                em(f"buffer_load_dwordx4 {vr(KQ[4 + 4 * t + s], 4)}, {vr(vSO)}, {sr(S_K, 4)}, {sr(sT0)} offen offset:{64 * s}")
            em.raw(f"L_kh{u}_{t}:")
        em.raw(f"L_kh{u}:")
        em.vm_q = []

    m(f"s_sub_u32 {sr(sW)}, {sr(sWAVE)}, {1 + NH}")
    if WX:
        m(f"s_xor_b32 {sr(sW)}, {sr(sW)}, {WX}")
    m(f"s_mul_i32 {sr(sT2)}, {sr(sDESC)}, 15")
    m(f"s_xor_b32 {sr(sB)}, {sr(sW)}, {sr(sT2)}")
    m(f"s_cmp_gt_u32 {sr(sW)}, 1")
    m("s_cbranch_scc1 L_qa_later")
    k_halo(m, sr(sB))
    m(f"s_cmp_gt_u32 {sr(sW)}, {QLEAD}")
    m("s_cbranch_scc1 L_qa_later")
    q_load(m, sr(sB))
    m.raw("L_qa_later:")
    if PRIOW < 8:
        m(f"s_cmp_lt_u32 {sr(sW)}, {PRIOW}")
        m("s_cbranch_scc1 L_noprio")
        m(f"s_setprio {PRIOV}")
        m.raw("L_noprio:")
    lane_addrs(m)
    m(f"v_xor_b32 {vr(vGK)}, {vr(vT1)}, {vr(vG)}")
    m(f"v_lshlrev_b32 {vr(vGK)}, 4, {vr(vGK)}")
    m(f"v_lshl_add_u32 {vr(vGK)}, {vr(vT1)}, 8, {vr(vGK)}")
    m(f"v_add_u32 {vr(vGK)}, {L_GK}, {vr(vGK)}")
    for u in range(4):
        m(f"v_add_u32 {vr(vGV + u)}, {L_GV}, {vr(vGV + u)}")
    m(f"s_lshl_b32 {sr(sREQ)}, {sr(sW)}, 10")
    m(f"v_bfe_u32 {vr(vT0)}, {vr(vN)}, 1, 2")
    m(f"v_lshlrev_b32 {vr(vT2)}, 6, {vr(vN)}")
    m(f"v_add_u32 {vr(vT2)}, {sr(sREQ)}, {vr(vT2)}")
    m(f"v_xor_b32 {vr(vSW)}, {vr(vT0)}, {vr(vG)}")
    m(f"v_lshl_add_u32 {vr(vSW)}, {vr(vSW)}, 4, {vr(vT2)}")
    m(f"v_lshrrev_b32 {vr(vSW1)}, 1, {vr(vG)}")
    m(f"v_xor_b32 {vr(vSW0)}, {vr(vT0)}, {vr(vSW1)}")
    m(f"v_lshl_add_u32 {vr(vSW0)}, {vr(vSW0)}, 4, {vr(vT2)}")
    m(f"v_and_b32 {vr(vSW1)}, 1, {vr(vG)}")
    m(f"v_lshl_add_u32 {vr(vSW0)}, {vr(vSW1)}, 3, {vr(vSW0)}")
    m(f"v_xor_b32 {vr(vSW1)}, 32, {vr(vSW0)}")
    m(f"v_add_u32 {vr(vSR)}, {sr(sREQ)}, {vr(vSR)}")
    m(f"v_sub_u32 {vr(vT0)}, {vr(vG4)}, {vr(vN)}")
    for r in range(4):
        m(f"v_cmp_le_i32 {sr(sMASK + 2 * r, 2)}, {-r}, {vr(vT0)}")
        m(f"v_cmp_ge_i32 {sr(sMASK + 8 + 2 * r, 2)}, {-r}, {vr(vT0)}")
    m(f"v_cmp_eq_u32 {sr(sMASK + 16, 2)}, 0, {vr(vG4)}")
    park_addr(m, sr(sW), sr(sPARK))
    m(f"s_sub_u32 {sr(sPARK)}, {sr(sPARK)}, {sr(sREQ)}")
    m(f"s_lshl_b32 {sr(sREQ)}, 15, {sr(sW)}")
    m(f"s_lshr_b32 {sr(sREQ)}, {sr(sREQ)}, 4")
    m(f"s_lshr_b32 {sr(sT1)}, {sr(sW)}, 1")
    m(f"s_lshl_b32 {sr(sT1)}, 0x8000, {sr(sT1)}")
    m(f"s_or_b32 {sr(sREQ)}, {sr(sREQ)}, {sr(sT1)}")
    m(f"s_lshl_b32 {sr(sT1)}, {sr(sW)}, 8")
    m(f"s_cmp_lt_u32 {sr(sW)}, 2")
    m(f"s_cselect_b32 {sr(sREQ)}, {sr(sT1)}, {sr(sREQ)}")
    m(f"s_mov_b32 {sr(sIT)}, 0")
    m(f"s_add_u32 {sr(sNEED)}, {sr(sW)}, 3")
    m(f"s_add_u32 {sr(sNEEDV)}, {sr(sW)}, 5")
    m(f"s_add_u32 {sr(sX)}, {sr(sW)}, {ROT}")
    m(f"s_and_b32 {sr(sX)}, {sr(sX)}, 7")
    m(f"s_add_u32 {sr(sX)}, {sr(sX)}, 8")
    m(f"s_mul_i32 {sr(sT2)}, {sr(sDESC)}, 15")
    m(f"s_xor_b32 {sr(sB2)}, {sr(sX)}, {sr(sT2)}")
    m(f"s_lshl_b32 {sr(sSTEP)}, {sr(sB)}, 12")
    m(f"s_add_u32 {sr(sSTEP)}, {sr(sSTEP)}, {L_K - 8192}")
    m(f"s_mul_i32 {sr(sSTEPV)}, {sr(sB)}, {VT}")
    m(f"s_add_u32 {sr(sSTEPV)}, {sr(sSTEPV)}, {L_V}")
    m(f"s_cmp_gt_u32 {sr(sW)}, {QLEAD}")
    m("s_cbranch_scc0 L_block")
    m(f"s_sub_u32 {sr(sT2)}, {sr(sW)}, {QLEAD}")
    poll(m, sr(sT2))
    q_load(m, sr(sB))
    m.label("L_block")
    m(f"s_lshl_b32 {sr(sT0)}, {sr(sB)}, 12")
    m(f"s_add_u32 {sr(sQOFF)}, {sr(sT0)}, {sr(sROW0)}")
    m(f"v_mov_b32 {vr(vT0)}, {sr(sNEG)}")
    tile_addrs(m, sr(sSTEP), sr(sSTEPV))
    m(f"s_lshl_b32 {sr(sQ0)}, {sr(sCHUNK)}, 8")
    m(f"s_lshl_b32 {sr(sT0)}, {sr(sB)}, 4")
    m(f"s_add_u32 {sr(sQ0)}, {sr(sQ0)}, {sr(sT0)}")
    for r in range(4):
        m(f"v_cndmask_b32_e64 {vr(vS + r)}, {vr(vT0)}, 0, {sr(sMASK + 2 * r, 2)}")
        m(f"v_cndmask_b32_e64 {vr(vS + 16 + r)}, {vr(vT0)}, 0, {sr(sMASK + 8 + 2 * r, 2)}")
    m(f"v_cndmask_b32_e64 {vr(vS + 20)}, {vr(vT0)}, 0, {sr(sMASK + 16, 2)}")
    m(f"v_cndmask_b32_e64 {vr(vS + 21)}, {vr(vT0)}, 0, {sr(sMASK + 16, 2)}")
    poll(m, sr(sNEED))
    stamp_it(m, 1)

    def relayout(q):
        m(f"ds_write_b128 {vr(vSR)}, {vr(q, 4)}")
        m(f"ds_read_b128 {vr(q, 4)}, {vr(vSW)}")

    def v_read(T, k):
        u, p = T // 2, T % 2
        q = vPOOL + 12 * (T % 6) + 4 * k
        r = [f"ds_read_b64_tr_b16 {vr(q + 2 * j, 2)}, {vr(vVA + u)} offset:{VT * (2 * k + j) + 32 * p}" for j in range(2)]
        if k == 2:
            r[1] = f"ds_read_b64_tr_b16 {vr(q + 2, 2)}, {vr(vGV + u)} offset:{32 * p}"
        return r

    if not NOCOMP:
        for s in range(4):
            if s:
                m(f"v_xor_b32 {vr(KQ[s])}, {64 * s}, {vr(vGK)}")
            m(f"ds_read_b128 {vr(KQ[s], 4)}, {vr(KQ[s]) if s else vr(vGK)}")
        for t in (2, 0, 1, 3, 4):
            if t != 2:
                m(f"s_add_u32 {sr(sT0)}, {sr(sB)}, {t - 2}")
                m(f"s_cmp_lt_u32 {sr(sT0)}, 16")
                m(f"s_cbranch_scc0 L_skipk{t}")
            for s in range(4):
                m(f"ds_read_b128 {vr(KQ[4 + 4 * t + s], 4)}, {vr(vKA + s)} offset:{4096 * t}")
            if t != 2:
                m.raw(f"L_skipk{t}:")
        m(f"s_sub_u32 {sr(sT0)}, {sr(sB)}, 2")
        m(f"s_cmp_lt_u32 {sr(sT0)}, 12")
        m("s_cbranch_scc1 L_nohalo")
        keep = list(m.ds_q)
        m.ds_q = []
        m("s_waitcnt vmcnt(4)")
        for t in (0, 1, 3, 4):
            m(f"s_add_u32 {sr(sT0)}, {sr(sB)}, {t - 2}")
            m(f"s_cmp_lt_u32 {sr(sT0)}, 16")
            m(f"s_cbranch_scc1 L_rl{t}")
            for s in range(4):
                relayout(KQ[4 + 4 * t + s])
            m.raw(f"L_rl{t}:")
        m.ds_q = keep
        m.raw("L_nohalo:")
    m("s_waitcnt vmcnt(0)")
    stamp_it(m, 2)
    if NOCOMP:
        for i in range(16):
            m(f"v_mov_b32 {vr(vPOOL + i)}, {vr(vQR + i)}")
        set_bit(m, sr(sW))
        poll(m, sr(sNEEDV))
    else:
        for s in range(4):
            relayout(vQR + 4 * s)
        m(f"s_sub_u32 {sr(sT1)}, {sr(sQ0)}, 34")
        for s in range(4):
            m(mfma(vS + 20, KQ[s], vQR + 4 * s, vS + 20))
        set_bit(m, sr(sW))
        m(f"ds_read_b32 {vr(vT3)}, {vr(vFLAG)}")
        m(f"s_cmp_lt_u32 {sr(sT1)}, {2001 - 34}")

        def s_tile(t):
            return [mfma(vS + 4 * t, KQ[4 + 4 * t + s], vQR + 4 * s, None if (s == 0 and t in (1, 2, 3)) else vS + 4 * t) for s in range(4)]

        VR = [op for k in range(3) for T in range(6) for op in v_read(T, k)]
        mx = max_tree([vS + 20, vS + 21] + [vS + i for i in range(20)], vT0)
        m("s_cbranch_scc0 L_edge")
        ed = m.fork()
        for op in s_tile(0) + s_tile(1) + s_tile(2) + merge(s_tile(3), mx[:2]) + merge(s_tile(4), mx[2:5]):
            m(op)
        poll_pre(m, sr(sNEEDV), vT3)
        for op in VR[:4] + mx[5:7] + VR[4:8] + mx[7:]:
            m(op)
        m.raw("L_join:")
        ed.raw("L_edge:")
        for t in range(5):
            for op in s_tile(t):
                ed(op)
        ed(f"v_add_u32 {vr(vT1)}, {sr(sT1)}, {vr(vG4)}")
        ed(f"s_movk_i32 {sr(sT1)}, 2046")
        for t in range(5):
            for r in range(4):
                ed(f"v_add_u32 v0, {16 * t + r}, {vr(vT1)}")
                ed(f"v_cmp_gt_u32 vcc, {sr(sT1)}, v0")
                ed(f"v_cndmask_b32 {vr(vS + 4 * t + r)}, {vr(vT0)}, {vr(vS + 4 * t + r)}, vcc")
        poll_pre(ed, sr(sNEEDV), vT3)
        for op in VR[:8] + mx:
            ed(op)
        ed.flush()
        ed("s_branch L_join")
    m(f"s_lshl_b32 {sr(sT0)}, {sr(sIT)}, 4")
    m(f"s_add_u32 {sr(sT0)}, {sr(sT0)}, {EW}")
    m(f"s_cmp_ge_u32 {sr(sW)}, {sr(sT0)}")
    m("s_cbranch_scc0 L_noearly")
    q_load(m, sr(sB2))
    m.raw("L_noearly:")
    stamp_it(m, 3)

    W = vPOOL + 40
    R = vPOOL + 24

    def p_ops(lo, hi):
        fm, ex, cv = [], [], []
        for i in range(lo, hi):
            if PK and i % 2 == 0:
                fm.append(f"v_pk_fma_f32 {vr(vS + i, 2)}, {vr(vS + i, 2)}, {sr(sC, 2)}, {vr(vT0, 2)} neg_lo:[0,0,1] neg_hi:[0,0,1]")
            elif not PK:
                fm.append(f"v_fma_f32 {vr(vS + i)}, {vr(vS + i)}, {sr(sC)}, -{vr(vT0)}")
            ex.append(f"v_exp_f32 {vr(vS + i)}, {vr(vS + i)}")
        for i in range(lo // 2, hi // 2):
            cv.append(f"v_cvt_pk_bf16_f32 {vr(vS + i)}, {vr(vS + 2 * i)}, {vr(vS + 2 * i + 1)}")
        per = 2 if PK else 1
        seq = fm[:2 // per]
        nf = 2 // per
        for j, x in enumerate(ex):
            seq.append(x)
            if nf < len(fm) and (j + 1) % per == 0:
                seq.append(fm[nf])
                nf += 1
            if j >= 2 and j % 2 == 0:
                seq.append(cv[(j - 2) // 2])
        seq.append(cv[-1])
        return seq

    def pv(T, k):
        return mfma(OACC[T], vPOOL + 12 * (T % 6) + 4 * k, vS + 4 * k, None if k == 0 else OACC[T])

    def lsum(k):
        return mfma(vL, vONE, vS + 4 * k, None if k == 0 else vL)

    def fin(T, park):
        u, p = T // 2, T % 2
        o = OACC[T]
        w = W + 4 * u + 2 * p
        if PK:
            ops = [f"v_pk_mul_f32 {vr(o + r, 2)}, {vr(o + r, 2)}, {vr(vT0, 2)} op_sel_hi:[1,0]" for r in (0, 2)]
        else:
            ops = [f"v_mul_f32 {vr(o + r)}, {vr(o + r)}, {vr(vT0)}" for r in range(4)]
        ops += [f"v_cvt_pk_bf16_f32 {vr(w)}, {vr(o)}, {vr(o + 1)}", f"v_cvt_pk_bf16_f32 {vr(w + 1)}, {vr(o + 2)}, {vr(o + 3)}"]
        if NOCOMP:
            ops = []
        if park:
            ops.append(f"ds_write_b64 {vr(vT3 if p else 0)}, {vr(w, 2)} offset:{1024 * u}")
        else:
            ops.append(f"ds_write_b64 {vr(vSW1 if p else vSW0)}, {vr(w, 2)}")
            if p:
                ops.append(f"ds_read_b128 {vr(R + 4 * u, 4)}, {vr(vSR)}")
        return ops

    if not NOCOMP:
        for op in merge(allreduce_ops("v_max_f32", vT0, vT1), VR[8:14]):
            m(op)
        m(f"v_mul_f32 {vr(vT0)}, {sr(sC)}, {vr(vT0)}")
        if PK:
            m(f"v_mov_b32 {vr(vT1)}, {vr(vT0)}")
        for op in merge(p_ops(0, 8), VR[14:24]):
            m(op)
        for op in merge(merge(p_ops(8, 16), VR[24:36]), [lsum(0)] + [pv(T, 0) for T in range(5)]):
            m(op)
        for op in merge(p_ops(16, 22) + [f"v_mov_b32 {vr(vS + 11)}, 0"], [pv(5, 0), lsum(1)] + [pv(T, 1) for T in range(6)]):
            m(op)
    stamp_it(m, 4)

    def tail(em, park):
        if park:
            em(f"v_add_u32 v0, {sr(sPARK)}, {vr(vSW0)}")
            em(f"v_add_u32 {vr(vT3)}, {sr(sPARK)}, {vr(vSW1)}")
            em(f"ds_read_b32 {vr(vT2)}, {vr(vFLAG)} offset:4")
        if NOCOMP:
            if park:
                poll_bits(em, sr(sREQ), True)
            for T in range(8):
                for op in fin(T, park):
                    em(op)
            return
        em(lsum(2))
        em(pv(0, 2))
        for k in range(3):
            for op in v_read(6, k):
                em(op)
        em(pv(1, 2))
        for k in range(3):
            for op in v_read(7, k):
                em(op)
        em(pv(2, 2))
        em(f"v_rcp_f32 {vr(vT0)}, {vr(vL)}")
        em(pv(3, 2))
        if park:
            poll_bits(em, sr(sREQ), True)
        em(pv(4, 2))
        em(pv(5, 2))
        for op in merge(fin(0, park) + fin(1, park) + fin(2, park), [pv(6, k) for k in range(3)] + [pv(7, k) for k in range(3)]):
            em(op)
        for T in range(3, 8):
            for op in fin(T, park):
                em(op)

    m(f"s_cmp_lg_u32 {sr(sIT)}, 0")
    m("s_cbranch_scc1 L_last")
    b2 = m.fork()
    tail(m, True)
    m(f"s_add_u32 {sr(sT1)}, {sr(sW)}, 8")
    m.wait_lgkm_all()
    set_bit(m, sr(sT1))
    stamp_it(m, 6, 0)
    m(f"s_sub_u32 {sr(sT1)}, {sr(sB2)}, {sr(sB)}")
    m(f"s_lshl_b32 {sr(sSTEP)}, {sr(sT1)}, 12")
    m(f"s_mul_i32 {sr(sSTEPV)}, {sr(sT1)}, {VT}")
    m(f"s_mov_b32 {sr(sB)}, {sr(sB2)}")
    if not NOCOMP:
        k_halo(m, sr(sB))
    m(f"s_add_u32 {sr(sNEED)}, {sr(sX)}, 3")
    m(f"s_min_u32 {sr(sNEED)}, {sr(sNEED)}, 16")
    m(f"s_add_u32 {sr(sNEEDV)}, {sr(sX)}, 5")
    m(f"s_min_u32 {sr(sNEEDV)}, {sr(sNEEDV)}, 17")
    m(f"s_cmp_ge_u32 {sr(sX)}, 14")
    m(f"s_addc_u32 {sr(sNEEDV)}, {sr(sNEEDV)}, 0")
    m(f"s_mov_b32 {sr(sIT)}, 1")
    m(f"s_cmp_ge_u32 {sr(sW)}, {EW}")
    m.flush()
    m("s_cbranch_scc1 L_block")
    m(f"s_sub_u32 {sr(sT2)}, {sr(sNEED)}, {D + QL2}")
    m(f"s_max_u32 {sr(sT2)}, {sr(sT2)}, {THRMIN}")
    poll(m, sr(sT2))
    q_load(m, sr(sB))
    m("s_branch L_block")
    b2.raw("L_last:")
    tail(b2, False)
    if STAMP and "B6" in PTS:
        b2.wait_lgkm_all()
        stamp_it(b2, 6, 1)
    for u in range(4):
        b2(f"buffer_store_dwordx4 {vr(R + 4 * u, 4)}, {vr(vSO)}, {sr(S_O, 4)}, {sr(sQOFF)} offen offset:{64 * u}{STB}")
    dump_stamps(b2, "m")
    b2("s_endpgm")

    h = c.fork()
    h.raw("L_helper:")
    hS, hO, hK, hV, vM, vA = 44, 56, 92, 124, 156, 1
    hL = hO + 32
    if PRIOH:
        h(f"s_setprio {PRIOH}")
    if CPF:
        h("s_getpc_b64 s[2:3]")
        h.raw("L_pc:")
        h(f"v_lshl_add_u32 v0, {vr(vG)}, 4, {vr(vN)}")
        h("v_lshlrev_b32 v0, 7, v0")
        h(f"s_sub_u32 s2, s2, L_pc-{NAME}_kernel")
        h("s_subb_u32 s3, s3, 0")
        for i in range(CPF):
            if i:
                h("v_add_u32 v0, 0x2000, v0")
            h(f"v_min_u32 v1, L_codeend-{NAME}_kernel-4, v0")
            h(f"global_load_dword {vr(160 + i)}, v1, s[2:3]")
    h(f"v_lshlrev_b32 {vr(vA)}, 4, {vr(vG)}")
    h(f"v_lshl_add_u32 v0, {vr(vN)}, 8, {vr(vA)}")
    for i in range(16):
        h(f"v_mov_b32 {vr(vQR + i)}, 0")
    h("s_mov_b32 exec_lo, 0x00030003")
    h("s_mov_b32 exec_hi, 0x00030003")
    for s in range(4):
        h(f"buffer_load_dwordx4 {vr(vQR + 4 * s, 4)}, v0, {sr(S_Q, 4)}, {sr(sHEADOFF)} offen offset:{64 * s}")
    h("s_mov_b64 exec, -1")
    lane_addrs(h)
    h(f"s_mul_i32 {sr(sPARK)}, {sr(sWAVE)}, 1056")
    h(f"s_add_u32 {sr(sPARK)}, {sr(sPARK)}, {L_MRG - 1056}")
    h(f"v_lshl_add_u32 {vr(vA)}, {vr(vN)}, 9, {vr(vA)}")
    h(f"v_add_u32 {vr(vA)}, {sr(sPARK)}, {vr(vA)}")
    h(f"v_lshlrev_b32 {vr(vSR)}, 3, {vr(vN)}")
    h(f"v_add_u32 {vr(vSR)}, {sr(sPARK)}, {vr(vSR)}")
    h(f"v_lshl_add_u32 {vr(vSO)}, {vr(vG)}, 4, {vr(vN)}")
    h(f"v_lshrrev_b32 {vr(vSW)}, 5, {vr(vSO)}")
    h(f"v_lshlrev_b32 {vr(vSW)}, 3, {vr(vSW)}")
    h(f"v_lshlrev_b32 {vr(vSW0)}, 4, {vr(vSO)}")
    h(f"v_and_b32 {vr(vSW1)}, 7, {vr(vSO)}")
    h(f"v_lshlrev_b32 {vr(vT0)}, 3, {vr(vSW)}")
    h(f"v_lshl_add_u32 {vr(vGK)}, {vr(vSW1)}, 3, {vr(vT0)}")
    h(f"v_lshl_add_u32 {vr(vSW1)}, {vr(vSW1)}, 11, {vr(vT0)}")
    h(f"v_lshlrev_b32 {vr(vSO)}, 3, {vr(vSO)}")
    for i in range(36):
        h(f"v_mov_b32 {vr(hO + i)}, 0")
    h(f"v_mov_b32 {vr(vM)}, {sr(sNEG)}")
    h(f"s_sub_u32 {sr(sW)}, {sr(sWAVE)}, 1")
    h(f"s_lshl_b32 {sr(sT0)}, {sr(sW)}, 1")
    h(f"s_add_u32 {sr(sNEED)}, {sr(sT0)}, 2")
    h(f"s_sub_u32 {sr(sT1)}, 14, {sr(sT0)}")
    h(f"s_cmp_eq_u32 {sr(sDESC)}, 0")
    h(f"s_cselect_b32 {sr(sT0)}, {sr(sT0)}, {sr(sT1)}")
    h(f"s_cselect_b32 {sr(sSTEPV)}, 1, -1")
    h(f"s_mul_i32 {sr(sSTEP)}, {sr(sSTEPV)}, {2 * NH * 4096}")
    h(f"s_mul_i32 {sr(sSTEPV)}, {sr(sSTEPV)}, {2 * NH * VT}")
    h(f"s_lshl_b32 {sr(sT1)}, {sr(sT0)}, 12")
    h(f"s_add_u32 {sr(sT1)}, {sr(sT1)}, {L_K}")
    h(f"s_mul_i32 {sr(sT2)}, {sr(sT0)}, {VT}")
    h(f"s_add_u32 {sr(sT2)}, {sr(sT2)}, {L_V + 2 * VT}")
    tile_addrs(h, sr(sT1), sr(sT2))
    h(f"s_lshl_b32 {sr(sREC)}, {sr(sHEAD)}, 3")
    h(f"s_add_u32 {sr(sREC)}, {sr(sREC)}, {sr(sCHUNK)}")
    h(f"s_lshl_b32 {sr(sREC)}, {sr(sREC)}, 11")
    h(f"s_getreg_b32 {sr(sX)}, hwreg(HW_REG_XCC_ID, 0, 4)")
    h(f"s_mul_i32 {sr(sT2)}, {sr(sX)}, {sr(sX)}")
    h(f"s_lshl_b32 {sr(sT2)}, {sr(sT2)}, 13")
    h(f"s_lshl_b32 {sr(sX)}, {sr(sX)}, 5")
    h(f"s_add_u32 {sr(sX)}, {sr(sX)}, {sr(sT2)}")
    h(f"s_add_u32 {sr(sX)}, {sr(sX)}, 1")
    h(f"s_add_u32 {sr(sREQ)}, {sr(sREC)}, {1 << 20}")
    if opt.get("tlbw"):
        h(f"s_lshl_b32 {sr(sT0)}, {sr(sHEAD)}, 14")
        h(f"buffer_load_dword v162, {vr(vSW1)}, {sr(S_WS, 4)}, {sr(sT0)} offen offset:1536")
        h(f"s_add_u32 {sr(sT0)}, {sr(sT0)}, {1 << 20}")
        h(f"buffer_load_dword v163, {vr(vSW1)}, {sr(S_WS, 4)}, {sr(sT0)} offen offset:1536")
    h.wait_vm_all()
    h.label("L_hloop")
    poll(h, sr(sNEED))
    h(f"s_lshr_b32 {sr(sT1)}, {sr(sNEED)}, 1")
    h(f"s_add_u32 {sr(sT1)}, {sr(sT1)}, 15")
    h(f"s_add_u32 {sr(sNEEDV)}, {sr(sNEED)}, 2")
    h(f"s_min_u32 {sr(sNEEDV)}, {sr(sNEEDV)}, 17")
    if not NOCOMP:
        for i in range(8):
            h(f"ds_read_b128 {vr(hK + 4 * i, 4)}, {vr(vKA + i % 4)} offset:{4096 * (i // 4)}")
        hvr = [f"ds_read_b64_tr_b16 {vr(hV + 4 * T + 2 * j, 2)}, {vr(vVA + T // 2)} offset:{VT * j + 32 * (T % 2)}" for T in range(8) for j in range(2)]
        for i in range(8):
            t, s = i // 4, i % 4
            h(mfma(hS + 4 * t, hK + 4 * i, vQR + 4 * s, None if s == 0 else hS + 4 * t))
    set_bit(h, sr(sT1))
    if not NOCOMP:
        for op in max_tree([hS + i for i in range(8)], vT0) + allreduce_ops("v_max_f32", vT0, vT1):
            h(op)
        h(f"v_mul_f32 {vr(vT0)}, {sr(sC)}, {vr(vT0)}")
        h(f"v_max_f32 {vr(vT0)}, {vr(vT0)}, {vr(vM)}")
        h(f"v_sub_f32 {vr(vT1)}, {vr(vM)}, {vr(vT0)}")
        h(f"v_exp_f32 {vr(vT1)}, {vr(vT1)}")
        h(f"v_mov_b32 {vr(vM)}, {vr(vT0)}")
        for i in range(8):
            h(f"v_fma_f32 {vr(hS + i)}, {vr(hS + i)}, {sr(sC)}, -{vr(vT0)}")
        for i in range(8):
            h(f"v_exp_f32 {vr(hS + i)}, {vr(hS + i)}")
        for i in range(33):
            h(f"v_mul_f32 {vr(hO + i)}, {vr(hO + i)}, {vr(vT1)}")
        for k in range(4):
            h(f"v_cvt_pk_bf16_f32 {vr(hS + k)}, {vr(hS + 2 * k)}, {vr(hS + 2 * k + 1)}")
        h(mfma(hL, vONE, hS, hL))
    poll(h, sr(sNEEDV))
    if not NOCOMP:
        for op in hvr:
            h(op)
    tile_addrs(h, sr(sSTEP), sr(sSTEPV))
    if not NOCOMP:
        for T in range(8):
            h(mfma(hO + 4 * T, hV + 4 * T, hS, hO + 4 * T))
    h(f"s_add_u32 {sr(sNEED)}, {sr(sNEED)}, {2 * NH}")
    h(f"s_cmp_le_u32 {sr(sNEED)}, 16")
    h.flush()
    h("s_cbranch_scc1 L_hloop")
    stamp(h, 1)
    if not NOCOMP:
        h(f"v_mov_b32 {vr(vM + 1)}, {vr(hL)}")
        h("s_mov_b32 exec_lo, 0x00030003")
        h("s_mov_b32 exec_hi, 0x00030003")
        for T in range(8):
            h(f"ds_write_b128 {vr(vA)}, {vr(hO + 4 * T, 4)} offset:{64 * T}")
        h("s_mov_b64 exec, 3")
        h(f"ds_write_b64 {vr(vSR)}, {vr(vM, 2)} offset:1024")
        h("s_mov_b64 exec, -1")
        h(f"s_cmp_lg_u32 {sr(sW)}, 0")
        h("s_cbranch_scc1 L_hmerge")
        h0 = h.fork()
        keepq = list(h.ds_q)
        h.wait_lgkm_all()
        set_bit(h, 24)
        h("s_branch L_hdone")
        h.raw("L_hmerge:")
        h.ds_q = keepq
        h(f"s_mov_b32 {sr(sT2)}, {1 << 24}")
        poll_bits(h, sr(sT2))
        cA, cB, cM = 56, 60, 64
        h(f"ds_read_b64 {vr(cM, 2)}, {vr(vSW)} offset:{L_MRG + 1024}")
        h(f"ds_read_b64 {vr(cM + 2, 2)}, {vr(vSW)} offset:{L_MRG + 1056 + 1024}")
        h(f"ds_read_b128 {vr(cA, 4)}, {vr(vSW0)} offset:{L_MRG}")
        h(f"ds_read_b128 {vr(cB, 4)}, {vr(vSW0)} offset:{L_MRG + 1056}")
        h(f"s_lshl_b32 {sr(sT0)}, {sr(sHEAD)}, 2")
        h(f"v_mov_b32 v0, {sr(sX)}")
        h(f"v_max_f32 {vr(vM)}, {vr(cM)}, {vr(cM + 2)}")
        h(f"v_sub_f32 {vr(cM)}, {vr(cM)}, {vr(vM)}")
        h(f"v_sub_f32 {vr(cM + 2)}, {vr(cM + 2)}, {vr(vM)}")
        h(f"v_exp_f32 {vr(cM)}, {vr(cM)}")
        h(f"v_exp_f32 {vr(cM + 2)}, {vr(cM + 2)}")
        for r in range(4):
            h(f"v_mul_f32 {vr(cA + r)}, {vr(cA + r)}, {vr(cM)}")
        h(f"v_mul_f32 {vr(vM + 1)}, {vr(cM + 1)}, {vr(cM)}")
        for r in range(4):
            h(f"v_fmac_f32 {vr(cA + r)}, {vr(cB + r)}, {vr(cM + 2)}")
        h(f"v_fmac_f32 {vr(vM + 1)}, {vr(cM + 3)}, {vr(cM + 2)}")
        h(f"buffer_store_dwordx4 {vr(cA, 4)}, {vr(vSW0)}, {sr(S_WS, 4)}, {sr(sREC)} offen sc1")
        if DUAL != "none":
            h(f"buffer_store_dwordx4 {vr(cA, 4)}, {vr(vSW0)}, {sr(S_WS, 4)}, {sr(sREQ)} offen")
        h("s_mov_b32 exec_lo, 0xff")
        h("s_mov_b32 exec_hi, 0xff")
        h(f"buffer_store_dwordx2 {vr(vM, 2)}, {vr(vGK)}, {sr(S_WS, 4)}, {sr(sREC)} offen offset:1024 sc1")
        if DUAL != "none":
            h(f"buffer_store_dwordx2 {vr(vM, 2)}, {vr(vGK)}, {sr(S_WS, 4)}, {sr(sREQ)} offen offset:1024")
        h("s_mov_b64 exec, 1")
        h(f"v_mov_b32 {vr(vT2)}, {1 << 25}")
        if GATE >= 0 and GATEP:
            h(f"ds_or_b32 {vr(vFLAG)}, {vr(vT2)} offset:4")
        h.wait_vm_all()
        stamp(h, 2)
        h(f"buffer_atomic_add v0, off, {sr(S_DBG, 4)}, {sr(sT0)} sc0")
        if GATE >= 0 and not GATEP:
            h(f"ds_or_b32 {vr(vFLAG)}, {vr(vT2)} offset:4")
        h(f"v_readfirstlane_b32 {sr(sT1)}, v0")
        h("s_mov_b64 exec, -1")
        stamp(h, 3)
        h(f"s_and_b32 {sr(sT2)}, {sr(sT1)}, 31")
        h(f"s_cmp_eq_u32 {sr(sT2)}, 7")
        h.flush()
        h("s_cbranch_scc0 L_hdone")
        cO, cW = 56, 96
        h(f"s_lshl_b32 {sr(sREC)}, {sr(sHEAD)}, 14")

        def rec_loads(mod):
            h.vm_q = []
            h(f"buffer_load_dwordx2 {vr(vM, 2)}, {vr(vSW1)}, {sr(S_WS, 4)}, {sr(sREC)} offen offset:1024{mod}")
            for i in range(8):
                if i % 2 == 0 and i:
                    h(f"s_add_u32 {sr(sREC)}, {sr(sREC)}, 4096")
                h(f"buffer_load_dwordx4 {vr(cO + 4 * i, 4)}, {vr(vSW0)}, {sr(S_WS, 4)}, {sr(sREC)} offen offset:{2048 * (i % 2)}{mod}")
        if DUAL != "none":
            h(f"s_mul_i32 {sr(sX)}, {sr(sX)}, 7")
            h(f"s_cmp_eq_u32 {sr(sX)}, {sr(sT1)}")
            h("s_cbranch_scc0 L_far")
            h(f"s_add_u32 {sr(sREC)}, {sr(sREC)}, {1 << 20}")
            rec_loads("" if DUAL == "plain" else " " + DUAL)
            h("s_branch L_got")
            h.raw("L_far:")
        rec_loads(" sc1")
        h.raw("L_got:")
        SWZ = (0x041F, 0x081F, 0x101F)
        h(f"v_mov_b32 {vr(vT0)}, {vr(vM)}")
        stamp(h, 5)
        for x in SWZ:
            h(f"ds_swizzle_b32 {vr(vT1)}, {vr(vT0)} offset:{x:#x}")
            h(f"v_max_f32 {vr(vT0)}, {vr(vT0)}, {vr(vT1)}")
        h(f"v_sub_f32 {vr(vM)}, {vr(vM)}, {vr(vT0)}")
        h(f"v_exp_f32 {vr(vM)}, {vr(vM)}")
        h(f"v_mul_f32 {vr(vT0)}, {vr(vM)}, {vr(vM + 1)}")
        for i in range(8):
            h(f"ds_swizzle_b32 {vr(cW + i)}, {vr(vM)} offset:{(i << 5) | 0x18:#x}")
        for x in SWZ:
            h(f"ds_swizzle_b32 {vr(vT1)}, {vr(vT0)} offset:{x:#x}")
            h(f"v_add_f32 {vr(vT0)}, {vr(vT0)}, {vr(vT1)}")
        h(f"v_rcp_f32 {vr(vT0)}, {vr(vT0)}")
        if STAMP:
            h.wait_vm_all()
            stamp(h, 4)
        for i in range(8):
            for r in range(4):
                h(f"{'v_fmac_f32' if i else 'v_mul_f32'} {vr(vKA + r)}, {vr(cW + i)}, {vr(cO + 4 * i + r)}")
        for r in range(4):
            h(f"v_mul_f32 {vr(vKA + r)}, {vr(vKA + r)}, {vr(vT0)}")
        h(f"v_cvt_pk_bf16_f32 {vr(vVA)}, {vr(vKA)}, {vr(vKA + 1)}")
        h(f"v_cvt_pk_bf16_f32 {vr(vVA + 1)}, {vr(vKA + 2)}, {vr(vKA + 3)}")
        h(f"buffer_store_dwordx2 {vr(vVA, 2)}, {vr(vSO)}, {sr(S_O, 4)}, {sr(sHEADOFF)} offen sc1")
        h.label("L_hdone")
    dump_stamps(h, "h")
    h.raw("L_end:")
    h("s_endpgm")

    tailtxt = f""".section .rodata,"a"
.p2align 6
.amdhsa_kernel {NAME}_kernel
  .amdhsa_next_free_vgpr 168
  .amdhsa_next_free_sgpr 98
  .amdhsa_accum_offset 168
  .amdhsa_group_segment_fixed_size 0
  .amdhsa_kernarg_size 64
  .amdhsa_user_sgpr_count 2
  .amdhsa_user_sgpr_kernarg_segment_ptr 1
  .amdhsa_system_sgpr_workgroup_id_x 1
.end_amdhsa_kernel
"""
    txt = e.text() + ld.text() + c.text() + m.text() + b2.text() + h.text()
    if not NOCOMP:
        txt += ed.text()
    return txt + "L_codeend:\n" + tailtxt


if __name__ == "__main__":
    out = sys.argv[1]
    opt = {}
    for a in sys.argv[2:]:
        k, _, v = a.partition("=")
        opt[k] = v if v else True
        if k in ("st", "stb", "ld", "qld"):
            opt[k] = (" " + v.replace("+", " ")) if v != "none" else ""
    open(out, "w").write(gen(opt))
```

```python
import sys
import math
import struct
from asmgen import Emitter, vr, sr

NAME = "standalone__global_local_windowed_global_tokens__prompt"

HEADER = """; Kernarg layout for this problem (64 bytes, ptrs only, base s[0:1]):
;   offset   0: d_in[0] q  shape=(1, 32, 2048, 128) dtype=bfloat16 strides=(16777216, 524288, 256, 2) contiguous=True
;   offset   8: d_in[1] k  shape=(1, 32, 2048, 128) dtype=bfloat16 strides=(16777216, 524288, 256, 2) contiguous=True
;   offset  16: d_in[2] v  shape=(1, 32, 2048, 128) dtype=bfloat16 strides=(16777216, 524288, 256, 2) contiguous=True
;   offset  24: d_in[3] window  shape=(1,) dtype=int32 strides=(4,) contiguous=True
;   offset  32: d_in[4] n_global  shape=(1,) dtype=int32 strides=(4,) contiguous=True
"""


def f32bits(x):
    return struct.unpack("<I", struct.pack("<f", x))[0]


def merge(a, b):
    out, nb = [], 0
    for i, x in enumerate(a):
        out.append(x)
        want = (i + 1) * len(b) // len(a)
        out += b[nb:want]
        nb = want
    return out + b[nb:]


def gen(opt):
    LD = opt.get("ld", "")
    QLD = opt.get("qld", "")
    ST = opt.get("st", " sc1")
    STB = opt.get("stb", ST)
    NOCOMP = opt.get("nocomp", False)
    PROBE = opt.get("probe", None)
    GPROBE = opt.get("gprobe", None)
    STAMP = opt.get("stamp", False) or PROBE or GPROBE
    D = int(opt.get("depth", 3))
    SLEEP = int(opt.get("sleep", 1))
    QLEAD = int(opt.get("qlead", 0))
    QL2 = int(opt.get("ql2", 0))
    THRMIN = int(opt.get("thrmin", 0))
    EW = int(opt.get("ew", 6))
    PST = int(opt.get("pst", 32))
    DUAL = opt.get("dual", "plain")
    PRIOW = int(opt.get("priow", 99))
    PRIOH = int(opt.get("prioh", 0))
    ROT = int(opt.get("rot", 6))
    PK = opt.get("pk", False)
    GATE = int(opt.get("gate", -1))
    GATEP = opt.get("gatep", False)
    WX = int(opt.get("wx", 0))
    PRIOV = int(opt.get("priov", 2))
    CPF = int(opt.get("cpf", 0))
    PTS = opt.get("pts", "A2,A6,B1,B2,B6").split(",")
    assert len(PTS) == 5 and D >= 2
    assert all(((w + ROT) & 7) < 6 for w in range(EW, 8))

    TB = 32 * 2048 * 256
    HEADB = 2048 * 256
    L_STAGE, L_GK, L_GV, L_FLAG, L_K, L_V = 0, 8192, 9216, 10240, 13824, 79360
    L_MRG = 10368
    VT, VP = 4224, 1056
    NH = 2
    NWAVE = 9 + NH
    NEG = f32bits(-1.0e30)
    CSCALE = f32bits((128 ** -0.5) * math.log2(math.e))

    S_Q, S_K, S_V, S_O, S_DBG, S_WS = 20, 24, 28, 32, 36, 40
    sWAVE, sHEADOFF, sROW0, sT0, sT1, sT2 = 44, 45, 46, 47, 48, 49
    sQOFF, sNEG, sQ0, sHEAD, sCHUNK, sDESC = 50, 51, 52, 53, 54, 55
    sEX = 56
    sC = 58
    sTS = 60
    sB, sIT, sNEED, sX, sCNT, sW, sHI, sREC, sSTEP, sXV, sSTEPV, sPARK, sREQ, sB2 = range(80, 94)
    sNEEDV = 95
    sMASK = 2

    vKA, vVA, vSW0, vSW1, vGK, vN, vG, vG4 = 2, 6, 10, 11, 12, 13, 14, 15
    vFLAG, vSW, vT0, vT1, vONE, vSR, vSO, vT3, vT2 = 16, 17, 18, 19, 20, 24, 25, 26, 27
    vQR, vS, vOX, vPOOL, vGV = 28, 44, 68, 92, 164

    uid = [0]

    def newid():
        uid[0] += 1
        return uid[0]

    def stamp(em, i):
        if STAMP:
            em(f"s_memrealtime {sr(sTS + 2 * i, 2)}")

    def stamp_it(em, k, only=None):
        if not STAMP:
            return
        for it, nm in ((0, f"A{k}"), (1, f"B{k}")):
            if nm in PTS and only in (None, it):
                if only is None:
                    u = newid()
                    em(f"s_cmp_eq_u32 {sr(sIT)}, {it}")
                    em(f"s_cbranch_scc0 L_sa{u}")
                stamp(em, PTS.index(nm) + 1)
                if only is None:
                    em.raw(f"L_sa{u}:")

    def poll(em, need):
        u = newid()
        em.label(f"L_poll{u}")
        em(f"ds_read_b32 {vr(vT2)}, {vr(vFLAG)}")
        em(f"v_readfirstlane_b32 {sr(sT0)}, {vr(vT2)}")
        em(f"s_cmp_ge_i32 {sr(sT0)}, {need}")
        em(f"s_cbranch_scc1 L_pdone{u}")
        if SLEEP:
            em(f"s_sleep {SLEEP}")
        em(f"s_branch L_poll{u}")
        em.raw(f"L_pdone{u}:")

    def poll_pre(em, need, reg):
        u = newid()
        em(f"v_readfirstlane_b32 {sr(sT0)}, {vr(reg)}")
        em(f"s_cmp_ge_i32 {sr(sT0)}, {need}")
        em(f"s_cbranch_scc1 L_pdone{u}")
        keep = (list(em.ds_q), list(em.hist))
        em.lines.append(f"L_poll{u}:")
        em(f"ds_read_b32 {vr(reg)}, {vr(vFLAG)}")
        em(f"v_readfirstlane_b32 {sr(sT0)}, {vr(reg)}")
        em(f"s_cmp_ge_i32 {sr(sT0)}, {need}")
        em(f"s_cbranch_scc0 L_poll{u}")
        em.raw(f"L_pdone{u}:")
        em.ds_q, em.hist = keep

    def poll_bits(em, smask, first_read_done=False):
        u = newid()
        if first_read_done:
            em(f"v_readfirstlane_b32 {sr(sT0)}, {vr(vT2)}")
            em(f"s_andn2_b32 {sr(sT0)}, {smask}, {sr(sT0)}")
            em(f"s_cbranch_scc0 L_pdone{u}")
            keep = (list(em.ds_q), list(em.hist))
            em.lines.append(f"L_poll{u}:")
        else:
            em.label(f"L_poll{u}")
        em(f"ds_read_b32 {vr(vT2)}, {vr(vFLAG)} offset:4")
        em(f"v_readfirstlane_b32 {sr(sT0)}, {vr(vT2)}")
        em(f"s_andn2_b32 {sr(sT0)}, {smask}, {sr(sT0)}")
        em(f"s_cbranch_scc0 L_pdone{u}")
        if SLEEP:
            em(f"s_sleep {SLEEP}")
        em(f"s_branch L_poll{u}")
        em.raw(f"L_pdone{u}:")
        if first_read_done:
            em.ds_q, em.hist = keep

    def set_bit(em, sbit):
        em(f"s_lshl_b32 {sr(sT0)}, 1, {sbit}")
        em(f"v_mov_b32 {vr(vT2)}, {sr(sT0)}")
        em("s_mov_b64 exec, 1")
        em(f"ds_or_b32 {vr(vFLAG)}, {vr(vT2)} offset:4")
        em("s_mov_b64 exec, -1")

    def park_addr(em, sw, dst):
        em(f"s_sub_u32 {sr(sT1)}, 19, {sw}")
        em(f"s_cmp_eq_u32 {sr(sDESC)}, 0")
        em(f"s_cselect_b32 {sr(sT1)}, {sw}, {sr(sT1)}")
        em(f"s_mul_i32 {sr(sT2)}, {sr(sT1)}, {VT}")
        em(f"s_add_u32 {sr(sT2)}, {sr(sT2)}, {L_V}")
        em(f"s_lshl_b32 {sr(sT1)}, {sr(sT1)}, 12")
        em(f"s_add_u32 {sr(sT1)}, {sr(sT1)}, {L_K - 8192}")
        em(f"s_cmp_lt_u32 {sw}, 2")
        em(f"s_cselect_b32 {dst}, {sr(sT2)}, {sr(sT1)}")

    def stage_read_addrs(em):
        em(f"v_lshrrev_b32 {vr(vT0)}, 2, {vr(vN)}")
        em(f"v_add_u32 {vr(vT2)}, {vr(vG4)}, {vr(vT0)}")
        em(f"v_and_b32 {vr(vT1)}, 3, {vr(vN)}")
        em(f"v_lshlrev_b32 {vr(vSO)}, 4, {vr(vT1)}")
        em(f"v_lshl_add_u32 {vr(vSO)}, {vr(vT2)}, 8, {vr(vSO)}")
        em(f"v_bfe_u32 {vr(vSR)}, {vr(vT2)}, 1, 2")
        em(f"v_xor_b32 {vr(vSR)}, {vr(vSR)}, {vr(vT1)}")
        em(f"v_lshlrev_b32 {vr(vSR)}, 4, {vr(vSR)}")
        em(f"v_lshl_add_u32 {vr(vSR)}, {vr(vT2)}, 6, {vr(vSR)}")

    def dump_stamps(em, tagn):
        if not STAMP:
            return
        stamp(em, 6)
        em("s_waitcnt vmcnt(0)")
        stamp(em, 7)
        em("s_memtime s[78:79]")
        em("s_waitcnt lgkmcnt(0)")
        if GPROBE:
            role, which, fac = GPROBE.split(",")
            which, fac = int(which), int(fac)
            nrep = {"l": 256, "m": 2048 + 256, "h": 512 + 256, "a": 2816}[role]
            em("s_mov_b64 exec, 1")
            if tagn == "l":
                em(f"s_not_b32 {sr(sT0)}, {sr(sTS)}")
                em(f"v_mov_b32 v0, {sr(sT0)}")
                em(f"buffer_atomic_umax v0, off, {sr(S_DBG, 4)}, 0 offset:128")
            if role in (tagn, "a"):
                em(f"v_mov_b32 v1, {sr(sTS + 2 * which)}")
                em(f"buffer_atomic_umax v1, off, {sr(S_DBG, 4)}, 0 offset:132")
            if role in (tagn, "a") or tagn == "l":
                em("v_mov_b32 v2, 1")
                em("s_waitcnt vmcnt(0)")
                em(f"buffer_atomic_add v2, off, {sr(S_DBG, 4)}, 0 offset:136")
            if tagn == "l":
                em(f"s_cmp_eq_u32 {sr(sWG)}, 100")
                em("s_cbranch_scc0 L_gp_done")
                em.label("L_gp1")
                em(f"buffer_load_dwordx4 v[4:7], off, {sr(S_DBG, 4)}, 0 offset:128 sc1")
                em("s_waitcnt vmcnt(0)")
                em(f"v_readfirstlane_b32 {sr(sT0)}, v6")
                em("s_sleep 8")
                em(f"s_cmp_ge_u32 {sr(sT0)}, {nrep}")
                em("s_cbranch_scc0 L_gp1")
                em(f"buffer_load_dwordx4 v[4:7], off, {sr(S_DBG, 4)}, 0 offset:128 sc1")
                em("s_waitcnt vmcnt(0)")
                em(f"v_readfirstlane_b32 {sr(sT2)}, v4")
                em(f"v_readfirstlane_b32 {sr(sT0)}, v5")
                em(f"s_not_b32 {sr(sT2)}, {sr(sT2)}")
                em(f"s_sub_u32 {sr(sT0)}, {sr(sT0)}, {sr(sT2)}")
                em(f"s_min_u32 {sr(sT0)}, {sr(sT0)}, 5000")
                em(f"s_mul_i32 {sr(sT0)}, {sr(sT0)}, {fac}")
                em(f"s_add_u32 {sr(sT0)}, {sr(sT0)}, 15000")
                em.label("L_gp2")
                em("s_memrealtime s[78:79]")
                em("s_waitcnt lgkmcnt(0)")
                em(f"s_sub_u32 {sr(sT1)}, s78, {sr(sT2)}")
                em(f"s_cmp_lt_u32 {sr(sT1)}, {sr(sT0)}")
                em("s_cbranch_scc1 L_gp2")
                em.label("L_gp_done")
            em.vm_q = []
            return
        if PROBE:
            which, fac, pw = (int(x) for x in PROBE.split(","))
            em(f"s_cmp_eq_u32 {sr(sWG)}, 100")
            em(f"s_cbranch_scc0 L_probe_done{tagn}")
            em(f"s_cmp_eq_u32 {sr(sWAVE)}, {pw}")
            em(f"s_cbranch_scc0 L_probe_done{tagn}")
            em(f"s_sub_u32 {sr(sT0)}, {sr(sTS + 2 * which)}, {sr(sTS)}")
            em(f"s_mul_i32 {sr(sT0)}, {sr(sT0)}, {fac}")
            em(f"s_add_u32 {sr(sT0)}, {sr(sT0)}, 5000")
            em.label(f"L_probe{tagn}")
            em("s_memrealtime s[78:79]")
            em("s_waitcnt lgkmcnt(0)")
            em(f"s_sub_u32 {sr(sT1)}, s78, {sr(sTS)}")
            em(f"s_cmp_lt_u32 {sr(sT1)}, {sr(sT0)}")
            em(f"s_cbranch_scc1 L_probe{tagn}")
            em.label(f"L_probe_done{tagn}")
            return
        em("s_sub_u32 s76, s78, s76")
        if tagn == "m":
            em(f"s_mov_b32 {sr(sT1)}, {sr(sW)}")
        else:
            em(f"s_add_u32 {sr(sT1)}, {sr(sWAVE)}, 8")
        em(f"s_mul_i32 {sr(sT0)}, {sr(sWG)}, {NWAVE}")
        em(f"s_add_u32 {sr(sT0)}, {sr(sT0)}, {sr(sT1)}")
        em(f"s_lshl_b32 {sr(sT0)}, {sr(sT0)}, 6")
        em(f"s_add_u32 {sr(sT0)}, {sr(sT0)}, {0x800000}")
        for i in range(9):
            em(f"v_mov_b32 {vr(vPOOL + i)}, {sr(sTS + 2 * i)}")
        em("v_mov_b32 v0, 0")
        em("s_mov_b64 exec, 1")
        em(f"buffer_store_dwordx4 {vr(vPOOL, 4)}, v0, {sr(S_WS, 4)}, {sr(sT0)} offen")
        em(f"buffer_store_dwordx4 {vr(vPOOL + 4, 4)}, v0, {sr(S_WS, 4)}, {sr(sT0)} offen offset:16")
        em(f"buffer_store_dword {vr(vPOOL + 8)}, v0, {sr(S_WS, 4)}, {sr(sT0)} offen offset:32")

    sWG = 94

    e = Emitter()
    e.raw(HEADER + f"; @launch grid=(256,1,1) block=({64 * NWAVE},1,1) lds=163840")
    e.raw('.amdgcn_target "amdgcn-amd-amdhsa--gfx950"')
    e.raw(".text")
    e.raw(f".globl {NAME}_kernel")
    e.raw(".p2align 8")
    e.raw(f".type {NAME}_kernel,@function")
    e.raw(f"{NAME}_kernel:")
    e("s_load_dwordx4 s[4:7], s[0:1], 0")
    e("s_load_dwordx2 s[8:9], s[0:1], 16")
    e("s_cmp_ge_u32 s2, 256")
    e("s_cbranch_scc1 L_end")
    stamp(e, 0)
    if STAMP:
        e("s_memtime s[76:77]")
        e(f"s_mov_b32 {sr(sWG)}, s2")
        for i in range(1, 6):
            e(f"s_mov_b64 {sr(sTS + 2 * i, 2)}, 0")
    e(f"v_readfirstlane_b32 {sr(sWAVE)}, v0")
    e(f"v_and_b32 {vr(vN)}, 15, v0")
    e(f"v_bfe_u32 {vr(vG)}, v0, 4, 2")
    e(f"s_and_b32 {sr(sT0)}, s2, 7")
    e(f"s_lshr_b32 {sr(sT1)}, s2, 6")
    e(f"s_lshl2_add_u32 {sr(sHEAD)}, {sr(sT0)}, {sr(sT1)}")
    e(f"s_bfe_u32 {sr(sCHUNK)}, s2, 0x30003")
    e(f"s_lshl_b32 {sr(sHEADOFF)}, {sr(sHEAD)}, 19")
    e(f"s_lshl_b32 {sr(sT0)}, {sr(sCHUNK)}, 16")
    e(f"s_add_u32 {sr(sROW0)}, {sr(sHEADOFF)}, {sr(sT0)}")
    e(f"s_add_u32 {sr(sHI)}, {sr(sHEADOFF)}, {HEADB - 4096}")
    e(f"s_and_b32 {sr(sDESC)}, {sr(sCHUNK)}, 1")
    e(f"v_lshlrev_b32 {vr(vG4)}, 2, {vr(vG)}")
    e(f"v_mov_b32 {vr(vFLAG)}, {L_FLAG}")
    e(f"s_mov_b32 {sr(S_K + 2)}, {TB}")
    e(f"s_mov_b32 {sr(S_K + 3)}, 0x20000")
    e(f"s_lshr_b32 {sr(sWAVE)}, {sr(sWAVE)}, 6")
    e("s_cbranch_scc1 L_notloader")

    def other_srds(em, which):
        em("s_load_dwordx4 s[12:15], s[0:1], 40")
        em("s_load_dwordx2 s[16:17], s[0:1], 56")
        em(f"s_mov_b32 {sr(S_O + 2)}, {TB}")
        em(f"s_mov_b32 {sr(S_O + 3)}, 0x20000")
        em(f"s_mov_b32 {sr(S_DBG + 2)}, 256")
        em(f"s_mov_b32 {sr(S_DBG + 3)}, 0x20000")
        em(f"s_mov_b32 {sr(S_WS + 2)}, {0x1000000}")
        em(f"s_mov_b32 {sr(S_WS + 3)}, 0x20000")

    def other_srds_done(em):
        em("s_waitcnt lgkmcnt(0)")
        for b, src in ((S_O, 12), (S_DBG, 14), (S_WS, 16)):
            em(f"s_mov_b64 {sr(b, 2)}, {sr(src, 2)}")

    ld = e.fork()
    vKD, vVD, vCNT = 2, 6, 8
    ld(f"v_lshlrev_b32 v0, 8, {vr(vG)}")
    ld(f"v_xor_b32 {vr(vVD)}, {vr(vG4)}, {vr(vN)}")
    ld(f"v_lshl_add_u32 {vr(vVD)}, {vr(vVD)}, 4, v0")
    ld(f"v_xor_b32 {vr(vKD)}, {vr(vG)}, {vr(vN)}")
    ld(f"v_lshl_add_u32 {vr(vKD)}, {vr(vKD)}, 4, v0")
    ld(f"s_mov_b32 {sr(S_V + 2)}, {TB}")
    ld(f"s_mov_b32 {sr(S_V + 3)}, 0x20000")
    ld(f"v_mov_b32 {vr(vCNT)}, 0")
    ld(f"v_mov_b32 {vr(vCNT + 1)}, 0")
    ld(f"s_mov_b32 m0, {L_GK}")
    ld("s_waitcnt lgkmcnt(0)")
    ld(f"s_mov_b64 {sr(S_K, 2)}, s[6:7]")
    ld(f"s_mov_b64 {sr(S_V, 2)}, s[8:9]")

    def v_halo(em, hi_when_desc):
        em(f"s_cmp_eq_u32 {sr(sDESC)}, {1 if hi_when_desc else 0}")
        em(f"s_cselect_b32 {sr(sT0)}, {18 * VT}, 0")
        em(f"s_cselect_b32 {sr(sT1)}, {18 * 4096}, 0")
        em(f"s_add_u32 {sr(sT1)}, {sr(sT1)}, {sr(sROW0)}")
        em(f"s_sub_u32 {sr(sT1)}, {sr(sT1)}, 8192")
        for k in range(2):
            em(f"s_max_i32 {sr(sT2)}, {sr(sT1)}, {sr(sHEADOFF)}")
            em(f"s_min_i32 {sr(sT2)}, {sr(sT2)}, {sr(sHI)}")
            for j in range(4):
                em(f"s_add_u32 m0, {sr(sT0)}, {L_V + VT * k + 32 * j}")
                if k == 0 and j == 0:
                    em(f"s_add_u32 {sr(sT1)}, {sr(sT1)}, 4096")
                em(f"buffer_load_dwordx4 {vr(vVD)}, {sr(S_V, 4)}, {sr(sT2)} offen offset:{1024 * j}{LD} lds")

    ld(f"buffer_load_dwordx4 {vr(vKD)}, {sr(S_K, 4)}, {sr(sHEADOFF)} offen lds")
    stamp(ld, 5)
    ld(f"s_mov_b32 m0, {L_GV}")
    ld(f"buffer_load_dwordx4 {vr(vVD)}, {sr(S_V, 4)}, {sr(sHEADOFF)} offen lds")
    ld(f"ds_write_b64 {vr(vFLAG)}, {vr(vCNT, 2)}")
    v_halo(ld, True)
    for j in range(1, 4):
        ld(f"v_xor_b32 {vr(vKD + j)}, {64 * j}, {vr(vKD)}")
    ld("s_waitcnt lgkmcnt(0)")
    if opt.get("stbar"):
        stamp(ld, 1)
    ld("s_barrier")
    if opt.get("stbar"):
        stamp(ld, 2)
    ld(f"s_mul_i32 {sr(sX)}, {sr(sDESC)}, {15 * 4096}")
    ld(f"s_mul_i32 {sr(sSTEP)}, {sr(sDESC)}, -8192")
    ld(f"s_add_u32 {sr(sSTEP)}, {sr(sSTEP)}, 4096")
    ld(f"s_mul_i32 {sr(sXV)}, {sr(sDESC)}, {15 * VT}")
    ld(f"s_add_u32 {sr(sXV)}, {sr(sXV)}, {L_V + 2 * VT}")
    ld(f"s_mul_i32 {sr(sSTEPV)}, {sr(sDESC)}, {-2 * VT}")
    ld(f"s_add_u32 {sr(sSTEPV)}, {sr(sSTEPV)}, {VT}")
    def k_tile():
        ld(f"s_add_u32 {sr(sT1)}, {sr(sX)}, {sr(sROW0)}")
        ld(f"s_add_u32 m0, {sr(sX)}, {L_K}")
        ld(f"s_add_u32 {sr(sX)}, {sr(sX)}, {sr(sSTEP)}")
        for j in range(4):
            ld(f"buffer_load_dwordx4 {vr(vKD + j)}, {sr(S_K, 4)}, {sr(sT1)} offen offset:{1024 * j}{LD} lds")

    def v_tile():
        for j in range(4):
            ld(f"s_add_u32 m0, {sr(sXV)}, {32 * j}")
            ld(f"buffer_load_dwordx4 {vr(vVD)}, {sr(S_V, 4)}, {sr(sB)} offen offset:{1024 * j}{LD} lds")
        ld(f"s_add_u32 {sr(sXV)}, {sr(sXV)}, {sr(sSTEPV)}")
        ld(f"s_add_u32 {sr(sB)}, {sr(sB)}, {sr(sSTEP)}")

    ld(f"s_add_u32 {sr(sB)}, {sr(sX)}, {sr(sROW0)}")
    k_tile()
    k_tile()
    ld(f"s_mov_b32 {sr(sCNT)}, {2 - D}")
    ld.vm_q = []
    ld.label("L_ldloop")
    k_tile()
    v_tile()
    ld(f"s_add_u32 {sr(sCNT)}, {sr(sCNT)}, 1")
    ld(f"v_mov_b32 {vr(vCNT)}, {sr(sCNT)}")
    ld(f"s_cmp_lt_i32 {sr(sCNT)}, {16 - D}")
    ld(f"s_waitcnt vmcnt({8 * D})")
    ld(f"ds_write_b32 {vr(vFLAG)}, {vr(vCNT)}")
    ld("s_cbranch_scc1 L_ldloop")
    ld.vm_q = []
    v_tile()
    v_tile()
    ld(f"v_mov_b32 {vr(vCNT)}, {17 - D}")
    ld(f"s_waitcnt vmcnt({8 * D})")
    ld(f"ds_write_b32 {vr(vFLAG)}, {vr(vCNT)}")
    if not opt.get("stbar"):
        stamp(ld, 1)
    ld.vm_q = []
    v_halo(ld, False)
    if not opt.get("stbar"):
        stamp(ld, 2)
    other_srds(ld, None)
    stage_read_addrs(ld)
    other_srds_done(ld)
    ld(f"s_mul_i32 {sr(sXV)}, {sr(sDESC)}, {19 * VT}")
    ld(f"s_add_u32 {sr(sXV)}, {sr(sXV)}, {L_V}")
    ld(f"s_mul_i32 {sr(sX)}, {sr(sDESC)}, {15 * 4096}")
    ld(f"s_add_u32 {sr(sQOFF)}, {sr(sX)}, {sr(sROW0)}")
    ld(f"s_add_u32 {sr(sX)}, {sr(sX)}, {L_K}")
    ld(f"s_cmp_eq_u32 {sr(sQOFF)}, {sr(sHEADOFF)}")
    ld(f"s_cselect_b32 {sr(sEX)}, 0xffffff00, -1")
    ld(f"s_mov_b32 {sr(sEX + 1)}, -1")
    ld(f"s_mov_b32 {sr(sREQ)}, 0")
    for k in range(D, -1, -1):
        ld(f"v_mov_b32 {vr(vCNT)}, {18 - k}")
        ld(f"s_waitcnt vmcnt({8 * k})")
        ld(f"ds_write_b32 {vr(vFLAG)}, {vr(vCNT)}")
        if k == 1:
            stamp(ld, 3)
    ld.vm_q = []
    stamp(ld, 4)
    def park_fetch(w):
        u = newid()
        ld(f"s_bitcmp1_b32 {sr(sREQ)}, {8 + w}")
        ld(f"s_cbranch_scc1 L_have{u}")
        keep = (list(ld.ds_q), list(ld.hist))
        ld.raw(f"L_poll{u}:")
        ld(f"ds_read_b32 {vr(vT2)}, {vr(vFLAG)} offset:4")
        ld(f"v_readfirstlane_b32 {sr(sREQ)}, {vr(vT2)}")
        ld(f"s_bitcmp1_b32 {sr(sREQ)}, {8 + w}")
        ld(f"s_cbranch_scc1 L_have{u}")
        ld(f"s_sleep {SLEEP}")
        ld(f"s_branch L_poll{u}")
        ld.raw(f"L_have{u}:")
        ld.ds_q, ld.hist = keep
        ld(f"v_add_u32 v0, {sr(sXV if w < 2 else sX)}, {vr(vSR)}")
        if w < 2:
            ld(f"s_add_u32 {sr(sXV)}, {sr(sXV)}, {sr(sSTEPV)}")
        else:
            ld(f"s_add_u32 {sr(sX)}, {sr(sX)}, {sr(sSTEP)}")
        for k in range(4):
            ld(f"ds_read_b128 {vr(vPOOL + 16 * (w % 2) + 4 * k, 4)}, v0 offset:{1024 * k}")

    park_fetch(0)
    for w in range(8):
        if w < 7:
            park_fetch(w + 1)
        if PST < 32 and 4 * w >= PST:
            ld(f"s_waitcnt vmcnt({PST - 4})")
        if w == GATE and not NOCOMP:
            ld(f"s_mov_b32 {sr(sT2)}, {1 << 25}")
            poll_bits(ld, sr(sT2))
        if w == 0:
            ld(f"s_mov_b64 exec, {sr(sEX, 2)}")
        for k in range(4):
            ld(f"buffer_store_dwordx4 {vr(vPOOL + 16 * (w % 2) + 4 * k, 4)}, {vr(vSO)}, {sr(S_O, 4)}, {sr(sQOFF)} offen offset:{64 * k}{ST}")
        if w == 0:
            ld("s_mov_b64 exec, -1")
        ld(f"s_add_u32 {sr(sQOFF)}, {sr(sQOFF)}, {sr(sSTEP)}")
    dump_stamps(ld, "l")
    ld("s_endpgm")
    ld.raw("L_notloader:")

    c = e.fork()
    other_srds(c, None)
    c(f"s_mov_b32 {sr(S_Q + 2)}, {TB}")
    c(f"s_mov_b32 {sr(S_Q + 3)}, 0x20000")
    stage_read_addrs(c)
    c("s_barrier")
    other_srds_done(c)
    c(f"s_mov_b64 {sr(S_K, 2)}, s[6:7]")
    c(f"s_mov_b64 {sr(S_Q, 2)}, s[4:5]")
    c(f"s_mov_b32 {sr(sC)}, {CSCALE:#x}")
    c(f"s_mov_b32 {sr(sC + 1)}, {CSCALE:#x}")
    c(f"s_mov_b32 {sr(sNEG)}, {NEG:#x}")
    c(f"s_cmp_le_u32 {sr(sWAVE)}, {NH}")
    c("s_cbranch_scc1 L_helper")

    def lane_addrs(em):
        em(f"v_xor_b32 {vr(vKA)}, {vr(vN)}, {vr(vG)}")
        em(f"v_lshlrev_b32 {vr(vKA)}, 4, {vr(vKA)}")
        em(f"v_lshl_add_u32 {vr(vKA)}, {vr(vN)}, 8, {vr(vKA)}")
        em(f"v_lshrrev_b32 {vr(vT0)}, 2, {vr(vN)}")
        em(f"v_and_b32 {vr(vT1)}, 3, {vr(vN)}")
        em(f"v_mul_u32_u24 {vr(vGV)}, {256 + 64}, {vr(vT0)}")
        em(f"v_lshl_add_u32 {vr(vGV)}, {vr(vT1)}, 3, {vr(vGV)}")
        em(f"v_mul_u32_u24 {vr(vT2)}, {VP}, {vr(vG)}")
        for s in range(1, 4):
            em(f"v_xor_b32 {vr(vKA + s)}, {64 * s}, {vr(vKA)}")
            em(f"v_xor_b32 {vr(vGV + s)}, {64 * s}, {vr(vGV)}")
        for s in range(4):
            em(f"v_add_u32 {vr(vVA + s)}, {vr(vT2)}, {vr(vGV + s)}")
        for i in range(4):
            em(f"v_mov_b32 {vr(vONE + i)}, 0x3f803f80")

    def tile_addrs(em, skoff, svoff):
        for s in range(4):
            em(f"v_add_u32 {vr(vKA + s)}, {skoff}, {vr(vKA + s)}")
            em(f"v_add_u32 {vr(vVA + s)}, {svoff}, {vr(vVA + s)}")

    def allreduce_ops(op, x, y):
        return [f"v_mov_b32 {vr(y)}, {vr(x)}", f"v_permlane32_swap_b32 {vr(x)}, {vr(y)}", f"{op} {vr(x)}, {vr(x)}, {vr(y)}",
                f"v_mov_b32 {vr(y)}, {vr(x)}", f"v_permlane16_swap_b32 {vr(x)}, {vr(y)}", f"{op} {vr(x)}, {vr(x)}, {vr(y)}"]

    def max_tree(vals, dst):
        vals = list(vals)
        ops = [f"v_max3_f32 {vr(dst)}, {vr(vals[0])}, {vr(vals[1])}, {vr(vals[2])}"]
        i = 3
        while i + 1 < len(vals):
            ops.append(f"v_max3_f32 {vr(dst)}, {vr(dst)}, {vr(vals[i])}, {vr(vals[i + 1])}")
            i += 2
        if i < len(vals):
            ops.append(f"v_max_f32 {vr(dst)}, {vr(dst)}, {vr(vals[i])}")
        return ops

    def mfma(d, a, b, cc):
        return f"v_mfma_f32_16x16x32_bf16 {vr(d, 4)}, {vr(a, 4)}, {vr(b, 4)}, {'0' if cc is None else vr(cc, 4)}"

    m = c.fork()
    KQ = [vOX + 4 * i for i in range(6)] + [vPOOL + 4 * i for i in range(18)]
    OACC = [vOX + 4 * i for i in range(5)] + [vS + 12, vS + 16, vS + 20]
    vL = vOX + 20

    def q_load(em, sb):
        em(f"s_lshl_b32 {sr(sT1)}, {sb}, 12")
        em(f"s_add_u32 {sr(sT1)}, {sr(sT1)}, {sr(sROW0)}")
        for s in range(4):
            em(f"buffer_load_dwordx4 {vr(vQR + 4 * s, 4)}, {vr(vSO)}, {sr(S_Q, 4)}, {sr(sT1)} offen offset:{64 * s}{QLD}")
        em.vm_q = []

    def k_halo(em, sb):
        u = newid()
        em(f"s_sub_u32 {sr(sT0)}, {sb}, 2")
        em(f"s_cmp_lt_u32 {sr(sT0)}, 12")
        em.flush()
        em(f"s_cbranch_scc1 L_kh{u}")
        for t in (0, 1, 3, 4):
            em(f"s_add_u32 {sr(sT0)}, {sb}, {t - 2}")
            em(f"s_cmp_lt_u32 {sr(sT0)}, 16")
            em(f"s_cbranch_scc1 L_kh{u}_{t}")
            em(f"s_lshl_b32 {sr(sT0)}, {sr(sT0)}, 12")
            em(f"s_add_u32 {sr(sT0)}, {sr(sT0)}, {sr(sROW0)}")
            em(f"s_max_i32 {sr(sT0)}, {sr(sT0)}, {sr(sHEADOFF)}")
            em(f"s_min_i32 {sr(sT0)}, {sr(sT0)}, {sr(sHI)}")
            for s in range(4):
                em(f"buffer_load_dwordx4 {vr(KQ[4 + 4 * t + s], 4)}, {vr(vSO)}, {sr(S_K, 4)}, {sr(sT0)} offen offset:{64 * s}")
            em.raw(f"L_kh{u}_{t}:")
        em.raw(f"L_kh{u}:")
        em.vm_q = []

    m(f"s_sub_u32 {sr(sW)}, {sr(sWAVE)}, {1 + NH}")
    if WX:
        m(f"s_xor_b32 {sr(sW)}, {sr(sW)}, {WX}")
    m(f"s_mul_i32 {sr(sT2)}, {sr(sDESC)}, 15")
    m(f"s_xor_b32 {sr(sB)}, {sr(sW)}, {sr(sT2)}")
    m(f"s_cmp_gt_u32 {sr(sW)}, {max(1, QLEAD)}")
    m("s_cbranch_scc1 L_qa_later")
    k_halo(m, sr(sB))
    m(f"s_cmp_gt_u32 {sr(sW)}, {QLEAD}")
    m("s_cbranch_scc1 L_qa_later")
    q_load(m, sr(sB))
    m.raw("L_qa_later:")
    if PRIOW < 8:
        m(f"s_cmp_lt_u32 {sr(sW)}, {PRIOW}")
        m("s_cbranch_scc1 L_noprio")
        m(f"s_setprio {PRIOV}")
        m.raw("L_noprio:")
    lane_addrs(m)
    m(f"v_xor_b32 {vr(vGK)}, {vr(vT1)}, {vr(vG)}")
    m(f"v_lshlrev_b32 {vr(vGK)}, 4, {vr(vGK)}")
    m(f"v_lshl_add_u32 {vr(vGK)}, {vr(vT1)}, 8, {vr(vGK)}")
    m(f"v_add_u32 {vr(vGK)}, {L_GK}, {vr(vGK)}")
    for u in range(4):
        m(f"v_add_u32 {vr(vGV + u)}, {L_GV}, {vr(vGV + u)}")
    m(f"s_lshl_b32 {sr(sREQ)}, {sr(sW)}, 10")
    m(f"v_bfe_u32 {vr(vT0)}, {vr(vN)}, 1, 2")
    m(f"v_lshlrev_b32 {vr(vT2)}, 6, {vr(vN)}")
    m(f"v_add_u32 {vr(vT2)}, {sr(sREQ)}, {vr(vT2)}")
    m(f"v_xor_b32 {vr(vSW)}, {vr(vT0)}, {vr(vG)}")
    m(f"v_lshl_add_u32 {vr(vSW)}, {vr(vSW)}, 4, {vr(vT2)}")
    m(f"v_lshrrev_b32 {vr(vSW1)}, 1, {vr(vG)}")
    m(f"v_xor_b32 {vr(vSW0)}, {vr(vT0)}, {vr(vSW1)}")
    m(f"v_lshl_add_u32 {vr(vSW0)}, {vr(vSW0)}, 4, {vr(vT2)}")
    m(f"v_and_b32 {vr(vSW1)}, 1, {vr(vG)}")
    m(f"v_lshl_add_u32 {vr(vSW0)}, {vr(vSW1)}, 3, {vr(vSW0)}")
    m(f"v_xor_b32 {vr(vSW1)}, 32, {vr(vSW0)}")
    m(f"v_add_u32 {vr(vSR)}, {sr(sREQ)}, {vr(vSR)}")
    m(f"v_sub_u32 {vr(vT0)}, {vr(vG4)}, {vr(vN)}")
    for r in range(4):
        m(f"v_cmp_le_i32 {sr(sMASK + 2 * r, 2)}, {-r}, {vr(vT0)}")
        m(f"v_cmp_ge_i32 {sr(sMASK + 8 + 2 * r, 2)}, {-r}, {vr(vT0)}")
    m(f"v_cmp_eq_u32 {sr(sMASK + 16, 2)}, 0, {vr(vG4)}")
    park_addr(m, sr(sW), sr(sPARK))
    m(f"s_sub_u32 {sr(sPARK)}, {sr(sPARK)}, {sr(sREQ)}")
    m(f"s_lshl_b32 {sr(sREQ)}, 15, {sr(sW)}")
    m(f"s_lshr_b32 {sr(sREQ)}, {sr(sREQ)}, 4")
    m(f"s_lshr_b32 {sr(sT1)}, {sr(sW)}, 1")
    m(f"s_lshl_b32 {sr(sT1)}, 0x8000, {sr(sT1)}")
    m(f"s_or_b32 {sr(sREQ)}, {sr(sREQ)}, {sr(sT1)}")
    m(f"s_lshl_b32 {sr(sT1)}, {sr(sW)}, 8")
    m(f"s_cmp_lt_u32 {sr(sW)}, 2")
    m(f"s_cselect_b32 {sr(sREQ)}, {sr(sT1)}, {sr(sREQ)}")
    m(f"s_mov_b32 {sr(sIT)}, 0")
    m(f"s_add_u32 {sr(sNEED)}, {sr(sW)}, 3")
    m(f"s_add_u32 {sr(sNEEDV)}, {sr(sW)}, 5")
    m(f"s_add_u32 {sr(sX)}, {sr(sW)}, {ROT}")
    m(f"s_and_b32 {sr(sX)}, {sr(sX)}, 7")
    m(f"s_add_u32 {sr(sX)}, {sr(sX)}, 8")
    m(f"s_mul_i32 {sr(sT2)}, {sr(sDESC)}, 15")
    m(f"s_xor_b32 {sr(sB2)}, {sr(sX)}, {sr(sT2)}")
    m(f"s_lshl_b32 {sr(sSTEP)}, {sr(sB)}, 12")
    m(f"s_add_u32 {sr(sSTEP)}, {sr(sSTEP)}, {L_K - 8192}")
    m(f"s_mul_i32 {sr(sSTEPV)}, {sr(sB)}, {VT}")
    m(f"s_add_u32 {sr(sSTEPV)}, {sr(sSTEPV)}, {L_V}")
    m(f"s_cmp_gt_u32 {sr(sW)}, {QLEAD}")
    m("s_cbranch_scc0 L_block")
    m(f"s_sub_u32 {sr(sT2)}, {sr(sW)}, {QLEAD}")
    poll(m, sr(sT2))
    q_load(m, sr(sB))
    m.label("L_block")
    m(f"s_lshl_b32 {sr(sT0)}, {sr(sB)}, 12")
    m(f"s_add_u32 {sr(sQOFF)}, {sr(sT0)}, {sr(sROW0)}")
    m(f"v_mov_b32 {vr(vT0)}, {sr(sNEG)}")
    tile_addrs(m, sr(sSTEP), sr(sSTEPV))
    m(f"s_lshl_b32 {sr(sQ0)}, {sr(sCHUNK)}, 8")
    m(f"s_lshl_b32 {sr(sT0)}, {sr(sB)}, 4")
    m(f"s_add_u32 {sr(sQ0)}, {sr(sQ0)}, {sr(sT0)}")
    for r in range(4):
        m(f"v_cndmask_b32_e64 {vr(vS + r)}, {vr(vT0)}, 0, {sr(sMASK + 2 * r, 2)}")
        m(f"v_cndmask_b32_e64 {vr(vS + 16 + r)}, {vr(vT0)}, 0, {sr(sMASK + 8 + 2 * r, 2)}")
    m(f"v_cndmask_b32_e64 {vr(vS + 20)}, {vr(vT0)}, 0, {sr(sMASK + 16, 2)}")
    m(f"v_cndmask_b32_e64 {vr(vS + 21)}, {vr(vT0)}, 0, {sr(sMASK + 16, 2)}")
    poll(m, sr(sNEED))
    stamp_it(m, 1)

    def relayout(q):
        m(f"ds_write_b128 {vr(vSR)}, {vr(q, 4)}")
        m(f"ds_read_b128 {vr(q, 4)}, {vr(vSW)}")

    def v_read(T, k):
        u, p = T // 2, T % 2
        q = vPOOL + 12 * (T % 6) + 4 * k
        r = [f"ds_read_b64_tr_b16 {vr(q + 2 * j, 2)}, {vr(vVA + u)} offset:{VT * (2 * k + j) + 32 * p}" for j in range(2)]
        if k == 2:
            r[1] = f"ds_read_b64_tr_b16 {vr(q + 2, 2)}, {vr(vGV + u)} offset:{32 * p}"
        return r

    if not NOCOMP:
        for s in range(4):
            if s:
                m(f"v_xor_b32 {vr(KQ[s])}, {64 * s}, {vr(vGK)}")
            m(f"ds_read_b128 {vr(KQ[s], 4)}, {vr(KQ[s]) if s else vr(vGK)}")
        for t in (2, 0, 1, 3, 4):
            if t != 2:
                m(f"s_add_u32 {sr(sT0)}, {sr(sB)}, {t - 2}")
                m(f"s_cmp_lt_u32 {sr(sT0)}, 16")
                m(f"s_cbranch_scc0 L_skipk{t}")
            for s in range(4):
                m(f"ds_read_b128 {vr(KQ[4 + 4 * t + s], 4)}, {vr(vKA + s)} offset:{4096 * t}")
            if t != 2:
                m.raw(f"L_skipk{t}:")
        m(f"s_sub_u32 {sr(sT0)}, {sr(sB)}, 2")
        m(f"s_cmp_lt_u32 {sr(sT0)}, 12")
        m("s_cbranch_scc1 L_nohalo")
        keep = list(m.ds_q)
        m.ds_q = []
        m("s_waitcnt vmcnt(4)")
        for t in (0, 1, 3, 4):
            m(f"s_add_u32 {sr(sT0)}, {sr(sB)}, {t - 2}")
            m(f"s_cmp_lt_u32 {sr(sT0)}, 16")
            m(f"s_cbranch_scc1 L_rl{t}")
            for s in range(4):
                relayout(KQ[4 + 4 * t + s])
            m.raw(f"L_rl{t}:")
        m.ds_q = keep
        m.raw("L_nohalo:")
    m("s_waitcnt vmcnt(0)")
    stamp_it(m, 2)
    if NOCOMP:
        for i in range(16):
            m(f"v_mov_b32 {vr(vPOOL + i)}, {vr(vQR + i)}")
        set_bit(m, sr(sW))
        poll(m, sr(sNEEDV))
    else:
        for s in range(4):
            relayout(vQR + 4 * s)
        m(f"s_sub_u32 {sr(sT1)}, {sr(sQ0)}, 34")
        for s in range(4):
            m(mfma(vS + 20, KQ[s], vQR + 4 * s, vS + 20))
        set_bit(m, sr(sW))
        m(f"ds_read_b32 {vr(vT3)}, {vr(vFLAG)}")
        m(f"s_cmp_lt_u32 {sr(sT1)}, {2001 - 34}")

        def s_tile(t):
            return [mfma(vS + 4 * t, KQ[4 + 4 * t + s], vQR + 4 * s, None if (s == 0 and t in (1, 2, 3)) else vS + 4 * t) for s in range(4)]

        VR = [op for k in range(3) for T in range(6) for op in v_read(T, k)]
        mx = max_tree([vS + 20, vS + 21] + [vS + i for i in range(20)], vT0)
        m("s_cbranch_scc0 L_edge")
        ed = m.fork()
        for op in s_tile(0) + s_tile(1) + s_tile(2) + merge(s_tile(3), mx[:2]) + merge(s_tile(4), mx[2:5]):
            m(op)
        poll_pre(m, sr(sNEEDV), vT3)
        for op in VR[:4] + mx[5:7] + VR[4:8] + mx[7:]:
            m(op)
        m.raw("L_join:")
        ed.raw("L_edge:")
        for t in range(5):
            for op in s_tile(t):
                ed(op)
        ed(f"v_add_u32 {vr(vT1)}, {sr(sT1)}, {vr(vG4)}")
        ed(f"s_movk_i32 {sr(sT1)}, 2046")
        for t in range(5):
            for r in range(4):
                ed(f"v_add_u32 v0, {16 * t + r}, {vr(vT1)}")
                ed(f"v_cmp_gt_u32 vcc, {sr(sT1)}, v0")
                ed(f"v_cndmask_b32 {vr(vS + 4 * t + r)}, {vr(vT0)}, {vr(vS + 4 * t + r)}, vcc")
        poll_pre(ed, sr(sNEEDV), vT3)
        for op in VR[:8] + mx:
            ed(op)
        ed.flush()
        ed("s_branch L_join")
    m(f"s_lshl_b32 {sr(sT0)}, {sr(sIT)}, 4")
    m(f"s_add_u32 {sr(sT0)}, {sr(sT0)}, {EW}")
    m(f"s_cmp_ge_u32 {sr(sW)}, {sr(sT0)}")
    m("s_cbranch_scc0 L_noearly")
    q_load(m, sr(sB2))
    m.raw("L_noearly:")
    stamp_it(m, 3)

    W = vPOOL + 40
    R = vPOOL + 24

    def p_ops(lo, hi):
        fm, ex, cv = [], [], []
        for i in range(lo, hi):
            if PK and i % 2 == 0:
                fm.append(f"v_pk_fma_f32 {vr(vS + i, 2)}, {vr(vS + i, 2)}, {sr(sC, 2)}, {vr(vT0, 2)} neg_lo:[0,0,1] neg_hi:[0,0,1]")
            elif not PK:
                fm.append(f"v_fma_f32 {vr(vS + i)}, {vr(vS + i)}, {sr(sC)}, -{vr(vT0)}")
            ex.append(f"v_exp_f32 {vr(vS + i)}, {vr(vS + i)}")
        for i in range(lo // 2, hi // 2):
            cv.append(f"v_cvt_pk_bf16_f32 {vr(vS + i)}, {vr(vS + 2 * i)}, {vr(vS + 2 * i + 1)}")
        per = 2 if PK else 1
        seq = fm[:2 // per]
        nf = 2 // per
        for j, x in enumerate(ex):
            seq.append(x)
            if nf < len(fm) and (j + 1) % per == 0:
                seq.append(fm[nf])
                nf += 1
            if j >= 2 and j % 2 == 0:
                seq.append(cv[(j - 2) // 2])
        seq.append(cv[-1])
        return seq

    def pv(T, k):
        return mfma(OACC[T], vPOOL + 12 * (T % 6) + 4 * k, vS + 4 * k, None if k == 0 else OACC[T])

    def lsum(k):
        return mfma(vL, vONE, vS + 4 * k, None if k == 0 else vL)

    def fin(T, park):
        u, p = T // 2, T % 2
        o = OACC[T]
        w = W + 4 * u + 2 * p
        if PK:
            ops = [f"v_pk_mul_f32 {vr(o + r, 2)}, {vr(o + r, 2)}, {vr(vT0, 2)} op_sel_hi:[1,0]" for r in (0, 2)]
        else:
            ops = [f"v_mul_f32 {vr(o + r)}, {vr(o + r)}, {vr(vT0)}" for r in range(4)]
        ops += [f"v_cvt_pk_bf16_f32 {vr(w)}, {vr(o)}, {vr(o + 1)}", f"v_cvt_pk_bf16_f32 {vr(w + 1)}, {vr(o + 2)}, {vr(o + 3)}"]
        if NOCOMP:
            ops = []
        if park:
            ops.append(f"ds_write_b64 {vr(vT3 if p else 0)}, {vr(w, 2)} offset:{1024 * u}")
        else:
            ops.append(f"ds_write_b64 {vr(vSW1 if p else vSW0)}, {vr(w, 2)}")
            if p:
                ops.append(f"ds_read_b128 {vr(R + 4 * u, 4)}, {vr(vSR)}")
        return ops

    if not NOCOMP:
        for op in merge(allreduce_ops("v_max_f32", vT0, vT1), VR[8:14]):
            m(op)
        m(f"v_mul_f32 {vr(vT0)}, {sr(sC)}, {vr(vT0)}")
        if PK:
            m(f"v_mov_b32 {vr(vT1)}, {vr(vT0)}")
        for op in merge(p_ops(0, 8), VR[14:24]):
            m(op)
        for op in merge(merge(p_ops(8, 16), VR[24:36]), [lsum(0)] + [pv(T, 0) for T in range(5)]):
            m(op)
        for op in merge(p_ops(16, 22) + [f"v_mov_b32 {vr(vS + 11)}, 0"], [pv(5, 0), lsum(1)] + [pv(T, 1) for T in range(6)]):
            m(op)
    stamp_it(m, 4)

    def tail(em, park):
        if park:
            em(f"v_add_u32 v0, {sr(sPARK)}, {vr(vSW0)}")
            em(f"v_add_u32 {vr(vT3)}, {sr(sPARK)}, {vr(vSW1)}")
            em(f"ds_read_b32 {vr(vT2)}, {vr(vFLAG)} offset:4")
        if NOCOMP:
            if park:
                poll_bits(em, sr(sREQ), True)
            for T in range(8):
                for op in fin(T, park):
                    em(op)
            return
        em(lsum(2))
        em(pv(0, 2))
        for k in range(3):
            for op in v_read(6, k):
                em(op)
        em(pv(1, 2))
        for k in range(3):
            for op in v_read(7, k):
                em(op)
        em(pv(2, 2))
        em(f"v_rcp_f32 {vr(vT0)}, {vr(vL)}")
        em(pv(3, 2))
        if park:
            poll_bits(em, sr(sREQ), True)
        em(pv(4, 2))
        em(pv(5, 2))
        for op in merge(fin(0, park) + fin(1, park) + fin(2, park), [pv(6, k) for k in range(3)] + [pv(7, k) for k in range(3)]):
            em(op)
        for T in range(3, 8):
            for op in fin(T, park):
                em(op)

    m(f"s_cmp_lg_u32 {sr(sIT)}, 0")
    m("s_cbranch_scc1 L_last")
    b2 = m.fork()
    tail(m, True)
    m(f"s_add_u32 {sr(sT1)}, {sr(sW)}, 8")
    m.wait_lgkm_all()
    set_bit(m, sr(sT1))
    stamp_it(m, 6, 0)
    m(f"s_sub_u32 {sr(sT1)}, {sr(sB2)}, {sr(sB)}")
    m(f"s_lshl_b32 {sr(sSTEP)}, {sr(sT1)}, 12")
    m(f"s_mul_i32 {sr(sSTEPV)}, {sr(sT1)}, {VT}")
    m(f"s_mov_b32 {sr(sB)}, {sr(sB2)}")
    if not NOCOMP:
        k_halo(m, sr(sB))
    m(f"s_add_u32 {sr(sNEED)}, {sr(sX)}, 3")
    m(f"s_min_u32 {sr(sNEED)}, {sr(sNEED)}, 16")
    m(f"s_add_u32 {sr(sNEEDV)}, {sr(sX)}, 5")
    m(f"s_min_u32 {sr(sNEEDV)}, {sr(sNEEDV)}, 17")
    m(f"s_cmp_ge_u32 {sr(sX)}, 14")
    m(f"s_addc_u32 {sr(sNEEDV)}, {sr(sNEEDV)}, 0")
    m(f"s_mov_b32 {sr(sIT)}, 1")
    m(f"s_cmp_ge_u32 {sr(sW)}, {EW}")
    m.flush()
    m("s_cbranch_scc1 L_block")
    m(f"s_sub_u32 {sr(sT2)}, {sr(sNEED)}, {D + QL2}")
    m(f"s_max_u32 {sr(sT2)}, {sr(sT2)}, {THRMIN}")
    poll(m, sr(sT2))
    q_load(m, sr(sB))
    m("s_branch L_block")
    b2.raw("L_last:")
    tail(b2, False)
    if STAMP and "B6" in PTS:
        b2.wait_lgkm_all()
        stamp_it(b2, 6, 1)
    for u in range(4):
        b2(f"buffer_store_dwordx4 {vr(R + 4 * u, 4)}, {vr(vSO)}, {sr(S_O, 4)}, {sr(sQOFF)} offen offset:{64 * u}{STB}")
    dump_stamps(b2, "m")
    b2("s_endpgm")

    h = c.fork()
    h.raw("L_helper:")
    hS, hO, hK, hV, vM, vA = 44, 56, 92, 124, 156, 1
    hL = hO + 32
    if PRIOH:
        h(f"s_setprio {PRIOH}")
    if CPF:
        h("s_getpc_b64 s[2:3]")
        h.raw("L_pc:")
        h(f"v_lshl_add_u32 v0, {vr(vG)}, 4, {vr(vN)}")
        h("v_lshlrev_b32 v0, 7, v0")
        h(f"s_sub_u32 s2, s2, L_pc-{NAME}_kernel")
        h("s_subb_u32 s3, s3, 0")
        for i in range(CPF):
            if i:
                h("v_add_u32 v0, 0x2000, v0")
            h(f"v_min_u32 v1, L_codeend-{NAME}_kernel-4, v0")
            h(f"global_load_dword {vr(160 + i)}, v1, s[2:3]")
    h(f"v_lshlrev_b32 {vr(vA)}, 4, {vr(vG)}")
    h(f"v_lshl_add_u32 v0, {vr(vN)}, 8, {vr(vA)}")
    for i in range(16):
        h(f"v_mov_b32 {vr(vQR + i)}, 0")
    h("s_mov_b32 exec_lo, 0x00030003")
    h("s_mov_b32 exec_hi, 0x00030003")
    for s in range(4):
        h(f"buffer_load_dwordx4 {vr(vQR + 4 * s, 4)}, v0, {sr(S_Q, 4)}, {sr(sHEADOFF)} offen offset:{64 * s}")
    h("s_mov_b64 exec, -1")
    lane_addrs(h)
    h(f"s_mul_i32 {sr(sPARK)}, {sr(sWAVE)}, 1056")
    h(f"s_add_u32 {sr(sPARK)}, {sr(sPARK)}, {L_MRG - 1056}")
    h(f"v_lshl_add_u32 {vr(vA)}, {vr(vN)}, 9, {vr(vA)}")
    h(f"v_add_u32 {vr(vA)}, {sr(sPARK)}, {vr(vA)}")
    h(f"v_lshlrev_b32 {vr(vSR)}, 3, {vr(vN)}")
    h(f"v_add_u32 {vr(vSR)}, {sr(sPARK)}, {vr(vSR)}")
    h(f"v_lshl_add_u32 {vr(vSO)}, {vr(vG)}, 4, {vr(vN)}")
    h(f"v_lshrrev_b32 {vr(vSW)}, 5, {vr(vSO)}")
    h(f"v_lshlrev_b32 {vr(vSW)}, 3, {vr(vSW)}")
    h(f"v_lshlrev_b32 {vr(vSW0)}, 4, {vr(vSO)}")
    h(f"v_and_b32 {vr(vSW1)}, 7, {vr(vSO)}")
    h(f"v_lshlrev_b32 {vr(vT0)}, 3, {vr(vSW)}")
    h(f"v_lshl_add_u32 {vr(vGK)}, {vr(vSW1)}, 3, {vr(vT0)}")
    h(f"v_lshl_add_u32 {vr(vSW1)}, {vr(vSW1)}, 11, {vr(vT0)}")
    h(f"v_lshlrev_b32 {vr(vSO)}, 3, {vr(vSO)}")
    for i in range(36):
        h(f"v_mov_b32 {vr(hO + i)}, 0")
    h(f"v_mov_b32 {vr(vM)}, {sr(sNEG)}")
    h(f"s_sub_u32 {sr(sW)}, {sr(sWAVE)}, 1")
    h(f"s_lshl_b32 {sr(sT0)}, {sr(sW)}, 1")
    h(f"s_add_u32 {sr(sNEED)}, {sr(sT0)}, 2")
    h(f"s_sub_u32 {sr(sT1)}, 14, {sr(sT0)}")
    h(f"s_cmp_eq_u32 {sr(sDESC)}, 0")
    h(f"s_cselect_b32 {sr(sT0)}, {sr(sT0)}, {sr(sT1)}")
    h(f"s_cselect_b32 {sr(sSTEPV)}, 1, -1")
    h(f"s_mul_i32 {sr(sSTEP)}, {sr(sSTEPV)}, {2 * NH * 4096}")
    h(f"s_mul_i32 {sr(sSTEPV)}, {sr(sSTEPV)}, {2 * NH * VT}")
    h(f"s_lshl_b32 {sr(sT1)}, {sr(sT0)}, 12")
    h(f"s_add_u32 {sr(sT1)}, {sr(sT1)}, {L_K}")
    h(f"s_mul_i32 {sr(sT2)}, {sr(sT0)}, {VT}")
    h(f"s_add_u32 {sr(sT2)}, {sr(sT2)}, {L_V + 2 * VT}")
    tile_addrs(h, sr(sT1), sr(sT2))
    h(f"s_lshl_b32 {sr(sREC)}, {sr(sHEAD)}, 3")
    h(f"s_add_u32 {sr(sREC)}, {sr(sREC)}, {sr(sCHUNK)}")
    h(f"s_lshl_b32 {sr(sREC)}, {sr(sREC)}, 11")
    h(f"s_getreg_b32 {sr(sX)}, hwreg(HW_REG_XCC_ID, 0, 4)")
    h(f"s_mul_i32 {sr(sT2)}, {sr(sX)}, {sr(sX)}")
    h(f"s_lshl_b32 {sr(sT2)}, {sr(sT2)}, 13")
    h(f"s_lshl_b32 {sr(sX)}, {sr(sX)}, 5")
    h(f"s_add_u32 {sr(sX)}, {sr(sX)}, {sr(sT2)}")
    h(f"s_add_u32 {sr(sX)}, {sr(sX)}, 1")
    h(f"s_add_u32 {sr(sREQ)}, {sr(sREC)}, {1 << 20}")
    if opt.get("tlbw"):
        h(f"s_lshl_b32 {sr(sT0)}, {sr(sHEAD)}, 14")
        h(f"buffer_load_dword v162, {vr(vSW1)}, {sr(S_WS, 4)}, {sr(sT0)} offen offset:1536")
        h(f"s_add_u32 {sr(sT0)}, {sr(sT0)}, {1 << 20}")
        h(f"buffer_load_dword v163, {vr(vSW1)}, {sr(S_WS, 4)}, {sr(sT0)} offen offset:1536")
    h.wait_vm_all()
    h.label("L_hloop")
    poll(h, sr(sNEED))
    h(f"s_lshr_b32 {sr(sT1)}, {sr(sNEED)}, 1")
    h(f"s_add_u32 {sr(sT1)}, {sr(sT1)}, 15")
    h(f"s_add_u32 {sr(sNEEDV)}, {sr(sNEED)}, 2")
    h(f"s_min_u32 {sr(sNEEDV)}, {sr(sNEEDV)}, 17")
    if not NOCOMP:
        for i in range(8):
            h(f"ds_read_b128 {vr(hK + 4 * i, 4)}, {vr(vKA + i % 4)} offset:{4096 * (i // 4)}")
        hvr = [f"ds_read_b64_tr_b16 {vr(hV + 4 * T + 2 * j, 2)}, {vr(vVA + T // 2)} offset:{VT * j + 32 * (T % 2)}" for T in range(8) for j in range(2)]
        for i in range(8):
            t, s = i // 4, i % 4
            h(mfma(hS + 4 * t, hK + 4 * i, vQR + 4 * s, None if s == 0 else hS + 4 * t))
    set_bit(h, sr(sT1))
    if not NOCOMP:
        for op in max_tree([hS + i for i in range(8)], vT0) + allreduce_ops("v_max_f32", vT0, vT1):
            h(op)
        h(f"v_mul_f32 {vr(vT0)}, {sr(sC)}, {vr(vT0)}")
        h(f"v_max_f32 {vr(vT0)}, {vr(vT0)}, {vr(vM)}")
        h(f"v_sub_f32 {vr(vT1)}, {vr(vM)}, {vr(vT0)}")
        h(f"v_exp_f32 {vr(vT1)}, {vr(vT1)}")
        h(f"v_mov_b32 {vr(vM)}, {vr(vT0)}")
        for i in range(8):
            h(f"v_fma_f32 {vr(hS + i)}, {vr(hS + i)}, {sr(sC)}, -{vr(vT0)}")
        for i in range(8):
            h(f"v_exp_f32 {vr(hS + i)}, {vr(hS + i)}")
        for i in range(33):
            h(f"v_mul_f32 {vr(hO + i)}, {vr(hO + i)}, {vr(vT1)}")
        for k in range(4):
            h(f"v_cvt_pk_bf16_f32 {vr(hS + k)}, {vr(hS + 2 * k)}, {vr(hS + 2 * k + 1)}")
        h(mfma(hL, vONE, hS, hL))
    poll(h, sr(sNEEDV))
    if not NOCOMP:
        for op in hvr:
            h(op)
    tile_addrs(h, sr(sSTEP), sr(sSTEPV))
    if not NOCOMP:
        for T in range(8):
            h(mfma(hO + 4 * T, hV + 4 * T, hS, hO + 4 * T))
    h(f"s_add_u32 {sr(sNEED)}, {sr(sNEED)}, {2 * NH}")
    h(f"s_cmp_le_u32 {sr(sNEED)}, 16")
    h.flush()
    h("s_cbranch_scc1 L_hloop")
    stamp(h, 1)
    if not NOCOMP:
        h(f"v_mov_b32 {vr(vM + 1)}, {vr(hL)}")
        h("s_mov_b32 exec_lo, 0x00030003")
        h("s_mov_b32 exec_hi, 0x00030003")
        for T in range(8):
            h(f"ds_write_b128 {vr(vA)}, {vr(hO + 4 * T, 4)} offset:{64 * T}")
        h("s_mov_b64 exec, 3")
        h(f"ds_write_b64 {vr(vSR)}, {vr(vM, 2)} offset:1024")
        h("s_mov_b64 exec, -1")
        h(f"s_cmp_lg_u32 {sr(sW)}, 0")
        h("s_cbranch_scc1 L_hmerge")
        h0 = h.fork()
        keepq = list(h.ds_q)
        h.wait_lgkm_all()
        set_bit(h, 24)
        h("s_branch L_hdone")
        h.raw("L_hmerge:")
        h.ds_q = keepq
        h(f"s_mov_b32 {sr(sT2)}, {1 << 24}")
        poll_bits(h, sr(sT2))
        cA, cB, cM = 56, 60, 64
        h(f"ds_read_b64 {vr(cM, 2)}, {vr(vSW)} offset:{L_MRG + 1024}")
        h(f"ds_read_b64 {vr(cM + 2, 2)}, {vr(vSW)} offset:{L_MRG + 1056 + 1024}")
        h(f"ds_read_b128 {vr(cA, 4)}, {vr(vSW0)} offset:{L_MRG}")
        h(f"ds_read_b128 {vr(cB, 4)}, {vr(vSW0)} offset:{L_MRG + 1056}")
        h(f"s_lshl_b32 {sr(sT0)}, {sr(sHEAD)}, 2")
        h(f"v_mov_b32 v0, {sr(sX)}")
        h(f"v_max_f32 {vr(vM)}, {vr(cM)}, {vr(cM + 2)}")
        h(f"v_sub_f32 {vr(cM)}, {vr(cM)}, {vr(vM)}")
        h(f"v_sub_f32 {vr(cM + 2)}, {vr(cM + 2)}, {vr(vM)}")
        h(f"v_exp_f32 {vr(cM)}, {vr(cM)}")
        h(f"v_exp_f32 {vr(cM + 2)}, {vr(cM + 2)}")
        for r in range(4):
            h(f"v_mul_f32 {vr(cA + r)}, {vr(cA + r)}, {vr(cM)}")
        h(f"v_mul_f32 {vr(vM + 1)}, {vr(cM + 1)}, {vr(cM)}")
        for r in range(4):
            h(f"v_fmac_f32 {vr(cA + r)}, {vr(cB + r)}, {vr(cM + 2)}")
        h(f"v_fmac_f32 {vr(vM + 1)}, {vr(cM + 3)}, {vr(cM + 2)}")
        h(f"buffer_store_dwordx4 {vr(cA, 4)}, {vr(vSW0)}, {sr(S_WS, 4)}, {sr(sREC)} offen sc1")
        if DUAL != "none":
            h(f"buffer_store_dwordx4 {vr(cA, 4)}, {vr(vSW0)}, {sr(S_WS, 4)}, {sr(sREQ)} offen")
        h("s_mov_b32 exec_lo, 0xff")
        h("s_mov_b32 exec_hi, 0xff")
        h(f"buffer_store_dwordx2 {vr(vM, 2)}, {vr(vGK)}, {sr(S_WS, 4)}, {sr(sREC)} offen offset:1024 sc1")
        if DUAL != "none":
            h(f"buffer_store_dwordx2 {vr(vM, 2)}, {vr(vGK)}, {sr(S_WS, 4)}, {sr(sREQ)} offen offset:1024")
        h("s_mov_b64 exec, 1")
        h(f"v_mov_b32 {vr(vT2)}, {1 << 25}")
        if GATE >= 0 and GATEP:
            h(f"ds_or_b32 {vr(vFLAG)}, {vr(vT2)} offset:4")
        h.wait_vm_all()
        stamp(h, 2)
        h(f"buffer_atomic_add v0, off, {sr(S_DBG, 4)}, {sr(sT0)} sc0")
        if GATE >= 0 and not GATEP:
            h(f"ds_or_b32 {vr(vFLAG)}, {vr(vT2)} offset:4")
        h(f"v_readfirstlane_b32 {sr(sT1)}, v0")
        h("s_mov_b64 exec, -1")
        stamp(h, 3)
        h(f"s_and_b32 {sr(sT2)}, {sr(sT1)}, 31")
        h(f"s_cmp_eq_u32 {sr(sT2)}, 7")
        h.flush()
        h("s_cbranch_scc0 L_hdone")
        cO, cW = 56, 96
        h(f"s_lshl_b32 {sr(sREC)}, {sr(sHEAD)}, 14")

        def rec_loads(mod):
            h.vm_q = []
            h(f"buffer_load_dwordx2 {vr(vM, 2)}, {vr(vSW1)}, {sr(S_WS, 4)}, {sr(sREC)} offen offset:1024{mod}")
            for i in range(8):
                if i % 2 == 0 and i:
                    h(f"s_add_u32 {sr(sREC)}, {sr(sREC)}, 4096")
                h(f"buffer_load_dwordx4 {vr(cO + 4 * i, 4)}, {vr(vSW0)}, {sr(S_WS, 4)}, {sr(sREC)} offen offset:{2048 * (i % 2)}{mod}")
        if DUAL != "none":
            h(f"s_mul_i32 {sr(sX)}, {sr(sX)}, 7")
            h(f"s_cmp_eq_u32 {sr(sX)}, {sr(sT1)}")
            h("s_cbranch_scc0 L_far")
            h(f"s_add_u32 {sr(sREC)}, {sr(sREC)}, {1 << 20}")
            rec_loads("" if DUAL == "plain" else " " + DUAL)
            h("s_branch L_got")
            h.raw("L_far:")
        rec_loads(" sc1")
        h.raw("L_got:")
        SWZ = (0x041F, 0x081F, 0x101F)
        h(f"v_mov_b32 {vr(vT0)}, {vr(vM)}")
        stamp(h, 5)
        for x in SWZ:
            h(f"ds_swizzle_b32 {vr(vT1)}, {vr(vT0)} offset:{x:#x}")
            h(f"v_max_f32 {vr(vT0)}, {vr(vT0)}, {vr(vT1)}")
        h(f"v_sub_f32 {vr(vM)}, {vr(vM)}, {vr(vT0)}")
        h(f"v_exp_f32 {vr(vM)}, {vr(vM)}")
        h(f"v_mul_f32 {vr(vT0)}, {vr(vM)}, {vr(vM + 1)}")
        for i in range(8):
            h(f"ds_swizzle_b32 {vr(cW + i)}, {vr(vM)} offset:{(i << 5) | 0x18:#x}")
        for x in SWZ:
            h(f"ds_swizzle_b32 {vr(vT1)}, {vr(vT0)} offset:{x:#x}")
            h(f"v_add_f32 {vr(vT0)}, {vr(vT0)}, {vr(vT1)}")
        h(f"v_rcp_f32 {vr(vT0)}, {vr(vT0)}")
        if STAMP:
            h.wait_vm_all()
            stamp(h, 4)
        for i in range(8):
            for r in range(4):
                h(f"{'v_fmac_f32' if i else 'v_mul_f32'} {vr(vKA + r)}, {vr(cW + i)}, {vr(cO + 4 * i + r)}")
        for r in range(4):
            h(f"v_mul_f32 {vr(vKA + r)}, {vr(vKA + r)}, {vr(vT0)}")
        h(f"v_cvt_pk_bf16_f32 {vr(vVA)}, {vr(vKA)}, {vr(vKA + 1)}")
        h(f"v_cvt_pk_bf16_f32 {vr(vVA + 1)}, {vr(vKA + 2)}, {vr(vKA + 3)}")
        h(f"buffer_store_dwordx2 {vr(vVA, 2)}, {vr(vSO)}, {sr(S_O, 4)}, {sr(sHEADOFF)} offen sc1")
        h.label("L_hdone")
    dump_stamps(h, "h")
    h.raw("L_end:")
    h("s_endpgm")

    tailtxt = f""".section .rodata,"a"
.p2align 6
.amdhsa_kernel {NAME}_kernel
  .amdhsa_next_free_vgpr 168
  .amdhsa_next_free_sgpr 98
  .amdhsa_accum_offset 168
  .amdhsa_group_segment_fixed_size 0
  .amdhsa_kernarg_size 64
  .amdhsa_user_sgpr_count 2
  .amdhsa_user_sgpr_kernarg_segment_ptr 1
  .amdhsa_system_sgpr_workgroup_id_x 1
.end_amdhsa_kernel
"""
    txt = e.text() + ld.text() + c.text() + m.text() + b2.text() + h.text()
    if not NOCOMP:
        txt += ed.text()
    return txt + "L_codeend:\n" + tailtxt


if __name__ == "__main__":
    out = sys.argv[1]
    opt = {}
    for a in sys.argv[2:]:
        k, _, v = a.partition("=")
        opt[k] = v if v else True
        if k in ("st", "stb", "ld", "qld"):
            opt[k] = (" " + v.replace("+", " ")) if v != "none" else ""
    open(out, "w").write(gen(opt))
```

```python
import sys
import math
import struct
from asmgen import Emitter, vr, sr

NAME = "standalone__global_local_windowed_global_tokens__prompt"

HEADER = """; Kernarg layout for this problem (64 bytes, ptrs only, base s[0:1]):
;   offset   0: d_in[0] q  shape=(1, 32, 2048, 128) dtype=bfloat16 strides=(16777216, 524288, 256, 2) contiguous=True
;   offset   8: d_in[1] k  shape=(1, 32, 2048, 128) dtype=bfloat16 strides=(16777216, 524288, 256, 2) contiguous=True
;   offset  16: d_in[2] v  shape=(1, 32, 2048, 128) dtype=bfloat16 strides=(16777216, 524288, 256, 2) contiguous=True
;   offset  24: d_in[3] window  shape=(1,) dtype=int32 strides=(4,) contiguous=True
;   offset  32: d_in[4] n_global  shape=(1,) dtype=int32 strides=(4,) contiguous=True
"""


def f32bits(x):
    return struct.unpack("<I", struct.pack("<f", x))[0]


def merge(a, b):
    out, nb = [], 0
    for i, x in enumerate(a):
        out.append(x)
        want = (i + 1) * len(b) // len(a)
        out += b[nb:want]
        nb = want
    return out + b[nb:]


def gen(opt):
    LD = opt.get("ld", "")
    QLD = opt.get("qld", "")
    ST = opt.get("st", " sc1")
    STB = opt.get("stb", ST)
    NOCOMP = opt.get("nocomp", False)
    PROBE = opt.get("probe", None)
    GPROBE = opt.get("gprobe", None)
    STAMP = opt.get("stamp", False) or PROBE or GPROBE
    D = int(opt.get("depth", 3))
    SLEEP = int(opt.get("sleep", 1))
    WIN = int(opt.get("win", 8 * D))
    HALF = int(opt.get("half", 63))
    assert WIN <= 8 * D
    QLEAD = int(opt.get("qlead", 0))
    QL2 = int(opt.get("ql2", 0))
    THRMIN = int(opt.get("thrmin", 0))
    EW = int(opt.get("ew", 6))
    PST = int(opt.get("pst", 32))
    DUAL = opt.get("dual", "plain")
    PRIOW = int(opt.get("priow", 99))
    PRIOH = int(opt.get("prioh", 0))
    ROT = int(opt.get("rot", 6))
    PK = opt.get("pk", False)
    GATE = int(opt.get("gate", -1))
    GATEP = opt.get("gatep", False)
    WX = int(opt.get("wx", 0))
    PRIOV = int(opt.get("priov", 2))
    CPF = int(opt.get("cpf", 0))
    PTS = opt.get("pts", "A2,A6,B1,B2,B6").split(",")
    assert len(PTS) == 5 and D >= 2
    assert all(((w + ROT) & 7) < 6 for w in range(EW, 8))

    TB = 32 * 2048 * 256
    HEADB = 2048 * 256
    L_STAGE, L_GK, L_GV, L_FLAG, L_K, L_V = 0, 8192, 9216, 10240, 13824, 79360
    L_MRG = 10368
    VT, VP = 4224, 1056
    NH = 2
    NWAVE = 9 + NH
    NEG = f32bits(-1.0e30)
    CSCALE = f32bits((128 ** -0.5) * math.log2(math.e))

    S_Q, S_K, S_V, S_O, S_DBG, S_WS = 20, 24, 28, 32, 36, 40
    sWAVE, sHEADOFF, sROW0, sT0, sT1, sT2 = 44, 45, 46, 47, 48, 49
    sQOFF, sNEG, sQ0, sHEAD, sCHUNK, sDESC = 50, 51, 52, 53, 54, 55
    sEX = 56
    sC = 58
    sTS = 60
    sB, sIT, sNEED, sX, sCNT, sW, sHI, sREC, sSTEP, sXV, sSTEPV, sPARK, sREQ, sB2 = range(80, 94)
    sNEEDV = 95
    sMASK = 2

    vKA, vVA, vSW0, vSW1, vGK, vN, vG, vG4 = 2, 6, 10, 11, 12, 13, 14, 15
    vFLAG, vSW, vT0, vT1, vONE, vSR, vSO, vT3, vT2 = 16, 17, 18, 19, 20, 24, 25, 26, 27
    vQR, vS, vOX, vPOOL, vGV = 28, 44, 68, 92, 164

    uid = [0]

    def newid():
        uid[0] += 1
        return uid[0]

    def stamp(em, i):
        if STAMP:
            em(f"s_memrealtime {sr(sTS + 2 * i, 2)}")

    def stamp_it(em, k, only=None):
        if not STAMP:
            return
        for it, nm in ((0, f"A{k}"), (1, f"B{k}")):
            if nm in PTS and only in (None, it):
                if only is None:
                    u = newid()
                    em(f"s_cmp_eq_u32 {sr(sIT)}, {it}")
                    em(f"s_cbranch_scc0 L_sa{u}")
                stamp(em, PTS.index(nm) + 1)
                if only is None:
                    em.raw(f"L_sa{u}:")

    def poll(em, need):
        u = newid()
        em.label(f"L_poll{u}")
        em(f"ds_read_b32 {vr(vT2)}, {vr(vFLAG)}")
        em(f"v_readfirstlane_b32 {sr(sT0)}, {vr(vT2)}")
        em(f"s_cmp_ge_i32 {sr(sT0)}, {need}")
        em(f"s_cbranch_scc1 L_pdone{u}")
        if SLEEP:
            em(f"s_sleep {SLEEP}")
        em(f"s_branch L_poll{u}")
        em.raw(f"L_pdone{u}:")

    def poll_pre(em, need, reg):
        u = newid()
        em(f"v_readfirstlane_b32 {sr(sT0)}, {vr(reg)}")
        em(f"s_cmp_ge_i32 {sr(sT0)}, {need}")
        em(f"s_cbranch_scc1 L_pdone{u}")
        keep = (list(em.ds_q), list(em.hist))
        em.lines.append(f"L_poll{u}:")
        em(f"ds_read_b32 {vr(reg)}, {vr(vFLAG)}")
        em(f"v_readfirstlane_b32 {sr(sT0)}, {vr(reg)}")
        em(f"s_cmp_ge_i32 {sr(sT0)}, {need}")
        em(f"s_cbranch_scc0 L_poll{u}")
        em.raw(f"L_pdone{u}:")
        em.ds_q, em.hist = keep

    def poll_bits(em, smask, first_read_done=False):
        u = newid()
        if first_read_done:
            em(f"v_readfirstlane_b32 {sr(sT0)}, {vr(vT2)}")
            em(f"s_andn2_b32 {sr(sT0)}, {smask}, {sr(sT0)}")
            em(f"s_cbranch_scc0 L_pdone{u}")
            keep = (list(em.ds_q), list(em.hist))
            em.lines.append(f"L_poll{u}:")
        else:
            em.label(f"L_poll{u}")
        em(f"ds_read_b32 {vr(vT2)}, {vr(vFLAG)} offset:4")
        em(f"v_readfirstlane_b32 {sr(sT0)}, {vr(vT2)}")
        em(f"s_andn2_b32 {sr(sT0)}, {smask}, {sr(sT0)}")
        em(f"s_cbranch_scc0 L_pdone{u}")
        if SLEEP:
            em(f"s_sleep {SLEEP}")
        em(f"s_branch L_poll{u}")
        em.raw(f"L_pdone{u}:")
        if first_read_done:
            em.ds_q, em.hist = keep

    def set_bit(em, sbit):
        em(f"s_lshl_b32 {sr(sT0)}, 1, {sbit}")
        em(f"v_mov_b32 {vr(vT2)}, {sr(sT0)}")
        em("s_mov_b64 exec, 1")
        em(f"ds_or_b32 {vr(vFLAG)}, {vr(vT2)} offset:4")
        em("s_mov_b64 exec, -1")

    def park_addr(em, sw, dst):
        em(f"s_sub_u32 {sr(sT1)}, 19, {sw}")
        em(f"s_cmp_eq_u32 {sr(sDESC)}, 0")
        em(f"s_cselect_b32 {sr(sT1)}, {sw}, {sr(sT1)}")
        em(f"s_mul_i32 {sr(sT2)}, {sr(sT1)}, {VT}")
        em(f"s_add_u32 {sr(sT2)}, {sr(sT2)}, {L_V}")
        em(f"s_lshl_b32 {sr(sT1)}, {sr(sT1)}, 12")
        em(f"s_add_u32 {sr(sT1)}, {sr(sT1)}, {L_K - 8192}")
        em(f"s_cmp_lt_u32 {sw}, 2")
        em(f"s_cselect_b32 {dst}, {sr(sT2)}, {sr(sT1)}")

    def stage_read_addrs(em):
        em(f"v_lshrrev_b32 {vr(vT0)}, 2, {vr(vN)}")
        em(f"v_add_u32 {vr(vT2)}, {vr(vG4)}, {vr(vT0)}")
        em(f"v_and_b32 {vr(vT1)}, 3, {vr(vN)}")
        em(f"v_lshlrev_b32 {vr(vSO)}, 4, {vr(vT1)}")
        em(f"v_lshl_add_u32 {vr(vSO)}, {vr(vT2)}, 8, {vr(vSO)}")
        em(f"v_bfe_u32 {vr(vSR)}, {vr(vT2)}, 1, 2")
        em(f"v_xor_b32 {vr(vSR)}, {vr(vSR)}, {vr(vT1)}")
        em(f"v_lshlrev_b32 {vr(vSR)}, 4, {vr(vSR)}")
        em(f"v_lshl_add_u32 {vr(vSR)}, {vr(vT2)}, 6, {vr(vSR)}")

    def dump_stamps(em, tagn):
        if not STAMP:
            return
        stamp(em, 6)
        em("s_waitcnt vmcnt(0)")
        stamp(em, 7)
        em("s_memtime s[78:79]")
        em("s_waitcnt lgkmcnt(0)")
        if GPROBE:
            role, which, fac = GPROBE.split(",")
            which, fac = int(which), int(fac)
            nrep = {"l": 256, "m": 2048 + 256, "h": 512 + 256, "a": 2816}[role]
            em("s_mov_b64 exec, 1")
            if tagn == "l":
                em(f"s_not_b32 {sr(sT0)}, {sr(sTS)}")
                em(f"v_mov_b32 v0, {sr(sT0)}")
                em(f"buffer_atomic_umax v0, off, {sr(S_DBG, 4)}, 0 offset:128")
            if role in (tagn, "a"):
                em(f"v_mov_b32 v1, {sr(sTS + 2 * which)}")
                em(f"buffer_atomic_umax v1, off, {sr(S_DBG, 4)}, 0 offset:132")
            if role in (tagn, "a") or tagn == "l":
                em("v_mov_b32 v2, 1")
                em("s_waitcnt vmcnt(0)")
                em(f"buffer_atomic_add v2, off, {sr(S_DBG, 4)}, 0 offset:136")
            if tagn == "l":
                em(f"s_cmp_eq_u32 {sr(sWG)}, 100")
                em("s_cbranch_scc0 L_gp_done")
                em.label("L_gp1")
                em(f"buffer_load_dwordx4 v[4:7], off, {sr(S_DBG, 4)}, 0 offset:128 sc1")
                em("s_waitcnt vmcnt(0)")
                em(f"v_readfirstlane_b32 {sr(sT0)}, v6")
                em("s_sleep 8")
                em(f"s_cmp_ge_u32 {sr(sT0)}, {nrep}")
                em("s_cbranch_scc0 L_gp1")
                em(f"buffer_load_dwordx4 v[4:7], off, {sr(S_DBG, 4)}, 0 offset:128 sc1")
                em("s_waitcnt vmcnt(0)")
                em(f"v_readfirstlane_b32 {sr(sT2)}, v4")
                em(f"v_readfirstlane_b32 {sr(sT0)}, v5")
                em(f"s_not_b32 {sr(sT2)}, {sr(sT2)}")
                em(f"s_sub_u32 {sr(sT0)}, {sr(sT0)}, {sr(sT2)}")
                em(f"s_min_u32 {sr(sT0)}, {sr(sT0)}, 5000")
                em(f"s_mul_i32 {sr(sT0)}, {sr(sT0)}, {fac}")
                em(f"s_add_u32 {sr(sT0)}, {sr(sT0)}, 15000")
                em.label("L_gp2")
                em("s_memrealtime s[78:79]")
                em("s_waitcnt lgkmcnt(0)")
                em(f"s_sub_u32 {sr(sT1)}, s78, {sr(sT2)}")
                em(f"s_cmp_lt_u32 {sr(sT1)}, {sr(sT0)}")
                em("s_cbranch_scc1 L_gp2")
                em.label("L_gp_done")
            em.vm_q = []
            return
        if PROBE:
            which, fac, pw = (int(x) for x in PROBE.split(","))
            em(f"s_cmp_eq_u32 {sr(sWG)}, 100")
            em(f"s_cbranch_scc0 L_probe_done{tagn}")
            em(f"s_cmp_eq_u32 {sr(sWAVE)}, {pw}")
            em(f"s_cbranch_scc0 L_probe_done{tagn}")
            em(f"s_sub_u32 {sr(sT0)}, {sr(sTS + 2 * which)}, {sr(sTS)}")
            em(f"s_mul_i32 {sr(sT0)}, {sr(sT0)}, {fac}")
            em(f"s_add_u32 {sr(sT0)}, {sr(sT0)}, 5000")
            em.label(f"L_probe{tagn}")
            em("s_memrealtime s[78:79]")
            em("s_waitcnt lgkmcnt(0)")
            em(f"s_sub_u32 {sr(sT1)}, s78, {sr(sTS)}")
            em(f"s_cmp_lt_u32 {sr(sT1)}, {sr(sT0)}")
            em(f"s_cbranch_scc1 L_probe{tagn}")
            em.label(f"L_probe_done{tagn}")
            return
        em("s_sub_u32 s76, s78, s76")
        if tagn == "m":
            em(f"s_mov_b32 {sr(sT1)}, {sr(sW)}")
        else:
            em(f"s_add_u32 {sr(sT1)}, {sr(sWAVE)}, 8")
        em(f"s_mul_i32 {sr(sT0)}, {sr(sWG)}, {NWAVE}")
        em(f"s_add_u32 {sr(sT0)}, {sr(sT0)}, {sr(sT1)}")
        em(f"s_lshl_b32 {sr(sT0)}, {sr(sT0)}, 6")
        em(f"s_add_u32 {sr(sT0)}, {sr(sT0)}, {0x800000}")
        for i in range(9):
            em(f"v_mov_b32 {vr(vPOOL + i)}, {sr(sTS + 2 * i)}")
        em("v_mov_b32 v0, 0")
        em("s_mov_b64 exec, 1")
        em(f"buffer_store_dwordx4 {vr(vPOOL, 4)}, v0, {sr(S_WS, 4)}, {sr(sT0)} offen")
        em(f"buffer_store_dwordx4 {vr(vPOOL + 4, 4)}, v0, {sr(S_WS, 4)}, {sr(sT0)} offen offset:16")
        em(f"buffer_store_dword {vr(vPOOL + 8)}, v0, {sr(S_WS, 4)}, {sr(sT0)} offen offset:32")

    sWG = 94

    e = Emitter()
    e.raw(HEADER + f"; @launch grid=(256,1,1) block=({64 * NWAVE},1,1) lds=163840")
    e.raw('.amdgcn_target "amdgcn-amd-amdhsa--gfx950"')
    e.raw(".text")
    e.raw(f".globl {NAME}_kernel")
    e.raw(".p2align 8")
    e.raw(f".type {NAME}_kernel,@function")
    e.raw(f"{NAME}_kernel:")
    e("s_load_dwordx4 s[4:7], s[0:1], 0")
    e("s_load_dwordx2 s[8:9], s[0:1], 16")
    e("s_cmp_ge_u32 s2, 256")
    e("s_cbranch_scc1 L_end")
    stamp(e, 0)
    if STAMP:
        e("s_memtime s[76:77]")
        e(f"s_mov_b32 {sr(sWG)}, s2")
        for i in range(1, 6):
            e(f"s_mov_b64 {sr(sTS + 2 * i, 2)}, 0")
    e(f"v_readfirstlane_b32 {sr(sWAVE)}, v0")
    e(f"v_and_b32 {vr(vN)}, 15, v0")
    e(f"v_bfe_u32 {vr(vG)}, v0, 4, 2")
    e(f"s_and_b32 {sr(sT0)}, s2, 7")
    e(f"s_lshr_b32 {sr(sT1)}, s2, 6")
    e(f"s_lshl2_add_u32 {sr(sHEAD)}, {sr(sT0)}, {sr(sT1)}")
    e(f"s_bfe_u32 {sr(sCHUNK)}, s2, 0x30003")
    e(f"s_lshl_b32 {sr(sHEADOFF)}, {sr(sHEAD)}, 19")
    e(f"s_lshl_b32 {sr(sT0)}, {sr(sCHUNK)}, 16")
    e(f"s_add_u32 {sr(sROW0)}, {sr(sHEADOFF)}, {sr(sT0)}")
    e(f"s_add_u32 {sr(sHI)}, {sr(sHEADOFF)}, {HEADB - 4096}")
    e(f"s_and_b32 {sr(sDESC)}, {sr(sCHUNK)}, 1")
    e(f"v_lshlrev_b32 {vr(vG4)}, 2, {vr(vG)}")
    e(f"v_mov_b32 {vr(vFLAG)}, {L_FLAG}")
    e(f"s_mov_b32 {sr(S_K + 2)}, {TB}")
    e(f"s_mov_b32 {sr(S_K + 3)}, 0x20000")
    e(f"s_lshr_b32 {sr(sWAVE)}, {sr(sWAVE)}, 6")
    e("s_cbranch_scc1 L_notloader")

    def other_srds(em, which):
        em("s_load_dwordx4 s[12:15], s[0:1], 40")
        em("s_load_dwordx2 s[16:17], s[0:1], 56")
        em(f"s_mov_b32 {sr(S_O + 2)}, {TB}")
        em(f"s_mov_b32 {sr(S_O + 3)}, 0x20000")
        em(f"s_mov_b32 {sr(S_DBG + 2)}, 256")
        em(f"s_mov_b32 {sr(S_DBG + 3)}, 0x20000")
        em(f"s_mov_b32 {sr(S_WS + 2)}, {0x1000000}")
        em(f"s_mov_b32 {sr(S_WS + 3)}, 0x20000")

    def other_srds_done(em):
        em("s_waitcnt lgkmcnt(0)")
        for b, src in ((S_O, 12), (S_DBG, 14), (S_WS, 16)):
            em(f"s_mov_b64 {sr(b, 2)}, {sr(src, 2)}")

    ld = e.fork()
    vKD, vVD, vCNT = 2, 6, 8
    ld(f"v_lshlrev_b32 v0, 8, {vr(vG)}")
    ld(f"v_xor_b32 {vr(vVD)}, {vr(vG4)}, {vr(vN)}")
    ld(f"v_lshl_add_u32 {vr(vVD)}, {vr(vVD)}, 4, v0")
    ld(f"v_xor_b32 {vr(vKD)}, {vr(vG)}, {vr(vN)}")
    ld(f"v_lshl_add_u32 {vr(vKD)}, {vr(vKD)}, 4, v0")
    ld(f"s_mov_b32 {sr(S_V + 2)}, {TB}")
    ld(f"s_mov_b32 {sr(S_V + 3)}, 0x20000")
    ld(f"v_mov_b32 {vr(vCNT)}, 0")
    ld(f"v_mov_b32 {vr(vCNT + 1)}, 0")
    ld(f"s_mov_b32 m0, {L_GK}")
    ld("s_waitcnt lgkmcnt(0)")
    ld(f"s_mov_b64 {sr(S_K, 2)}, s[6:7]")
    ld(f"s_mov_b64 {sr(S_V, 2)}, s[8:9]")

    def v_halo(em, hi_when_desc):
        em(f"s_cmp_eq_u32 {sr(sDESC)}, {1 if hi_when_desc else 0}")
        em(f"s_cselect_b32 {sr(sT0)}, {18 * VT}, 0")
        em(f"s_cselect_b32 {sr(sT1)}, {18 * 4096}, 0")
        em(f"s_add_u32 {sr(sT1)}, {sr(sT1)}, {sr(sROW0)}")
        em(f"s_sub_u32 {sr(sT1)}, {sr(sT1)}, 8192")
        for k in range(2):
            em(f"s_max_i32 {sr(sT2)}, {sr(sT1)}, {sr(sHEADOFF)}")
            em(f"s_min_i32 {sr(sT2)}, {sr(sT2)}, {sr(sHI)}")
            for j in range(4):
                em(f"s_add_u32 m0, {sr(sT0)}, {L_V + VT * k + 32 * j}")
                if k == 0 and j == 0:
                    em(f"s_add_u32 {sr(sT1)}, {sr(sT1)}, 4096")
                em(f"buffer_load_dwordx4 {vr(vVD)}, {sr(S_V, 4)}, {sr(sT2)} offen offset:{1024 * j}{LD} lds")

    ld(f"buffer_load_dwordx4 {vr(vKD)}, {sr(S_K, 4)}, {sr(sHEADOFF)} offen lds")
    stamp(ld, 5)
    ld(f"s_mov_b32 m0, {L_GV}")
    ld(f"buffer_load_dwordx4 {vr(vVD)}, {sr(S_V, 4)}, {sr(sHEADOFF)} offen lds")
    ld(f"ds_write_b64 {vr(vFLAG)}, {vr(vCNT, 2)}")
    v_halo(ld, True)
    for j in range(1, 4):
        ld(f"v_xor_b32 {vr(vKD + j)}, {64 * j}, {vr(vKD)}")
    ld("s_waitcnt lgkmcnt(0)")
    if opt.get("stbar"):
        stamp(ld, 1)
    ld("s_barrier")
    if opt.get("stbar"):
        stamp(ld, 2)
    ld(f"s_mul_i32 {sr(sX)}, {sr(sDESC)}, {15 * 4096}")
    ld(f"s_mul_i32 {sr(sSTEP)}, {sr(sDESC)}, -8192")
    ld(f"s_add_u32 {sr(sSTEP)}, {sr(sSTEP)}, 4096")
    ld(f"s_mul_i32 {sr(sXV)}, {sr(sDESC)}, {15 * VT}")
    ld(f"s_add_u32 {sr(sXV)}, {sr(sXV)}, {L_V + 2 * VT}")
    ld(f"s_mul_i32 {sr(sSTEPV)}, {sr(sDESC)}, {-2 * VT}")
    ld(f"s_add_u32 {sr(sSTEPV)}, {sr(sSTEPV)}, {VT}")
    def k_tile():
        ld(f"s_add_u32 {sr(sT1)}, {sr(sX)}, {sr(sROW0)}")
        ld(f"s_add_u32 m0, {sr(sX)}, {L_K}")
        ld(f"s_add_u32 {sr(sX)}, {sr(sX)}, {sr(sSTEP)}")
        for j in range(4):
            ld(f"buffer_load_dwordx4 {vr(vKD + j)}, {sr(S_K, 4)}, {sr(sT1)} offen offset:{1024 * j}{LD} lds")

    def v_tile():
        for j in range(4):
            ld(f"s_add_u32 m0, {sr(sXV)}, {32 * j}")
            ld(f"buffer_load_dwordx4 {vr(vVD)}, {sr(S_V, 4)}, {sr(sB)} offen offset:{1024 * j}{LD} lds")
        ld(f"s_add_u32 {sr(sXV)}, {sr(sXV)}, {sr(sSTEPV)}")
        ld(f"s_add_u32 {sr(sB)}, {sr(sB)}, {sr(sSTEP)}")

    ld(f"s_add_u32 {sr(sB)}, {sr(sX)}, {sr(sROW0)}")
    k_tile()
    k_tile()
    ld(f"s_mov_b32 {sr(sCNT)}, {2 - D}")
    ld.vm_q = []
    ld.label("L_ldloop")
    k_tile()
    if HALF < 63:
        ld(f"s_waitcnt vmcnt({HALF})")
    v_tile()
    ld(f"s_add_u32 {sr(sCNT)}, {sr(sCNT)}, 1")
    ld(f"v_mov_b32 {vr(vCNT)}, {sr(sCNT)}")
    ld(f"s_cmp_lt_i32 {sr(sCNT)}, {16 - D}")
    ld(f"s_waitcnt vmcnt({WIN})")
    ld(f"ds_write_b32 {vr(vFLAG)}, {vr(vCNT)}")
    ld("s_cbranch_scc1 L_ldloop")
    ld.vm_q = []
    v_tile()
    v_tile()
    ld(f"v_mov_b32 {vr(vCNT)}, {17 - D}")
    ld(f"s_waitcnt vmcnt({8 * D})")
    ld(f"ds_write_b32 {vr(vFLAG)}, {vr(vCNT)}")
    if not opt.get("stbar"):
        stamp(ld, 1)
    ld.vm_q = []
    v_halo(ld, False)
    if not opt.get("stbar"):
        stamp(ld, 2)
    other_srds(ld, None)
    stage_read_addrs(ld)
    other_srds_done(ld)
    ld(f"s_mul_i32 {sr(sXV)}, {sr(sDESC)}, {19 * VT}")
    ld(f"s_add_u32 {sr(sXV)}, {sr(sXV)}, {L_V}")
    ld(f"s_mul_i32 {sr(sX)}, {sr(sDESC)}, {15 * 4096}")
    ld(f"s_add_u32 {sr(sQOFF)}, {sr(sX)}, {sr(sROW0)}")
    ld(f"s_add_u32 {sr(sX)}, {sr(sX)}, {L_K}")
    ld(f"s_cmp_eq_u32 {sr(sQOFF)}, {sr(sHEADOFF)}")
    ld(f"s_cselect_b32 {sr(sEX)}, 0xffffff00, -1")
    ld(f"s_mov_b32 {sr(sEX + 1)}, -1")
    ld(f"s_mov_b32 {sr(sREQ)}, 0")
    for k in range(D, -1, -1):
        ld(f"v_mov_b32 {vr(vCNT)}, {18 - k}")
        ld(f"s_waitcnt vmcnt({8 * k})")
        ld(f"ds_write_b32 {vr(vFLAG)}, {vr(vCNT)}")
        if k == 1:
            stamp(ld, 3)
    ld.vm_q = []
    stamp(ld, 4)
    def park_fetch(w):
        u = newid()
        ld(f"s_bitcmp1_b32 {sr(sREQ)}, {8 + w}")
        ld(f"s_cbranch_scc1 L_have{u}")
        keep = (list(ld.ds_q), list(ld.hist))
        ld.raw(f"L_poll{u}:")
        ld(f"ds_read_b32 {vr(vT2)}, {vr(vFLAG)} offset:4")
        ld(f"v_readfirstlane_b32 {sr(sREQ)}, {vr(vT2)}")
        ld(f"s_bitcmp1_b32 {sr(sREQ)}, {8 + w}")
        ld(f"s_cbranch_scc1 L_have{u}")
        ld(f"s_sleep {SLEEP}")
        ld(f"s_branch L_poll{u}")
        ld.raw(f"L_have{u}:")
        ld.ds_q, ld.hist = keep
        ld(f"v_add_u32 v0, {sr(sXV if w < 2 else sX)}, {vr(vSR)}")
        if w < 2:
            ld(f"s_add_u32 {sr(sXV)}, {sr(sXV)}, {sr(sSTEPV)}")
        else:
            ld(f"s_add_u32 {sr(sX)}, {sr(sX)}, {sr(sSTEP)}")
        for k in range(4):
            ld(f"ds_read_b128 {vr(vPOOL + 16 * (w % 2) + 4 * k, 4)}, v0 offset:{1024 * k}")

    park_fetch(0)
    for w in range(8):
        if w < 7:
            park_fetch(w + 1)
        if PST < 32 and 4 * w >= PST:
            ld(f"s_waitcnt vmcnt({PST - 4})")
        if w == GATE and not NOCOMP:
            ld(f"s_mov_b32 {sr(sT2)}, {1 << 25}")
            poll_bits(ld, sr(sT2))
        if w == 0:
            ld(f"s_mov_b64 exec, {sr(sEX, 2)}")
        for k in range(4):
            ld(f"buffer_store_dwordx4 {vr(vPOOL + 16 * (w % 2) + 4 * k, 4)}, {vr(vSO)}, {sr(S_O, 4)}, {sr(sQOFF)} offen offset:{64 * k}{ST}")
        if w == 0:
            ld("s_mov_b64 exec, -1")
        ld(f"s_add_u32 {sr(sQOFF)}, {sr(sQOFF)}, {sr(sSTEP)}")
    dump_stamps(ld, "l")
    ld("s_endpgm")
    ld.raw("L_notloader:")

    c = e.fork()
    other_srds(c, None)
    c(f"s_mov_b32 {sr(S_Q + 2)}, {TB}")
    c(f"s_mov_b32 {sr(S_Q + 3)}, 0x20000")
    stage_read_addrs(c)
    c("s_barrier")
    other_srds_done(c)
    c(f"s_mov_b64 {sr(S_K, 2)}, s[6:7]")
    c(f"s_mov_b64 {sr(S_Q, 2)}, s[4:5]")
    c(f"s_mov_b32 {sr(sC)}, {CSCALE:#x}")
    c(f"s_mov_b32 {sr(sC + 1)}, {CSCALE:#x}")
    c(f"s_mov_b32 {sr(sNEG)}, {NEG:#x}")
    c(f"s_cmp_le_u32 {sr(sWAVE)}, {NH}")
    c("s_cbranch_scc1 L_helper")

    def lane_addrs(em):
        em(f"v_xor_b32 {vr(vKA)}, {vr(vN)}, {vr(vG)}")
        em(f"v_lshlrev_b32 {vr(vKA)}, 4, {vr(vKA)}")
        em(f"v_lshl_add_u32 {vr(vKA)}, {vr(vN)}, 8, {vr(vKA)}")
        em(f"v_lshrrev_b32 {vr(vT0)}, 2, {vr(vN)}")
        em(f"v_and_b32 {vr(vT1)}, 3, {vr(vN)}")
        em(f"v_mul_u32_u24 {vr(vGV)}, {256 + 64}, {vr(vT0)}")
        em(f"v_lshl_add_u32 {vr(vGV)}, {vr(vT1)}, 3, {vr(vGV)}")
        em(f"v_mul_u32_u24 {vr(vT2)}, {VP}, {vr(vG)}")
        for s in range(1, 4):
            em(f"v_xor_b32 {vr(vKA + s)}, {64 * s}, {vr(vKA)}")
            em(f"v_xor_b32 {vr(vGV + s)}, {64 * s}, {vr(vGV)}")
        for s in range(4):
            em(f"v_add_u32 {vr(vVA + s)}, {vr(vT2)}, {vr(vGV + s)}")
        for i in range(4):
            em(f"v_mov_b32 {vr(vONE + i)}, 0x3f803f80")

    def tile_addrs(em, skoff, svoff):
        for s in range(4):
            em(f"v_add_u32 {vr(vKA + s)}, {skoff}, {vr(vKA + s)}")
            em(f"v_add_u32 {vr(vVA + s)}, {svoff}, {vr(vVA + s)}")

    def allreduce_ops(op, x, y):
        return [f"v_mov_b32 {vr(y)}, {vr(x)}", f"v_permlane32_swap_b32 {vr(x)}, {vr(y)}", f"{op} {vr(x)}, {vr(x)}, {vr(y)}",
                f"v_mov_b32 {vr(y)}, {vr(x)}", f"v_permlane16_swap_b32 {vr(x)}, {vr(y)}", f"{op} {vr(x)}, {vr(x)}, {vr(y)}"]

    def max_tree(vals, dst):
        vals = list(vals)
        ops = [f"v_max3_f32 {vr(dst)}, {vr(vals[0])}, {vr(vals[1])}, {vr(vals[2])}"]
        i = 3
        while i + 1 < len(vals):
            ops.append(f"v_max3_f32 {vr(dst)}, {vr(dst)}, {vr(vals[i])}, {vr(vals[i + 1])}")
            i += 2
        if i < len(vals):
            ops.append(f"v_max_f32 {vr(dst)}, {vr(dst)}, {vr(vals[i])}")
        return ops

    def mfma(d, a, b, cc):
        return f"v_mfma_f32_16x16x32_bf16 {vr(d, 4)}, {vr(a, 4)}, {vr(b, 4)}, {'0' if cc is None else vr(cc, 4)}"

    m = c.fork()
    KQ = [vOX + 4 * i for i in range(6)] + [vPOOL + 4 * i for i in range(18)]
    OACC = [vOX + 4 * i for i in range(5)] + [vS + 12, vS + 16, vS + 20]
    vL = vOX + 20

    def q_load(em, sb):
        em(f"s_lshl_b32 {sr(sT1)}, {sb}, 12")
        em(f"s_add_u32 {sr(sT1)}, {sr(sT1)}, {sr(sROW0)}")
        for s in range(4):
            em(f"buffer_load_dwordx4 {vr(vQR + 4 * s, 4)}, {vr(vSO)}, {sr(S_Q, 4)}, {sr(sT1)} offen offset:{64 * s}{QLD}")
        em.vm_q = []

    def k_halo(em, sb):
        u = newid()
        em(f"s_sub_u32 {sr(sT0)}, {sb}, 2")
        em(f"s_cmp_lt_u32 {sr(sT0)}, 12")
        em.flush()
        em(f"s_cbranch_scc1 L_kh{u}")
        for t in (0, 1, 3, 4):
            em(f"s_add_u32 {sr(sT0)}, {sb}, {t - 2}")
            em(f"s_cmp_lt_u32 {sr(sT0)}, 16")
            em(f"s_cbranch_scc1 L_kh{u}_{t}")
            em(f"s_lshl_b32 {sr(sT0)}, {sr(sT0)}, 12")
            em(f"s_add_u32 {sr(sT0)}, {sr(sT0)}, {sr(sROW0)}")
            em(f"s_max_i32 {sr(sT0)}, {sr(sT0)}, {sr(sHEADOFF)}")
            em(f"s_min_i32 {sr(sT0)}, {sr(sT0)}, {sr(sHI)}")
            for s in range(4):
                em(f"buffer_load_dwordx4 {vr(KQ[4 + 4 * t + s], 4)}, {vr(vSO)}, {sr(S_K, 4)}, {sr(sT0)} offen offset:{64 * s}")
            em.raw(f"L_kh{u}_{t}:")
        em.raw(f"L_kh{u}:")
        em.vm_q = []

    m(f"s_sub_u32 {sr(sW)}, {sr(sWAVE)}, {1 + NH}")
    if WX:
        m(f"s_xor_b32 {sr(sW)}, {sr(sW)}, {WX}")
    m(f"s_mul_i32 {sr(sT2)}, {sr(sDESC)}, 15")
    m(f"s_xor_b32 {sr(sB)}, {sr(sW)}, {sr(sT2)}")
    m(f"s_cmp_gt_u32 {sr(sW)}, {max(1, QLEAD)}")
    m("s_cbranch_scc1 L_qa_later")
    k_halo(m, sr(sB))
    m(f"s_cmp_gt_u32 {sr(sW)}, {QLEAD}")
    m("s_cbranch_scc1 L_qa_later")
    q_load(m, sr(sB))
    m.raw("L_qa_later:")
    if PRIOW < 8:
        m(f"s_cmp_lt_u32 {sr(sW)}, {PRIOW}")
        m("s_cbranch_scc1 L_noprio")
        m(f"s_setprio {PRIOV}")
        m.raw("L_noprio:")
    lane_addrs(m)
    m(f"v_xor_b32 {vr(vGK)}, {vr(vT1)}, {vr(vG)}")
    m(f"v_lshlrev_b32 {vr(vGK)}, 4, {vr(vGK)}")
    m(f"v_lshl_add_u32 {vr(vGK)}, {vr(vT1)}, 8, {vr(vGK)}")
    m(f"v_add_u32 {vr(vGK)}, {L_GK}, {vr(vGK)}")
    for u in range(4):
        m(f"v_add_u32 {vr(vGV + u)}, {L_GV}, {vr(vGV + u)}")
    m(f"s_lshl_b32 {sr(sREQ)}, {sr(sW)}, 10")
    m(f"v_bfe_u32 {vr(vT0)}, {vr(vN)}, 1, 2")
    m(f"v_lshlrev_b32 {vr(vT2)}, 6, {vr(vN)}")
    m(f"v_add_u32 {vr(vT2)}, {sr(sREQ)}, {vr(vT2)}")
    m(f"v_xor_b32 {vr(vSW)}, {vr(vT0)}, {vr(vG)}")
    m(f"v_lshl_add_u32 {vr(vSW)}, {vr(vSW)}, 4, {vr(vT2)}")
    m(f"v_lshrrev_b32 {vr(vSW1)}, 1, {vr(vG)}")
    m(f"v_xor_b32 {vr(vSW0)}, {vr(vT0)}, {vr(vSW1)}")
    m(f"v_lshl_add_u32 {vr(vSW0)}, {vr(vSW0)}, 4, {vr(vT2)}")
    m(f"v_and_b32 {vr(vSW1)}, 1, {vr(vG)}")
    m(f"v_lshl_add_u32 {vr(vSW0)}, {vr(vSW1)}, 3, {vr(vSW0)}")
    m(f"v_xor_b32 {vr(vSW1)}, 32, {vr(vSW0)}")
    m(f"v_add_u32 {vr(vSR)}, {sr(sREQ)}, {vr(vSR)}")
    m(f"v_sub_u32 {vr(vT0)}, {vr(vG4)}, {vr(vN)}")
    for r in range(4):
        m(f"v_cmp_le_i32 {sr(sMASK + 2 * r, 2)}, {-r}, {vr(vT0)}")
        m(f"v_cmp_ge_i32 {sr(sMASK + 8 + 2 * r, 2)}, {-r}, {vr(vT0)}")
    m(f"v_cmp_eq_u32 {sr(sMASK + 16, 2)}, 0, {vr(vG4)}")
    park_addr(m, sr(sW), sr(sPARK))
    m(f"s_sub_u32 {sr(sPARK)}, {sr(sPARK)}, {sr(sREQ)}")
    m(f"s_lshl_b32 {sr(sREQ)}, 15, {sr(sW)}")
    m(f"s_lshr_b32 {sr(sREQ)}, {sr(sREQ)}, 4")
    m(f"s_lshr_b32 {sr(sT1)}, {sr(sW)}, 1")
    m(f"s_lshl_b32 {sr(sT1)}, 0x8000, {sr(sT1)}")
    m(f"s_or_b32 {sr(sREQ)}, {sr(sREQ)}, {sr(sT1)}")
    m(f"s_lshl_b32 {sr(sT1)}, {sr(sW)}, 8")
    m(f"s_cmp_lt_u32 {sr(sW)}, 2")
    m(f"s_cselect_b32 {sr(sREQ)}, {sr(sT1)}, {sr(sREQ)}")
    m(f"s_mov_b32 {sr(sIT)}, 0")
    m(f"s_add_u32 {sr(sNEED)}, {sr(sW)}, 3")
    m(f"s_add_u32 {sr(sNEEDV)}, {sr(sW)}, 5")
    m(f"s_add_u32 {sr(sX)}, {sr(sW)}, {ROT}")
    m(f"s_and_b32 {sr(sX)}, {sr(sX)}, 7")
    m(f"s_add_u32 {sr(sX)}, {sr(sX)}, 8")
    m(f"s_mul_i32 {sr(sT2)}, {sr(sDESC)}, 15")
    m(f"s_xor_b32 {sr(sB2)}, {sr(sX)}, {sr(sT2)}")
    m(f"s_lshl_b32 {sr(sSTEP)}, {sr(sB)}, 12")
    m(f"s_add_u32 {sr(sSTEP)}, {sr(sSTEP)}, {L_K - 8192}")
    m(f"s_mul_i32 {sr(sSTEPV)}, {sr(sB)}, {VT}")
    m(f"s_add_u32 {sr(sSTEPV)}, {sr(sSTEPV)}, {L_V}")
    m(f"s_cmp_gt_u32 {sr(sW)}, {QLEAD}")
    m("s_cbranch_scc0 L_block")
    m(f"s_sub_u32 {sr(sT2)}, {sr(sW)}, {QLEAD}")
    poll(m, sr(sT2))
    q_load(m, sr(sB))
    m.label("L_block")
    m(f"s_lshl_b32 {sr(sT0)}, {sr(sB)}, 12")
    m(f"s_add_u32 {sr(sQOFF)}, {sr(sT0)}, {sr(sROW0)}")
    m(f"v_mov_b32 {vr(vT0)}, {sr(sNEG)}")
    tile_addrs(m, sr(sSTEP), sr(sSTEPV))
    m(f"s_lshl_b32 {sr(sQ0)}, {sr(sCHUNK)}, 8")
    m(f"s_lshl_b32 {sr(sT0)}, {sr(sB)}, 4")
    m(f"s_add_u32 {sr(sQ0)}, {sr(sQ0)}, {sr(sT0)}")
    for r in range(4):
        m(f"v_cndmask_b32_e64 {vr(vS + r)}, {vr(vT0)}, 0, {sr(sMASK + 2 * r, 2)}")
        m(f"v_cndmask_b32_e64 {vr(vS + 16 + r)}, {vr(vT0)}, 0, {sr(sMASK + 8 + 2 * r, 2)}")
    m(f"v_cndmask_b32_e64 {vr(vS + 20)}, {vr(vT0)}, 0, {sr(sMASK + 16, 2)}")
    m(f"v_cndmask_b32_e64 {vr(vS + 21)}, {vr(vT0)}, 0, {sr(sMASK + 16, 2)}")
    poll(m, sr(sNEED))
    stamp_it(m, 1)

    def relayout(q):
        m(f"ds_write_b128 {vr(vSR)}, {vr(q, 4)}")
        m(f"ds_read_b128 {vr(q, 4)}, {vr(vSW)}")

    def v_read(T, k):
        u, p = T // 2, T % 2
        q = vPOOL + 12 * (T % 6) + 4 * k
        r = [f"ds_read_b64_tr_b16 {vr(q + 2 * j, 2)}, {vr(vVA + u)} offset:{VT * (2 * k + j) + 32 * p}" for j in range(2)]
        if k == 2:
            r[1] = f"ds_read_b64_tr_b16 {vr(q + 2, 2)}, {vr(vGV + u)} offset:{32 * p}"
        return r

    if not NOCOMP:
        for s in range(4):
            if s:
                m(f"v_xor_b32 {vr(KQ[s])}, {64 * s}, {vr(vGK)}")
            m(f"ds_read_b128 {vr(KQ[s], 4)}, {vr(KQ[s]) if s else vr(vGK)}")
        for t in (2, 0, 1, 3, 4):
            if t != 2:
                m(f"s_add_u32 {sr(sT0)}, {sr(sB)}, {t - 2}")
                m(f"s_cmp_lt_u32 {sr(sT0)}, 16")
                m(f"s_cbranch_scc0 L_skipk{t}")
            for s in range(4):
                m(f"ds_read_b128 {vr(KQ[4 + 4 * t + s], 4)}, {vr(vKA + s)} offset:{4096 * t}")
            if t != 2:
                m.raw(f"L_skipk{t}:")
        m(f"s_sub_u32 {sr(sT0)}, {sr(sB)}, 2")
        m(f"s_cmp_lt_u32 {sr(sT0)}, 12")
        m("s_cbranch_scc1 L_nohalo")
        keep = list(m.ds_q)
        m.ds_q = []
        m("s_waitcnt vmcnt(4)")
        for t in (0, 1, 3, 4):
            m(f"s_add_u32 {sr(sT0)}, {sr(sB)}, {t - 2}")
            m(f"s_cmp_lt_u32 {sr(sT0)}, 16")
            m(f"s_cbranch_scc1 L_rl{t}")
            for s in range(4):
                relayout(KQ[4 + 4 * t + s])
            m.raw(f"L_rl{t}:")
        m.ds_q = keep
        m.raw("L_nohalo:")
    m("s_waitcnt vmcnt(0)")
    stamp_it(m, 2)
    if NOCOMP:
        for i in range(16):
            m(f"v_mov_b32 {vr(vPOOL + i)}, {vr(vQR + i)}")
        set_bit(m, sr(sW))
        poll(m, sr(sNEEDV))
    else:
        for s in range(4):
            relayout(vQR + 4 * s)
        m(f"s_sub_u32 {sr(sT1)}, {sr(sQ0)}, 34")
        for s in range(4):
            m(mfma(vS + 20, KQ[s], vQR + 4 * s, vS + 20))
        set_bit(m, sr(sW))
        m(f"ds_read_b32 {vr(vT3)}, {vr(vFLAG)}")
        m(f"s_cmp_lt_u32 {sr(sT1)}, {2001 - 34}")

        def s_tile(t):
            return [mfma(vS + 4 * t, KQ[4 + 4 * t + s], vQR + 4 * s, None if (s == 0 and t in (1, 2, 3)) else vS + 4 * t) for s in range(4)]

        VR = [op for k in range(3) for T in range(6) for op in v_read(T, k)]
        mx = max_tree([vS + 20, vS + 21] + [vS + i for i in range(20)], vT0)
        m("s_cbranch_scc0 L_edge")
        ed = m.fork()
        for op in s_tile(0) + s_tile(1) + s_tile(2) + merge(s_tile(3), mx[:2]) + merge(s_tile(4), mx[2:5]):
            m(op)
        poll_pre(m, sr(sNEEDV), vT3)
        for op in VR[:4] + mx[5:7] + VR[4:8] + mx[7:]:
            m(op)
        m.raw("L_join:")
        ed.raw("L_edge:")
        for t in range(5):
            for op in s_tile(t):
                ed(op)
        ed(f"v_add_u32 {vr(vT1)}, {sr(sT1)}, {vr(vG4)}")
        ed(f"s_movk_i32 {sr(sT1)}, 2046")
        for t in range(5):
            for r in range(4):
                ed(f"v_add_u32 v0, {16 * t + r}, {vr(vT1)}")
                ed(f"v_cmp_gt_u32 vcc, {sr(sT1)}, v0")
                ed(f"v_cndmask_b32 {vr(vS + 4 * t + r)}, {vr(vT0)}, {vr(vS + 4 * t + r)}, vcc")
        poll_pre(ed, sr(sNEEDV), vT3)
        for op in VR[:8] + mx:
            ed(op)
        ed.flush()
        ed("s_branch L_join")
    m(f"s_lshl_b32 {sr(sT0)}, {sr(sIT)}, 4")
    m(f"s_add_u32 {sr(sT0)}, {sr(sT0)}, {EW}")
    m(f"s_cmp_ge_u32 {sr(sW)}, {sr(sT0)}")
    m("s_cbranch_scc0 L_noearly")
    q_load(m, sr(sB2))
    m.raw("L_noearly:")
    stamp_it(m, 3)

    W = vPOOL + 40
    R = vPOOL + 24

    def p_ops(lo, hi):
        fm, ex, cv = [], [], []
        for i in range(lo, hi):
            if PK and i % 2 == 0:
                fm.append(f"v_pk_fma_f32 {vr(vS + i, 2)}, {vr(vS + i, 2)}, {sr(sC, 2)}, {vr(vT0, 2)} neg_lo:[0,0,1] neg_hi:[0,0,1]")
            elif not PK:
                fm.append(f"v_fma_f32 {vr(vS + i)}, {vr(vS + i)}, {sr(sC)}, -{vr(vT0)}")
            ex.append(f"v_exp_f32 {vr(vS + i)}, {vr(vS + i)}")
        for i in range(lo // 2, hi // 2):
            cv.append(f"v_cvt_pk_bf16_f32 {vr(vS + i)}, {vr(vS + 2 * i)}, {vr(vS + 2 * i + 1)}")
        per = 2 if PK else 1
        seq = fm[:2 // per]
        nf = 2 // per
        for j, x in enumerate(ex):
            seq.append(x)
            if nf < len(fm) and (j + 1) % per == 0:
                seq.append(fm[nf])
                nf += 1
            if j >= 2 and j % 2 == 0:
                seq.append(cv[(j - 2) // 2])
        seq.append(cv[-1])
        return seq

    def pv(T, k):
        return mfma(OACC[T], vPOOL + 12 * (T % 6) + 4 * k, vS + 4 * k, None if k == 0 else OACC[T])

    def lsum(k):
        return mfma(vL, vONE, vS + 4 * k, None if k == 0 else vL)

    def fin(T, park):
        u, p = T // 2, T % 2
        o = OACC[T]
        w = W + 4 * u + 2 * p
        if PK:
            ops = [f"v_pk_mul_f32 {vr(o + r, 2)}, {vr(o + r, 2)}, {vr(vT0, 2)} op_sel_hi:[1,0]" for r in (0, 2)]
        else:
            ops = [f"v_mul_f32 {vr(o + r)}, {vr(o + r)}, {vr(vT0)}" for r in range(4)]
        ops += [f"v_cvt_pk_bf16_f32 {vr(w)}, {vr(o)}, {vr(o + 1)}", f"v_cvt_pk_bf16_f32 {vr(w + 1)}, {vr(o + 2)}, {vr(o + 3)}"]
        if NOCOMP:
            ops = []
        if park:
            ops.append(f"ds_write_b64 {vr(vT3 if p else 0)}, {vr(w, 2)} offset:{1024 * u}")
        else:
            ops.append(f"ds_write_b64 {vr(vSW1 if p else vSW0)}, {vr(w, 2)}")
            if p:
                ops.append(f"ds_read_b128 {vr(R + 4 * u, 4)}, {vr(vSR)}")
        return ops

    if not NOCOMP:
        for op in merge(allreduce_ops("v_max_f32", vT0, vT1), VR[8:14]):
            m(op)
        m(f"v_mul_f32 {vr(vT0)}, {sr(sC)}, {vr(vT0)}")
        if PK:
            m(f"v_mov_b32 {vr(vT1)}, {vr(vT0)}")
        for op in merge(p_ops(0, 8), VR[14:24]):
            m(op)
        for op in merge(merge(p_ops(8, 16), VR[24:36]), [lsum(0)] + [pv(T, 0) for T in range(5)]):
            m(op)
        for op in merge(p_ops(16, 22) + [f"v_mov_b32 {vr(vS + 11)}, 0"], [pv(5, 0), lsum(1)] + [pv(T, 1) for T in range(6)]):
            m(op)
    stamp_it(m, 4)

    def tail(em, park):
        if park:
            em(f"v_add_u32 v0, {sr(sPARK)}, {vr(vSW0)}")
            em(f"v_add_u32 {vr(vT3)}, {sr(sPARK)}, {vr(vSW1)}")
            em(f"ds_read_b32 {vr(vT2)}, {vr(vFLAG)} offset:4")
        if NOCOMP:
            if park:
                poll_bits(em, sr(sREQ), True)
            for T in range(8):
                for op in fin(T, park):
                    em(op)
            return
        em(lsum(2))
        em(pv(0, 2))
        for k in range(3):
            for op in v_read(6, k):
                em(op)
        em(pv(1, 2))
        for k in range(3):
            for op in v_read(7, k):
                em(op)
        em(pv(2, 2))
        em(f"v_rcp_f32 {vr(vT0)}, {vr(vL)}")
        em(pv(3, 2))
        if park:
            poll_bits(em, sr(sREQ), True)
        em(pv(4, 2))
        em(pv(5, 2))
        for op in merge(fin(0, park) + fin(1, park) + fin(2, park), [pv(6, k) for k in range(3)] + [pv(7, k) for k in range(3)]):
            em(op)
        for T in range(3, 8):
            for op in fin(T, park):
                em(op)

    m(f"s_cmp_lg_u32 {sr(sIT)}, 0")
    m("s_cbranch_scc1 L_last")
    b2 = m.fork()
    tail(m, True)
    m(f"s_add_u32 {sr(sT1)}, {sr(sW)}, 8")
    m.wait_lgkm_all()
    set_bit(m, sr(sT1))
    stamp_it(m, 6, 0)
    m(f"s_sub_u32 {sr(sT1)}, {sr(sB2)}, {sr(sB)}")
    m(f"s_lshl_b32 {sr(sSTEP)}, {sr(sT1)}, 12")
    m(f"s_mul_i32 {sr(sSTEPV)}, {sr(sT1)}, {VT}")
    m(f"s_mov_b32 {sr(sB)}, {sr(sB2)}")
    if not NOCOMP:
        k_halo(m, sr(sB))
    m(f"s_add_u32 {sr(sNEED)}, {sr(sX)}, 3")
    m(f"s_min_u32 {sr(sNEED)}, {sr(sNEED)}, 16")
    m(f"s_add_u32 {sr(sNEEDV)}, {sr(sX)}, 5")
    m(f"s_min_u32 {sr(sNEEDV)}, {sr(sNEEDV)}, 17")
    m(f"s_cmp_ge_u32 {sr(sX)}, 14")
    m(f"s_addc_u32 {sr(sNEEDV)}, {sr(sNEEDV)}, 0")
    m(f"s_mov_b32 {sr(sIT)}, 1")
    m(f"s_cmp_ge_u32 {sr(sW)}, {EW}")
    m.flush()
    m("s_cbranch_scc1 L_block")
    m(f"s_sub_u32 {sr(sT2)}, {sr(sNEED)}, {D + QL2}")
    m(f"s_max_u32 {sr(sT2)}, {sr(sT2)}, {THRMIN}")
    poll(m, sr(sT2))
    q_load(m, sr(sB))
    m("s_branch L_block")
    b2.raw("L_last:")
    tail(b2, False)
    if STAMP and "B6" in PTS:
        b2.wait_lgkm_all()
        stamp_it(b2, 6, 1)
    for u in range(4):
        b2(f"buffer_store_dwordx4 {vr(R + 4 * u, 4)}, {vr(vSO)}, {sr(S_O, 4)}, {sr(sQOFF)} offen offset:{64 * u}{STB}")
    dump_stamps(b2, "m")
    b2("s_endpgm")

    h = c.fork()
    h.raw("L_helper:")
    hS, hO, hK, hV, vM, vA = 44, 56, 92, 124, 156, 1
    hL = hO + 32
    if PRIOH:
        h(f"s_setprio {PRIOH}")
    if CPF:
        h("s_getpc_b64 s[2:3]")
        h.raw("L_pc:")
        h(f"v_lshl_add_u32 v0, {vr(vG)}, 4, {vr(vN)}")
        h("v_lshlrev_b32 v0, 7, v0")
        h(f"s_sub_u32 s2, s2, L_pc-{NAME}_kernel")
        h("s_subb_u32 s3, s3, 0")
        for i in range(CPF):
            if i:
                h("v_add_u32 v0, 0x2000, v0")
            h(f"v_min_u32 v1, L_codeend-{NAME}_kernel-4, v0")
            h(f"global_load_dword {vr(160 + i)}, v1, s[2:3]")
    h(f"v_lshlrev_b32 {vr(vA)}, 4, {vr(vG)}")
    h(f"v_lshl_add_u32 v0, {vr(vN)}, 8, {vr(vA)}")
    for i in range(16):
        h(f"v_mov_b32 {vr(vQR + i)}, 0")
    h("s_mov_b32 exec_lo, 0x00030003")
    h("s_mov_b32 exec_hi, 0x00030003")
    for s in range(4):
        h(f"buffer_load_dwordx4 {vr(vQR + 4 * s, 4)}, v0, {sr(S_Q, 4)}, {sr(sHEADOFF)} offen offset:{64 * s}")
    h("s_mov_b64 exec, -1")
    lane_addrs(h)
    h(f"s_mul_i32 {sr(sPARK)}, {sr(sWAVE)}, 1056")
    h(f"s_add_u32 {sr(sPARK)}, {sr(sPARK)}, {L_MRG - 1056}")
    h(f"v_lshl_add_u32 {vr(vA)}, {vr(vN)}, 9, {vr(vA)}")
    h(f"v_add_u32 {vr(vA)}, {sr(sPARK)}, {vr(vA)}")
    h(f"v_lshlrev_b32 {vr(vSR)}, 3, {vr(vN)}")
    h(f"v_add_u32 {vr(vSR)}, {sr(sPARK)}, {vr(vSR)}")
    h(f"v_lshl_add_u32 {vr(vSO)}, {vr(vG)}, 4, {vr(vN)}")
    h(f"v_lshrrev_b32 {vr(vSW)}, 5, {vr(vSO)}")
    h(f"v_lshlrev_b32 {vr(vSW)}, 3, {vr(vSW)}")
    h(f"v_lshlrev_b32 {vr(vSW0)}, 4, {vr(vSO)}")
    h(f"v_and_b32 {vr(vSW1)}, 7, {vr(vSO)}")
    h(f"v_lshlrev_b32 {vr(vT0)}, 3, {vr(vSW)}")
    h(f"v_lshl_add_u32 {vr(vGK)}, {vr(vSW1)}, 3, {vr(vT0)}")
    h(f"v_lshl_add_u32 {vr(vSW1)}, {vr(vSW1)}, 11, {vr(vT0)}")
    h(f"v_lshlrev_b32 {vr(vSO)}, 3, {vr(vSO)}")
    for i in range(36):
        h(f"v_mov_b32 {vr(hO + i)}, 0")
    h(f"v_mov_b32 {vr(vM)}, {sr(sNEG)}")
    h(f"s_sub_u32 {sr(sW)}, {sr(sWAVE)}, 1")
    h(f"s_lshl_b32 {sr(sT0)}, {sr(sW)}, 1")
    h(f"s_add_u32 {sr(sNEED)}, {sr(sT0)}, 2")
    h(f"s_sub_u32 {sr(sT1)}, 14, {sr(sT0)}")
    h(f"s_cmp_eq_u32 {sr(sDESC)}, 0")
    h(f"s_cselect_b32 {sr(sT0)}, {sr(sT0)}, {sr(sT1)}")
    h(f"s_cselect_b32 {sr(sSTEPV)}, 1, -1")
    h(f"s_mul_i32 {sr(sSTEP)}, {sr(sSTEPV)}, {2 * NH * 4096}")
    h(f"s_mul_i32 {sr(sSTEPV)}, {sr(sSTEPV)}, {2 * NH * VT}")
    h(f"s_lshl_b32 {sr(sT1)}, {sr(sT0)}, 12")
    h(f"s_add_u32 {sr(sT1)}, {sr(sT1)}, {L_K}")
    h(f"s_mul_i32 {sr(sT2)}, {sr(sT0)}, {VT}")
    h(f"s_add_u32 {sr(sT2)}, {sr(sT2)}, {L_V + 2 * VT}")
    tile_addrs(h, sr(sT1), sr(sT2))
    h(f"s_lshl_b32 {sr(sREC)}, {sr(sHEAD)}, 3")
    h(f"s_add_u32 {sr(sREC)}, {sr(sREC)}, {sr(sCHUNK)}")
    h(f"s_lshl_b32 {sr(sREC)}, {sr(sREC)}, 11")
    h(f"s_getreg_b32 {sr(sX)}, hwreg(HW_REG_XCC_ID, 0, 4)")
    h(f"s_mul_i32 {sr(sT2)}, {sr(sX)}, {sr(sX)}")
    h(f"s_lshl_b32 {sr(sT2)}, {sr(sT2)}, 13")
    h(f"s_lshl_b32 {sr(sX)}, {sr(sX)}, 5")
    h(f"s_add_u32 {sr(sX)}, {sr(sX)}, {sr(sT2)}")
    h(f"s_add_u32 {sr(sX)}, {sr(sX)}, 1")
    h(f"s_add_u32 {sr(sREQ)}, {sr(sREC)}, {1 << 20}")
    if opt.get("tlbw"):
        h(f"s_lshl_b32 {sr(sT0)}, {sr(sHEAD)}, 14")
        h(f"buffer_load_dword v162, {vr(vSW1)}, {sr(S_WS, 4)}, {sr(sT0)} offen offset:1536")
        h(f"s_add_u32 {sr(sT0)}, {sr(sT0)}, {1 << 20}")
        h(f"buffer_load_dword v163, {vr(vSW1)}, {sr(S_WS, 4)}, {sr(sT0)} offen offset:1536")
    h.wait_vm_all()
    h.label("L_hloop")
    poll(h, sr(sNEED))
    h(f"s_lshr_b32 {sr(sT1)}, {sr(sNEED)}, 1")
    h(f"s_add_u32 {sr(sT1)}, {sr(sT1)}, 15")
    h(f"s_add_u32 {sr(sNEEDV)}, {sr(sNEED)}, 2")
    h(f"s_min_u32 {sr(sNEEDV)}, {sr(sNEEDV)}, 17")
    if not NOCOMP:
        for i in range(8):
            h(f"ds_read_b128 {vr(hK + 4 * i, 4)}, {vr(vKA + i % 4)} offset:{4096 * (i // 4)}")
        hvr = [f"ds_read_b64_tr_b16 {vr(hV + 4 * T + 2 * j, 2)}, {vr(vVA + T // 2)} offset:{VT * j + 32 * (T % 2)}" for T in range(8) for j in range(2)]
        for i in range(8):
            t, s = i // 4, i % 4
            h(mfma(hS + 4 * t, hK + 4 * i, vQR + 4 * s, None if s == 0 else hS + 4 * t))
    set_bit(h, sr(sT1))
    if not NOCOMP:
        for op in max_tree([hS + i for i in range(8)], vT0) + allreduce_ops("v_max_f32", vT0, vT1):
            h(op)
        h(f"v_mul_f32 {vr(vT0)}, {sr(sC)}, {vr(vT0)}")
        h(f"v_max_f32 {vr(vT0)}, {vr(vT0)}, {vr(vM)}")
        h(f"v_sub_f32 {vr(vT1)}, {vr(vM)}, {vr(vT0)}")
        h(f"v_exp_f32 {vr(vT1)}, {vr(vT1)}")
        h(f"v_mov_b32 {vr(vM)}, {vr(vT0)}")
        for i in range(8):
            h(f"v_fma_f32 {vr(hS + i)}, {vr(hS + i)}, {sr(sC)}, -{vr(vT0)}")
        for i in range(8):
            h(f"v_exp_f32 {vr(hS + i)}, {vr(hS + i)}")
        for i in range(33):
            h(f"v_mul_f32 {vr(hO + i)}, {vr(hO + i)}, {vr(vT1)}")
        for k in range(4):
            h(f"v_cvt_pk_bf16_f32 {vr(hS + k)}, {vr(hS + 2 * k)}, {vr(hS + 2 * k + 1)}")
        h(mfma(hL, vONE, hS, hL))
    poll(h, sr(sNEEDV))
    if not NOCOMP:
        for op in hvr:
            h(op)
    tile_addrs(h, sr(sSTEP), sr(sSTEPV))
    if not NOCOMP:
        for T in range(8):
            h(mfma(hO + 4 * T, hV + 4 * T, hS, hO + 4 * T))
    h(f"s_add_u32 {sr(sNEED)}, {sr(sNEED)}, {2 * NH}")
    h(f"s_cmp_le_u32 {sr(sNEED)}, 16")
    h.flush()
    h("s_cbranch_scc1 L_hloop")
    stamp(h, 1)
    if not NOCOMP:
        h(f"v_mov_b32 {vr(vM + 1)}, {vr(hL)}")
        h("s_mov_b32 exec_lo, 0x00030003")
        h("s_mov_b32 exec_hi, 0x00030003")
        for T in range(8):
            h(f"ds_write_b128 {vr(vA)}, {vr(hO + 4 * T, 4)} offset:{64 * T}")
        h("s_mov_b64 exec, 3")
        h(f"ds_write_b64 {vr(vSR)}, {vr(vM, 2)} offset:1024")
        h("s_mov_b64 exec, -1")
        h(f"s_cmp_lg_u32 {sr(sW)}, 0")
        h("s_cbranch_scc1 L_hmerge")
        h0 = h.fork()
        keepq = list(h.ds_q)
        h.wait_lgkm_all()
        set_bit(h, 24)
        h("s_branch L_hdone")
        h.raw("L_hmerge:")
        h.ds_q = keepq
        h(f"s_mov_b32 {sr(sT2)}, {1 << 24}")
        poll_bits(h, sr(sT2))
        cA, cB, cM = 56, 60, 64
        h(f"ds_read_b64 {vr(cM, 2)}, {vr(vSW)} offset:{L_MRG + 1024}")
        h(f"ds_read_b64 {vr(cM + 2, 2)}, {vr(vSW)} offset:{L_MRG + 1056 + 1024}")
        h(f"ds_read_b128 {vr(cA, 4)}, {vr(vSW0)} offset:{L_MRG}")
        h(f"ds_read_b128 {vr(cB, 4)}, {vr(vSW0)} offset:{L_MRG + 1056}")
        h(f"s_lshl_b32 {sr(sT0)}, {sr(sHEAD)}, 2")
        h(f"v_mov_b32 v0, {sr(sX)}")
        h(f"v_max_f32 {vr(vM)}, {vr(cM)}, {vr(cM + 2)}")
        h(f"v_sub_f32 {vr(cM)}, {vr(cM)}, {vr(vM)}")
        h(f"v_sub_f32 {vr(cM + 2)}, {vr(cM + 2)}, {vr(vM)}")
        h(f"v_exp_f32 {vr(cM)}, {vr(cM)}")
        h(f"v_exp_f32 {vr(cM + 2)}, {vr(cM + 2)}")
        for r in range(4):
            h(f"v_mul_f32 {vr(cA + r)}, {vr(cA + r)}, {vr(cM)}")
        h(f"v_mul_f32 {vr(vM + 1)}, {vr(cM + 1)}, {vr(cM)}")
        for r in range(4):
            h(f"v_fmac_f32 {vr(cA + r)}, {vr(cB + r)}, {vr(cM + 2)}")
        h(f"v_fmac_f32 {vr(vM + 1)}, {vr(cM + 3)}, {vr(cM + 2)}")
        h(f"buffer_store_dwordx4 {vr(cA, 4)}, {vr(vSW0)}, {sr(S_WS, 4)}, {sr(sREC)} offen sc1")
        if DUAL != "none":
            h(f"buffer_store_dwordx4 {vr(cA, 4)}, {vr(vSW0)}, {sr(S_WS, 4)}, {sr(sREQ)} offen")
        h("s_mov_b32 exec_lo, 0xff")
        h("s_mov_b32 exec_hi, 0xff")
        h(f"buffer_store_dwordx2 {vr(vM, 2)}, {vr(vGK)}, {sr(S_WS, 4)}, {sr(sREC)} offen offset:1024 sc1")
        if DUAL != "none":
            h(f"buffer_store_dwordx2 {vr(vM, 2)}, {vr(vGK)}, {sr(S_WS, 4)}, {sr(sREQ)} offen offset:1024")
        h("s_mov_b64 exec, 1")
        h(f"v_mov_b32 {vr(vT2)}, {1 << 25}")
        if GATE >= 0 and GATEP:
            h(f"ds_or_b32 {vr(vFLAG)}, {vr(vT2)} offset:4")
        h.wait_vm_all()
        stamp(h, 2)
        h(f"buffer_atomic_add v0, off, {sr(S_DBG, 4)}, {sr(sT0)} sc0")
        if GATE >= 0 and not GATEP:
            h(f"ds_or_b32 {vr(vFLAG)}, {vr(vT2)} offset:4")
        h(f"v_readfirstlane_b32 {sr(sT1)}, v0")
        h("s_mov_b64 exec, -1")
        stamp(h, 3)
        h(f"s_and_b32 {sr(sT2)}, {sr(sT1)}, 31")
        h(f"s_cmp_eq_u32 {sr(sT2)}, 7")
        h.flush()
        h("s_cbranch_scc0 L_hdone")
        cO, cW = 56, 96
        h(f"s_lshl_b32 {sr(sREC)}, {sr(sHEAD)}, 14")

        def rec_loads(mod):
            h.vm_q = []
            h(f"buffer_load_dwordx2 {vr(vM, 2)}, {vr(vSW1)}, {sr(S_WS, 4)}, {sr(sREC)} offen offset:1024{mod}")
            for i in range(8):
                if i % 2 == 0 and i:
                    h(f"s_add_u32 {sr(sREC)}, {sr(sREC)}, 4096")
                h(f"buffer_load_dwordx4 {vr(cO + 4 * i, 4)}, {vr(vSW0)}, {sr(S_WS, 4)}, {sr(sREC)} offen offset:{2048 * (i % 2)}{mod}")
        if DUAL != "none":
            h(f"s_mul_i32 {sr(sX)}, {sr(sX)}, 7")
            h(f"s_cmp_eq_u32 {sr(sX)}, {sr(sT1)}")
            h("s_cbranch_scc0 L_far")
            h(f"s_add_u32 {sr(sREC)}, {sr(sREC)}, {1 << 20}")
            rec_loads("" if DUAL == "plain" else " " + DUAL)
            h("s_branch L_got")
            h.raw("L_far:")
        rec_loads(" sc1")
        h.raw("L_got:")
        SWZ = (0x041F, 0x081F, 0x101F)
        h(f"v_mov_b32 {vr(vT0)}, {vr(vM)}")
        stamp(h, 5)
        for x in SWZ:
            h(f"ds_swizzle_b32 {vr(vT1)}, {vr(vT0)} offset:{x:#x}")
            h(f"v_max_f32 {vr(vT0)}, {vr(vT0)}, {vr(vT1)}")
        h(f"v_sub_f32 {vr(vM)}, {vr(vM)}, {vr(vT0)}")
        h(f"v_exp_f32 {vr(vM)}, {vr(vM)}")
        h(f"v_mul_f32 {vr(vT0)}, {vr(vM)}, {vr(vM + 1)}")
        for i in range(8):
            h(f"ds_swizzle_b32 {vr(cW + i)}, {vr(vM)} offset:{(i << 5) | 0x18:#x}")
        for x in SWZ:
            h(f"ds_swizzle_b32 {vr(vT1)}, {vr(vT0)} offset:{x:#x}")
            h(f"v_add_f32 {vr(vT0)}, {vr(vT0)}, {vr(vT1)}")
        h(f"v_rcp_f32 {vr(vT0)}, {vr(vT0)}")
        if STAMP:
            h.wait_vm_all()
            stamp(h, 4)
        for i in range(8):
            for r in range(4):
                h(f"{'v_fmac_f32' if i else 'v_mul_f32'} {vr(vKA + r)}, {vr(cW + i)}, {vr(cO + 4 * i + r)}")
        for r in range(4):
            h(f"v_mul_f32 {vr(vKA + r)}, {vr(vKA + r)}, {vr(vT0)}")
        h(f"v_cvt_pk_bf16_f32 {vr(vVA)}, {vr(vKA)}, {vr(vKA + 1)}")
        h(f"v_cvt_pk_bf16_f32 {vr(vVA + 1)}, {vr(vKA + 2)}, {vr(vKA + 3)}")
        h(f"buffer_store_dwordx2 {vr(vVA, 2)}, {vr(vSO)}, {sr(S_O, 4)}, {sr(sHEADOFF)} offen sc1")
        h.label("L_hdone")
    dump_stamps(h, "h")
    h.raw("L_end:")
    h("s_endpgm")

    tailtxt = f""".section .rodata,"a"
.p2align 6
.amdhsa_kernel {NAME}_kernel
  .amdhsa_next_free_vgpr 168
  .amdhsa_next_free_sgpr 98
  .amdhsa_accum_offset 168
  .amdhsa_group_segment_fixed_size 0
  .amdhsa_kernarg_size 64
  .amdhsa_user_sgpr_count 2
  .amdhsa_user_sgpr_kernarg_segment_ptr 1
  .amdhsa_system_sgpr_workgroup_id_x 1
.end_amdhsa_kernel
"""
    txt = e.text() + ld.text() + c.text() + m.text() + b2.text() + h.text()
    if not NOCOMP:
        txt += ed.text()
    return txt + "L_codeend:\n" + tailtxt


if __name__ == "__main__":
    out = sys.argv[1]
    opt = {}
    for a in sys.argv[2:]:
        k, _, v = a.partition("=")
        opt[k] = v if v else True
        if k in ("st", "stb", "ld", "qld"):
            opt[k] = (" " + v.replace("+", " ")) if v != "none" else ""
    open(out, "w").write(gen(opt))
```

```python
import sys
import math
import struct
from asmgen import Emitter, vr, sr

NAME = "standalone__global_local_windowed_global_tokens__prompt"

HEADER = """; Kernarg layout for this problem (64 bytes, ptrs only, base s[0:1]):
;   offset   0: d_in[0] q  shape=(1, 32, 2048, 128) dtype=bfloat16 strides=(16777216, 524288, 256, 2) contiguous=True
;   offset   8: d_in[1] k  shape=(1, 32, 2048, 128) dtype=bfloat16 strides=(16777216, 524288, 256, 2) contiguous=True
;   offset  16: d_in[2] v  shape=(1, 32, 2048, 128) dtype=bfloat16 strides=(16777216, 524288, 256, 2) contiguous=True
;   offset  24: d_in[3] window  shape=(1,) dtype=int32 strides=(4,) contiguous=True
;   offset  32: d_in[4] n_global  shape=(1,) dtype=int32 strides=(4,) contiguous=True
;
;   wave 0      streams the chunk's K and V tiles (16 rows each) into LDS by DMA, publishes its progress in
;               an LDS word, and afterwards stores the output tiles that the first round parked in LDS
;   waves 1,2   query rows 0,1 (global rows) against the chunk's 256 keys with a running max; the merged
;               partial (max, sum, O) goes to d_ws, a ticket in d_debug tells the last of a head's 8
;               (16x16x32 MFMA, band masks enter as the accumulator's start value), exact softmax,
;               O^T = V^T P^T with transposing LDS reads, row-contiguous stores through LDS
"""


def f32bits(x):
    return struct.unpack("<I", struct.pack("<f", x))[0]


def merge(a, b):
    out, nb = [], 0
    for i, x in enumerate(a):
        out.append(x)
        want = (i + 1) * len(b) // len(a)
        out += b[nb:want]
        nb = want
    return out + b[nb:]


def gen(opt):
    LD = opt.get("ld", "")
    QLD = opt.get("qld", "")
    ST = opt.get("st", " sc1")
    STB = opt.get("stb", ST)
    NOCOMP = opt.get("nocomp", False)
    PROBE = opt.get("probe", None)
    GPROBE = opt.get("gprobe", None)
    STAMP = opt.get("stamp", False) or PROBE or GPROBE
    D = int(opt.get("depth", 3))
    SLEEP = int(opt.get("sleep", 1))
    WIN = int(opt.get("win", 8 * D))
    HALF = int(opt.get("half", 63))
    assert WIN <= 8 * D
    QLEAD = int(opt.get("qlead", 0))
    QL2 = int(opt.get("ql2", 0))
    THRMIN = int(opt.get("thrmin", 0))
    EW = int(opt.get("ew", 6))
    PST = int(opt.get("pst", 32))
    DUAL = opt.get("dual", "none")
    PRIOW = int(opt.get("priow", 99))
    PRIOH = int(opt.get("prioh", 0))
    ROT = int(opt.get("rot", 6))
    PK = opt.get("pk", False)
    QDIR = opt.get("qdir", False)
    HP = int(opt.get("hp", 11))
    assert 11 <= HP <= 14
    GATE = int(opt.get("gate", -1))
    GATEP = opt.get("gatep", False)
    WX = int(opt.get("wx", 0))
    PRIOV = int(opt.get("priov", 2))
    CPF = int(opt.get("cpf", 0))
    PTS = opt.get("pts", "A2,A6,B1,B2,B6").split(",")
    assert len(PTS) == 5 and D >= 2
    assert all(((w + ROT) & 7) < 6 for w in range(EW, 8))

    TB = 32 * 2048 * 256
    HEADB = 2048 * 256
    L_STAGE, L_GK, L_GV, L_FLAG, L_K, L_V = 0, 8192, 9216, 10240, 13824, 79360
    L_MRG = 10368
    VT, VP = 4224, 1056
    NH = 2
    NWAVE = 9 + NH
    NEG = f32bits(-1.0e30)
    CSCALE = f32bits((128 ** -0.5) * math.log2(math.e))

    S_Q, S_K, S_V, S_O, S_DBG, S_WS = 20, 24, 28, 32, 36, 40
    sWAVE, sHEADOFF, sROW0, sT0, sT1, sT2 = 44, 45, 46, 47, 48, 49
    sQOFF, sNEG, sQ0, sHEAD, sCHUNK, sDESC = 50, 51, 52, 53, 54, 55
    sEX = 56
    sC = 58
    sTS = 60
    sB, sIT, sNEED, sX, sCNT, sW, sHI, sREC, sSTEP, sXV, sSTEPV, sPARK, sREQ, sB2 = range(80, 94)
    sNEEDV = 95
    sMASK = 2

    vKA, vVA, vSW0, vSW1, vGK, vN, vG, vG4 = 2, 6, 10, 11, 12, 13, 14, 15
    vFLAG, vSW, vT0, vT1, vONE, vSR, vSO, vT3, vT2 = 16, 17, 18, 19, 20, 24, 25, 26, 27
    vQR, vS, vOX, vPOOL, vGV = 28, 44, 68, 92, 164

    uid = [0]

    def newid():
        uid[0] += 1
        return uid[0]

    def stamp(em, i):
        if STAMP:
            em(f"s_memrealtime {sr(sTS + 2 * i, 2)}")

    def stamp_it(em, k, only=None):
        if not STAMP:
            return
        for it, nm in ((0, f"A{k}"), (1, f"B{k}")):
            if nm in PTS and only in (None, it):
                if only is None:
                    u = newid()
                    em(f"s_cmp_eq_u32 {sr(sIT)}, {it}")
                    em(f"s_cbranch_scc0 L_sa{u}")
                stamp(em, PTS.index(nm) + 1)
                if only is None:
                    em.raw(f"L_sa{u}:")

    def poll(em, need):
        u = newid()
        em.label(f"L_poll{u}")
        em(f"ds_read_b32 {vr(vT2)}, {vr(vFLAG)}")
        em(f"v_readfirstlane_b32 {sr(sT0)}, {vr(vT2)}")
        em(f"s_cmp_ge_i32 {sr(sT0)}, {need}")
        em(f"s_cbranch_scc1 L_pdone{u}")
        if SLEEP:
            em(f"s_sleep {SLEEP}")
        em(f"s_branch L_poll{u}")
        em.raw(f"L_pdone{u}:")

    def poll_pre(em, need, reg):
        u = newid()
        em(f"v_readfirstlane_b32 {sr(sT0)}, {vr(reg)}")
        em(f"s_cmp_ge_i32 {sr(sT0)}, {need}")
        em(f"s_cbranch_scc1 L_pdone{u}")
        keep = (list(em.ds_q), list(em.hist))
        em.lines.append(f"L_poll{u}:")
        em(f"ds_read_b32 {vr(reg)}, {vr(vFLAG)}")
        em(f"v_readfirstlane_b32 {sr(sT0)}, {vr(reg)}")
        em(f"s_cmp_ge_i32 {sr(sT0)}, {need}")
        em(f"s_cbranch_scc0 L_poll{u}")
        em.raw(f"L_pdone{u}:")
        em.ds_q, em.hist = keep

    def poll_bits(em, smask, first_read_done=False):
        u = newid()
        if first_read_done:
            em(f"v_readfirstlane_b32 {sr(sT0)}, {vr(vT2)}")
            em(f"s_andn2_b32 {sr(sT0)}, {smask}, {sr(sT0)}")
            em(f"s_cbranch_scc0 L_pdone{u}")
            keep = (list(em.ds_q), list(em.hist))
            em.lines.append(f"L_poll{u}:")
        else:
            em.label(f"L_poll{u}")
        em(f"ds_read_b32 {vr(vT2)}, {vr(vFLAG)} offset:4")
        em(f"v_readfirstlane_b32 {sr(sT0)}, {vr(vT2)}")
        em(f"s_andn2_b32 {sr(sT0)}, {smask}, {sr(sT0)}")
        em(f"s_cbranch_scc0 L_pdone{u}")
        if SLEEP:
            em(f"s_sleep {SLEEP}")
        em(f"s_branch L_poll{u}")
        em.raw(f"L_pdone{u}:")
        if first_read_done:
            em.ds_q, em.hist = keep

    def set_bit(em, sbit):
        em(f"s_lshl_b32 {sr(sT0)}, 1, {sbit}")
        em(f"v_mov_b32 {vr(vT2)}, {sr(sT0)}")
        em("s_mov_b64 exec, 1")
        em(f"ds_or_b32 {vr(vFLAG)}, {vr(vT2)} offset:4")
        em("s_mov_b64 exec, -1")

    def park_addr(em, sw, dst):
        em(f"s_sub_u32 {sr(sT1)}, 19, {sw}")
        em(f"s_cmp_eq_u32 {sr(sDESC)}, 0")
        em(f"s_cselect_b32 {sr(sT1)}, {sw}, {sr(sT1)}")
        em(f"s_mul_i32 {sr(sT2)}, {sr(sT1)}, {VT}")
        em(f"s_add_u32 {sr(sT2)}, {sr(sT2)}, {L_V}")
        em(f"s_lshl_b32 {sr(sT1)}, {sr(sT1)}, 12")
        em(f"s_add_u32 {sr(sT1)}, {sr(sT1)}, {L_K - 8192}")
        em(f"s_cmp_lt_u32 {sw}, 2")
        em(f"s_cselect_b32 {dst}, {sr(sT2)}, {sr(sT1)}")

    def stage_read_addrs(em):
        em(f"v_lshrrev_b32 {vr(vT0)}, 2, {vr(vN)}")
        em(f"v_add_u32 {vr(vT2)}, {vr(vG4)}, {vr(vT0)}")
        em(f"v_and_b32 {vr(vT1)}, 3, {vr(vN)}")
        em(f"v_lshlrev_b32 {vr(vSO)}, 4, {vr(vT1)}")
        em(f"v_lshl_add_u32 {vr(vSO)}, {vr(vT2)}, 8, {vr(vSO)}")
        em(f"v_bfe_u32 {vr(vSR)}, {vr(vT2)}, 1, 2")
        em(f"v_xor_b32 {vr(vSR)}, {vr(vSR)}, {vr(vT1)}")
        em(f"v_lshlrev_b32 {vr(vSR)}, 4, {vr(vSR)}")
        em(f"v_lshl_add_u32 {vr(vSR)}, {vr(vT2)}, 6, {vr(vSR)}")

    def dump_stamps(em, tagn):
        if not STAMP:
            return
        stamp(em, 6)
        em("s_waitcnt vmcnt(0)")
        stamp(em, 7)
        em("s_memtime s[78:79]")
        em("s_waitcnt lgkmcnt(0)")
        if GPROBE:
            role, which, fac = GPROBE.split(",")
            which, fac = int(which), int(fac)
            nrep = {"l": 256, "m": 2048 + 256, "h": 512 + 256, "a": 2816}[role]
            em("s_mov_b64 exec, 1")
            if tagn == "l":
                em(f"s_not_b32 {sr(sT0)}, {sr(sTS)}")
                em(f"v_mov_b32 v0, {sr(sT0)}")
                em(f"buffer_atomic_umax v0, off, {sr(S_DBG, 4)}, 0 offset:128")
            if role in (tagn, "a"):
                em(f"v_mov_b32 v1, {sr(sTS + 2 * which)}")
                em(f"buffer_atomic_umax v1, off, {sr(S_DBG, 4)}, 0 offset:132")
            if role in (tagn, "a") or tagn == "l":
                em("v_mov_b32 v2, 1")
                em("s_waitcnt vmcnt(0)")
                em(f"buffer_atomic_add v2, off, {sr(S_DBG, 4)}, 0 offset:136")
            if tagn == "l":
                em(f"s_cmp_eq_u32 {sr(sWG)}, 100")
                em("s_cbranch_scc0 L_gp_done")
                em.label("L_gp1")
                em(f"buffer_load_dwordx4 v[4:7], off, {sr(S_DBG, 4)}, 0 offset:128 sc1")
                em("s_waitcnt vmcnt(0)")
                em(f"v_readfirstlane_b32 {sr(sT0)}, v6")
                em("s_sleep 8")
                em(f"s_cmp_ge_u32 {sr(sT0)}, {nrep}")
                em("s_cbranch_scc0 L_gp1")
                em(f"buffer_load_dwordx4 v[4:7], off, {sr(S_DBG, 4)}, 0 offset:128 sc1")
                em("s_waitcnt vmcnt(0)")
                em(f"v_readfirstlane_b32 {sr(sT2)}, v4")
                em(f"v_readfirstlane_b32 {sr(sT0)}, v5")
                em(f"s_not_b32 {sr(sT2)}, {sr(sT2)}")
                em(f"s_sub_u32 {sr(sT0)}, {sr(sT0)}, {sr(sT2)}")
                em(f"s_min_u32 {sr(sT0)}, {sr(sT0)}, 5000")
                em(f"s_mul_i32 {sr(sT0)}, {sr(sT0)}, {fac}")
                em(f"s_add_u32 {sr(sT0)}, {sr(sT0)}, 15000")
                em.label("L_gp2")
                em("s_memrealtime s[78:79]")
                em("s_waitcnt lgkmcnt(0)")
                em(f"s_sub_u32 {sr(sT1)}, s78, {sr(sT2)}")
                em(f"s_cmp_lt_u32 {sr(sT1)}, {sr(sT0)}")
                em("s_cbranch_scc1 L_gp2")
                em.label("L_gp_done")
            em.vm_q = []
            return
        if PROBE:
            which, fac, pw = (int(x) for x in PROBE.split(","))
            em(f"s_cmp_eq_u32 {sr(sWG)}, 100")
            em(f"s_cbranch_scc0 L_probe_done{tagn}")
            em(f"s_cmp_eq_u32 {sr(sWAVE)}, {pw}")
            em(f"s_cbranch_scc0 L_probe_done{tagn}")
            em(f"s_sub_u32 {sr(sT0)}, {sr(sTS + 2 * which)}, {sr(sTS)}")
            em(f"s_mul_i32 {sr(sT0)}, {sr(sT0)}, {fac}")
            em(f"s_add_u32 {sr(sT0)}, {sr(sT0)}, 5000")
            em.label(f"L_probe{tagn}")
            em("s_memrealtime s[78:79]")
            em("s_waitcnt lgkmcnt(0)")
            em(f"s_sub_u32 {sr(sT1)}, s78, {sr(sTS)}")
            em(f"s_cmp_lt_u32 {sr(sT1)}, {sr(sT0)}")
            em(f"s_cbranch_scc1 L_probe{tagn}")
            em.label(f"L_probe_done{tagn}")
            return
        em("s_sub_u32 s76, s78, s76")
        if tagn == "m":
            em(f"s_mov_b32 {sr(sT1)}, {sr(sW)}")
        else:
            em(f"s_add_u32 {sr(sT1)}, {sr(sWAVE)}, 8")
        em(f"s_mul_i32 {sr(sT0)}, {sr(sWG)}, {NWAVE}")
        em(f"s_add_u32 {sr(sT0)}, {sr(sT0)}, {sr(sT1)}")
        em(f"s_lshl_b32 {sr(sT0)}, {sr(sT0)}, 6")
        em(f"s_add_u32 {sr(sT0)}, {sr(sT0)}, {0x800000}")
        for i in range(9):
            em(f"v_mov_b32 {vr(vPOOL + i)}, {sr(sTS + 2 * i)}")
        em("v_mov_b32 v0, 0")
        em("s_mov_b64 exec, 1")
        em(f"buffer_store_dwordx4 {vr(vPOOL, 4)}, v0, {sr(S_WS, 4)}, {sr(sT0)} offen")
        em(f"buffer_store_dwordx4 {vr(vPOOL + 4, 4)}, v0, {sr(S_WS, 4)}, {sr(sT0)} offen offset:16")
        em(f"buffer_store_dword {vr(vPOOL + 8)}, v0, {sr(S_WS, 4)}, {sr(sT0)} offen offset:32")
        em(f"s_getreg_b32 {sr(sT1)}, hwreg(HW_REG_XCC_ID, 0, 4)")
        em(f"v_mov_b32 {vr(vPOOL + 9)}, {sr(sT1)}")
        em(f"buffer_store_dword {vr(vPOOL + 9)}, v0, {sr(S_WS, 4)}, {sr(sT0)} offen offset:36")

    sWG = 94

    e = Emitter()
    e.raw(HEADER + f"; @launch grid=(256,1,1) block=({64 * NWAVE},1,1) lds=163840")
    e.raw('.amdgcn_target "amdgcn-amd-amdhsa--gfx950"')
    e.raw(".text")
    e.raw(f".globl {NAME}_kernel")
    e.raw(".p2align 8")
    e.raw(f".type {NAME}_kernel,@function")
    e.raw(f"{NAME}_kernel:")
    e("s_load_dwordx4 s[4:7], s[0:1], 0")
    e("s_load_dwordx2 s[8:9], s[0:1], 16")
    e("s_cmp_ge_u32 s2, 256")
    e("s_cbranch_scc1 L_end")
    stamp(e, 0)
    if STAMP:
        e("s_memtime s[76:77]")
        e(f"s_mov_b32 {sr(sWG)}, s2")
        for i in range(1, 6):
            e(f"s_mov_b64 {sr(sTS + 2 * i, 2)}, 0")
    e(f"v_readfirstlane_b32 {sr(sWAVE)}, v0")
    e(f"v_and_b32 {vr(vN)}, 15, v0")
    e(f"v_bfe_u32 {vr(vG)}, v0, 4, 2")
    e(f"s_and_b32 {sr(sT0)}, s2, 7")
    e(f"s_lshr_b32 {sr(sT1)}, s2, 6")
    e(f"s_lshl2_add_u32 {sr(sHEAD)}, {sr(sT0)}, {sr(sT1)}")
    e(f"s_bfe_u32 {sr(sCHUNK)}, s2, 0x30003")
    e(f"s_lshl_b32 {sr(sHEADOFF)}, {sr(sHEAD)}, 19")
    e(f"s_lshl_b32 {sr(sT0)}, {sr(sCHUNK)}, 16")
    e(f"s_add_u32 {sr(sROW0)}, {sr(sHEADOFF)}, {sr(sT0)}")
    e(f"s_add_u32 {sr(sHI)}, {sr(sHEADOFF)}, {HEADB - 4096}")
    e(f"s_and_b32 {sr(sDESC)}, {sr(sCHUNK)}, 1")
    e(f"v_lshlrev_b32 {vr(vG4)}, 2, {vr(vG)}")
    e(f"v_mov_b32 {vr(vFLAG)}, {L_FLAG}")
    e(f"s_mov_b32 {sr(S_K + 2)}, {TB}")
    e(f"s_mov_b32 {sr(S_K + 3)}, 0x20000")
    e(f"s_lshr_b32 {sr(sWAVE)}, {sr(sWAVE)}, 6")
    e("s_cbranch_scc1 L_notloader")

    def other_srds(em, which):
        em("s_load_dwordx4 s[12:15], s[0:1], 40")
        em("s_load_dwordx2 s[16:17], s[0:1], 56")
        em(f"s_mov_b32 {sr(S_O + 2)}, {TB}")
        em(f"s_mov_b32 {sr(S_O + 3)}, 0x20000")
        em(f"s_mov_b32 {sr(S_DBG + 2)}, 256")
        em(f"s_mov_b32 {sr(S_DBG + 3)}, 0x20000")
        em(f"s_mov_b32 {sr(S_WS + 2)}, {0x1000000}")
        em(f"s_mov_b32 {sr(S_WS + 3)}, 0x20000")

    def other_srds_done(em):
        em("s_waitcnt lgkmcnt(0)")
        for b, src in ((S_O, 12), (S_DBG, 14), (S_WS, 16)):
            em(f"s_mov_b64 {sr(b, 2)}, {sr(src, 2)}")

    ld = e.fork()
    vKD, vVD, vCNT = 2, 6, 8
    ld(f"v_lshlrev_b32 v0, 8, {vr(vG)}")
    ld(f"v_xor_b32 {vr(vVD)}, {vr(vG4)}, {vr(vN)}")
    ld(f"v_lshl_add_u32 {vr(vVD)}, {vr(vVD)}, 4, v0")
    ld(f"v_xor_b32 {vr(vKD)}, {vr(vG)}, {vr(vN)}")
    ld(f"v_lshl_add_u32 {vr(vKD)}, {vr(vKD)}, 4, v0")
    ld(f"s_mov_b32 {sr(S_V + 2)}, {TB}")
    ld(f"s_mov_b32 {sr(S_V + 3)}, 0x20000")
    ld(f"v_mov_b32 {vr(vCNT)}, 0")
    ld(f"v_mov_b32 {vr(vCNT + 1)}, 0")
    ld(f"s_mov_b32 m0, {L_GK}")
    ld("s_waitcnt lgkmcnt(0)")
    ld(f"s_mov_b64 {sr(S_K, 2)}, s[6:7]")
    ld(f"s_mov_b64 {sr(S_V, 2)}, s[8:9]")

    def v_halo(em, hi_when_desc):
        em(f"s_cmp_eq_u32 {sr(sDESC)}, {1 if hi_when_desc else 0}")
        em(f"s_cselect_b32 {sr(sT0)}, {18 * VT}, 0")
        em(f"s_cselect_b32 {sr(sT1)}, {18 * 4096}, 0")
        em(f"s_add_u32 {sr(sT1)}, {sr(sT1)}, {sr(sROW0)}")
        em(f"s_sub_u32 {sr(sT1)}, {sr(sT1)}, 8192")
        for k in range(2):
            em(f"s_max_i32 {sr(sT2)}, {sr(sT1)}, {sr(sHEADOFF)}")
            em(f"s_min_i32 {sr(sT2)}, {sr(sT2)}, {sr(sHI)}")
            for j in range(4):
                em(f"s_add_u32 m0, {sr(sT0)}, {L_V + VT * k + 32 * j}")
                if k == 0 and j == 0:
                    em(f"s_add_u32 {sr(sT1)}, {sr(sT1)}, 4096")
                em(f"buffer_load_dwordx4 {vr(vVD)}, {sr(S_V, 4)}, {sr(sT2)} offen offset:{1024 * j}{LD} lds")

    ld(f"buffer_load_dwordx4 {vr(vKD)}, {sr(S_K, 4)}, {sr(sHEADOFF)} offen lds")
    stamp(ld, 5)
    ld(f"s_mov_b32 m0, {L_GV}")
    ld(f"buffer_load_dwordx4 {vr(vVD)}, {sr(S_V, 4)}, {sr(sHEADOFF)} offen lds")
    ld(f"ds_write_b64 {vr(vFLAG)}, {vr(vCNT, 2)}")
    v_halo(ld, True)
    for j in range(1, 4):
        ld(f"v_xor_b32 {vr(vKD + j)}, {64 * j}, {vr(vKD)}")
    ld("s_waitcnt lgkmcnt(0)")
    if opt.get("stbar"):
        stamp(ld, 1)
    ld("s_barrier")
    if opt.get("stbar"):
        stamp(ld, 2)
    ld(f"s_mul_i32 {sr(sX)}, {sr(sDESC)}, {15 * 4096}")
    ld(f"s_mul_i32 {sr(sSTEP)}, {sr(sDESC)}, -8192")
    ld(f"s_add_u32 {sr(sSTEP)}, {sr(sSTEP)}, 4096")
    ld(f"s_mul_i32 {sr(sXV)}, {sr(sDESC)}, {15 * VT}")
    ld(f"s_add_u32 {sr(sXV)}, {sr(sXV)}, {L_V + 2 * VT}")
    ld(f"s_mul_i32 {sr(sSTEPV)}, {sr(sDESC)}, {-2 * VT}")
    ld(f"s_add_u32 {sr(sSTEPV)}, {sr(sSTEPV)}, {VT}")
    def k_tile():
        ld(f"s_add_u32 {sr(sT1)}, {sr(sX)}, {sr(sROW0)}")
        ld(f"s_add_u32 m0, {sr(sX)}, {L_K}")
        ld(f"s_add_u32 {sr(sX)}, {sr(sX)}, {sr(sSTEP)}")
        for j in range(4):
            ld(f"buffer_load_dwordx4 {vr(vKD + j)}, {sr(S_K, 4)}, {sr(sT1)} offen offset:{1024 * j}{LD} lds")

    def v_tile():
        for j in range(4):
            ld(f"s_add_u32 m0, {sr(sXV)}, {32 * j}")
            ld(f"buffer_load_dwordx4 {vr(vVD)}, {sr(S_V, 4)}, {sr(sB)} offen offset:{1024 * j}{LD} lds")
        ld(f"s_add_u32 {sr(sXV)}, {sr(sXV)}, {sr(sSTEPV)}")
        ld(f"s_add_u32 {sr(sB)}, {sr(sB)}, {sr(sSTEP)}")

    ld(f"s_add_u32 {sr(sB)}, {sr(sX)}, {sr(sROW0)}")
    k_tile()
    k_tile()
    other_srds(ld, None)
    stage_read_addrs(ld)
    ld(f"s_mov_b32 {sr(sCNT)}, {2 - D}")
    ld.vm_q = []
    ld.label("L_ldloop")
    ld(f"s_cmp_eq_u32 {sr(sCNT)}, {HP + 1 - D}")
    ld("s_cbranch_scc1 L_ldhalo")
    k_tile()
    v_tile()
    ld.raw("L_ldwait:")
    ld(f"s_add_u32 {sr(sCNT)}, {sr(sCNT)}, 1")
    ld(f"v_mov_b32 {vr(vCNT)}, {sr(sCNT)}")
    ld(f"s_cmp_lt_i32 {sr(sCNT)}, {17 - D}")
    ld(f"s_waitcnt vmcnt({WIN})")
    ld(f"ds_write_b32 {vr(vFLAG)}, {vr(vCNT)}")
    ld("s_cbranch_scc1 L_ldloop")
    ld.vm_q = []
    stamp(ld, 1)
    v_tile()
    v_tile()
    stamp(ld, 2)
    hl = Emitter()
    hl.raw("L_ldhalo:")
    v_halo(hl, False)
    hl("s_branch L_ldwait")
    other_srds_done(ld)
    ld(f"s_mul_i32 {sr(sXV)}, {sr(sDESC)}, {19 * VT}")
    ld(f"s_add_u32 {sr(sXV)}, {sr(sXV)}, {L_V}")
    ld(f"s_mul_i32 {sr(sX)}, {sr(sDESC)}, {15 * 4096}")
    ld(f"s_add_u32 {sr(sQOFF)}, {sr(sX)}, {sr(sROW0)}")
    ld(f"s_add_u32 {sr(sX)}, {sr(sX)}, {L_K}")
    ld(f"s_cmp_eq_u32 {sr(sQOFF)}, {sr(sHEADOFF)}")
    ld(f"s_cselect_b32 {sr(sEX)}, 0xffffff00, -1")
    ld(f"s_mov_b32 {sr(sEX + 1)}, -1")
    ld(f"s_mov_b32 {sr(sREQ)}, 0")
    for k in range(D, -1, -1):
        ld(f"v_mov_b32 {vr(vCNT)}, {18 - k}")
        ld(f"s_waitcnt vmcnt({8 * k})")
        ld(f"ds_write_b32 {vr(vFLAG)}, {vr(vCNT)}")
        if k == 1:
            stamp(ld, 3)
    ld.vm_q = []
    stamp(ld, 4)
    def park_fetch(w):
        u = newid()
        ld(f"s_bitcmp1_b32 {sr(sREQ)}, {8 + w}")
        ld(f"s_cbranch_scc1 L_have{u}")
        keep = (list(ld.ds_q), list(ld.hist))
        ld.raw(f"L_poll{u}:")
        ld(f"ds_read_b32 {vr(vT2)}, {vr(vFLAG)} offset:4")
        ld(f"v_readfirstlane_b32 {sr(sREQ)}, {vr(vT2)}")
        ld(f"s_bitcmp1_b32 {sr(sREQ)}, {8 + w}")
        ld(f"s_cbranch_scc1 L_have{u}")
        if SLEEP:
            ld(f"s_sleep {SLEEP}")
        ld(f"s_branch L_poll{u}")
        ld.raw(f"L_have{u}:")
        ld.ds_q, ld.hist = keep
        ld(f"v_add_u32 v0, {sr(sXV if w < 2 else sX)}, {vr(vSR)}")
        if w < 2:
            ld(f"s_add_u32 {sr(sXV)}, {sr(sXV)}, {sr(sSTEPV)}")
        else:
            ld(f"s_add_u32 {sr(sX)}, {sr(sX)}, {sr(sSTEP)}")
        for k in range(4):
            ld(f"ds_read_b128 {vr(vPOOL + 16 * (w % 2) + 4 * k, 4)}, v0 offset:{1024 * k}")

    park_fetch(0)
    for w in range(8):
        if w < 7:
            park_fetch(w + 1)
        if PST < 32 and 4 * w >= PST:
            ld(f"s_waitcnt vmcnt({PST - 4})")
        if w == GATE and not NOCOMP:
            ld(f"s_mov_b32 {sr(sT2)}, {1 << 25}")
            poll_bits(ld, sr(sT2))
        if w == 0:
            ld(f"s_mov_b64 exec, {sr(sEX, 2)}")
        for k in range(4):
            ld(f"buffer_store_dwordx4 {vr(vPOOL + 16 * (w % 2) + 4 * k, 4)}, {vr(vSO)}, {sr(S_O, 4)}, {sr(sQOFF)} offen offset:{64 * k}{ST}")
        if w == 0:
            ld("s_mov_b64 exec, -1")
        ld(f"s_add_u32 {sr(sQOFF)}, {sr(sQOFF)}, {sr(sSTEP)}")
    dump_stamps(ld, "l")
    ld("s_endpgm")
    ld.lines += hl.lines
    ld.raw("L_notloader:")

    c = e.fork()
    other_srds(c, None)
    c(f"s_mov_b32 {sr(S_Q + 2)}, {TB}")
    c(f"s_mov_b32 {sr(S_Q + 3)}, 0x20000")
    stage_read_addrs(c)
    c("s_barrier")
    other_srds_done(c)
    c(f"s_mov_b64 {sr(S_K, 2)}, s[6:7]")
    c(f"s_mov_b64 {sr(S_Q, 2)}, s[4:5]")
    c(f"s_mov_b32 {sr(sC)}, {CSCALE:#x}")
    c(f"s_mov_b32 {sr(sC + 1)}, {CSCALE:#x}")
    c(f"s_mov_b32 {sr(sNEG)}, {NEG:#x}")
    c(f"s_cmp_le_u32 {sr(sWAVE)}, {NH}")
    c("s_cbranch_scc1 L_helper")

    def lane_addrs(em):
        em(f"v_xor_b32 {vr(vKA)}, {vr(vN)}, {vr(vG)}")
        em(f"v_lshlrev_b32 {vr(vKA)}, 4, {vr(vKA)}")
        em(f"v_lshl_add_u32 {vr(vKA)}, {vr(vN)}, 8, {vr(vKA)}")
        em(f"v_lshrrev_b32 {vr(vT0)}, 2, {vr(vN)}")
        em(f"v_and_b32 {vr(vT1)}, 3, {vr(vN)}")
        em(f"v_mul_u32_u24 {vr(vGV)}, {256 + 64}, {vr(vT0)}")
        em(f"v_lshl_add_u32 {vr(vGV)}, {vr(vT1)}, 3, {vr(vGV)}")
        em(f"v_mul_u32_u24 {vr(vT2)}, {VP}, {vr(vG)}")
        for s in range(1, 4):
            em(f"v_xor_b32 {vr(vKA + s)}, {64 * s}, {vr(vKA)}")
            em(f"v_xor_b32 {vr(vGV + s)}, {64 * s}, {vr(vGV)}")
        for s in range(4):
            em(f"v_add_u32 {vr(vVA + s)}, {vr(vT2)}, {vr(vGV + s)}")
        for i in range(4):
            em(f"v_mov_b32 {vr(vONE + i)}, 0x3f803f80")

    def tile_addrs(em, skoff, svoff):
        for s in range(4):
            em(f"v_add_u32 {vr(vKA + s)}, {skoff}, {vr(vKA + s)}")
            em(f"v_add_u32 {vr(vVA + s)}, {svoff}, {vr(vVA + s)}")

    def allreduce_ops(op, x, y):
        return [f"v_mov_b32 {vr(y)}, {vr(x)}", f"v_permlane32_swap_b32 {vr(x)}, {vr(y)}", f"{op} {vr(x)}, {vr(x)}, {vr(y)}",
                f"v_mov_b32 {vr(y)}, {vr(x)}", f"v_permlane16_swap_b32 {vr(x)}, {vr(y)}", f"{op} {vr(x)}, {vr(x)}, {vr(y)}"]

    def max_tree(vals, dst):
        vals = list(vals)
        ops = [f"v_max3_f32 {vr(dst)}, {vr(vals[0])}, {vr(vals[1])}, {vr(vals[2])}"]
        i = 3
        while i + 1 < len(vals):
            ops.append(f"v_max3_f32 {vr(dst)}, {vr(dst)}, {vr(vals[i])}, {vr(vals[i + 1])}")
            i += 2
        if i < len(vals):
            ops.append(f"v_max_f32 {vr(dst)}, {vr(dst)}, {vr(vals[i])}")
        return ops

    def mfma(d, a, b, cc):
        return f"v_mfma_f32_16x16x32_bf16 {vr(d, 4)}, {vr(a, 4)}, {vr(b, 4)}, {'0' if cc is None else vr(cc, 4)}"

    m = c.fork()
    KQ = [vOX + 4 * i for i in range(6)] + [vPOOL + 4 * i for i in range(18)]
    OACC = [vOX + 4 * i for i in range(5)] + [vS + 12, vS + 16, vS + 20]
    vL = vOX + 20

    def q_load(em, sb):
        em(f"s_lshl_b32 {sr(sT1)}, {sb}, 12")
        em(f"s_add_u32 {sr(sT1)}, {sr(sT1)}, {sr(sROW0)}")
        for s in range(4):
            em(f"buffer_load_dwordx4 {vr(vQR + 4 * s, 4)}, {vr(1 if QDIR else vSO)}, {sr(S_Q, 4)}, {sr(sT1)} offen offset:{64 * s}{QLD}")
        em.vm_q = []

    def k_halo(em, sb):
        u = newid()
        em(f"s_sub_u32 {sr(sT0)}, {sb}, 2")
        em(f"s_cmp_lt_u32 {sr(sT0)}, 12")
        em.flush()
        em(f"s_cbranch_scc1 L_kh{u}")
        for t in (0, 1, 3, 4):
            em(f"s_add_u32 {sr(sT0)}, {sb}, {t - 2}")
            em(f"s_cmp_lt_u32 {sr(sT0)}, 16")
            em(f"s_cbranch_scc1 L_kh{u}_{t}")
            em(f"s_lshl_b32 {sr(sT0)}, {sr(sT0)}, 12")
            em(f"s_add_u32 {sr(sT0)}, {sr(sT0)}, {sr(sROW0)}")
            em(f"s_max_i32 {sr(sT0)}, {sr(sT0)}, {sr(sHEADOFF)}")
            em(f"s_min_i32 {sr(sT0)}, {sr(sT0)}, {sr(sHI)}")
            for s in range(4):
                em(f"buffer_load_dwordx4 {vr(KQ[4 + 4 * t + s], 4)}, {vr(vSO)}, {sr(S_K, 4)}, {sr(sT0)} offen offset:{64 * s}")
            em.raw(f"L_kh{u}_{t}:")
        em.raw(f"L_kh{u}:")
        em.vm_q = []

    m(f"s_sub_u32 {sr(sW)}, {sr(sWAVE)}, {1 + NH}")
    if WX:
        m(f"s_xor_b32 {sr(sW)}, {sr(sW)}, {WX}")
    m(f"s_mul_i32 {sr(sT2)}, {sr(sDESC)}, 15")
    m(f"s_xor_b32 {sr(sB)}, {sr(sW)}, {sr(sT2)}")
    if QDIR:
        m(f"v_lshlrev_b32 v1, 4, {vr(vG)}")
        m(f"v_lshl_add_u32 v1, {vr(vN)}, 8, v1")
    m(f"s_cmp_gt_u32 {sr(sW)}, {max(1, QLEAD)}")
    m("s_cbranch_scc1 L_qa_later")
    k_halo(m, sr(sB))
    m(f"s_cmp_gt_u32 {sr(sW)}, {QLEAD}")
    m("s_cbranch_scc1 L_qa_later")
    q_load(m, sr(sB))
    m.raw("L_qa_later:")
    if PRIOW < 8:
        m(f"s_cmp_lt_u32 {sr(sW)}, {PRIOW}")
        m("s_cbranch_scc1 L_noprio")
        m(f"s_setprio {PRIOV}")
        m.raw("L_noprio:")
    lane_addrs(m)
    m(f"v_xor_b32 {vr(vGK)}, {vr(vT1)}, {vr(vG)}")
    m(f"v_lshlrev_b32 {vr(vGK)}, 4, {vr(vGK)}")
    m(f"v_lshl_add_u32 {vr(vGK)}, {vr(vT1)}, 8, {vr(vGK)}")
    m(f"v_add_u32 {vr(vGK)}, {L_GK}, {vr(vGK)}")
    for u in range(4):
        m(f"v_add_u32 {vr(vGV + u)}, {L_GV}, {vr(vGV + u)}")
    m(f"s_lshl_b32 {sr(sREQ)}, {sr(sW)}, 10")
    m(f"v_bfe_u32 {vr(vT0)}, {vr(vN)}, 1, 2")
    m(f"v_lshlrev_b32 {vr(vT2)}, 6, {vr(vN)}")
    m(f"v_add_u32 {vr(vT2)}, {sr(sREQ)}, {vr(vT2)}")
    m(f"v_xor_b32 {vr(vSW)}, {vr(vT0)}, {vr(vG)}")
    m(f"v_lshl_add_u32 {vr(vSW)}, {vr(vSW)}, 4, {vr(vT2)}")
    m(f"v_lshrrev_b32 {vr(vSW1)}, 1, {vr(vG)}")
    m(f"v_xor_b32 {vr(vSW0)}, {vr(vT0)}, {vr(vSW1)}")
    m(f"v_lshl_add_u32 {vr(vSW0)}, {vr(vSW0)}, 4, {vr(vT2)}")
    m(f"v_and_b32 {vr(vSW1)}, 1, {vr(vG)}")
    m(f"v_lshl_add_u32 {vr(vSW0)}, {vr(vSW1)}, 3, {vr(vSW0)}")
    m(f"v_xor_b32 {vr(vSW1)}, 32, {vr(vSW0)}")
    m(f"v_add_u32 {vr(vSR)}, {sr(sREQ)}, {vr(vSR)}")
    m(f"v_sub_u32 {vr(vT0)}, {vr(vG4)}, {vr(vN)}")
    for r in range(4):
        m(f"v_cmp_le_i32 {sr(sMASK + 2 * r, 2)}, {-r}, {vr(vT0)}")
        m(f"v_cmp_ge_i32 {sr(sMASK + 8 + 2 * r, 2)}, {-r}, {vr(vT0)}")
    m(f"v_cmp_eq_u32 {sr(sMASK + 16, 2)}, 0, {vr(vG4)}")
    park_addr(m, sr(sW), sr(sPARK))
    m(f"s_sub_u32 {sr(sPARK)}, {sr(sPARK)}, {sr(sREQ)}")
    m(f"s_lshl_b32 {sr(sREQ)}, 15, {sr(sW)}")
    m(f"s_lshr_b32 {sr(sREQ)}, {sr(sREQ)}, 4")
    m(f"s_lshr_b32 {sr(sT1)}, {sr(sW)}, 1")
    m(f"s_lshl_b32 {sr(sT1)}, 0x8000, {sr(sT1)}")
    m(f"s_or_b32 {sr(sREQ)}, {sr(sREQ)}, {sr(sT1)}")
    m(f"s_lshl_b32 {sr(sT1)}, {sr(sW)}, 8")
    m(f"s_cmp_lt_u32 {sr(sW)}, 2")
    m(f"s_cselect_b32 {sr(sREQ)}, {sr(sT1)}, {sr(sREQ)}")
    m(f"s_mov_b32 {sr(sIT)}, 0")
    m(f"s_add_u32 {sr(sNEED)}, {sr(sW)}, 3")
    m(f"s_add_u32 {sr(sNEEDV)}, {sr(sW)}, 5")
    m(f"s_add_u32 {sr(sX)}, {sr(sW)}, {ROT}")
    m(f"s_and_b32 {sr(sX)}, {sr(sX)}, 7")
    m(f"s_add_u32 {sr(sX)}, {sr(sX)}, 8")
    m(f"s_mul_i32 {sr(sT2)}, {sr(sDESC)}, 15")
    m(f"s_xor_b32 {sr(sB2)}, {sr(sX)}, {sr(sT2)}")
    m(f"s_lshl_b32 {sr(sSTEP)}, {sr(sB)}, 12")
    m(f"s_add_u32 {sr(sSTEP)}, {sr(sSTEP)}, {L_K - 8192}")
    m(f"s_mul_i32 {sr(sSTEPV)}, {sr(sB)}, {VT}")
    m(f"s_add_u32 {sr(sSTEPV)}, {sr(sSTEPV)}, {L_V}")
    m(f"s_cmp_gt_u32 {sr(sW)}, {QLEAD}")
    m("s_cbranch_scc0 L_block")
    m(f"s_sub_u32 {sr(sT2)}, {sr(sW)}, {QLEAD}")
    poll(m, sr(sT2))
    q_load(m, sr(sB))
    m.label("L_block")
    m(f"s_lshl_b32 {sr(sT0)}, {sr(sB)}, 12")
    m(f"s_add_u32 {sr(sQOFF)}, {sr(sT0)}, {sr(sROW0)}")
    m(f"v_mov_b32 {vr(vT0)}, {sr(sNEG)}")
    tile_addrs(m, sr(sSTEP), sr(sSTEPV))
    m(f"s_lshl_b32 {sr(sQ0)}, {sr(sCHUNK)}, 8")
    m(f"s_lshl_b32 {sr(sT0)}, {sr(sB)}, 4")
    m(f"s_add_u32 {sr(sQ0)}, {sr(sQ0)}, {sr(sT0)}")
    for r in range(4):
        m(f"v_cndmask_b32_e64 {vr(vS + r)}, {vr(vT0)}, 0, {sr(sMASK + 2 * r, 2)}")
        m(f"v_cndmask_b32_e64 {vr(vS + 16 + r)}, {vr(vT0)}, 0, {sr(sMASK + 8 + 2 * r, 2)}")
    m(f"v_cndmask_b32_e64 {vr(vS + 20)}, {vr(vT0)}, 0, {sr(sMASK + 16, 2)}")
    m(f"v_cndmask_b32_e64 {vr(vS + 21)}, {vr(vT0)}, 0, {sr(sMASK + 16, 2)}")
    poll(m, sr(sNEED))
    stamp_it(m, 1)

    def relayout(q):
        m(f"ds_write_b128 {vr(vSR)}, {vr(q, 4)}")
        m(f"ds_read_b128 {vr(q, 4)}, {vr(vSW)}")

    def v_read(T, k):
        u, p = T // 2, T % 2
        q = vPOOL + 12 * (T % 6) + 4 * k
        r = [f"ds_read_b64_tr_b16 {vr(q + 2 * j, 2)}, {vr(vVA + u)} offset:{VT * (2 * k + j) + 32 * p}" for j in range(2)]
        if k == 2:
            r[1] = f"ds_read_b64_tr_b16 {vr(q + 2, 2)}, {vr(vGV + u)} offset:{32 * p}"
        return r

    if not NOCOMP:
        for s in range(4):
            if s:
                m(f"v_xor_b32 {vr(KQ[s])}, {64 * s}, {vr(vGK)}")
            m(f"ds_read_b128 {vr(KQ[s], 4)}, {vr(KQ[s]) if s else vr(vGK)}")
        for t in (2, 0, 1, 3, 4):
            if t != 2:
                m(f"s_add_u32 {sr(sT0)}, {sr(sB)}, {t - 2}")
                m(f"s_cmp_lt_u32 {sr(sT0)}, 16")
                m(f"s_cbranch_scc0 L_skipk{t}")
            for s in range(4):
                m(f"ds_read_b128 {vr(KQ[4 + 4 * t + s], 4)}, {vr(vKA + s)} offset:{4096 * t}")
            if t != 2:
                m.raw(f"L_skipk{t}:")
        m(f"s_sub_u32 {sr(sT0)}, {sr(sB)}, 2")
        m(f"s_cmp_lt_u32 {sr(sT0)}, 12")
        m("s_cbranch_scc1 L_nohalo")
        keep = list(m.ds_q)
        m.ds_q = []
        m("s_waitcnt vmcnt(4)")
        for t in (0, 1, 3, 4):
            m(f"s_add_u32 {sr(sT0)}, {sr(sB)}, {t - 2}")
            m(f"s_cmp_lt_u32 {sr(sT0)}, 16")
            m(f"s_cbranch_scc1 L_rl{t}")
            for s in range(4):
                relayout(KQ[4 + 4 * t + s])
            m.raw(f"L_rl{t}:")
        m.ds_q = keep
        m.raw("L_nohalo:")
    m("s_waitcnt vmcnt(0)")
    stamp_it(m, 2)
    if NOCOMP:
        for i in range(16):
            m(f"v_mov_b32 {vr(vPOOL + i)}, {vr(vQR + i)}")
        set_bit(m, sr(sW))
        poll(m, sr(sNEEDV))
    else:
        if QDIR:
            m.wait_lgkm_all()
        else:
            for s in range(4):
                relayout(vQR + 4 * s)
        m(f"s_sub_u32 {sr(sT1)}, {sr(sQ0)}, 34")
        for s in range(4):
            m(mfma(vS + 20, KQ[s], vQR + 4 * s, vS + 20))
        set_bit(m, sr(sW))
        m(f"ds_read_b32 {vr(vT3)}, {vr(vFLAG)}")
        m(f"s_cmp_lt_u32 {sr(sT1)}, {2001 - 34}")

        def s_tile(t):
            return [mfma(vS + 4 * t, KQ[4 + 4 * t + s], vQR + 4 * s, None if (s == 0 and t in (1, 2, 3)) else vS + 4 * t) for s in range(4)]

        VR = [op for k in range(3) for T in range(6) for op in v_read(T, k)]
        mx = max_tree([vS + 20, vS + 21] + [vS + i for i in range(20)], vT0)
        m("s_cbranch_scc0 L_edge")
        ed = m.fork()
        for op in s_tile(0) + s_tile(1) + s_tile(2) + merge(s_tile(3), mx[:2]) + merge(s_tile(4), mx[2:5]):
            m(op)
        poll_pre(m, sr(sNEEDV), vT3)
        for op in VR[:4] + mx[5:7] + VR[4:8] + mx[7:]:
            m(op)
        m.raw("L_join:")
        ed.raw("L_edge:")
        for t in range(5):
            for op in s_tile(t):
                ed(op)
        ed(f"v_add_u32 {vr(vT1)}, {sr(sT1)}, {vr(vG4)}")
        ed(f"s_movk_i32 {sr(sT1)}, 2046")
        for t in range(5):
            for r in range(4):
                ed(f"v_add_u32 v0, {16 * t + r}, {vr(vT1)}")
                ed(f"v_cmp_gt_u32 vcc, {sr(sT1)}, v0")
                ed(f"v_cndmask_b32 {vr(vS + 4 * t + r)}, {vr(vT0)}, {vr(vS + 4 * t + r)}, vcc")
        poll_pre(ed, sr(sNEEDV), vT3)
        for op in VR[:8] + mx:
            ed(op)
        ed.flush()
        ed("s_branch L_join")
    m(f"s_lshl_b32 {sr(sT0)}, {sr(sIT)}, 4")
    m(f"s_add_u32 {sr(sT0)}, {sr(sT0)}, {EW}")
    m(f"s_cmp_ge_u32 {sr(sW)}, {sr(sT0)}")
    m("s_cbranch_scc0 L_noearly")
    q_load(m, sr(sB2))
    m.raw("L_noearly:")
    stamp_it(m, 3)

    W = vPOOL + 40
    R = vPOOL + 24

    def p_ops(lo, hi):
        fm, ex, cv = [], [], []
        for i in range(lo, hi):
            if PK and i % 2 == 0:
                fm.append(f"v_pk_fma_f32 {vr(vS + i, 2)}, {vr(vS + i, 2)}, {sr(sC, 2)}, {vr(vT0, 2)} neg_lo:[0,0,1] neg_hi:[0,0,1]")
            elif not PK:
                fm.append(f"v_fma_f32 {vr(vS + i)}, {vr(vS + i)}, {sr(sC)}, -{vr(vT0)}")
            ex.append(f"v_exp_f32 {vr(vS + i)}, {vr(vS + i)}")
        for i in range(lo // 2, hi // 2):
            cv.append(f"v_cvt_pk_bf16_f32 {vr(vS + i)}, {vr(vS + 2 * i)}, {vr(vS + 2 * i + 1)}")
        per = 2 if PK else 1
        seq = fm[:2 // per]
        nf = 2 // per
        for j, x in enumerate(ex):
            seq.append(x)
            if nf < len(fm) and (j + 1) % per == 0:
                seq.append(fm[nf])
                nf += 1
            if j >= 2 and j % 2 == 0:
                seq.append(cv[(j - 2) // 2])
        seq.append(cv[-1])
        return seq

    def pv(T, k):
        return mfma(OACC[T], vPOOL + 12 * (T % 6) + 4 * k, vS + 4 * k, None if k == 0 else OACC[T])

    def lsum(k):
        return mfma(vL, vONE, vS + 4 * k, None if k == 0 else vL)

    def fin(T, park):
        u, p = T // 2, T % 2
        o = OACC[T]
        w = W + 4 * u + 2 * p
        if PK:
            ops = [f"v_pk_mul_f32 {vr(o + r, 2)}, {vr(o + r, 2)}, {vr(vT0, 2)} op_sel_hi:[1,0]" for r in (0, 2)]
        else:
            ops = [f"v_mul_f32 {vr(o + r)}, {vr(o + r)}, {vr(vT0)}" for r in range(4)]
        ops += [f"v_cvt_pk_bf16_f32 {vr(w)}, {vr(o)}, {vr(o + 1)}", f"v_cvt_pk_bf16_f32 {vr(w + 1)}, {vr(o + 2)}, {vr(o + 3)}"]
        if NOCOMP:
            ops = []
        if park:
            ops.append(f"ds_write_b64 {vr(vT3 if p else 0)}, {vr(w, 2)} offset:{1024 * u}")
        else:
            ops.append(f"ds_write_b64 {vr(vSW1 if p else vSW0)}, {vr(w, 2)}")
            if p:
                ops.append(f"ds_read_b128 {vr(R + 4 * u, 4)}, {vr(vSR)}")
        return ops

    if not NOCOMP:
        for op in merge(allreduce_ops("v_max_f32", vT0, vT1), VR[8:14]):
            m(op)
        m(f"v_mul_f32 {vr(vT0)}, {sr(sC)}, {vr(vT0)}")
        if PK:
            m(f"v_mov_b32 {vr(vT1)}, {vr(vT0)}")
        for op in merge(p_ops(0, 8), VR[14:24]):
            m(op)
        for op in merge(merge(p_ops(8, 16), VR[24:36]), [lsum(0)] + [pv(T, 0) for T in range(5)]):
            m(op)
        for op in merge(p_ops(16, 22) + [f"v_mov_b32 {vr(vS + 11)}, 0"], [pv(5, 0), lsum(1)] + [pv(T, 1) for T in range(6)]):
            m(op)
    stamp_it(m, 4)

    def tail(em, park):
        if park:
            em(f"v_add_u32 v0, {sr(sPARK)}, {vr(vSW0)}")
            em(f"v_add_u32 {vr(vT3)}, {sr(sPARK)}, {vr(vSW1)}")
            em(f"ds_read_b32 {vr(vT2)}, {vr(vFLAG)} offset:4")
        if NOCOMP:
            if park:
                poll_bits(em, sr(sREQ), True)
            for T in range(8):
                for op in fin(T, park):
                    em(op)
            return
        em(lsum(2))
        em(pv(0, 2))
        for k in range(3):
            for op in v_read(6, k):
                em(op)
        em(pv(1, 2))
        for k in range(3):
            for op in v_read(7, k):
                em(op)
        em(pv(2, 2))
        em(f"v_rcp_f32 {vr(vT0)}, {vr(vL)}")
        em(pv(3, 2))
        if park:
            poll_bits(em, sr(sREQ), True)
        em(pv(4, 2))
        em(pv(5, 2))
        for op in merge(fin(0, park) + fin(1, park) + fin(2, park), [pv(6, k) for k in range(3)] + [pv(7, k) for k in range(3)]):
            em(op)
        for T in range(3, 8):
            for op in fin(T, park):
                em(op)

    m(f"s_cmp_lg_u32 {sr(sIT)}, 0")
    m("s_cbranch_scc1 L_last")
    b2 = m.fork()
    tail(m, True)
    m(f"s_add_u32 {sr(sT1)}, {sr(sW)}, 8")
    m.wait_lgkm_all()
    set_bit(m, sr(sT1))
    stamp_it(m, 6, 0)
    m(f"s_sub_u32 {sr(sT1)}, {sr(sB2)}, {sr(sB)}")
    m(f"s_lshl_b32 {sr(sSTEP)}, {sr(sT1)}, 12")
    m(f"s_mul_i32 {sr(sSTEPV)}, {sr(sT1)}, {VT}")
    m(f"s_mov_b32 {sr(sB)}, {sr(sB2)}")
    if not NOCOMP:
        k_halo(m, sr(sB))
    m(f"s_add_u32 {sr(sNEED)}, {sr(sX)}, 2")
    m(f"s_min_u32 {sr(sNEED)}, {sr(sNEED)}, 15")
    m(f"s_cmp_gt_u32 {sr(sNEED)}, {HP}")
    m(f"s_addc_u32 {sr(sNEED)}, {sr(sNEED)}, 1")
    m(f"s_add_u32 {sr(sNEEDV)}, {sr(sX)}, 4")
    m(f"s_min_u32 {sr(sNEEDV)}, {sr(sNEEDV)}, 16")
    m(f"s_cmp_gt_u32 {sr(sNEEDV)}, {HP}")
    m(f"s_addc_u32 {sr(sNEEDV)}, {sr(sNEEDV)}, 1")
    m(f"s_mov_b32 {sr(sIT)}, 1")
    m(f"s_cmp_ge_u32 {sr(sW)}, {EW}")
    m.flush()
    m("s_cbranch_scc1 L_block")
    m(f"s_sub_u32 {sr(sT2)}, {sr(sNEED)}, {D + QL2}")
    m(f"s_max_u32 {sr(sT2)}, {sr(sT2)}, {THRMIN}")
    poll(m, sr(sT2))
    q_load(m, sr(sB))
    m("s_branch L_block")
    b2.raw("L_last:")
    tail(b2, False)
    if STAMP and "B6" in PTS:
        b2.wait_lgkm_all()
        stamp_it(b2, 6, 1)
    for u in range(4):
        b2(f"buffer_store_dwordx4 {vr(R + 4 * u, 4)}, {vr(vSO)}, {sr(S_O, 4)}, {sr(sQOFF)} offen offset:{64 * u}{STB}")
    dump_stamps(b2, "m")
    b2("s_endpgm")

    h = c.fork()
    h.raw("L_helper:")
    hS, hO, hK, hV, vM, vA = 44, 56, 92, 124, 156, 1
    hL = hO + 32
    if PRIOH:
        h(f"s_setprio {PRIOH}")
    if CPF:
        h("s_getpc_b64 s[2:3]")
        h.raw("L_pc:")
        h(f"v_lshl_add_u32 v0, {vr(vG)}, 4, {vr(vN)}")
        h("v_lshlrev_b32 v0, 7, v0")
        h(f"s_sub_u32 s2, s2, L_pc-{NAME}_kernel")
        h("s_subb_u32 s3, s3, 0")
        for i in range(CPF):
            if i:
                h("v_add_u32 v0, 0x2000, v0")
            h(f"v_min_u32 v1, L_codeend-{NAME}_kernel-4, v0")
            h(f"global_load_dword {vr(160 + i)}, v1, s[2:3]")
    h(f"v_lshlrev_b32 {vr(vA)}, 4, {vr(vG)}")
    h(f"v_lshl_add_u32 v0, {vr(vN)}, 8, {vr(vA)}")
    for i in range(16):
        h(f"v_mov_b32 {vr(vQR + i)}, 0")
    h("s_mov_b32 exec_lo, 0x00030003")
    h("s_mov_b32 exec_hi, 0x00030003")
    for s in range(4):
        h(f"buffer_load_dwordx4 {vr(vQR + 4 * s, 4)}, v0, {sr(S_Q, 4)}, {sr(sHEADOFF)} offen offset:{64 * s}")
    h("s_mov_b64 exec, -1")
    lane_addrs(h)
    h(f"s_mul_i32 {sr(sPARK)}, {sr(sWAVE)}, 1056")
    h(f"s_add_u32 {sr(sPARK)}, {sr(sPARK)}, {L_MRG - 1056}")
    h(f"v_lshl_add_u32 {vr(vA)}, {vr(vN)}, 9, {vr(vA)}")
    h(f"v_add_u32 {vr(vA)}, {sr(sPARK)}, {vr(vA)}")
    h(f"v_lshlrev_b32 {vr(vSR)}, 3, {vr(vN)}")
    h(f"v_add_u32 {vr(vSR)}, {sr(sPARK)}, {vr(vSR)}")
    h(f"v_lshl_add_u32 {vr(vSO)}, {vr(vG)}, 4, {vr(vN)}")
    h(f"v_lshrrev_b32 {vr(vSW)}, 5, {vr(vSO)}")
    h(f"v_lshlrev_b32 {vr(vSW)}, 3, {vr(vSW)}")
    h(f"v_lshlrev_b32 {vr(vSW0)}, 4, {vr(vSO)}")
    h(f"v_and_b32 {vr(vSW1)}, 7, {vr(vSO)}")
    h(f"v_lshlrev_b32 {vr(vT0)}, 3, {vr(vSW)}")
    h(f"v_lshl_add_u32 {vr(vGK)}, {vr(vSW1)}, 3, {vr(vT0)}")
    h(f"v_lshl_add_u32 {vr(vSW1)}, {vr(vSW1)}, 11, {vr(vT0)}")
    h(f"v_lshlrev_b32 {vr(vSO)}, 3, {vr(vSO)}")
    for i in range(36):
        h(f"v_mov_b32 {vr(hO + i)}, 0")
    h(f"v_mov_b32 {vr(vM)}, {sr(sNEG)}")
    h(f"s_sub_u32 {sr(sW)}, {sr(sWAVE)}, 1")
    h(f"s_lshl_b32 {sr(sT0)}, {sr(sW)}, 1")
    h(f"s_add_u32 {sr(sNEED)}, {sr(sT0)}, 2")
    h(f"s_sub_u32 {sr(sT1)}, 14, {sr(sT0)}")
    h(f"s_cmp_eq_u32 {sr(sDESC)}, 0")
    h(f"s_cselect_b32 {sr(sT0)}, {sr(sT0)}, {sr(sT1)}")
    h(f"s_cselect_b32 {sr(sSTEPV)}, 1, -1")
    h(f"s_mul_i32 {sr(sSTEP)}, {sr(sSTEPV)}, {2 * NH * 4096}")
    h(f"s_mul_i32 {sr(sSTEPV)}, {sr(sSTEPV)}, {2 * NH * VT}")
    h(f"s_lshl_b32 {sr(sT1)}, {sr(sT0)}, 12")
    h(f"s_add_u32 {sr(sT1)}, {sr(sT1)}, {L_K}")
    h(f"s_mul_i32 {sr(sT2)}, {sr(sT0)}, {VT}")
    h(f"s_add_u32 {sr(sT2)}, {sr(sT2)}, {L_V + 2 * VT}")
    tile_addrs(h, sr(sT1), sr(sT2))
    h(f"s_lshl_b32 {sr(sREC)}, {sr(sHEAD)}, 3")
    h(f"s_add_u32 {sr(sREC)}, {sr(sREC)}, {sr(sCHUNK)}")
    h(f"s_lshl_b32 {sr(sREC)}, {sr(sREC)}, 11")
    assert DUAL == "none"
    h(f"s_mov_b32 {sr(sX)}, 1")
    if opt.get("tlbw"):
        h(f"s_lshl_b32 {sr(sT0)}, {sr(sHEAD)}, 14")
        h(f"buffer_load_dword v162, {vr(vSW1)}, {sr(S_WS, 4)}, {sr(sT0)} offen offset:1536")
        h(f"s_add_u32 {sr(sT0)}, {sr(sT0)}, {1 << 20}")
        h(f"buffer_load_dword v163, {vr(vSW1)}, {sr(S_WS, 4)}, {sr(sT0)} offen offset:1536")
    h.wait_vm_all()
    h.label("L_hloop")
    h(f"s_cmp_gt_u32 {sr(sNEED)}, {HP + 1}")
    h(f"s_addc_u32 {sr(sT2)}, {sr(sNEED)}, 0")
    poll(h, sr(sT2))
    h(f"s_lshr_b32 {sr(sT1)}, {sr(sNEED)}, 1")
    h(f"s_add_u32 {sr(sT1)}, {sr(sT1)}, 15")
    h(f"s_add_u32 {sr(sNEEDV)}, {sr(sNEED)}, 1")
    h(f"s_min_u32 {sr(sNEEDV)}, {sr(sNEEDV)}, 16")
    h(f"s_cmp_gt_u32 {sr(sNEEDV)}, {HP}")
    h(f"s_addc_u32 {sr(sNEEDV)}, {sr(sNEEDV)}, 1")
    if not NOCOMP:
        for i in range(8):
            h(f"ds_read_b128 {vr(hK + 4 * i, 4)}, {vr(vKA + i % 4)} offset:{4096 * (i // 4)}")
        hvr = [f"ds_read_b64_tr_b16 {vr(hV + 4 * T + 2 * j, 2)}, {vr(vVA + T // 2)} offset:{VT * j + 32 * (T % 2)}" for T in range(8) for j in range(2)]
        for i in range(8):
            t, s = i // 4, i % 4
            h(mfma(hS + 4 * t, hK + 4 * i, vQR + 4 * s, None if s == 0 else hS + 4 * t))
    set_bit(h, sr(sT1))
    if not NOCOMP:
        for op in max_tree([hS + i for i in range(8)], vT0) + allreduce_ops("v_max_f32", vT0, vT1):
            h(op)
        h(f"v_mul_f32 {vr(vT0)}, {sr(sC)}, {vr(vT0)}")
        h(f"v_max_f32 {vr(vT0)}, {vr(vT0)}, {vr(vM)}")
        h(f"v_sub_f32 {vr(vT1)}, {vr(vM)}, {vr(vT0)}")
        h(f"v_exp_f32 {vr(vT1)}, {vr(vT1)}")
        h(f"v_mov_b32 {vr(vM)}, {vr(vT0)}")
        for i in range(8):
            h(f"v_fma_f32 {vr(hS + i)}, {vr(hS + i)}, {sr(sC)}, -{vr(vT0)}")
        for i in range(8):
            h(f"v_exp_f32 {vr(hS + i)}, {vr(hS + i)}")
        for i in range(33):
            h(f"v_mul_f32 {vr(hO + i)}, {vr(hO + i)}, {vr(vT1)}")
        for k in range(4):
            h(f"v_cvt_pk_bf16_f32 {vr(hS + k)}, {vr(hS + 2 * k)}, {vr(hS + 2 * k + 1)}")
        h(mfma(hL, vONE, hS, hL))
    poll(h, sr(sNEEDV))
    if not NOCOMP:
        for op in hvr:
            h(op)
    tile_addrs(h, sr(sSTEP), sr(sSTEPV))
    if not NOCOMP:
        for T in range(8):
            h(mfma(hO + 4 * T, hV + 4 * T, hS, hO + 4 * T))
    h(f"s_add_u32 {sr(sNEED)}, {sr(sNEED)}, {2 * NH}")
    h(f"s_cmp_le_u32 {sr(sNEED)}, 16")
    h.flush()
    h("s_cbranch_scc1 L_hloop")
    stamp(h, 1)
    if not NOCOMP:
        h(f"v_mov_b32 {vr(vM + 1)}, {vr(hL)}")
        h("s_mov_b32 exec_lo, 0x00030003")
        h("s_mov_b32 exec_hi, 0x00030003")
        for T in range(8):
            h(f"ds_write_b128 {vr(vA)}, {vr(hO + 4 * T, 4)} offset:{64 * T}")
        h("s_mov_b64 exec, 3")
        h(f"ds_write_b64 {vr(vSR)}, {vr(vM, 2)} offset:1024")
        h("s_mov_b64 exec, -1")
        h(f"s_cmp_lg_u32 {sr(sW)}, 0")
        h("s_cbranch_scc1 L_hmerge")
        h0 = h.fork()
        keepq = list(h.ds_q)
        h.wait_lgkm_all()
        set_bit(h, 24)
        h("s_branch L_hdone")
        h.raw("L_hmerge:")
        h.ds_q = keepq
        h(f"s_mov_b32 {sr(sT2)}, {1 << 24}")
        poll_bits(h, sr(sT2))
        cA, cB, cM = 56, 60, 64
        h(f"ds_read_b64 {vr(cM, 2)}, {vr(vSW)} offset:{L_MRG + 1024}")
        h(f"ds_read_b64 {vr(cM + 2, 2)}, {vr(vSW)} offset:{L_MRG + 1056 + 1024}")
        h(f"ds_read_b128 {vr(cA, 4)}, {vr(vSW0)} offset:{L_MRG}")
        h(f"ds_read_b128 {vr(cB, 4)}, {vr(vSW0)} offset:{L_MRG + 1056}")
        h(f"s_lshl_b32 {sr(sT0)}, {sr(sHEAD)}, 2")
        h(f"v_mov_b32 v0, {sr(sX)}")
        h(f"v_max_f32 {vr(vM)}, {vr(cM)}, {vr(cM + 2)}")
        h(f"v_sub_f32 {vr(cM)}, {vr(cM)}, {vr(vM)}")
        h(f"v_sub_f32 {vr(cM + 2)}, {vr(cM + 2)}, {vr(vM)}")
        h(f"v_exp_f32 {vr(cM)}, {vr(cM)}")
        h(f"v_exp_f32 {vr(cM + 2)}, {vr(cM + 2)}")
        for r in range(4):
            h(f"v_mul_f32 {vr(cA + r)}, {vr(cA + r)}, {vr(cM)}")
        h(f"v_mul_f32 {vr(vM + 1)}, {vr(cM + 1)}, {vr(cM)}")
        for r in range(4):
            h(f"v_fmac_f32 {vr(cA + r)}, {vr(cB + r)}, {vr(cM + 2)}")
        h(f"v_fmac_f32 {vr(vM + 1)}, {vr(cM + 3)}, {vr(cM + 2)}")
        h(f"buffer_store_dwordx4 {vr(cA, 4)}, {vr(vSW0)}, {sr(S_WS, 4)}, {sr(sREC)} offen sc1")
        if DUAL != "none":
            h(f"buffer_store_dwordx4 {vr(cA, 4)}, {vr(vSW0)}, {sr(S_WS, 4)}, {sr(sREQ)} offen")
        h("s_mov_b32 exec_lo, 0xff")
        h("s_mov_b32 exec_hi, 0xff")
        h(f"buffer_store_dwordx2 {vr(vM, 2)}, {vr(vGK)}, {sr(S_WS, 4)}, {sr(sREC)} offen offset:1024 sc1")
        if DUAL != "none":
            h(f"buffer_store_dwordx2 {vr(vM, 2)}, {vr(vGK)}, {sr(S_WS, 4)}, {sr(sREQ)} offen offset:1024")
        h("s_mov_b64 exec, 1")
        h(f"v_mov_b32 {vr(vT2)}, {1 << 25}")
        if GATE >= 0 and GATEP:
            h(f"ds_or_b32 {vr(vFLAG)}, {vr(vT2)} offset:4")
        h.wait_vm_all()
        stamp(h, 2)
        h(f"buffer_atomic_add v0, off, {sr(S_DBG, 4)}, {sr(sT0)} sc0")
        if GATE >= 0 and not GATEP:
            h(f"ds_or_b32 {vr(vFLAG)}, {vr(vT2)} offset:4")
        h(f"v_readfirstlane_b32 {sr(sT1)}, v0")
        h("s_mov_b64 exec, -1")
        stamp(h, 3)
        h(f"s_and_b32 {sr(sT2)}, {sr(sT1)}, 31")
        h(f"s_cmp_eq_u32 {sr(sT2)}, 7")
        h.flush()
        h("s_cbranch_scc0 L_hdone")
        cO, cW = 56, 96
        h(f"s_lshl_b32 {sr(sREC)}, {sr(sHEAD)}, 14")

        def rec_loads(mod):
            h.vm_q = []
            h(f"buffer_load_dwordx2 {vr(vM, 2)}, {vr(vSW1)}, {sr(S_WS, 4)}, {sr(sREC)} offen offset:1024{mod}")
            for i in range(8):
                if i % 2 == 0 and i:
                    h(f"s_add_u32 {sr(sREC)}, {sr(sREC)}, 4096")
                h(f"buffer_load_dwordx4 {vr(cO + 4 * i, 4)}, {vr(vSW0)}, {sr(S_WS, 4)}, {sr(sREC)} offen offset:{2048 * (i % 2)}{mod}")
        if DUAL != "none":
            h(f"s_mul_i32 {sr(sX)}, {sr(sX)}, 7")
            h(f"s_cmp_eq_u32 {sr(sX)}, {sr(sT1)}")
            h("s_cbranch_scc0 L_far")
            h(f"s_add_u32 {sr(sREC)}, {sr(sREC)}, {1 << 20}")
            rec_loads("" if DUAL == "plain" else " " + DUAL)
            h("s_branch L_got")
            h.raw("L_far:")
        rec_loads(" sc1")
        h.raw("L_got:")
        SWZ = (0x041F, 0x081F, 0x101F)
        h(f"v_mov_b32 {vr(vT0)}, {vr(vM)}")
        stamp(h, 5)
        for x in SWZ:
            h(f"ds_swizzle_b32 {vr(vT1)}, {vr(vT0)} offset:{x:#x}")
            h(f"v_max_f32 {vr(vT0)}, {vr(vT0)}, {vr(vT1)}")
        h(f"v_sub_f32 {vr(vM)}, {vr(vM)}, {vr(vT0)}")
        h(f"v_exp_f32 {vr(vM)}, {vr(vM)}")
        h(f"v_mul_f32 {vr(vT0)}, {vr(vM)}, {vr(vM + 1)}")
        for i in range(8):
            h(f"ds_swizzle_b32 {vr(cW + i)}, {vr(vM)} offset:{(i << 5) | 0x18:#x}")
        for x in SWZ:
            h(f"ds_swizzle_b32 {vr(vT1)}, {vr(vT0)} offset:{x:#x}")
            h(f"v_add_f32 {vr(vT0)}, {vr(vT0)}, {vr(vT1)}")
        h(f"v_rcp_f32 {vr(vT0)}, {vr(vT0)}")
        if STAMP:
            h.wait_vm_all()
            stamp(h, 4)
        for i in range(8):
            for r in range(4):
                h(f"{'v_fmac_f32' if i else 'v_mul_f32'} {vr(vKA + r)}, {vr(cW + i)}, {vr(cO + 4 * i + r)}")
        for r in range(4):
            h(f"v_mul_f32 {vr(vKA + r)}, {vr(vKA + r)}, {vr(vT0)}")
        h(f"v_cvt_pk_bf16_f32 {vr(vVA)}, {vr(vKA)}, {vr(vKA + 1)}")
        h(f"v_cvt_pk_bf16_f32 {vr(vVA + 1)}, {vr(vKA + 2)}, {vr(vKA + 3)}")
        h(f"buffer_store_dwordx2 {vr(vVA, 2)}, {vr(vSO)}, {sr(S_O, 4)}, {sr(sHEADOFF)} offen sc1")
        h.label("L_hdone")
    dump_stamps(h, "h")
    h.raw("L_end:")
    h("s_endpgm")

    tailtxt = f""".section .rodata,"a"
.p2align 6
.amdhsa_kernel {NAME}_kernel
  .amdhsa_next_free_vgpr 168
  .amdhsa_next_free_sgpr 98
  .amdhsa_accum_offset 168
  .amdhsa_group_segment_fixed_size 0
  .amdhsa_kernarg_size 64
  .amdhsa_user_sgpr_count 2
  .amdhsa_user_sgpr_kernarg_segment_ptr 1
  .amdhsa_system_sgpr_workgroup_id_x 1
.end_amdhsa_kernel
"""
    txt = e.text() + ld.text() + c.text() + m.text() + b2.text() + h.text()
    if not NOCOMP:
        txt += ed.text()
    return txt + "L_codeend:\n" + tailtxt


if __name__ == "__main__":
    out = sys.argv[1]
    opt = {}
    for a in sys.argv[2:]:
        k, _, v = a.partition("=")
        opt[k] = v if v else True
        if k in ("st", "stb", "ld", "qld"):
            opt[k] = (" " + v.replace("+", " ")) if v != "none" else ""
    open(out, "w").write(gen(opt))
```

```python
import sys
import math
import struct
from asmgen import Emitter, vr, sr

NAME = "standalone__global_local_windowed_global_tokens__prompt"

HEADER = """; Kernarg layout for this problem (64 bytes, ptrs only, base s[0:1]):
;   offset   0: d_in[0] q  shape=(1, 32, 2048, 128) dtype=bfloat16 strides=(16777216, 524288, 256, 2) contiguous=True
;   offset   8: d_in[1] k  shape=(1, 32, 2048, 128) dtype=bfloat16 strides=(16777216, 524288, 256, 2) contiguous=True
;   offset  16: d_in[2] v  shape=(1, 32, 2048, 128) dtype=bfloat16 strides=(16777216, 524288, 256, 2) contiguous=True
;   offset  24: d_in[3] window  shape=(1,) dtype=int32 strides=(4,) contiguous=True
;   offset  32: d_in[4] n_global  shape=(1,) dtype=int32 strides=(4,) contiguous=True
;
;   wave 0      streams the chunk's K and V tiles (16 rows each) into LDS by DMA, publishes its progress in
;               an LDS word, and afterwards stores the output tiles that the first round parked in LDS
;   waves 1,2   query rows 0,1 (global rows) against the chunk's 256 keys with a running max; the merged
;               partial (max, sum, O) goes to d_ws, a ticket in d_debug tells the last of a head's 8
;               (16x16x32 MFMA, band masks enter as the accumulator's start value), exact softmax,
;               O^T = V^T P^T with transposing LDS reads, row-contiguous stores through LDS
"""


def f32bits(x):
    return struct.unpack("<I", struct.pack("<f", x))[0]


def merge(a, b):
    out, nb = [], 0
    for i, x in enumerate(a):
        out.append(x)
        want = (i + 1) * len(b) // len(a)
        out += b[nb:want]
        nb = want
    return out + b[nb:]


def gen(opt):
    LD = opt.get("ld", "")
    QLD = opt.get("qld", "")
    ST = opt.get("st", " sc1")
    STB = opt.get("stb", ST)
    NOCOMP = opt.get("nocomp", False)
    PROBE = opt.get("probe", None)
    GPROBE = opt.get("gprobe", None)
    STAMP = opt.get("stamp", False) or PROBE or GPROBE
    D = int(opt.get("depth", 3))
    SLEEP = int(opt.get("sleep", 1))
    WIN = int(opt.get("win", 8 * D))
    HALF = int(opt.get("half", 63))
    assert WIN <= 8 * D
    QLEAD = int(opt.get("qlead", 0))
    QL2 = int(opt.get("ql2", 0))
    THRMIN = int(opt.get("thrmin", 0))
    EW = int(opt.get("ew", 6))
    PST = int(opt.get("pst", 32))
    DUAL = opt.get("dual", "none")
    PRIOW = int(opt.get("priow", 99))
    PRIOH = int(opt.get("prioh", 0))
    ROT = int(opt.get("rot", 6))
    PK = opt.get("pk", False)
    CPE = opt.get("cpe", False)
    CPL = opt.get("cpl", False)
    QDIR = opt.get("qdir", False)
    HP = int(opt.get("hp", 11))
    assert 11 <= HP <= 14
    GATE = int(opt.get("gate", -1))
    GATEP = opt.get("gatep", False)
    WX = int(opt.get("wx", 0))
    PRIOV = int(opt.get("priov", 2))
    CPF = int(opt.get("cpf", 0))
    PTS = opt.get("pts", "A2,A6,B1,B2,B6").split(",")
    assert len(PTS) == 5 and D >= 2
    assert all(((w + ROT) & 7) < 6 for w in range(EW, 8))

    TB = 32 * 2048 * 256
    HEADB = 2048 * 256
    L_STAGE, L_GK, L_GV, L_FLAG, L_K, L_V = 0, 8192, 9216, 10240, 13824, 79360
    L_MRG = 10368
    VT, VP = 4224, 1056
    NH = 2
    NWAVE = 9 + NH
    NEG = f32bits(-1.0e30)
    CSCALE = f32bits((128 ** -0.5) * math.log2(math.e))

    S_Q, S_K, S_V, S_O, S_DBG, S_WS = 20, 24, 28, 32, 36, 40
    sWAVE, sHEADOFF, sROW0, sT0, sT1, sT2 = 44, 45, 46, 47, 48, 49
    sQOFF, sNEG, sQ0, sHEAD, sCHUNK, sDESC = 50, 51, 52, 53, 54, 55
    sEX = 56
    sC = 58
    sTS = 60
    sB, sIT, sNEED, sX, sCNT, sW, sHI, sREC, sSTEP, sXV, sSTEPV, sPARK, sREQ, sB2 = range(80, 94)
    sNEEDV = 95
    sMASK = 2

    vKA, vVA, vSW0, vSW1, vGK, vN, vG, vG4 = 2, 6, 10, 11, 12, 13, 14, 15
    vFLAG, vSW, vT0, vT1, vONE, vSR, vSO, vT3, vT2 = 16, 17, 18, 19, 20, 24, 25, 26, 27
    vQR, vS, vOX, vPOOL, vGV = 28, 44, 68, 92, 164

    uid = [0]

    def newid():
        uid[0] += 1
        return uid[0]

    def stamp(em, i):
        if STAMP:
            em(f"s_memrealtime {sr(sTS + 2 * i, 2)}")

    def stamp_it(em, k, only=None):
        if not STAMP:
            return
        for it, nm in ((0, f"A{k}"), (1, f"B{k}")):
            if nm in PTS and only in (None, it):
                if only is None:
                    u = newid()
                    em(f"s_cmp_eq_u32 {sr(sIT)}, {it}")
                    em(f"s_cbranch_scc0 L_sa{u}")
                stamp(em, PTS.index(nm) + 1)
                if only is None:
                    em.raw(f"L_sa{u}:")

    def poll(em, need):
        u = newid()
        em.label(f"L_poll{u}")
        em(f"ds_read_b32 {vr(vT2)}, {vr(vFLAG)}")
        em(f"v_readfirstlane_b32 {sr(sT0)}, {vr(vT2)}")
        em(f"s_cmp_ge_i32 {sr(sT0)}, {need}")
        em(f"s_cbranch_scc1 L_pdone{u}")
        if SLEEP:
            em(f"s_sleep {SLEEP}")
        em(f"s_branch L_poll{u}")
        em.raw(f"L_pdone{u}:")

    def poll_pre(em, need, reg):
        u = newid()
        em(f"v_readfirstlane_b32 {sr(sT0)}, {vr(reg)}")
        em(f"s_cmp_ge_i32 {sr(sT0)}, {need}")
        em(f"s_cbranch_scc1 L_pdone{u}")
        keep = (list(em.ds_q), list(em.hist))
        em.lines.append(f"L_poll{u}:")
        em(f"ds_read_b32 {vr(reg)}, {vr(vFLAG)}")
        em(f"v_readfirstlane_b32 {sr(sT0)}, {vr(reg)}")
        em(f"s_cmp_ge_i32 {sr(sT0)}, {need}")
        em(f"s_cbranch_scc0 L_poll{u}")
        em.raw(f"L_pdone{u}:")
        em.ds_q, em.hist = keep

    def poll_bits(em, smask, first_read_done=False):
        u = newid()
        if first_read_done:
            em(f"v_readfirstlane_b32 {sr(sT0)}, {vr(vT2)}")
            em(f"s_andn2_b32 {sr(sT0)}, {smask}, {sr(sT0)}")
            em(f"s_cbranch_scc0 L_pdone{u}")
            keep = (list(em.ds_q), list(em.hist))
            em.lines.append(f"L_poll{u}:")
        else:
            em.label(f"L_poll{u}")
        em(f"ds_read_b32 {vr(vT2)}, {vr(vFLAG)} offset:4")
        em(f"v_readfirstlane_b32 {sr(sT0)}, {vr(vT2)}")
        em(f"s_andn2_b32 {sr(sT0)}, {smask}, {sr(sT0)}")
        em(f"s_cbranch_scc0 L_pdone{u}")
        if SLEEP:
            em(f"s_sleep {SLEEP}")
        em(f"s_branch L_poll{u}")
        em.raw(f"L_pdone{u}:")
        if first_read_done:
            em.ds_q, em.hist = keep

    def set_bit(em, sbit):
        em(f"s_lshl_b32 {sr(sT0)}, 1, {sbit}")
        em(f"v_mov_b32 {vr(vT2)}, {sr(sT0)}")
        em("s_mov_b64 exec, 1")
        em(f"ds_or_b32 {vr(vFLAG)}, {vr(vT2)} offset:4")
        em("s_mov_b64 exec, -1")

    def park_addr(em, sw, dst):
        em(f"s_sub_u32 {sr(sT1)}, 19, {sw}")
        em(f"s_cmp_eq_u32 {sr(sDESC)}, 0")
        em(f"s_cselect_b32 {sr(sT1)}, {sw}, {sr(sT1)}")
        em(f"s_mul_i32 {sr(sT2)}, {sr(sT1)}, {VT}")
        em(f"s_add_u32 {sr(sT2)}, {sr(sT2)}, {L_V}")
        em(f"s_lshl_b32 {sr(sT1)}, {sr(sT1)}, 12")
        em(f"s_add_u32 {sr(sT1)}, {sr(sT1)}, {L_K - 8192}")
        em(f"s_cmp_lt_u32 {sw}, 2")
        em(f"s_cselect_b32 {dst}, {sr(sT2)}, {sr(sT1)}")

    def stage_read_addrs(em):
        em(f"v_lshrrev_b32 {vr(vT0)}, 2, {vr(vN)}")
        em(f"v_add_u32 {vr(vT2)}, {vr(vG4)}, {vr(vT0)}")
        em(f"v_and_b32 {vr(vT1)}, 3, {vr(vN)}")
        em(f"v_lshlrev_b32 {vr(vSO)}, 4, {vr(vT1)}")
        em(f"v_lshl_add_u32 {vr(vSO)}, {vr(vT2)}, 8, {vr(vSO)}")
        em(f"v_bfe_u32 {vr(vSR)}, {vr(vT2)}, 1, 2")
        em(f"v_xor_b32 {vr(vSR)}, {vr(vSR)}, {vr(vT1)}")
        em(f"v_lshlrev_b32 {vr(vSR)}, 4, {vr(vSR)}")
        em(f"v_lshl_add_u32 {vr(vSR)}, {vr(vT2)}, 6, {vr(vSR)}")

    def dump_stamps(em, tagn):
        if not STAMP:
            return
        stamp(em, 6)
        em("s_waitcnt vmcnt(0)")
        stamp(em, 7)
        em("s_memtime s[78:79]")
        em("s_waitcnt lgkmcnt(0)")
        if GPROBE:
            role, which, fac = GPROBE.split(",")
            which, fac = int(which), int(fac)
            nrep = {"l": 256, "m": 2048 + 256, "h": 512 + 256, "a": 2816}[role]
            em("s_mov_b64 exec, 1")
            if tagn == "l":
                em(f"s_not_b32 {sr(sT0)}, {sr(sTS)}")
                em(f"v_mov_b32 v0, {sr(sT0)}")
                em(f"buffer_atomic_umax v0, off, {sr(S_DBG, 4)}, 0 offset:128")
            if role in (tagn, "a"):
                em(f"v_mov_b32 v1, {sr(sTS + 2 * which)}")
                em(f"buffer_atomic_umax v1, off, {sr(S_DBG, 4)}, 0 offset:132")
            if role in (tagn, "a") or tagn == "l":
                em("v_mov_b32 v2, 1")
                em("s_waitcnt vmcnt(0)")
                em(f"buffer_atomic_add v2, off, {sr(S_DBG, 4)}, 0 offset:136")
            if tagn == "l":
                em(f"s_cmp_eq_u32 {sr(sWG)}, 100")
                em("s_cbranch_scc0 L_gp_done")
                em.label("L_gp1")
                em(f"buffer_load_dwordx4 v[4:7], off, {sr(S_DBG, 4)}, 0 offset:128 sc1")
                em("s_waitcnt vmcnt(0)")
                em(f"v_readfirstlane_b32 {sr(sT0)}, v6")
                em("s_sleep 8")
                em(f"s_cmp_ge_u32 {sr(sT0)}, {nrep}")
                em("s_cbranch_scc0 L_gp1")
                em(f"buffer_load_dwordx4 v[4:7], off, {sr(S_DBG, 4)}, 0 offset:128 sc1")
                em("s_waitcnt vmcnt(0)")
                em(f"v_readfirstlane_b32 {sr(sT2)}, v4")
                em(f"v_readfirstlane_b32 {sr(sT0)}, v5")
                em(f"s_not_b32 {sr(sT2)}, {sr(sT2)}")
                em(f"s_sub_u32 {sr(sT0)}, {sr(sT0)}, {sr(sT2)}")
                em(f"s_min_u32 {sr(sT0)}, {sr(sT0)}, 5000")
                em(f"s_mul_i32 {sr(sT0)}, {sr(sT0)}, {fac}")
                em(f"s_add_u32 {sr(sT0)}, {sr(sT0)}, 15000")
                em.label("L_gp2")
                em("s_memrealtime s[78:79]")
                em("s_waitcnt lgkmcnt(0)")
                em(f"s_sub_u32 {sr(sT1)}, s78, {sr(sT2)}")
                em(f"s_cmp_lt_u32 {sr(sT1)}, {sr(sT0)}")
                em("s_cbranch_scc1 L_gp2")
                em.label("L_gp_done")
            em.vm_q = []
            return
        if PROBE:
            which, fac, pw = (int(x) for x in PROBE.split(","))
            em(f"s_cmp_eq_u32 {sr(sWG)}, 100")
            em(f"s_cbranch_scc0 L_probe_done{tagn}")
            em(f"s_cmp_eq_u32 {sr(sWAVE)}, {pw}")
            em(f"s_cbranch_scc0 L_probe_done{tagn}")
            em(f"s_sub_u32 {sr(sT0)}, {sr(sTS + 2 * which)}, {sr(sTS)}")
            em(f"s_mul_i32 {sr(sT0)}, {sr(sT0)}, {fac}")
            em(f"s_add_u32 {sr(sT0)}, {sr(sT0)}, 5000")
            em.label(f"L_probe{tagn}")
            em("s_memrealtime s[78:79]")
            em("s_waitcnt lgkmcnt(0)")
            em(f"s_sub_u32 {sr(sT1)}, s78, {sr(sTS)}")
            em(f"s_cmp_lt_u32 {sr(sT1)}, {sr(sT0)}")
            em(f"s_cbranch_scc1 L_probe{tagn}")
            em.label(f"L_probe_done{tagn}")
            return
        em("s_sub_u32 s76, s78, s76")
        if tagn == "m":
            em(f"s_mov_b32 {sr(sT1)}, {sr(sW)}")
        else:
            em(f"s_add_u32 {sr(sT1)}, {sr(sWAVE)}, 8")
        em(f"s_mul_i32 {sr(sT0)}, {sr(sWG)}, {NWAVE}")
        em(f"s_add_u32 {sr(sT0)}, {sr(sT0)}, {sr(sT1)}")
        em(f"s_lshl_b32 {sr(sT0)}, {sr(sT0)}, 6")
        em(f"s_add_u32 {sr(sT0)}, {sr(sT0)}, {0x800000}")
        for i in range(9):
            em(f"v_mov_b32 {vr(vPOOL + i)}, {sr(sTS + 2 * i)}")
        em("v_mov_b32 v0, 0")
        em("s_mov_b64 exec, 1")
        em(f"buffer_store_dwordx4 {vr(vPOOL, 4)}, v0, {sr(S_WS, 4)}, {sr(sT0)} offen")
        em(f"buffer_store_dwordx4 {vr(vPOOL + 4, 4)}, v0, {sr(S_WS, 4)}, {sr(sT0)} offen offset:16")
        em(f"buffer_store_dword {vr(vPOOL + 8)}, v0, {sr(S_WS, 4)}, {sr(sT0)} offen offset:32")
        em(f"s_getreg_b32 {sr(sT1)}, hwreg(HW_REG_XCC_ID, 0, 4)")
        em(f"v_mov_b32 {vr(vPOOL + 9)}, {sr(sT1)}")
        em(f"buffer_store_dword {vr(vPOOL + 9)}, v0, {sr(S_WS, 4)}, {sr(sT0)} offen offset:36")

    sWG = 94

    e = Emitter()
    e.raw(HEADER + f"; @launch grid=(256,1,1) block=({64 * NWAVE},1,1) lds=163840")
    e.raw('.amdgcn_target "amdgcn-amd-amdhsa--gfx950"')
    e.raw(".text")
    e.raw(f".globl {NAME}_kernel")
    e.raw(".p2align 8")
    e.raw(f".type {NAME}_kernel,@function")
    e.raw(f"{NAME}_kernel:")
    e("s_load_dwordx4 s[4:7], s[0:1], 0")
    e("s_load_dwordx2 s[8:9], s[0:1], 16")
    e("s_cmp_ge_u32 s2, 256")
    e("s_cbranch_scc1 L_end")
    stamp(e, 0)
    if STAMP:
        e("s_memtime s[76:77]")
        e(f"s_mov_b32 {sr(sWG)}, s2")
        for i in range(1, 6):
            e(f"s_mov_b64 {sr(sTS + 2 * i, 2)}, 0")
    e(f"v_readfirstlane_b32 {sr(sWAVE)}, v0")
    e(f"v_and_b32 {vr(vN)}, 15, v0")
    e(f"v_bfe_u32 {vr(vG)}, v0, 4, 2")
    e(f"s_and_b32 {sr(sT0)}, s2, 7")
    e(f"s_lshr_b32 {sr(sT1)}, s2, 6")
    e(f"s_lshl2_add_u32 {sr(sHEAD)}, {sr(sT0)}, {sr(sT1)}")
    e(f"s_bfe_u32 {sr(sCHUNK)}, s2, 0x30003")
    e(f"s_lshl_b32 {sr(sHEADOFF)}, {sr(sHEAD)}, 19")
    e(f"s_lshl_b32 {sr(sT0)}, {sr(sCHUNK)}, 16")
    e(f"s_add_u32 {sr(sROW0)}, {sr(sHEADOFF)}, {sr(sT0)}")
    e(f"s_add_u32 {sr(sHI)}, {sr(sHEADOFF)}, {HEADB - 4096}")
    e(f"s_and_b32 {sr(sDESC)}, {sr(sCHUNK)}, 1")
    e(f"v_lshlrev_b32 {vr(vG4)}, 2, {vr(vG)}")
    e(f"v_mov_b32 {vr(vFLAG)}, {L_FLAG}")
    e(f"s_mov_b32 {sr(S_K + 2)}, {TB}")
    e(f"s_mov_b32 {sr(S_K + 3)}, 0x20000")
    e(f"s_lshr_b32 {sr(sWAVE)}, {sr(sWAVE)}, 6")
    e("s_cbranch_scc1 L_notloader")

    def other_srds(em, which):
        em("s_load_dwordx4 s[12:15], s[0:1], 40")
        em("s_load_dwordx2 s[16:17], s[0:1], 56")
        em(f"s_mov_b32 {sr(S_O + 2)}, {TB}")
        em(f"s_mov_b32 {sr(S_O + 3)}, 0x20000")
        em(f"s_mov_b32 {sr(S_DBG + 2)}, 256")
        em(f"s_mov_b32 {sr(S_DBG + 3)}, 0x20000")
        em(f"s_mov_b32 {sr(S_WS + 2)}, {0x1000000}")
        em(f"s_mov_b32 {sr(S_WS + 3)}, 0x20000")

    def other_srds_done(em):
        em("s_waitcnt lgkmcnt(0)")
        for b, src in ((S_O, 12), (S_DBG, 14), (S_WS, 16)):
            em(f"s_mov_b64 {sr(b, 2)}, {sr(src, 2)}")

    ld = e.fork()
    vKD, vVD, vCNT = 2, 6, 8
    ld(f"v_lshlrev_b32 v0, 8, {vr(vG)}")
    ld(f"v_xor_b32 {vr(vVD)}, {vr(vG4)}, {vr(vN)}")
    ld(f"v_lshl_add_u32 {vr(vVD)}, {vr(vVD)}, 4, v0")
    ld(f"v_xor_b32 {vr(vKD)}, {vr(vG)}, {vr(vN)}")
    ld(f"v_lshl_add_u32 {vr(vKD)}, {vr(vKD)}, 4, v0")
    ld(f"s_mov_b32 {sr(S_V + 2)}, {TB}")
    ld(f"s_mov_b32 {sr(S_V + 3)}, 0x20000")
    ld(f"v_mov_b32 {vr(vCNT)}, 0")
    ld(f"v_mov_b32 {vr(vCNT + 1)}, 0")
    ld(f"s_mov_b32 m0, {L_GK}")
    ld("s_waitcnt lgkmcnt(0)")
    ld(f"s_mov_b64 {sr(S_K, 2)}, s[6:7]")
    ld(f"s_mov_b64 {sr(S_V, 2)}, s[8:9]")

    def v_halo(em, hi_when_desc):
        em(f"s_cmp_eq_u32 {sr(sDESC)}, {1 if hi_when_desc else 0}")
        em(f"s_cselect_b32 {sr(sT0)}, {18 * VT}, 0")
        em(f"s_cselect_b32 {sr(sT1)}, {18 * 4096}, 0")
        em(f"s_add_u32 {sr(sT1)}, {sr(sT1)}, {sr(sROW0)}")
        em(f"s_sub_u32 {sr(sT1)}, {sr(sT1)}, 8192")
        for k in range(2):
            em(f"s_max_i32 {sr(sT2)}, {sr(sT1)}, {sr(sHEADOFF)}")
            em(f"s_min_i32 {sr(sT2)}, {sr(sT2)}, {sr(sHI)}")
            for j in range(4):
                em(f"s_add_u32 m0, {sr(sT0)}, {L_V + VT * k + 32 * j}")
                if k == 0 and j == 0:
                    em(f"s_add_u32 {sr(sT1)}, {sr(sT1)}, 4096")
                em(f"buffer_load_dwordx4 {vr(vVD)}, {sr(S_V, 4)}, {sr(sT2)} offen offset:{1024 * j}{LD} lds")

    ld(f"buffer_load_dwordx4 {vr(vKD)}, {sr(S_K, 4)}, {sr(sHEADOFF)} offen lds")
    stamp(ld, 5)
    ld(f"s_mov_b32 m0, {L_GV}")
    ld(f"buffer_load_dwordx4 {vr(vVD)}, {sr(S_V, 4)}, {sr(sHEADOFF)} offen lds")
    ld(f"ds_write_b64 {vr(vFLAG)}, {vr(vCNT, 2)}")
    v_halo(ld, True)
    for j in range(1, 4):
        ld(f"v_xor_b32 {vr(vKD + j)}, {64 * j}, {vr(vKD)}")
    ld("s_waitcnt lgkmcnt(0)")
    if opt.get("stbar"):
        stamp(ld, 1)
    ld("s_barrier")
    if opt.get("stbar"):
        stamp(ld, 2)
    ld(f"s_mul_i32 {sr(sX)}, {sr(sDESC)}, {15 * 4096}")
    ld(f"s_mul_i32 {sr(sSTEP)}, {sr(sDESC)}, -8192")
    ld(f"s_add_u32 {sr(sSTEP)}, {sr(sSTEP)}, 4096")
    ld(f"s_mul_i32 {sr(sXV)}, {sr(sDESC)}, {15 * VT}")
    ld(f"s_add_u32 {sr(sXV)}, {sr(sXV)}, {L_V + 2 * VT}")
    ld(f"s_mul_i32 {sr(sSTEPV)}, {sr(sDESC)}, {-2 * VT}")
    ld(f"s_add_u32 {sr(sSTEPV)}, {sr(sSTEPV)}, {VT}")
    def k_tile():
        ld(f"s_add_u32 {sr(sT1)}, {sr(sX)}, {sr(sROW0)}")
        ld(f"s_add_u32 m0, {sr(sX)}, {L_K}")
        ld(f"s_add_u32 {sr(sX)}, {sr(sX)}, {sr(sSTEP)}")
        for j in range(4):
            ld(f"buffer_load_dwordx4 {vr(vKD + j)}, {sr(S_K, 4)}, {sr(sT1)} offen offset:{1024 * j}{LD} lds")

    def v_tile():
        for j in range(4):
            ld(f"s_add_u32 m0, {sr(sXV)}, {32 * j}")
            ld(f"buffer_load_dwordx4 {vr(vVD)}, {sr(S_V, 4)}, {sr(sB)} offen offset:{1024 * j}{LD} lds")
        ld(f"s_add_u32 {sr(sXV)}, {sr(sXV)}, {sr(sSTEPV)}")
        ld(f"s_add_u32 {sr(sB)}, {sr(sB)}, {sr(sSTEP)}")

    ld(f"s_add_u32 {sr(sB)}, {sr(sX)}, {sr(sROW0)}")
    k_tile()
    k_tile()
    other_srds(ld, None)
    stage_read_addrs(ld)
    ld(f"s_mov_b32 {sr(sCNT)}, {2 - D}")
    ld.vm_q = []
    ld.label("L_ldloop")
    ld(f"s_cmp_eq_u32 {sr(sCNT)}, {HP + 1 - D}")
    ld("s_cbranch_scc1 L_ldhalo")
    k_tile()
    v_tile()
    ld.raw("L_ldwait:")
    ld(f"s_add_u32 {sr(sCNT)}, {sr(sCNT)}, 1")
    ld(f"v_mov_b32 {vr(vCNT)}, {sr(sCNT)}")
    ld(f"s_cmp_lt_i32 {sr(sCNT)}, {17 - D}")
    ld(f"s_waitcnt vmcnt({WIN})")
    ld(f"ds_write_b32 {vr(vFLAG)}, {vr(vCNT)}")
    ld("s_cbranch_scc1 L_ldloop")
    ld.vm_q = []
    stamp(ld, 1)
    v_tile()
    v_tile()
    stamp(ld, 2)
    hl = Emitter()
    hl.raw("L_ldhalo:")
    v_halo(hl, False)
    hl("s_branch L_ldwait")
    other_srds_done(ld)
    ld(f"s_mul_i32 {sr(sXV)}, {sr(sDESC)}, {19 * VT}")
    ld(f"s_add_u32 {sr(sXV)}, {sr(sXV)}, {L_V}")
    ld(f"s_mul_i32 {sr(sX)}, {sr(sDESC)}, {15 * 4096}")
    ld(f"s_add_u32 {sr(sQOFF)}, {sr(sX)}, {sr(sROW0)}")
    ld(f"s_add_u32 {sr(sX)}, {sr(sX)}, {L_K}")
    ld(f"s_cmp_eq_u32 {sr(sQOFF)}, {sr(sHEADOFF)}")
    ld(f"s_cselect_b32 {sr(sEX)}, 0xffffff00, -1")
    ld(f"s_mov_b32 {sr(sEX + 1)}, -1")
    ld(f"s_mov_b32 {sr(sREQ)}, 0")
    for k in range(D, -1, -1):
        ld(f"v_mov_b32 {vr(vCNT)}, {18 - k}")
        ld(f"s_waitcnt vmcnt({8 * k})")
        ld(f"ds_write_b32 {vr(vFLAG)}, {vr(vCNT)}")
        if k == 1:
            stamp(ld, 3)
    ld.vm_q = []
    stamp(ld, 4)
    def park_fetch(w):
        u = newid()
        ld(f"s_bitcmp1_b32 {sr(sREQ)}, {8 + w}")
        ld(f"s_cbranch_scc1 L_have{u}")
        keep = (list(ld.ds_q), list(ld.hist))
        ld.raw(f"L_poll{u}:")
        ld(f"ds_read_b32 {vr(vT2)}, {vr(vFLAG)} offset:4")
        ld(f"v_readfirstlane_b32 {sr(sREQ)}, {vr(vT2)}")
        ld(f"s_bitcmp1_b32 {sr(sREQ)}, {8 + w}")
        ld(f"s_cbranch_scc1 L_have{u}")
        if SLEEP:
            ld(f"s_sleep {SLEEP}")
        ld(f"s_branch L_poll{u}")
        ld.raw(f"L_have{u}:")
        ld.ds_q, ld.hist = keep
        ld(f"v_add_u32 v0, {sr(sXV if w < 2 else sX)}, {vr(vSR)}")
        if w < 2:
            ld(f"s_add_u32 {sr(sXV)}, {sr(sXV)}, {sr(sSTEPV)}")
        else:
            ld(f"s_add_u32 {sr(sX)}, {sr(sX)}, {sr(sSTEP)}")
        for k in range(4):
            ld(f"ds_read_b128 {vr(vPOOL + 16 * (w % 2) + 4 * k, 4)}, v0 offset:{1024 * k}")

    park_fetch(0)
    for w in range(8):
        if w < 7:
            park_fetch(w + 1)
        if PST < 32 and 4 * w >= PST:
            ld(f"s_waitcnt vmcnt({PST - 4})")
        if w == GATE and not NOCOMP:
            ld(f"s_mov_b32 {sr(sT2)}, {1 << 25}")
            poll_bits(ld, sr(sT2))
        if w == 0:
            ld(f"s_mov_b64 exec, {sr(sEX, 2)}")
        for k in range(4):
            ld(f"buffer_store_dwordx4 {vr(vPOOL + 16 * (w % 2) + 4 * k, 4)}, {vr(vSO)}, {sr(S_O, 4)}, {sr(sQOFF)} offen offset:{64 * k}{ST}")
        if w == 0:
            ld("s_mov_b64 exec, -1")
        ld(f"s_add_u32 {sr(sQOFF)}, {sr(sQOFF)}, {sr(sSTEP)}")
    dump_stamps(ld, "l")
    ld("s_endpgm")
    ld.lines += hl.lines
    ld.raw("L_notloader:")

    def code_pf_setup(em):
        em("s_getpc_b64 s[18:19]")
        em.raw("L_pc:")
        em(f"v_lshl_add_u32 v158, {vr(vG)}, 4, {vr(vN)}")
        em("v_lshlrev_b32 v158, 7, v158")
        em(f"s_sub_u32 s18, s18, L_pc-{NAME}_kernel")
        em("s_subb_u32 s19, s19, 0")
        em("v_add_u32 v159, 0x2000, v158")
        em(f"v_min_u32 v159, L_codeend-{NAME}_kernel-4, v159")

    def code_pf(em):
        for i in range(2):
            em(f"global_load_dword {vr(160 + i)}, {vr(158 + i)}, s[18:19]")
        em.vm_q = [x for x in em.vm_q if not (x[0] & {("v", 160), ("v", 161)})] + [(set(), None)] * 2

    c = e.fork()
    if CPF and CPE:
        c(f"s_cmp_le_u32 {sr(sWAVE)}, {NH}")
        c("s_cbranch_scc0 L_nocp")
        code_pf_setup(c)
        code_pf(c)
        c.raw("L_nocp:")
    other_srds(c, None)
    c(f"s_mov_b32 {sr(S_Q + 2)}, {TB}")
    c(f"s_mov_b32 {sr(S_Q + 3)}, 0x20000")
    stage_read_addrs(c)
    c("s_barrier")
    other_srds_done(c)
    c(f"s_mov_b64 {sr(S_K, 2)}, s[6:7]")
    c(f"s_mov_b64 {sr(S_Q, 2)}, s[4:5]")
    c(f"s_mov_b32 {sr(sC)}, {CSCALE:#x}")
    c(f"s_mov_b32 {sr(sC + 1)}, {CSCALE:#x}")
    c(f"s_mov_b32 {sr(sNEG)}, {NEG:#x}")
    c(f"s_cmp_le_u32 {sr(sWAVE)}, {NH}")
    c("s_cbranch_scc1 L_helper")

    def lane_addrs(em):
        em(f"v_xor_b32 {vr(vKA)}, {vr(vN)}, {vr(vG)}")
        em(f"v_lshlrev_b32 {vr(vKA)}, 4, {vr(vKA)}")
        em(f"v_lshl_add_u32 {vr(vKA)}, {vr(vN)}, 8, {vr(vKA)}")
        em(f"v_lshrrev_b32 {vr(vT0)}, 2, {vr(vN)}")
        em(f"v_and_b32 {vr(vT1)}, 3, {vr(vN)}")
        em(f"v_mul_u32_u24 {vr(vGV)}, {256 + 64}, {vr(vT0)}")
        em(f"v_lshl_add_u32 {vr(vGV)}, {vr(vT1)}, 3, {vr(vGV)}")
        em(f"v_mul_u32_u24 {vr(vT2)}, {VP}, {vr(vG)}")
        for s in range(1, 4):
            em(f"v_xor_b32 {vr(vKA + s)}, {64 * s}, {vr(vKA)}")
            em(f"v_xor_b32 {vr(vGV + s)}, {64 * s}, {vr(vGV)}")
        for s in range(4):
            em(f"v_add_u32 {vr(vVA + s)}, {vr(vT2)}, {vr(vGV + s)}")
        for i in range(4):
            em(f"v_mov_b32 {vr(vONE + i)}, 0x3f803f80")

    def tile_addrs(em, skoff, svoff):
        for s in range(4):
            em(f"v_add_u32 {vr(vKA + s)}, {skoff}, {vr(vKA + s)}")
            em(f"v_add_u32 {vr(vVA + s)}, {svoff}, {vr(vVA + s)}")

    def allreduce_ops(op, x, y):
        return [f"v_mov_b32 {vr(y)}, {vr(x)}", f"v_permlane32_swap_b32 {vr(x)}, {vr(y)}", f"{op} {vr(x)}, {vr(x)}, {vr(y)}",
                f"v_mov_b32 {vr(y)}, {vr(x)}", f"v_permlane16_swap_b32 {vr(x)}, {vr(y)}", f"{op} {vr(x)}, {vr(x)}, {vr(y)}"]

    def max_tree(vals, dst):
        vals = list(vals)
        ops = [f"v_max3_f32 {vr(dst)}, {vr(vals[0])}, {vr(vals[1])}, {vr(vals[2])}"]
        i = 3
        while i + 1 < len(vals):
            ops.append(f"v_max3_f32 {vr(dst)}, {vr(dst)}, {vr(vals[i])}, {vr(vals[i + 1])}")
            i += 2
        if i < len(vals):
            ops.append(f"v_max_f32 {vr(dst)}, {vr(dst)}, {vr(vals[i])}")
        return ops

    def mfma(d, a, b, cc):
        return f"v_mfma_f32_16x16x32_bf16 {vr(d, 4)}, {vr(a, 4)}, {vr(b, 4)}, {'0' if cc is None else vr(cc, 4)}"

    m = c.fork()
    KQ = [vOX + 4 * i for i in range(6)] + [vPOOL + 4 * i for i in range(18)]
    OACC = [vOX + 4 * i for i in range(5)] + [vS + 12, vS + 16, vS + 20]
    vL = vOX + 20

    def q_load(em, sb):
        em(f"s_lshl_b32 {sr(sT1)}, {sb}, 12")
        em(f"s_add_u32 {sr(sT1)}, {sr(sT1)}, {sr(sROW0)}")
        for s in range(4):
            em(f"buffer_load_dwordx4 {vr(vQR + 4 * s, 4)}, {vr(1 if QDIR else vSO)}, {sr(S_Q, 4)}, {sr(sT1)} offen offset:{64 * s}{QLD}")
        em.vm_q = []

    def k_halo(em, sb):
        u = newid()
        em(f"s_sub_u32 {sr(sT0)}, {sb}, 2")
        em(f"s_cmp_lt_u32 {sr(sT0)}, 12")
        em.flush()
        em(f"s_cbranch_scc1 L_kh{u}")
        for t in (0, 1, 3, 4):
            em(f"s_add_u32 {sr(sT0)}, {sb}, {t - 2}")
            em(f"s_cmp_lt_u32 {sr(sT0)}, 16")
            em(f"s_cbranch_scc1 L_kh{u}_{t}")
            em(f"s_lshl_b32 {sr(sT0)}, {sr(sT0)}, 12")
            em(f"s_add_u32 {sr(sT0)}, {sr(sT0)}, {sr(sROW0)}")
            em(f"s_max_i32 {sr(sT0)}, {sr(sT0)}, {sr(sHEADOFF)}")
            em(f"s_min_i32 {sr(sT0)}, {sr(sT0)}, {sr(sHI)}")
            for s in range(4):
                em(f"buffer_load_dwordx4 {vr(KQ[4 + 4 * t + s], 4)}, {vr(vSO)}, {sr(S_K, 4)}, {sr(sT0)} offen offset:{64 * s}")
            em.raw(f"L_kh{u}_{t}:")
        em.raw(f"L_kh{u}:")
        em.vm_q = []

    m(f"s_sub_u32 {sr(sW)}, {sr(sWAVE)}, {1 + NH}")
    if WX:
        m(f"s_xor_b32 {sr(sW)}, {sr(sW)}, {WX}")
    m(f"s_mul_i32 {sr(sT2)}, {sr(sDESC)}, 15")
    m(f"s_xor_b32 {sr(sB)}, {sr(sW)}, {sr(sT2)}")
    if QDIR:
        m(f"v_lshlrev_b32 v1, 4, {vr(vG)}")
        m(f"v_lshl_add_u32 v1, {vr(vN)}, 8, v1")
    m(f"s_cmp_gt_u32 {sr(sW)}, {max(1, QLEAD)}")
    m("s_cbranch_scc1 L_qa_later")
    k_halo(m, sr(sB))
    m(f"s_cmp_gt_u32 {sr(sW)}, {QLEAD}")
    m("s_cbranch_scc1 L_qa_later")
    q_load(m, sr(sB))
    m.raw("L_qa_later:")
    if PRIOW < 8:
        m(f"s_cmp_lt_u32 {sr(sW)}, {PRIOW}")
        m("s_cbranch_scc1 L_noprio")
        m(f"s_setprio {PRIOV}")
        m.raw("L_noprio:")
    lane_addrs(m)
    m(f"v_xor_b32 {vr(vGK)}, {vr(vT1)}, {vr(vG)}")
    m(f"v_lshlrev_b32 {vr(vGK)}, 4, {vr(vGK)}")
    m(f"v_lshl_add_u32 {vr(vGK)}, {vr(vT1)}, 8, {vr(vGK)}")
    m(f"v_add_u32 {vr(vGK)}, {L_GK}, {vr(vGK)}")
    for u in range(4):
        m(f"v_add_u32 {vr(vGV + u)}, {L_GV}, {vr(vGV + u)}")
    m(f"s_lshl_b32 {sr(sREQ)}, {sr(sW)}, 10")
    m(f"v_bfe_u32 {vr(vT0)}, {vr(vN)}, 1, 2")
    m(f"v_lshlrev_b32 {vr(vT2)}, 6, {vr(vN)}")
    m(f"v_add_u32 {vr(vT2)}, {sr(sREQ)}, {vr(vT2)}")
    m(f"v_xor_b32 {vr(vSW)}, {vr(vT0)}, {vr(vG)}")
    m(f"v_lshl_add_u32 {vr(vSW)}, {vr(vSW)}, 4, {vr(vT2)}")
    m(f"v_lshrrev_b32 {vr(vSW1)}, 1, {vr(vG)}")
    m(f"v_xor_b32 {vr(vSW0)}, {vr(vT0)}, {vr(vSW1)}")
    m(f"v_lshl_add_u32 {vr(vSW0)}, {vr(vSW0)}, 4, {vr(vT2)}")
    m(f"v_and_b32 {vr(vSW1)}, 1, {vr(vG)}")
    m(f"v_lshl_add_u32 {vr(vSW0)}, {vr(vSW1)}, 3, {vr(vSW0)}")
    m(f"v_xor_b32 {vr(vSW1)}, 32, {vr(vSW0)}")
    m(f"v_add_u32 {vr(vSR)}, {sr(sREQ)}, {vr(vSR)}")
    m(f"v_sub_u32 {vr(vT0)}, {vr(vG4)}, {vr(vN)}")
    for r in range(4):
        m(f"v_cmp_le_i32 {sr(sMASK + 2 * r, 2)}, {-r}, {vr(vT0)}")
        m(f"v_cmp_ge_i32 {sr(sMASK + 8 + 2 * r, 2)}, {-r}, {vr(vT0)}")
    m(f"v_cmp_eq_u32 {sr(sMASK + 16, 2)}, 0, {vr(vG4)}")
    park_addr(m, sr(sW), sr(sPARK))
    m(f"s_sub_u32 {sr(sPARK)}, {sr(sPARK)}, {sr(sREQ)}")
    m(f"s_lshl_b32 {sr(sREQ)}, 15, {sr(sW)}")
    m(f"s_lshr_b32 {sr(sREQ)}, {sr(sREQ)}, 4")
    m(f"s_lshr_b32 {sr(sT1)}, {sr(sW)}, 1")
    m(f"s_lshl_b32 {sr(sT1)}, 0x8000, {sr(sT1)}")
    m(f"s_or_b32 {sr(sREQ)}, {sr(sREQ)}, {sr(sT1)}")
    m(f"s_lshl_b32 {sr(sT1)}, {sr(sW)}, 8")
    m(f"s_cmp_lt_u32 {sr(sW)}, 2")
    m(f"s_cselect_b32 {sr(sREQ)}, {sr(sT1)}, {sr(sREQ)}")
    m(f"s_mov_b32 {sr(sIT)}, 0")
    m(f"s_add_u32 {sr(sNEED)}, {sr(sW)}, 3")
    m(f"s_add_u32 {sr(sNEEDV)}, {sr(sW)}, 5")
    m(f"s_add_u32 {sr(sX)}, {sr(sW)}, {ROT}")
    m(f"s_and_b32 {sr(sX)}, {sr(sX)}, 7")
    m(f"s_add_u32 {sr(sX)}, {sr(sX)}, 8")
    m(f"s_mul_i32 {sr(sT2)}, {sr(sDESC)}, 15")
    m(f"s_xor_b32 {sr(sB2)}, {sr(sX)}, {sr(sT2)}")
    m(f"s_lshl_b32 {sr(sSTEP)}, {sr(sB)}, 12")
    m(f"s_add_u32 {sr(sSTEP)}, {sr(sSTEP)}, {L_K - 8192}")
    m(f"s_mul_i32 {sr(sSTEPV)}, {sr(sB)}, {VT}")
    m(f"s_add_u32 {sr(sSTEPV)}, {sr(sSTEPV)}, {L_V}")
    m(f"s_cmp_gt_u32 {sr(sW)}, {QLEAD}")
    m("s_cbranch_scc0 L_block")
    m(f"s_sub_u32 {sr(sT2)}, {sr(sW)}, {QLEAD}")
    poll(m, sr(sT2))
    q_load(m, sr(sB))
    m.label("L_block")
    m(f"s_lshl_b32 {sr(sT0)}, {sr(sB)}, 12")
    m(f"s_add_u32 {sr(sQOFF)}, {sr(sT0)}, {sr(sROW0)}")
    m(f"v_mov_b32 {vr(vT0)}, {sr(sNEG)}")
    tile_addrs(m, sr(sSTEP), sr(sSTEPV))
    m(f"s_lshl_b32 {sr(sQ0)}, {sr(sCHUNK)}, 8")
    m(f"s_lshl_b32 {sr(sT0)}, {sr(sB)}, 4")
    m(f"s_add_u32 {sr(sQ0)}, {sr(sQ0)}, {sr(sT0)}")
    for r in range(4):
        m(f"v_cndmask_b32_e64 {vr(vS + r)}, {vr(vT0)}, 0, {sr(sMASK + 2 * r, 2)}")
        m(f"v_cndmask_b32_e64 {vr(vS + 16 + r)}, {vr(vT0)}, 0, {sr(sMASK + 8 + 2 * r, 2)}")
    m(f"v_cndmask_b32_e64 {vr(vS + 20)}, {vr(vT0)}, 0, {sr(sMASK + 16, 2)}")
    m(f"v_cndmask_b32_e64 {vr(vS + 21)}, {vr(vT0)}, 0, {sr(sMASK + 16, 2)}")
    poll(m, sr(sNEED))
    stamp_it(m, 1)

    def relayout(q):
        m(f"ds_write_b128 {vr(vSR)}, {vr(q, 4)}")
        m(f"ds_read_b128 {vr(q, 4)}, {vr(vSW)}")

    def v_read(T, k):
        u, p = T // 2, T % 2
        q = vPOOL + 12 * (T % 6) + 4 * k
        r = [f"ds_read_b64_tr_b16 {vr(q + 2 * j, 2)}, {vr(vVA + u)} offset:{VT * (2 * k + j) + 32 * p}" for j in range(2)]
        if k == 2:
            r[1] = f"ds_read_b64_tr_b16 {vr(q + 2, 2)}, {vr(vGV + u)} offset:{32 * p}"
        return r

    if not NOCOMP:
        for s in range(4):
            if s:
                m(f"v_xor_b32 {vr(KQ[s])}, {64 * s}, {vr(vGK)}")
            m(f"ds_read_b128 {vr(KQ[s], 4)}, {vr(KQ[s]) if s else vr(vGK)}")
        for t in (2, 0, 1, 3, 4):
            if t != 2:
                m(f"s_add_u32 {sr(sT0)}, {sr(sB)}, {t - 2}")
                m(f"s_cmp_lt_u32 {sr(sT0)}, 16")
                m(f"s_cbranch_scc0 L_skipk{t}")
            for s in range(4):
                m(f"ds_read_b128 {vr(KQ[4 + 4 * t + s], 4)}, {vr(vKA + s)} offset:{4096 * t}")
            if t != 2:
                m.raw(f"L_skipk{t}:")
        m(f"s_sub_u32 {sr(sT0)}, {sr(sB)}, 2")
        m(f"s_cmp_lt_u32 {sr(sT0)}, 12")
        m("s_cbranch_scc1 L_nohalo")
        keep = list(m.ds_q)
        m.ds_q = []
        m("s_waitcnt vmcnt(4)")
        for t in (0, 1, 3, 4):
            m(f"s_add_u32 {sr(sT0)}, {sr(sB)}, {t - 2}")
            m(f"s_cmp_lt_u32 {sr(sT0)}, 16")
            m(f"s_cbranch_scc1 L_rl{t}")
            for s in range(4):
                relayout(KQ[4 + 4 * t + s])
            m.raw(f"L_rl{t}:")
        m.ds_q = keep
        m.raw("L_nohalo:")
    m("s_waitcnt vmcnt(0)")
    stamp_it(m, 2)
    if NOCOMP:
        for i in range(16):
            m(f"v_mov_b32 {vr(vPOOL + i)}, {vr(vQR + i)}")
        set_bit(m, sr(sW))
        poll(m, sr(sNEEDV))
    else:
        if QDIR:
            m.wait_lgkm_all()
        else:
            for s in range(4):
                relayout(vQR + 4 * s)
        m(f"s_sub_u32 {sr(sT1)}, {sr(sQ0)}, 34")
        for s in range(4):
            m(mfma(vS + 20, KQ[s], vQR + 4 * s, vS + 20))
        set_bit(m, sr(sW))
        m(f"ds_read_b32 {vr(vT3)}, {vr(vFLAG)}")
        m(f"s_cmp_lt_u32 {sr(sT1)}, {2001 - 34}")

        def s_tile(t):
            return [mfma(vS + 4 * t, KQ[4 + 4 * t + s], vQR + 4 * s, None if (s == 0 and t in (1, 2, 3)) else vS + 4 * t) for s in range(4)]

        VR = [op for k in range(3) for T in range(6) for op in v_read(T, k)]
        mx = max_tree([vS + 20, vS + 21] + [vS + i for i in range(20)], vT0)
        m("s_cbranch_scc0 L_edge")
        ed = m.fork()
        for op in s_tile(0) + s_tile(1) + s_tile(2) + merge(s_tile(3), mx[:2]) + merge(s_tile(4), mx[2:5]):
            m(op)
        poll_pre(m, sr(sNEEDV), vT3)
        for op in VR[:4] + mx[5:7] + VR[4:8] + mx[7:]:
            m(op)
        m.raw("L_join:")
        ed.raw("L_edge:")
        for t in range(5):
            for op in s_tile(t):
                ed(op)
        ed(f"v_add_u32 {vr(vT1)}, {sr(sT1)}, {vr(vG4)}")
        ed(f"s_movk_i32 {sr(sT1)}, 2046")
        for t in range(5):
            for r in range(4):
                ed(f"v_add_u32 v0, {16 * t + r}, {vr(vT1)}")
                ed(f"v_cmp_gt_u32 vcc, {sr(sT1)}, v0")
                ed(f"v_cndmask_b32 {vr(vS + 4 * t + r)}, {vr(vT0)}, {vr(vS + 4 * t + r)}, vcc")
        poll_pre(ed, sr(sNEEDV), vT3)
        for op in VR[:8] + mx:
            ed(op)
        ed.flush()
        ed("s_branch L_join")
    m(f"s_lshl_b32 {sr(sT0)}, {sr(sIT)}, 4")
    m(f"s_add_u32 {sr(sT0)}, {sr(sT0)}, {EW}")
    m(f"s_cmp_ge_u32 {sr(sW)}, {sr(sT0)}")
    m("s_cbranch_scc0 L_noearly")
    q_load(m, sr(sB2))
    m.raw("L_noearly:")
    stamp_it(m, 3)

    W = vPOOL + 40
    R = vPOOL + 24

    def p_ops(lo, hi):
        fm, ex, cv = [], [], []
        for i in range(lo, hi):
            if PK and i % 2 == 0:
                fm.append(f"v_pk_fma_f32 {vr(vS + i, 2)}, {vr(vS + i, 2)}, {sr(sC, 2)}, {vr(vT0, 2)} neg_lo:[0,0,1] neg_hi:[0,0,1]")
            elif not PK:
                fm.append(f"v_fma_f32 {vr(vS + i)}, {vr(vS + i)}, {sr(sC)}, -{vr(vT0)}")
            ex.append(f"v_exp_f32 {vr(vS + i)}, {vr(vS + i)}")
        for i in range(lo // 2, hi // 2):
            cv.append(f"v_cvt_pk_bf16_f32 {vr(vS + i)}, {vr(vS + 2 * i)}, {vr(vS + 2 * i + 1)}")
        per = 2 if PK else 1
        seq = fm[:2 // per]
        nf = 2 // per
        for j, x in enumerate(ex):
            seq.append(x)
            if nf < len(fm) and (j + 1) % per == 0:
                seq.append(fm[nf])
                nf += 1
            if j >= 2 and j % 2 == 0:
                seq.append(cv[(j - 2) // 2])
        seq.append(cv[-1])
        return seq

    def pv(T, k):
        return mfma(OACC[T], vPOOL + 12 * (T % 6) + 4 * k, vS + 4 * k, None if k == 0 else OACC[T])

    def lsum(k):
        return mfma(vL, vONE, vS + 4 * k, None if k == 0 else vL)

    def fin(T, park):
        u, p = T // 2, T % 2
        o = OACC[T]
        w = W + 4 * u + 2 * p
        if PK:
            ops = [f"v_pk_mul_f32 {vr(o + r, 2)}, {vr(o + r, 2)}, {vr(vT0, 2)} op_sel_hi:[1,0]" for r in (0, 2)]
        else:
            ops = [f"v_mul_f32 {vr(o + r)}, {vr(o + r)}, {vr(vT0)}" for r in range(4)]
        ops += [f"v_cvt_pk_bf16_f32 {vr(w)}, {vr(o)}, {vr(o + 1)}", f"v_cvt_pk_bf16_f32 {vr(w + 1)}, {vr(o + 2)}, {vr(o + 3)}"]
        if NOCOMP:
            ops = []
        if park:
            ops.append(f"ds_write_b64 {vr(vT3 if p else 0)}, {vr(w, 2)} offset:{1024 * u}")
        else:
            ops.append(f"ds_write_b64 {vr(vSW1 if p else vSW0)}, {vr(w, 2)}")
            if p:
                ops.append(f"ds_read_b128 {vr(R + 4 * u, 4)}, {vr(vSR)}")
        return ops

    if not NOCOMP:
        for op in merge(allreduce_ops("v_max_f32", vT0, vT1), VR[8:14]):
            m(op)
        m(f"v_mul_f32 {vr(vT0)}, {sr(sC)}, {vr(vT0)}")
        if PK:
            m(f"v_mov_b32 {vr(vT1)}, {vr(vT0)}")
        for op in merge(p_ops(0, 8), VR[14:24]):
            m(op)
        for op in merge(merge(p_ops(8, 16), VR[24:36]), [lsum(0)] + [pv(T, 0) for T in range(5)]):
            m(op)
        for op in merge(p_ops(16, 22) + [f"v_mov_b32 {vr(vS + 11)}, 0"], [pv(5, 0), lsum(1)] + [pv(T, 1) for T in range(6)]):
            m(op)
    stamp_it(m, 4)

    def tail(em, park):
        if park:
            em(f"v_add_u32 v0, {sr(sPARK)}, {vr(vSW0)}")
            em(f"v_add_u32 {vr(vT3)}, {sr(sPARK)}, {vr(vSW1)}")
            em(f"ds_read_b32 {vr(vT2)}, {vr(vFLAG)} offset:4")
        if NOCOMP:
            if park:
                poll_bits(em, sr(sREQ), True)
            for T in range(8):
                for op in fin(T, park):
                    em(op)
            return
        em(lsum(2))
        em(pv(0, 2))
        for k in range(3):
            for op in v_read(6, k):
                em(op)
        em(pv(1, 2))
        for k in range(3):
            for op in v_read(7, k):
                em(op)
        em(pv(2, 2))
        em(f"v_rcp_f32 {vr(vT0)}, {vr(vL)}")
        em(pv(3, 2))
        if park:
            poll_bits(em, sr(sREQ), True)
        em(pv(4, 2))
        em(pv(5, 2))
        for op in merge(fin(0, park) + fin(1, park) + fin(2, park), [pv(6, k) for k in range(3)] + [pv(7, k) for k in range(3)]):
            em(op)
        for T in range(3, 8):
            for op in fin(T, park):
                em(op)

    m(f"s_cmp_lg_u32 {sr(sIT)}, 0")
    m("s_cbranch_scc1 L_last")
    b2 = m.fork()
    tail(m, True)
    m(f"s_add_u32 {sr(sT1)}, {sr(sW)}, 8")
    m.wait_lgkm_all()
    set_bit(m, sr(sT1))
    stamp_it(m, 6, 0)
    m(f"s_sub_u32 {sr(sT1)}, {sr(sB2)}, {sr(sB)}")
    m(f"s_lshl_b32 {sr(sSTEP)}, {sr(sT1)}, 12")
    m(f"s_mul_i32 {sr(sSTEPV)}, {sr(sT1)}, {VT}")
    m(f"s_mov_b32 {sr(sB)}, {sr(sB2)}")
    if not NOCOMP:
        k_halo(m, sr(sB))
    m(f"s_add_u32 {sr(sNEED)}, {sr(sX)}, 2")
    m(f"s_min_u32 {sr(sNEED)}, {sr(sNEED)}, 15")
    m(f"s_cmp_gt_u32 {sr(sNEED)}, {HP}")
    m(f"s_addc_u32 {sr(sNEED)}, {sr(sNEED)}, 1")
    m(f"s_add_u32 {sr(sNEEDV)}, {sr(sX)}, 4")
    m(f"s_min_u32 {sr(sNEEDV)}, {sr(sNEEDV)}, 16")
    m(f"s_cmp_gt_u32 {sr(sNEEDV)}, {HP}")
    m(f"s_addc_u32 {sr(sNEEDV)}, {sr(sNEEDV)}, 1")
    m(f"s_mov_b32 {sr(sIT)}, 1")
    m(f"s_cmp_ge_u32 {sr(sW)}, {EW}")
    m.flush()
    m("s_cbranch_scc1 L_block")
    m(f"s_sub_u32 {sr(sT2)}, {sr(sNEED)}, {D + QL2}")
    m(f"s_max_u32 {sr(sT2)}, {sr(sT2)}, {THRMIN}")
    poll(m, sr(sT2))
    q_load(m, sr(sB))
    m("s_branch L_block")
    b2.raw("L_last:")
    tail(b2, False)
    if STAMP and "B6" in PTS:
        b2.wait_lgkm_all()
        stamp_it(b2, 6, 1)
    for u in range(4):
        b2(f"buffer_store_dwordx4 {vr(R + 4 * u, 4)}, {vr(vSO)}, {sr(S_O, 4)}, {sr(sQOFF)} offen offset:{64 * u}{STB}")
    dump_stamps(b2, "m")
    b2("s_endpgm")

    h = c.fork()
    h.raw("L_helper:")
    hS, hO, hK, hV, vM, vA = 44, 56, 92, 124, 156, 1
    hL = hO + 32
    if PRIOH:
        h(f"s_setprio {PRIOH}")
    if CPF and not CPE:
        code_pf_setup(h)
        code_pf(h)
    h(f"v_lshlrev_b32 {vr(vA)}, 4, {vr(vG)}")
    h(f"v_lshl_add_u32 v0, {vr(vN)}, 8, {vr(vA)}")
    for i in range(16):
        h(f"v_mov_b32 {vr(vQR + i)}, 0")
    h("s_mov_b32 exec_lo, 0x00030003")
    h("s_mov_b32 exec_hi, 0x00030003")
    for s in range(4):
        h(f"buffer_load_dwordx4 {vr(vQR + 4 * s, 4)}, v0, {sr(S_Q, 4)}, {sr(sHEADOFF)} offen offset:{64 * s}")
    h("s_mov_b64 exec, -1")
    lane_addrs(h)
    h(f"s_mul_i32 {sr(sPARK)}, {sr(sWAVE)}, 1056")
    h(f"s_add_u32 {sr(sPARK)}, {sr(sPARK)}, {L_MRG - 1056}")
    h(f"v_lshl_add_u32 {vr(vA)}, {vr(vN)}, 9, {vr(vA)}")
    h(f"v_add_u32 {vr(vA)}, {sr(sPARK)}, {vr(vA)}")
    h(f"v_lshlrev_b32 {vr(vSR)}, 3, {vr(vN)}")
    h(f"v_add_u32 {vr(vSR)}, {sr(sPARK)}, {vr(vSR)}")
    h(f"v_lshl_add_u32 {vr(vSO)}, {vr(vG)}, 4, {vr(vN)}")
    h(f"v_lshrrev_b32 {vr(vSW)}, 5, {vr(vSO)}")
    h(f"v_lshlrev_b32 {vr(vSW)}, 3, {vr(vSW)}")
    h(f"v_lshlrev_b32 {vr(vSW0)}, 4, {vr(vSO)}")
    h(f"v_and_b32 {vr(vSW1)}, 7, {vr(vSO)}")
    h(f"v_lshlrev_b32 {vr(vT0)}, 3, {vr(vSW)}")
    h(f"v_lshl_add_u32 {vr(vGK)}, {vr(vSW1)}, 3, {vr(vT0)}")
    h(f"v_lshl_add_u32 {vr(vSW1)}, {vr(vSW1)}, 11, {vr(vT0)}")
    h(f"v_lshlrev_b32 {vr(vSO)}, 3, {vr(vSO)}")
    for i in range(36):
        h(f"v_mov_b32 {vr(hO + i)}, 0")
    h(f"v_mov_b32 {vr(vM)}, {sr(sNEG)}")
    h(f"s_sub_u32 {sr(sW)}, {sr(sWAVE)}, 1")
    h(f"s_lshl_b32 {sr(sT0)}, {sr(sW)}, 1")
    h(f"s_add_u32 {sr(sNEED)}, {sr(sT0)}, 2")
    h(f"s_sub_u32 {sr(sT1)}, 14, {sr(sT0)}")
    h(f"s_cmp_eq_u32 {sr(sDESC)}, 0")
    h(f"s_cselect_b32 {sr(sT0)}, {sr(sT0)}, {sr(sT1)}")
    h(f"s_cselect_b32 {sr(sSTEPV)}, 1, -1")
    h(f"s_mul_i32 {sr(sSTEP)}, {sr(sSTEPV)}, {2 * NH * 4096}")
    h(f"s_mul_i32 {sr(sSTEPV)}, {sr(sSTEPV)}, {2 * NH * VT}")
    h(f"s_lshl_b32 {sr(sT1)}, {sr(sT0)}, 12")
    h(f"s_add_u32 {sr(sT1)}, {sr(sT1)}, {L_K}")
    h(f"s_mul_i32 {sr(sT2)}, {sr(sT0)}, {VT}")
    h(f"s_add_u32 {sr(sT2)}, {sr(sT2)}, {L_V + 2 * VT}")
    tile_addrs(h, sr(sT1), sr(sT2))
    h(f"s_lshl_b32 {sr(sREC)}, {sr(sHEAD)}, 3")
    h(f"s_add_u32 {sr(sREC)}, {sr(sREC)}, {sr(sCHUNK)}")
    h(f"s_lshl_b32 {sr(sREC)}, {sr(sREC)}, 11")
    assert DUAL == "none"
    h(f"s_mov_b32 {sr(sX)}, 1")
    if opt.get("tlbw"):
        h(f"s_lshl_b32 {sr(sT0)}, {sr(sHEAD)}, 14")
        h(f"buffer_load_dword v162, {vr(vSW1)}, {sr(S_WS, 4)}, {sr(sT0)} offen offset:1536")
        h(f"s_add_u32 {sr(sT0)}, {sr(sT0)}, {1 << 20}")
        h(f"buffer_load_dword v163, {vr(vSW1)}, {sr(S_WS, 4)}, {sr(sT0)} offen offset:1536")
    h.wait_vm_all()
    h.label("L_hloop")
    h(f"s_cmp_gt_u32 {sr(sNEED)}, {HP + 1}")
    h(f"s_addc_u32 {sr(sT2)}, {sr(sNEED)}, 0")
    poll(h, sr(sT2))
    h(f"s_lshr_b32 {sr(sT1)}, {sr(sNEED)}, 1")
    h(f"s_add_u32 {sr(sT1)}, {sr(sT1)}, 15")
    h(f"s_add_u32 {sr(sNEEDV)}, {sr(sNEED)}, 1")
    h(f"s_min_u32 {sr(sNEEDV)}, {sr(sNEEDV)}, 16")
    h(f"s_cmp_gt_u32 {sr(sNEEDV)}, {HP}")
    h(f"s_addc_u32 {sr(sNEEDV)}, {sr(sNEEDV)}, 1")
    if not NOCOMP:
        for i in range(8):
            h(f"ds_read_b128 {vr(hK + 4 * i, 4)}, {vr(vKA + i % 4)} offset:{4096 * (i // 4)}")
        hvr = [f"ds_read_b64_tr_b16 {vr(hV + 4 * T + 2 * j, 2)}, {vr(vVA + T // 2)} offset:{VT * j + 32 * (T % 2)}" for T in range(8) for j in range(2)]
        for i in range(8):
            t, s = i // 4, i % 4
            h(mfma(hS + 4 * t, hK + 4 * i, vQR + 4 * s, None if s == 0 else hS + 4 * t))
    set_bit(h, sr(sT1))
    if CPL:
        code_pf(h)
    if not NOCOMP:
        for op in max_tree([hS + i for i in range(8)], vT0) + allreduce_ops("v_max_f32", vT0, vT1):
            h(op)
        h(f"v_mul_f32 {vr(vT0)}, {sr(sC)}, {vr(vT0)}")
        h(f"v_max_f32 {vr(vT0)}, {vr(vT0)}, {vr(vM)}")
        h(f"v_sub_f32 {vr(vT1)}, {vr(vM)}, {vr(vT0)}")
        h(f"v_exp_f32 {vr(vT1)}, {vr(vT1)}")
        h(f"v_mov_b32 {vr(vM)}, {vr(vT0)}")
        for i in range(8):
            h(f"v_fma_f32 {vr(hS + i)}, {vr(hS + i)}, {sr(sC)}, -{vr(vT0)}")
        for i in range(8):
            h(f"v_exp_f32 {vr(hS + i)}, {vr(hS + i)}")
        for i in range(33):
            h(f"v_mul_f32 {vr(hO + i)}, {vr(hO + i)}, {vr(vT1)}")
        for k in range(4):
            h(f"v_cvt_pk_bf16_f32 {vr(hS + k)}, {vr(hS + 2 * k)}, {vr(hS + 2 * k + 1)}")
        h(mfma(hL, vONE, hS, hL))
    poll(h, sr(sNEEDV))
    if not NOCOMP:
        for op in hvr:
            h(op)
    tile_addrs(h, sr(sSTEP), sr(sSTEPV))
    if not NOCOMP:
        for T in range(8):
            h(mfma(hO + 4 * T, hV + 4 * T, hS, hO + 4 * T))
    h(f"s_add_u32 {sr(sNEED)}, {sr(sNEED)}, {2 * NH}")
    h(f"s_cmp_le_u32 {sr(sNEED)}, 16")
    h.flush()
    h("s_cbranch_scc1 L_hloop")
    stamp(h, 1)
    if not NOCOMP:
        h(f"v_mov_b32 {vr(vM + 1)}, {vr(hL)}")
        h("s_mov_b32 exec_lo, 0x00030003")
        h("s_mov_b32 exec_hi, 0x00030003")
        for T in range(8):
            h(f"ds_write_b128 {vr(vA)}, {vr(hO + 4 * T, 4)} offset:{64 * T}")
        h("s_mov_b64 exec, 3")
        h(f"ds_write_b64 {vr(vSR)}, {vr(vM, 2)} offset:1024")
        h("s_mov_b64 exec, -1")
        h(f"s_cmp_lg_u32 {sr(sW)}, 0")
        h("s_cbranch_scc1 L_hmerge")
        h0 = h.fork()
        keepq = list(h.ds_q)
        h.wait_lgkm_all()
        set_bit(h, 24)
        h("s_branch L_hdone")
        h.raw("L_hmerge:")
        h.ds_q = keepq
        h(f"s_mov_b32 {sr(sT2)}, {1 << 24}")
        poll_bits(h, sr(sT2))
        cA, cB, cM = 56, 60, 64
        h(f"ds_read_b64 {vr(cM, 2)}, {vr(vSW)} offset:{L_MRG + 1024}")
        h(f"ds_read_b64 {vr(cM + 2, 2)}, {vr(vSW)} offset:{L_MRG + 1056 + 1024}")
        h(f"ds_read_b128 {vr(cA, 4)}, {vr(vSW0)} offset:{L_MRG}")
        h(f"ds_read_b128 {vr(cB, 4)}, {vr(vSW0)} offset:{L_MRG + 1056}")
        h(f"s_lshl_b32 {sr(sT0)}, {sr(sHEAD)}, 2")
        h(f"v_mov_b32 v0, {sr(sX)}")
        h(f"v_max_f32 {vr(vM)}, {vr(cM)}, {vr(cM + 2)}")
        h(f"v_sub_f32 {vr(cM)}, {vr(cM)}, {vr(vM)}")
        h(f"v_sub_f32 {vr(cM + 2)}, {vr(cM + 2)}, {vr(vM)}")
        h(f"v_exp_f32 {vr(cM)}, {vr(cM)}")
        h(f"v_exp_f32 {vr(cM + 2)}, {vr(cM + 2)}")
        for r in range(4):
            h(f"v_mul_f32 {vr(cA + r)}, {vr(cA + r)}, {vr(cM)}")
        h(f"v_mul_f32 {vr(vM + 1)}, {vr(cM + 1)}, {vr(cM)}")
        for r in range(4):
            h(f"v_fmac_f32 {vr(cA + r)}, {vr(cB + r)}, {vr(cM + 2)}")
        h(f"v_fmac_f32 {vr(vM + 1)}, {vr(cM + 3)}, {vr(cM + 2)}")
        h(f"buffer_store_dwordx4 {vr(cA, 4)}, {vr(vSW0)}, {sr(S_WS, 4)}, {sr(sREC)} offen sc1")
        if DUAL != "none":
            h(f"buffer_store_dwordx4 {vr(cA, 4)}, {vr(vSW0)}, {sr(S_WS, 4)}, {sr(sREQ)} offen")
        h("s_mov_b32 exec_lo, 0xff")
        h("s_mov_b32 exec_hi, 0xff")
        h(f"buffer_store_dwordx2 {vr(vM, 2)}, {vr(vGK)}, {sr(S_WS, 4)}, {sr(sREC)} offen offset:1024 sc1")
        if DUAL != "none":
            h(f"buffer_store_dwordx2 {vr(vM, 2)}, {vr(vGK)}, {sr(S_WS, 4)}, {sr(sREQ)} offen offset:1024")
        h("s_mov_b64 exec, 1")
        h(f"v_mov_b32 {vr(vT2)}, {1 << 25}")
        if GATE >= 0 and GATEP:
            h(f"ds_or_b32 {vr(vFLAG)}, {vr(vT2)} offset:4")
        h.wait_vm_all()
        stamp(h, 2)
        h(f"buffer_atomic_add v0, off, {sr(S_DBG, 4)}, {sr(sT0)} sc0")
        if GATE >= 0 and not GATEP:
            h(f"ds_or_b32 {vr(vFLAG)}, {vr(vT2)} offset:4")
        h(f"v_readfirstlane_b32 {sr(sT1)}, v0")
        h("s_mov_b64 exec, -1")
        stamp(h, 3)
        h(f"s_and_b32 {sr(sT2)}, {sr(sT1)}, 31")
        h(f"s_cmp_eq_u32 {sr(sT2)}, 7")
        h.flush()
        h("s_cbranch_scc0 L_hdone")
        cO, cW = 56, 96
        h(f"s_lshl_b32 {sr(sREC)}, {sr(sHEAD)}, 14")

        def rec_loads(mod):
            h.vm_q = []
            h(f"buffer_load_dwordx2 {vr(vM, 2)}, {vr(vSW1)}, {sr(S_WS, 4)}, {sr(sREC)} offen offset:1024{mod}")
            for i in range(8):
                if i % 2 == 0 and i:
                    h(f"s_add_u32 {sr(sREC)}, {sr(sREC)}, 4096")
                h(f"buffer_load_dwordx4 {vr(cO + 4 * i, 4)}, {vr(vSW0)}, {sr(S_WS, 4)}, {sr(sREC)} offen offset:{2048 * (i % 2)}{mod}")
        if DUAL != "none":
            h(f"s_mul_i32 {sr(sX)}, {sr(sX)}, 7")
            h(f"s_cmp_eq_u32 {sr(sX)}, {sr(sT1)}")
            h("s_cbranch_scc0 L_far")
            h(f"s_add_u32 {sr(sREC)}, {sr(sREC)}, {1 << 20}")
            rec_loads("" if DUAL == "plain" else " " + DUAL)
            h("s_branch L_got")
            h.raw("L_far:")
        rec_loads(" sc1")
        h.raw("L_got:")
        SWZ = (0x041F, 0x081F, 0x101F)
        h(f"v_mov_b32 {vr(vT0)}, {vr(vM)}")
        stamp(h, 5)
        for x in SWZ:
            h(f"ds_swizzle_b32 {vr(vT1)}, {vr(vT0)} offset:{x:#x}")
            h(f"v_max_f32 {vr(vT0)}, {vr(vT0)}, {vr(vT1)}")
        h(f"v_sub_f32 {vr(vM)}, {vr(vM)}, {vr(vT0)}")
        h(f"v_exp_f32 {vr(vM)}, {vr(vM)}")
        h(f"v_mul_f32 {vr(vT0)}, {vr(vM)}, {vr(vM + 1)}")
        for i in range(8):
            h(f"ds_swizzle_b32 {vr(cW + i)}, {vr(vM)} offset:{(i << 5) | 0x18:#x}")
        for x in SWZ:
            h(f"ds_swizzle_b32 {vr(vT1)}, {vr(vT0)} offset:{x:#x}")
            h(f"v_add_f32 {vr(vT0)}, {vr(vT0)}, {vr(vT1)}")
        h(f"v_rcp_f32 {vr(vT0)}, {vr(vT0)}")
        if STAMP:
            h.wait_vm_all()
            stamp(h, 4)
        for i in range(8):
            for r in range(4):
                h(f"{'v_fmac_f32' if i else 'v_mul_f32'} {vr(vKA + r)}, {vr(cW + i)}, {vr(cO + 4 * i + r)}")
        for r in range(4):
            h(f"v_mul_f32 {vr(vKA + r)}, {vr(vKA + r)}, {vr(vT0)}")
        h(f"v_cvt_pk_bf16_f32 {vr(vVA)}, {vr(vKA)}, {vr(vKA + 1)}")
        h(f"v_cvt_pk_bf16_f32 {vr(vVA + 1)}, {vr(vKA + 2)}, {vr(vKA + 3)}")
        h(f"buffer_store_dwordx2 {vr(vVA, 2)}, {vr(vSO)}, {sr(S_O, 4)}, {sr(sHEADOFF)} offen sc1")
        h.label("L_hdone")
    dump_stamps(h, "h")
    h.raw("L_end:")
    h("s_endpgm")

    tailtxt = f""".section .rodata,"a"
.p2align 6
.amdhsa_kernel {NAME}_kernel
  .amdhsa_next_free_vgpr 168
  .amdhsa_next_free_sgpr 98
  .amdhsa_accum_offset 168
  .amdhsa_group_segment_fixed_size 0
  .amdhsa_kernarg_size 64
  .amdhsa_user_sgpr_count 2
  .amdhsa_user_sgpr_kernarg_segment_ptr 1
  .amdhsa_system_sgpr_workgroup_id_x 1
.end_amdhsa_kernel
"""
    txt = e.text() + ld.text() + c.text() + m.text() + b2.text() + h.text()
    if not NOCOMP:
        txt += ed.text()
    return txt + "L_codeend:\n" + tailtxt


if __name__ == "__main__":
    out = sys.argv[1]
    opt = {}
    for a in sys.argv[2:]:
        k, _, v = a.partition("=")
        opt[k] = v if v else True
        if k in ("st", "stb", "ld", "qld"):
            opt[k] = (" " + v.replace("+", " ")) if v != "none" else ""
    open(out, "w").write(gen(opt))
```

```python
import sys
import math
import struct
from asmgen import Emitter, vr, sr

NAME = "standalone__global_local_windowed_global_tokens__prompt"

HEADER = """; Kernarg layout for this problem (64 bytes, ptrs only, base s[0:1]):
;   offset   0: d_in[0] q  shape=(1, 32, 2048, 128) dtype=bfloat16 strides=(16777216, 524288, 256, 2) contiguous=True
;   offset   8: d_in[1] k  shape=(1, 32, 2048, 128) dtype=bfloat16 strides=(16777216, 524288, 256, 2) contiguous=True
;   offset  16: d_in[2] v  shape=(1, 32, 2048, 128) dtype=bfloat16 strides=(16777216, 524288, 256, 2) contiguous=True
;   offset  24: d_in[3] window  shape=(1,) dtype=int32 strides=(4,) contiguous=True
;   offset  32: d_in[4] n_global  shape=(1,) dtype=int32 strides=(4,) contiguous=True
;
;   wave 0      streams the chunk's K and V tiles (16 rows each) into LDS by DMA, publishes its progress in
;               an LDS word, and afterwards stores the output tiles that the first round parked in LDS
;   waves 1,2   query rows 0,1 (global rows) against the chunk's 256 keys with a running max; the merged
;               partial (max, sum, O) goes to d_ws, a ticket in d_debug tells the last of a head's 8
;               (16x16x32 MFMA, band masks enter as the accumulator's start value), exact softmax,
;               O^T = V^T P^T with transposing LDS reads, row-contiguous stores through LDS
"""


def f32bits(x):
    return struct.unpack("<I", struct.pack("<f", x))[0]


def merge(a, b):
    out, nb = [], 0
    for i, x in enumerate(a):
        out.append(x)
        want = (i + 1) * len(b) // len(a)
        out += b[nb:want]
        nb = want
    return out + b[nb:]


def gen(opt):
    LD = opt.get("ld", "")
    QLD = opt.get("qld", "")
    ST = opt.get("st", " sc1")
    STB = opt.get("stb", ST)
    NOCOMP = opt.get("nocomp", False)
    PROBE = opt.get("probe", None)
    GPROBE = opt.get("gprobe", None)
    STAMP = opt.get("stamp", False) or PROBE or GPROBE
    D = int(opt.get("depth", 3))
    SLEEP = int(opt.get("sleep", 1))
    WIN = int(opt.get("win", 8 * D))
    HALF = int(opt.get("half", 63))
    assert WIN <= 8 * D
    QLEAD = int(opt.get("qlead", 0))
    QL2 = int(opt.get("ql2", 0))
    THRMIN = int(opt.get("thrmin", 0))
    EW = int(opt.get("ew", 6))
    PST = int(opt.get("pst", 32))
    DUAL = opt.get("dual", "none")
    PRIOW = int(opt.get("priow", 99))
    PRIOH = int(opt.get("prioh", 0))
    ROT = int(opt.get("rot", 6))
    PK = opt.get("pk", False)
    CPE = opt.get("cpe", False)
    CPL = opt.get("cpl", False)
    QDIR = opt.get("qdir", False)
    HP = int(opt.get("hp", 11))
    assert 11 <= HP <= 14
    GATE = int(opt.get("gate", -1))
    GATEP = opt.get("gatep", False)
    WX = int(opt.get("wx", 0))
    PRIOV = int(opt.get("priov", 2))
    CPF = int(opt.get("cpf", 0))
    PTS = opt.get("pts", "A2,A6,B1,B2,B6").split(",")
    assert len(PTS) == 5 and D >= 2
    assert all(((w + ROT) & 7) < 6 for w in range(EW, 8))

    TB = 32 * 2048 * 256
    HEADB = 2048 * 256
    L_STAGE, L_GK, L_GV, L_FLAG, L_K, L_V = 0, 8192, 9216, 10240, 13824, 79360
    L_MRG = 10368
    VT, VP = 4224, 1056
    NH = 2
    NWAVE = 9 + NH
    NEG = f32bits(-1.0e30)
    CSCALE = f32bits((128 ** -0.5) * math.log2(math.e))

    S_Q, S_K, S_V, S_O, S_DBG, S_WS = 20, 24, 28, 32, 36, 40
    sWAVE, sHEADOFF, sROW0, sT0, sT1, sT2 = 44, 45, 46, 47, 48, 49
    sQOFF, sNEG, sQ0, sHEAD, sCHUNK, sDESC = 50, 51, 52, 53, 54, 55
    sEX = 56
    sC = 58
    sTS = 60
    sB, sIT, sNEED, sX, sCNT, sW, sHI, sREC, sSTEP, sXV, sSTEPV, sPARK, sREQ, sB2 = range(80, 94)
    sNEEDV = 95
    sMASK = 2

    vKA, vVA, vSW0, vSW1, vGK, vN, vG, vG4 = 2, 6, 10, 11, 12, 13, 14, 15
    vFLAG, vSW, vT0, vT1, vONE, vSR, vSO, vT3, vT2 = 16, 17, 18, 19, 20, 24, 25, 26, 27
    vQR, vS, vOX, vPOOL, vGV = 28, 44, 68, 92, 164

    uid = [0]

    def newid():
        uid[0] += 1
        return uid[0]

    def stamp(em, i):
        if STAMP:
            em(f"s_memrealtime {sr(sTS + 2 * i, 2)}")

    def stamp_it(em, k, only=None):
        if not STAMP:
            return
        for it, nm in ((0, f"A{k}"), (1, f"B{k}")):
            if nm in PTS and only in (None, it):
                if only is None:
                    u = newid()
                    em(f"s_cmp_eq_u32 {sr(sIT)}, {it}")
                    em(f"s_cbranch_scc0 L_sa{u}")
                stamp(em, PTS.index(nm) + 1)
                if only is None:
                    em.raw(f"L_sa{u}:")

    def poll(em, need):
        u = newid()
        em.label(f"L_poll{u}")
        em(f"ds_read_b32 {vr(vT2)}, {vr(vFLAG)}")
        em(f"v_readfirstlane_b32 {sr(sT0)}, {vr(vT2)}")
        em(f"s_cmp_ge_i32 {sr(sT0)}, {need}")
        em(f"s_cbranch_scc1 L_pdone{u}")
        if SLEEP:
            em(f"s_sleep {SLEEP}")
        em(f"s_branch L_poll{u}")
        em.raw(f"L_pdone{u}:")

    def poll_pre(em, need, reg):
        u = newid()
        em(f"v_readfirstlane_b32 {sr(sT0)}, {vr(reg)}")
        em(f"s_cmp_ge_i32 {sr(sT0)}, {need}")
        em(f"s_cbranch_scc1 L_pdone{u}")
        keep = (list(em.ds_q), list(em.hist))
        em.lines.append(f"L_poll{u}:")
        em(f"ds_read_b32 {vr(reg)}, {vr(vFLAG)}")
        em(f"v_readfirstlane_b32 {sr(sT0)}, {vr(reg)}")
        em(f"s_cmp_ge_i32 {sr(sT0)}, {need}")
        em(f"s_cbranch_scc0 L_poll{u}")
        em.raw(f"L_pdone{u}:")
        em.ds_q, em.hist = keep

    def poll_bits(em, smask, first_read_done=False):
        u = newid()
        if first_read_done:
            em(f"v_readfirstlane_b32 {sr(sT0)}, {vr(vT2)}")
            em(f"s_andn2_b32 {sr(sT0)}, {smask}, {sr(sT0)}")
            em(f"s_cbranch_scc0 L_pdone{u}")
            keep = (list(em.ds_q), list(em.hist))
            em.lines.append(f"L_poll{u}:")
        else:
            em.label(f"L_poll{u}")
        em(f"ds_read_b32 {vr(vT2)}, {vr(vFLAG)} offset:4")
        em(f"v_readfirstlane_b32 {sr(sT0)}, {vr(vT2)}")
        em(f"s_andn2_b32 {sr(sT0)}, {smask}, {sr(sT0)}")
        em(f"s_cbranch_scc0 L_pdone{u}")
        if SLEEP:
            em(f"s_sleep {SLEEP}")
        em(f"s_branch L_poll{u}")
        em.raw(f"L_pdone{u}:")
        if first_read_done:
            em.ds_q, em.hist = keep

    def set_bit(em, sbit):
        em(f"s_lshl_b32 {sr(sT0)}, 1, {sbit}")
        em(f"v_mov_b32 {vr(vT2)}, {sr(sT0)}")
        em("s_mov_b64 exec, 1")
        em(f"ds_or_b32 {vr(vFLAG)}, {vr(vT2)} offset:4")
        em("s_mov_b64 exec, -1")

    def park_addr(em, sw, dst):
        em(f"s_sub_u32 {sr(sT1)}, 19, {sw}")
        em(f"s_cmp_eq_u32 {sr(sDESC)}, 0")
        em(f"s_cselect_b32 {sr(sT1)}, {sw}, {sr(sT1)}")
        em(f"s_mul_i32 {sr(sT2)}, {sr(sT1)}, {VT}")
        em(f"s_add_u32 {sr(sT2)}, {sr(sT2)}, {L_V}")
        em(f"s_lshl_b32 {sr(sT1)}, {sr(sT1)}, 12")
        em(f"s_add_u32 {sr(sT1)}, {sr(sT1)}, {L_K - 8192}")
        em(f"s_cmp_lt_u32 {sw}, 2")
        em(f"s_cselect_b32 {dst}, {sr(sT2)}, {sr(sT1)}")

    def stage_read_addrs(em):
        em(f"v_lshrrev_b32 {vr(vT0)}, 2, {vr(vN)}")
        em(f"v_add_u32 {vr(vT2)}, {vr(vG4)}, {vr(vT0)}")
        em(f"v_and_b32 {vr(vT1)}, 3, {vr(vN)}")
        em(f"v_lshlrev_b32 {vr(vSO)}, 4, {vr(vT1)}")
        em(f"v_lshl_add_u32 {vr(vSO)}, {vr(vT2)}, 8, {vr(vSO)}")
        em(f"v_bfe_u32 {vr(vSR)}, {vr(vT2)}, 1, 2")
        em(f"v_xor_b32 {vr(vSR)}, {vr(vSR)}, {vr(vT1)}")
        em(f"v_lshlrev_b32 {vr(vSR)}, 4, {vr(vSR)}")
        em(f"v_lshl_add_u32 {vr(vSR)}, {vr(vT2)}, 6, {vr(vSR)}")

    def dump_stamps(em, tagn):
        if not STAMP:
            return
        stamp(em, 6)
        em("s_waitcnt vmcnt(0)")
        stamp(em, 7)
        em("s_memtime s[78:79]")
        em("s_waitcnt lgkmcnt(0)")
        if GPROBE:
            role, which, fac = GPROBE.split(",")
            which, fac = int(which), int(fac)
            nrep = {"l": 256, "m": 2048 + 256, "h": 512 + 256, "a": 2816}[role]
            em("s_mov_b64 exec, 1")
            if tagn == "l":
                em(f"s_not_b32 {sr(sT0)}, {sr(sTS)}")
                em(f"v_mov_b32 v0, {sr(sT0)}")
                em(f"buffer_atomic_umax v0, off, {sr(S_DBG, 4)}, 0 offset:128")
            if role in (tagn, "a"):
                em(f"v_mov_b32 v1, {sr(sTS + 2 * which)}")
                em(f"buffer_atomic_umax v1, off, {sr(S_DBG, 4)}, 0 offset:132")
            if role in (tagn, "a") or tagn == "l":
                em("v_mov_b32 v2, 1")
                em("s_waitcnt vmcnt(0)")
                em(f"buffer_atomic_add v2, off, {sr(S_DBG, 4)}, 0 offset:136")
            if tagn == "l":
                em(f"s_cmp_eq_u32 {sr(sWG)}, 100")
                em("s_cbranch_scc0 L_gp_done")
                em.label("L_gp1")
                em(f"buffer_load_dwordx4 v[4:7], off, {sr(S_DBG, 4)}, 0 offset:128 sc1")
                em("s_waitcnt vmcnt(0)")
                em(f"v_readfirstlane_b32 {sr(sT0)}, v6")
                em("s_sleep 8")
                em(f"s_cmp_ge_u32 {sr(sT0)}, {nrep}")
                em("s_cbranch_scc0 L_gp1")
                em(f"buffer_load_dwordx4 v[4:7], off, {sr(S_DBG, 4)}, 0 offset:128 sc1")
                em("s_waitcnt vmcnt(0)")
                em(f"v_readfirstlane_b32 {sr(sT2)}, v4")
                em(f"v_readfirstlane_b32 {sr(sT0)}, v5")
                em(f"s_not_b32 {sr(sT2)}, {sr(sT2)}")
                em(f"s_sub_u32 {sr(sT0)}, {sr(sT0)}, {sr(sT2)}")
                em(f"s_min_u32 {sr(sT0)}, {sr(sT0)}, 5000")
                em(f"s_mul_i32 {sr(sT0)}, {sr(sT0)}, {fac}")
                em(f"s_add_u32 {sr(sT0)}, {sr(sT0)}, 15000")
                em.label("L_gp2")
                em("s_memrealtime s[78:79]")
                em("s_waitcnt lgkmcnt(0)")
                em(f"s_sub_u32 {sr(sT1)}, s78, {sr(sT2)}")
                em(f"s_cmp_lt_u32 {sr(sT1)}, {sr(sT0)}")
                em("s_cbranch_scc1 L_gp2")
                em.label("L_gp_done")
            em.vm_q = []
            return
        if PROBE:
            which, fac, pw = (int(x) for x in PROBE.split(","))
            em(f"s_cmp_eq_u32 {sr(sWG)}, 100")
            em(f"s_cbranch_scc0 L_probe_done{tagn}")
            em(f"s_cmp_eq_u32 {sr(sWAVE)}, {pw}")
            em(f"s_cbranch_scc0 L_probe_done{tagn}")
            em(f"s_sub_u32 {sr(sT0)}, {sr(sTS + 2 * which)}, {sr(sTS)}")
            em(f"s_mul_i32 {sr(sT0)}, {sr(sT0)}, {fac}")
            em(f"s_add_u32 {sr(sT0)}, {sr(sT0)}, 5000")
            em.label(f"L_probe{tagn}")
            em("s_memrealtime s[78:79]")
            em("s_waitcnt lgkmcnt(0)")
            em(f"s_sub_u32 {sr(sT1)}, s78, {sr(sTS)}")
            em(f"s_cmp_lt_u32 {sr(sT1)}, {sr(sT0)}")
            em(f"s_cbranch_scc1 L_probe{tagn}")
            em.label(f"L_probe_done{tagn}")
            return
        em("s_sub_u32 s76, s78, s76")
        if tagn == "m":
            em(f"s_mov_b32 {sr(sT1)}, {sr(sW)}")
        else:
            em(f"s_add_u32 {sr(sT1)}, {sr(sWAVE)}, 8")
        em(f"s_mul_i32 {sr(sT0)}, {sr(sWG)}, {NWAVE}")
        em(f"s_add_u32 {sr(sT0)}, {sr(sT0)}, {sr(sT1)}")
        em(f"s_lshl_b32 {sr(sT0)}, {sr(sT0)}, 6")
        em(f"s_add_u32 {sr(sT0)}, {sr(sT0)}, {0x800000}")
        for i in range(9):
            em(f"v_mov_b32 {vr(vPOOL + i)}, {sr(sTS + 2 * i)}")
        em("v_mov_b32 v0, 0")
        em("s_mov_b64 exec, 1")
        em(f"buffer_store_dwordx4 {vr(vPOOL, 4)}, v0, {sr(S_WS, 4)}, {sr(sT0)} offen")
        em(f"buffer_store_dwordx4 {vr(vPOOL + 4, 4)}, v0, {sr(S_WS, 4)}, {sr(sT0)} offen offset:16")
        em(f"buffer_store_dword {vr(vPOOL + 8)}, v0, {sr(S_WS, 4)}, {sr(sT0)} offen offset:32")
        em(f"s_getreg_b32 {sr(sT1)}, hwreg(HW_REG_XCC_ID, 0, 4)")
        em(f"v_mov_b32 {vr(vPOOL + 9)}, {sr(sT1)}")
        em(f"buffer_store_dword {vr(vPOOL + 9)}, v0, {sr(S_WS, 4)}, {sr(sT0)} offen offset:36")

    sWG = 94

    def code_pf_setup(em):
        em("s_getpc_b64 s[18:19]")
        em.raw("L_pc:")
        em(f"v_lshl_add_u32 v158, {vr(vG)}, 4, {vr(vN)}")
        em("v_lshlrev_b32 v158, 7, v158")
        em(f"s_sub_u32 s18, s18, L_pc-{NAME}_kernel")
        em("s_subb_u32 s19, s19, 0")
        em("v_add_u32 v159, 0x2000, v158")
        em(f"v_min_u32 v159, L_codeend-{NAME}_kernel-4, v159")

    def code_pf(em):
        for i in range(2):
            em(f"global_load_dword {vr(160 + i)}, {vr(158 + i)}, s[18:19]")
        em.vm_q = [x for x in em.vm_q if not (x[0] & {("v", 160), ("v", 161)})] + [(set(), None)] * 2

    e = Emitter()
    e.raw(HEADER + f"; @launch grid=(256,1,1) block=({64 * NWAVE},1,1) lds=163840")
    e.raw('.amdgcn_target "amdgcn-amd-amdhsa--gfx950"')
    e.raw(".text")
    e.raw(f".globl {NAME}_kernel")
    e.raw(".p2align 8")
    e.raw(f".type {NAME}_kernel,@function")
    e.raw(f"{NAME}_kernel:")
    e("s_load_dwordx4 s[4:7], s[0:1], 0")
    e("s_load_dwordx2 s[8:9], s[0:1], 16")
    e("s_cmp_ge_u32 s2, 256")
    e("s_cbranch_scc1 L_end")
    stamp(e, 0)
    if STAMP:
        e("s_memtime s[76:77]")
        e(f"s_mov_b32 {sr(sWG)}, s2")
        for i in range(1, 6):
            e(f"s_mov_b64 {sr(sTS + 2 * i, 2)}, 0")
    e(f"v_readfirstlane_b32 {sr(sWAVE)}, v0")
    e(f"v_and_b32 {vr(vN)}, 15, v0")
    e(f"v_bfe_u32 {vr(vG)}, v0, 4, 2")
    if CPE == "2":
        e(f"s_cmp_eq_u32 {sr(sWAVE)}, 64")
        e("s_cbranch_scc0 L_nocp")
        code_pf_setup(e)
        code_pf(e)
        e.raw("L_nocp:")
        e.vm_q = []
    e(f"s_and_b32 {sr(sT0)}, s2, 7")
    e(f"s_lshr_b32 {sr(sT1)}, s2, 6")
    e(f"s_lshl2_add_u32 {sr(sHEAD)}, {sr(sT0)}, {sr(sT1)}")
    e(f"s_bfe_u32 {sr(sCHUNK)}, s2, 0x30003")
    e(f"s_lshl_b32 {sr(sHEADOFF)}, {sr(sHEAD)}, 19")
    e(f"s_lshl_b32 {sr(sT0)}, {sr(sCHUNK)}, 16")
    e(f"s_add_u32 {sr(sROW0)}, {sr(sHEADOFF)}, {sr(sT0)}")
    e(f"s_add_u32 {sr(sHI)}, {sr(sHEADOFF)}, {HEADB - 4096}")
    e(f"s_and_b32 {sr(sDESC)}, {sr(sCHUNK)}, 1")
    e(f"v_lshlrev_b32 {vr(vG4)}, 2, {vr(vG)}")
    e(f"v_mov_b32 {vr(vFLAG)}, {L_FLAG}")
    e(f"s_mov_b32 {sr(S_K + 2)}, {TB}")
    e(f"s_mov_b32 {sr(S_K + 3)}, 0x20000")
    e(f"s_lshr_b32 {sr(sWAVE)}, {sr(sWAVE)}, 6")
    e("s_cbranch_scc1 L_notloader")

    def other_srds(em, which):
        em("s_load_dwordx4 s[12:15], s[0:1], 40")
        em("s_load_dwordx2 s[16:17], s[0:1], 56")
        em(f"s_mov_b32 {sr(S_O + 2)}, {TB}")
        em(f"s_mov_b32 {sr(S_O + 3)}, 0x20000")
        em(f"s_mov_b32 {sr(S_DBG + 2)}, 256")
        em(f"s_mov_b32 {sr(S_DBG + 3)}, 0x20000")
        em(f"s_mov_b32 {sr(S_WS + 2)}, {0x1000000}")
        em(f"s_mov_b32 {sr(S_WS + 3)}, 0x20000")

    def other_srds_done(em):
        em("s_waitcnt lgkmcnt(0)")
        for b, src in ((S_O, 12), (S_DBG, 14), (S_WS, 16)):
            em(f"s_mov_b64 {sr(b, 2)}, {sr(src, 2)}")

    ld = e.fork()
    vKD, vVD, vCNT = 2, 6, 8
    ld(f"v_lshlrev_b32 v0, 8, {vr(vG)}")
    ld(f"v_xor_b32 {vr(vVD)}, {vr(vG4)}, {vr(vN)}")
    ld(f"v_lshl_add_u32 {vr(vVD)}, {vr(vVD)}, 4, v0")
    ld(f"v_xor_b32 {vr(vKD)}, {vr(vG)}, {vr(vN)}")
    ld(f"v_lshl_add_u32 {vr(vKD)}, {vr(vKD)}, 4, v0")
    ld(f"s_mov_b32 {sr(S_V + 2)}, {TB}")
    ld(f"s_mov_b32 {sr(S_V + 3)}, 0x20000")
    ld(f"v_mov_b32 {vr(vCNT)}, 0")
    ld(f"v_mov_b32 {vr(vCNT + 1)}, 0")
    ld(f"s_mov_b32 m0, {L_GK}")
    ld("s_waitcnt lgkmcnt(0)")
    ld(f"s_mov_b64 {sr(S_K, 2)}, s[6:7]")
    ld(f"s_mov_b64 {sr(S_V, 2)}, s[8:9]")

    def v_halo(em, hi_when_desc):
        em(f"s_cmp_eq_u32 {sr(sDESC)}, {1 if hi_when_desc else 0}")
        em(f"s_cselect_b32 {sr(sT0)}, {18 * VT}, 0")
        em(f"s_cselect_b32 {sr(sT1)}, {18 * 4096}, 0")
        em(f"s_add_u32 {sr(sT1)}, {sr(sT1)}, {sr(sROW0)}")
        em(f"s_sub_u32 {sr(sT1)}, {sr(sT1)}, 8192")
        for k in range(2):
            em(f"s_max_i32 {sr(sT2)}, {sr(sT1)}, {sr(sHEADOFF)}")
            em(f"s_min_i32 {sr(sT2)}, {sr(sT2)}, {sr(sHI)}")
            for j in range(4):
                em(f"s_add_u32 m0, {sr(sT0)}, {L_V + VT * k + 32 * j}")
                if k == 0 and j == 0:
                    em(f"s_add_u32 {sr(sT1)}, {sr(sT1)}, 4096")
                em(f"buffer_load_dwordx4 {vr(vVD)}, {sr(S_V, 4)}, {sr(sT2)} offen offset:{1024 * j}{LD} lds")

    ld(f"buffer_load_dwordx4 {vr(vKD)}, {sr(S_K, 4)}, {sr(sHEADOFF)} offen lds")
    stamp(ld, 5)
    ld(f"s_mov_b32 m0, {L_GV}")
    ld(f"buffer_load_dwordx4 {vr(vVD)}, {sr(S_V, 4)}, {sr(sHEADOFF)} offen lds")
    ld(f"ds_write_b64 {vr(vFLAG)}, {vr(vCNT, 2)}")
    v_halo(ld, True)
    for j in range(1, 4):
        ld(f"v_xor_b32 {vr(vKD + j)}, {64 * j}, {vr(vKD)}")
    ld("s_waitcnt lgkmcnt(0)")
    if opt.get("stbar"):
        stamp(ld, 1)
    ld("s_barrier")
    if opt.get("stbar"):
        stamp(ld, 2)
    ld(f"s_mul_i32 {sr(sX)}, {sr(sDESC)}, {15 * 4096}")
    ld(f"s_mul_i32 {sr(sSTEP)}, {sr(sDESC)}, -8192")
    ld(f"s_add_u32 {sr(sSTEP)}, {sr(sSTEP)}, 4096")
    ld(f"s_mul_i32 {sr(sXV)}, {sr(sDESC)}, {15 * VT}")
    ld(f"s_add_u32 {sr(sXV)}, {sr(sXV)}, {L_V + 2 * VT}")
    ld(f"s_mul_i32 {sr(sSTEPV)}, {sr(sDESC)}, {-2 * VT}")
    ld(f"s_add_u32 {sr(sSTEPV)}, {sr(sSTEPV)}, {VT}")
    def k_tile():
        ld(f"s_add_u32 {sr(sT1)}, {sr(sX)}, {sr(sROW0)}")
        ld(f"s_add_u32 m0, {sr(sX)}, {L_K}")
        ld(f"s_add_u32 {sr(sX)}, {sr(sX)}, {sr(sSTEP)}")
        for j in range(4):
            ld(f"buffer_load_dwordx4 {vr(vKD + j)}, {sr(S_K, 4)}, {sr(sT1)} offen offset:{1024 * j}{LD} lds")

    def v_tile():
        for j in range(4):
            ld(f"s_add_u32 m0, {sr(sXV)}, {32 * j}")
            ld(f"buffer_load_dwordx4 {vr(vVD)}, {sr(S_V, 4)}, {sr(sB)} offen offset:{1024 * j}{LD} lds")
        ld(f"s_add_u32 {sr(sXV)}, {sr(sXV)}, {sr(sSTEPV)}")
        ld(f"s_add_u32 {sr(sB)}, {sr(sB)}, {sr(sSTEP)}")

    ld(f"s_add_u32 {sr(sB)}, {sr(sX)}, {sr(sROW0)}")
    k_tile()
    k_tile()
    other_srds(ld, None)
    stage_read_addrs(ld)
    ld(f"s_mov_b32 {sr(sCNT)}, {2 - D}")
    ld.vm_q = []
    ld.label("L_ldloop")
    ld(f"s_cmp_eq_u32 {sr(sCNT)}, {HP + 1 - D}")
    ld("s_cbranch_scc1 L_ldhalo")
    k_tile()
    v_tile()
    ld.raw("L_ldwait:")
    ld(f"s_add_u32 {sr(sCNT)}, {sr(sCNT)}, 1")
    ld(f"v_mov_b32 {vr(vCNT)}, {sr(sCNT)}")
    ld(f"s_cmp_lt_i32 {sr(sCNT)}, {17 - D}")
    ld(f"s_waitcnt vmcnt({WIN})")
    ld(f"ds_write_b32 {vr(vFLAG)}, {vr(vCNT)}")
    ld("s_cbranch_scc1 L_ldloop")
    ld.vm_q = []
    stamp(ld, 1)
    v_tile()
    v_tile()
    stamp(ld, 2)
    hl = Emitter()
    hl.raw("L_ldhalo:")
    v_halo(hl, False)
    hl("s_branch L_ldwait")
    other_srds_done(ld)
    ld(f"s_mul_i32 {sr(sXV)}, {sr(sDESC)}, {19 * VT}")
    ld(f"s_add_u32 {sr(sXV)}, {sr(sXV)}, {L_V}")
    ld(f"s_mul_i32 {sr(sX)}, {sr(sDESC)}, {15 * 4096}")
    ld(f"s_add_u32 {sr(sQOFF)}, {sr(sX)}, {sr(sROW0)}")
    ld(f"s_add_u32 {sr(sX)}, {sr(sX)}, {L_K}")
    ld(f"s_cmp_eq_u32 {sr(sQOFF)}, {sr(sHEADOFF)}")
    ld(f"s_cselect_b32 {sr(sEX)}, 0xffffff00, -1")
    ld(f"s_mov_b32 {sr(sEX + 1)}, -1")
    ld(f"s_mov_b32 {sr(sREQ)}, 0")
    for k in range(D, -1, -1):
        ld(f"v_mov_b32 {vr(vCNT)}, {18 - k}")
        ld(f"s_waitcnt vmcnt({8 * k})")
        ld(f"ds_write_b32 {vr(vFLAG)}, {vr(vCNT)}")
        if k == 1:
            stamp(ld, 3)
    ld.vm_q = []
    stamp(ld, 4)
    def park_fetch(w):
        u = newid()
        ld(f"s_bitcmp1_b32 {sr(sREQ)}, {8 + w}")
        ld(f"s_cbranch_scc1 L_have{u}")
        keep = (list(ld.ds_q), list(ld.hist))
        ld.raw(f"L_poll{u}:")
        ld(f"ds_read_b32 {vr(vT2)}, {vr(vFLAG)} offset:4")
        ld(f"v_readfirstlane_b32 {sr(sREQ)}, {vr(vT2)}")
        ld(f"s_bitcmp1_b32 {sr(sREQ)}, {8 + w}")
        ld(f"s_cbranch_scc1 L_have{u}")
        if SLEEP:
            ld(f"s_sleep {SLEEP}")
        ld(f"s_branch L_poll{u}")
        ld.raw(f"L_have{u}:")
        ld.ds_q, ld.hist = keep
        ld(f"v_add_u32 v0, {sr(sXV if w < 2 else sX)}, {vr(vSR)}")
        if w < 2:
            ld(f"s_add_u32 {sr(sXV)}, {sr(sXV)}, {sr(sSTEPV)}")
        else:
            ld(f"s_add_u32 {sr(sX)}, {sr(sX)}, {sr(sSTEP)}")
        for k in range(4):
            ld(f"ds_read_b128 {vr(vPOOL + 16 * (w % 2) + 4 * k, 4)}, v0 offset:{1024 * k}")

    park_fetch(0)
    for w in range(8):
        if w < 7:
            park_fetch(w + 1)
        if PST < 32 and 4 * w >= PST:
            ld(f"s_waitcnt vmcnt({PST - 4})")
        if w == GATE and not NOCOMP:
            ld(f"s_mov_b32 {sr(sT2)}, {1 << 25}")
            poll_bits(ld, sr(sT2))
        if w == 0:
            ld(f"s_mov_b64 exec, {sr(sEX, 2)}")
        for k in range(4):
            ld(f"buffer_store_dwordx4 {vr(vPOOL + 16 * (w % 2) + 4 * k, 4)}, {vr(vSO)}, {sr(S_O, 4)}, {sr(sQOFF)} offen offset:{64 * k}{ST}")
        if w == 0:
            ld("s_mov_b64 exec, -1")
        ld(f"s_add_u32 {sr(sQOFF)}, {sr(sQOFF)}, {sr(sSTEP)}")
    dump_stamps(ld, "l")
    ld("s_endpgm")
    ld.lines += hl.lines
    ld.raw("L_notloader:")

    c = e.fork()
    if CPF and CPE is True:
        c(f"s_cmp_le_u32 {sr(sWAVE)}, {NH}")
        c("s_cbranch_scc0 L_nocp")
        code_pf_setup(c)
        code_pf(c)
        c.raw("L_nocp:")
    other_srds(c, None)
    c(f"s_mov_b32 {sr(S_Q + 2)}, {TB}")
    c(f"s_mov_b32 {sr(S_Q + 3)}, 0x20000")
    stage_read_addrs(c)
    c("s_barrier")
    other_srds_done(c)
    c(f"s_mov_b64 {sr(S_K, 2)}, s[6:7]")
    c(f"s_mov_b64 {sr(S_Q, 2)}, s[4:5]")
    c(f"s_mov_b32 {sr(sC)}, {CSCALE:#x}")
    c(f"s_mov_b32 {sr(sC + 1)}, {CSCALE:#x}")
    c(f"s_mov_b32 {sr(sNEG)}, {NEG:#x}")
    c(f"s_cmp_le_u32 {sr(sWAVE)}, {NH}")
    c("s_cbranch_scc1 L_helper")

    def lane_addrs(em):
        em(f"v_xor_b32 {vr(vKA)}, {vr(vN)}, {vr(vG)}")
        em(f"v_lshlrev_b32 {vr(vKA)}, 4, {vr(vKA)}")
        em(f"v_lshl_add_u32 {vr(vKA)}, {vr(vN)}, 8, {vr(vKA)}")
        em(f"v_lshrrev_b32 {vr(vT0)}, 2, {vr(vN)}")
        em(f"v_and_b32 {vr(vT1)}, 3, {vr(vN)}")
        em(f"v_mul_u32_u24 {vr(vGV)}, {256 + 64}, {vr(vT0)}")
        em(f"v_lshl_add_u32 {vr(vGV)}, {vr(vT1)}, 3, {vr(vGV)}")
        em(f"v_mul_u32_u24 {vr(vT2)}, {VP}, {vr(vG)}")
        for s in range(1, 4):
            em(f"v_xor_b32 {vr(vKA + s)}, {64 * s}, {vr(vKA)}")
            em(f"v_xor_b32 {vr(vGV + s)}, {64 * s}, {vr(vGV)}")
        for s in range(4):
            em(f"v_add_u32 {vr(vVA + s)}, {vr(vT2)}, {vr(vGV + s)}")
        for i in range(4):
            em(f"v_mov_b32 {vr(vONE + i)}, 0x3f803f80")

    def tile_addrs(em, skoff, svoff):
        for s in range(4):
            em(f"v_add_u32 {vr(vKA + s)}, {skoff}, {vr(vKA + s)}")
            em(f"v_add_u32 {vr(vVA + s)}, {svoff}, {vr(vVA + s)}")

    def allreduce_ops(op, x, y):
        return [f"v_mov_b32 {vr(y)}, {vr(x)}", f"v_permlane32_swap_b32 {vr(x)}, {vr(y)}", f"{op} {vr(x)}, {vr(x)}, {vr(y)}",
                f"v_mov_b32 {vr(y)}, {vr(x)}", f"v_permlane16_swap_b32 {vr(x)}, {vr(y)}", f"{op} {vr(x)}, {vr(x)}, {vr(y)}"]

    def max_tree(vals, dst):
        vals = list(vals)
        ops = [f"v_max3_f32 {vr(dst)}, {vr(vals[0])}, {vr(vals[1])}, {vr(vals[2])}"]
        i = 3
        while i + 1 < len(vals):
            ops.append(f"v_max3_f32 {vr(dst)}, {vr(dst)}, {vr(vals[i])}, {vr(vals[i + 1])}")
            i += 2
        if i < len(vals):
            ops.append(f"v_max_f32 {vr(dst)}, {vr(dst)}, {vr(vals[i])}")
        return ops

    def mfma(d, a, b, cc):
        return f"v_mfma_f32_16x16x32_bf16 {vr(d, 4)}, {vr(a, 4)}, {vr(b, 4)}, {'0' if cc is None else vr(cc, 4)}"

    m = c.fork()
    KQ = [vOX + 4 * i for i in range(6)] + [vPOOL + 4 * i for i in range(18)]
    OACC = [vOX + 4 * i for i in range(5)] + [vS + 12, vS + 16, vS + 20]
    vL = vOX + 20

    def q_load(em, sb):
        em(f"s_lshl_b32 {sr(sT1)}, {sb}, 12")
        em(f"s_add_u32 {sr(sT1)}, {sr(sT1)}, {sr(sROW0)}")
        for s in range(4):
            em(f"buffer_load_dwordx4 {vr(vQR + 4 * s, 4)}, {vr(1 if QDIR else vSO)}, {sr(S_Q, 4)}, {sr(sT1)} offen offset:{64 * s}{QLD}")
        em.vm_q = []

    def k_halo(em, sb):
        u = newid()
        em(f"s_sub_u32 {sr(sT0)}, {sb}, 2")
        em(f"s_cmp_lt_u32 {sr(sT0)}, 12")
        em.flush()
        em(f"s_cbranch_scc1 L_kh{u}")
        for t in (0, 1, 3, 4):
            em(f"s_add_u32 {sr(sT0)}, {sb}, {t - 2}")
            em(f"s_cmp_lt_u32 {sr(sT0)}, 16")
            em(f"s_cbranch_scc1 L_kh{u}_{t}")
            em(f"s_lshl_b32 {sr(sT0)}, {sr(sT0)}, 12")
            em(f"s_add_u32 {sr(sT0)}, {sr(sT0)}, {sr(sROW0)}")
            em(f"s_max_i32 {sr(sT0)}, {sr(sT0)}, {sr(sHEADOFF)}")
            em(f"s_min_i32 {sr(sT0)}, {sr(sT0)}, {sr(sHI)}")
            for s in range(4):
                em(f"buffer_load_dwordx4 {vr(KQ[4 + 4 * t + s], 4)}, {vr(vSO)}, {sr(S_K, 4)}, {sr(sT0)} offen offset:{64 * s}")
            em.raw(f"L_kh{u}_{t}:")
        em.raw(f"L_kh{u}:")
        em.vm_q = []

    m(f"s_sub_u32 {sr(sW)}, {sr(sWAVE)}, {1 + NH}")
    if WX:
        m(f"s_xor_b32 {sr(sW)}, {sr(sW)}, {WX}")
    m(f"s_mul_i32 {sr(sT2)}, {sr(sDESC)}, 15")
    m(f"s_xor_b32 {sr(sB)}, {sr(sW)}, {sr(sT2)}")
    if QDIR:
        m(f"v_lshlrev_b32 v1, 4, {vr(vG)}")
        m(f"v_lshl_add_u32 v1, {vr(vN)}, 8, v1")
    m(f"s_cmp_gt_u32 {sr(sW)}, {max(1, QLEAD)}")
    m("s_cbranch_scc1 L_qa_later")
    k_halo(m, sr(sB))
    m(f"s_cmp_gt_u32 {sr(sW)}, {QLEAD}")
    m("s_cbranch_scc1 L_qa_later")
    q_load(m, sr(sB))
    m.raw("L_qa_later:")
    if PRIOW < 8:
        m(f"s_cmp_lt_u32 {sr(sW)}, {PRIOW}")
        m("s_cbranch_scc1 L_noprio")
        m(f"s_setprio {PRIOV}")
        m.raw("L_noprio:")
    lane_addrs(m)
    m(f"v_xor_b32 {vr(vGK)}, {vr(vT1)}, {vr(vG)}")
    m(f"v_lshlrev_b32 {vr(vGK)}, 4, {vr(vGK)}")
    m(f"v_lshl_add_u32 {vr(vGK)}, {vr(vT1)}, 8, {vr(vGK)}")
    m(f"v_add_u32 {vr(vGK)}, {L_GK}, {vr(vGK)}")
    for u in range(4):
        m(f"v_add_u32 {vr(vGV + u)}, {L_GV}, {vr(vGV + u)}")
    m(f"s_lshl_b32 {sr(sREQ)}, {sr(sW)}, 10")
    m(f"v_bfe_u32 {vr(vT0)}, {vr(vN)}, 1, 2")
    m(f"v_lshlrev_b32 {vr(vT2)}, 6, {vr(vN)}")
    m(f"v_add_u32 {vr(vT2)}, {sr(sREQ)}, {vr(vT2)}")
    m(f"v_xor_b32 {vr(vSW)}, {vr(vT0)}, {vr(vG)}")
    m(f"v_lshl_add_u32 {vr(vSW)}, {vr(vSW)}, 4, {vr(vT2)}")
    m(f"v_lshrrev_b32 {vr(vSW1)}, 1, {vr(vG)}")
    m(f"v_xor_b32 {vr(vSW0)}, {vr(vT0)}, {vr(vSW1)}")
    m(f"v_lshl_add_u32 {vr(vSW0)}, {vr(vSW0)}, 4, {vr(vT2)}")
    m(f"v_and_b32 {vr(vSW1)}, 1, {vr(vG)}")
    m(f"v_lshl_add_u32 {vr(vSW0)}, {vr(vSW1)}, 3, {vr(vSW0)}")
    m(f"v_xor_b32 {vr(vSW1)}, 32, {vr(vSW0)}")
    m(f"v_add_u32 {vr(vSR)}, {sr(sREQ)}, {vr(vSR)}")
    m(f"v_sub_u32 {vr(vT0)}, {vr(vG4)}, {vr(vN)}")
    for r in range(4):
        m(f"v_cmp_le_i32 {sr(sMASK + 2 * r, 2)}, {-r}, {vr(vT0)}")
        m(f"v_cmp_ge_i32 {sr(sMASK + 8 + 2 * r, 2)}, {-r}, {vr(vT0)}")
    m(f"v_cmp_eq_u32 {sr(sMASK + 16, 2)}, 0, {vr(vG4)}")
    park_addr(m, sr(sW), sr(sPARK))
    m(f"s_sub_u32 {sr(sPARK)}, {sr(sPARK)}, {sr(sREQ)}")
    m(f"s_lshl_b32 {sr(sREQ)}, 15, {sr(sW)}")
    m(f"s_lshr_b32 {sr(sREQ)}, {sr(sREQ)}, 4")
    m(f"s_lshr_b32 {sr(sT1)}, {sr(sW)}, 1")
    m(f"s_lshl_b32 {sr(sT1)}, 0x8000, {sr(sT1)}")
    m(f"s_or_b32 {sr(sREQ)}, {sr(sREQ)}, {sr(sT1)}")
    m(f"s_lshl_b32 {sr(sT1)}, {sr(sW)}, 8")
    m(f"s_cmp_lt_u32 {sr(sW)}, 2")
    m(f"s_cselect_b32 {sr(sREQ)}, {sr(sT1)}, {sr(sREQ)}")
    m(f"s_mov_b32 {sr(sIT)}, 0")
    m(f"s_add_u32 {sr(sNEED)}, {sr(sW)}, 3")
    m(f"s_add_u32 {sr(sNEEDV)}, {sr(sW)}, 5")
    m(f"s_add_u32 {sr(sX)}, {sr(sW)}, {ROT}")
    m(f"s_and_b32 {sr(sX)}, {sr(sX)}, 7")
    m(f"s_add_u32 {sr(sX)}, {sr(sX)}, 8")
    m(f"s_mul_i32 {sr(sT2)}, {sr(sDESC)}, 15")
    m(f"s_xor_b32 {sr(sB2)}, {sr(sX)}, {sr(sT2)}")
    m(f"s_lshl_b32 {sr(sSTEP)}, {sr(sB)}, 12")
    m(f"s_add_u32 {sr(sSTEP)}, {sr(sSTEP)}, {L_K - 8192}")
    m(f"s_mul_i32 {sr(sSTEPV)}, {sr(sB)}, {VT}")
    m(f"s_add_u32 {sr(sSTEPV)}, {sr(sSTEPV)}, {L_V}")
    m(f"s_cmp_gt_u32 {sr(sW)}, {QLEAD}")
    m("s_cbranch_scc0 L_block")
    m(f"s_sub_u32 {sr(sT2)}, {sr(sW)}, {QLEAD}")
    poll(m, sr(sT2))
    q_load(m, sr(sB))
    m.label("L_block")
    m(f"s_lshl_b32 {sr(sT0)}, {sr(sB)}, 12")
    m(f"s_add_u32 {sr(sQOFF)}, {sr(sT0)}, {sr(sROW0)}")
    m(f"v_mov_b32 {vr(vT0)}, {sr(sNEG)}")
    tile_addrs(m, sr(sSTEP), sr(sSTEPV))
    m(f"s_lshl_b32 {sr(sQ0)}, {sr(sCHUNK)}, 8")
    m(f"s_lshl_b32 {sr(sT0)}, {sr(sB)}, 4")
    m(f"s_add_u32 {sr(sQ0)}, {sr(sQ0)}, {sr(sT0)}")
    for r in range(4):
        m(f"v_cndmask_b32_e64 {vr(vS + r)}, {vr(vT0)}, 0, {sr(sMASK + 2 * r, 2)}")
        m(f"v_cndmask_b32_e64 {vr(vS + 16 + r)}, {vr(vT0)}, 0, {sr(sMASK + 8 + 2 * r, 2)}")
    m(f"v_cndmask_b32_e64 {vr(vS + 20)}, {vr(vT0)}, 0, {sr(sMASK + 16, 2)}")
    m(f"v_cndmask_b32_e64 {vr(vS + 21)}, {vr(vT0)}, 0, {sr(sMASK + 16, 2)}")
    poll(m, sr(sNEED))
    stamp_it(m, 1)

    def relayout(q):
        m(f"ds_write_b128 {vr(vSR)}, {vr(q, 4)}")
        m(f"ds_read_b128 {vr(q, 4)}, {vr(vSW)}")

    def v_read(T, k):
        u, p = T // 2, T % 2
        q = vPOOL + 12 * (T % 6) + 4 * k
        r = [f"ds_read_b64_tr_b16 {vr(q + 2 * j, 2)}, {vr(vVA + u)} offset:{VT * (2 * k + j) + 32 * p}" for j in range(2)]
        if k == 2:
            r[1] = f"ds_read_b64_tr_b16 {vr(q + 2, 2)}, {vr(vGV + u)} offset:{32 * p}"
        return r

    if not NOCOMP:
        for s in range(4):
            if s:
                m(f"v_xor_b32 {vr(KQ[s])}, {64 * s}, {vr(vGK)}")
            m(f"ds_read_b128 {vr(KQ[s], 4)}, {vr(KQ[s]) if s else vr(vGK)}")
        for t in (2, 0, 1, 3, 4):
            if t != 2:
                m(f"s_add_u32 {sr(sT0)}, {sr(sB)}, {t - 2}")
                m(f"s_cmp_lt_u32 {sr(sT0)}, 16")
                m(f"s_cbranch_scc0 L_skipk{t}")
            for s in range(4):
                m(f"ds_read_b128 {vr(KQ[4 + 4 * t + s], 4)}, {vr(vKA + s)} offset:{4096 * t}")
            if t != 2:
                m.raw(f"L_skipk{t}:")
        m(f"s_sub_u32 {sr(sT0)}, {sr(sB)}, 2")
        m(f"s_cmp_lt_u32 {sr(sT0)}, 12")
        m("s_cbranch_scc1 L_nohalo")
        keep = list(m.ds_q)
        m.ds_q = []
        m("s_waitcnt vmcnt(4)")
        for t in (0, 1, 3, 4):
            m(f"s_add_u32 {sr(sT0)}, {sr(sB)}, {t - 2}")
            m(f"s_cmp_lt_u32 {sr(sT0)}, 16")
            m(f"s_cbranch_scc1 L_rl{t}")
            for s in range(4):
                relayout(KQ[4 + 4 * t + s])
            m.raw(f"L_rl{t}:")
        m.ds_q = keep
        m.raw("L_nohalo:")
    m("s_waitcnt vmcnt(0)")
    stamp_it(m, 2)
    if NOCOMP:
        for i in range(16):
            m(f"v_mov_b32 {vr(vPOOL + i)}, {vr(vQR + i)}")
        set_bit(m, sr(sW))
        poll(m, sr(sNEEDV))
    else:
        if QDIR:
            m.wait_lgkm_all()
        else:
            for s in range(4):
                relayout(vQR + 4 * s)
        m(f"s_sub_u32 {sr(sT1)}, {sr(sQ0)}, 34")
        for s in range(4):
            m(mfma(vS + 20, KQ[s], vQR + 4 * s, vS + 20))
        set_bit(m, sr(sW))
        m(f"ds_read_b32 {vr(vT3)}, {vr(vFLAG)}")
        m(f"s_cmp_lt_u32 {sr(sT1)}, {2001 - 34}")

        def s_tile(t):
            return [mfma(vS + 4 * t, KQ[4 + 4 * t + s], vQR + 4 * s, None if (s == 0 and t in (1, 2, 3)) else vS + 4 * t) for s in range(4)]

        VR = [op for k in range(3) for T in range(6) for op in v_read(T, k)]
        mx = max_tree([vS + 20, vS + 21] + [vS + i for i in range(20)], vT0)
        m("s_cbranch_scc0 L_edge")
        ed = m.fork()
        for op in s_tile(0) + s_tile(1) + s_tile(2) + merge(s_tile(3), mx[:2]) + merge(s_tile(4), mx[2:5]):
            m(op)
        poll_pre(m, sr(sNEEDV), vT3)
        for op in VR[:4] + mx[5:7] + VR[4:8] + mx[7:]:
            m(op)
        m.raw("L_join:")
        ed.raw("L_edge:")
        for t in range(5):
            for op in s_tile(t):
                ed(op)
        ed(f"v_add_u32 {vr(vT1)}, {sr(sT1)}, {vr(vG4)}")
        ed(f"s_movk_i32 {sr(sT1)}, 2046")
        for t in range(5):
            for r in range(4):
                ed(f"v_add_u32 v0, {16 * t + r}, {vr(vT1)}")
                ed(f"v_cmp_gt_u32 vcc, {sr(sT1)}, v0")
                ed(f"v_cndmask_b32 {vr(vS + 4 * t + r)}, {vr(vT0)}, {vr(vS + 4 * t + r)}, vcc")
        poll_pre(ed, sr(sNEEDV), vT3)
        for op in VR[:8] + mx:
            ed(op)
        ed.flush()
        ed("s_branch L_join")
    m(f"s_lshl_b32 {sr(sT0)}, {sr(sIT)}, 4")
    m(f"s_add_u32 {sr(sT0)}, {sr(sT0)}, {EW}")
    m(f"s_cmp_ge_u32 {sr(sW)}, {sr(sT0)}")
    m("s_cbranch_scc0 L_noearly")
    q_load(m, sr(sB2))
    m.raw("L_noearly:")
    stamp_it(m, 3)

    W = vPOOL + 40
    R = vPOOL + 24

    def p_ops(lo, hi):
        fm, ex, cv = [], [], []
        for i in range(lo, hi):
            if PK and i % 2 == 0:
                fm.append(f"v_pk_fma_f32 {vr(vS + i, 2)}, {vr(vS + i, 2)}, {sr(sC, 2)}, {vr(vT0, 2)} neg_lo:[0,0,1] neg_hi:[0,0,1]")
            elif not PK:
                fm.append(f"v_fma_f32 {vr(vS + i)}, {vr(vS + i)}, {sr(sC)}, -{vr(vT0)}")
            ex.append(f"v_exp_f32 {vr(vS + i)}, {vr(vS + i)}")
        for i in range(lo // 2, hi // 2):
            cv.append(f"v_cvt_pk_bf16_f32 {vr(vS + i)}, {vr(vS + 2 * i)}, {vr(vS + 2 * i + 1)}")
        per = 2 if PK else 1
        seq = fm[:2 // per]
        nf = 2 // per
        for j, x in enumerate(ex):
            seq.append(x)
            if nf < len(fm) and (j + 1) % per == 0:
                seq.append(fm[nf])
                nf += 1
            if j >= 2 and j % 2 == 0:
                seq.append(cv[(j - 2) // 2])
        seq.append(cv[-1])
        return seq

    def pv(T, k):
        return mfma(OACC[T], vPOOL + 12 * (T % 6) + 4 * k, vS + 4 * k, None if k == 0 else OACC[T])

    def lsum(k):
        return mfma(vL, vONE, vS + 4 * k, None if k == 0 else vL)

    def fin(T, park):
        u, p = T // 2, T % 2
        o = OACC[T]
        w = W + 4 * u + 2 * p
        if PK:
            ops = [f"v_pk_mul_f32 {vr(o + r, 2)}, {vr(o + r, 2)}, {vr(vT0, 2)} op_sel_hi:[1,0]" for r in (0, 2)]
        else:
            ops = [f"v_mul_f32 {vr(o + r)}, {vr(o + r)}, {vr(vT0)}" for r in range(4)]
        ops += [f"v_cvt_pk_bf16_f32 {vr(w)}, {vr(o)}, {vr(o + 1)}", f"v_cvt_pk_bf16_f32 {vr(w + 1)}, {vr(o + 2)}, {vr(o + 3)}"]
        if NOCOMP:
            ops = []
        if park:
            ops.append(f"ds_write_b64 {vr(vT3 if p else 0)}, {vr(w, 2)} offset:{1024 * u}")
        else:
            ops.append(f"ds_write_b64 {vr(vSW1 if p else vSW0)}, {vr(w, 2)}")
            if p:
                ops.append(f"ds_read_b128 {vr(R + 4 * u, 4)}, {vr(vSR)}")
        return ops

    if not NOCOMP:
        for op in merge(allreduce_ops("v_max_f32", vT0, vT1), VR[8:14]):
            m(op)
        m(f"v_mul_f32 {vr(vT0)}, {sr(sC)}, {vr(vT0)}")
        if PK:
            m(f"v_mov_b32 {vr(vT1)}, {vr(vT0)}")
        for op in merge(p_ops(0, 8), VR[14:24]):
            m(op)
        for op in merge(merge(p_ops(8, 16), VR[24:36]), [lsum(0)] + [pv(T, 0) for T in range(5)]):
            m(op)
        for op in merge(p_ops(16, 22) + [f"v_mov_b32 {vr(vS + 11)}, 0"], [pv(5, 0), lsum(1)] + [pv(T, 1) for T in range(6)]):
            m(op)
    stamp_it(m, 4)

    def tail(em, park):
        if park:
            em(f"v_add_u32 v0, {sr(sPARK)}, {vr(vSW0)}")
            em(f"v_add_u32 {vr(vT3)}, {sr(sPARK)}, {vr(vSW1)}")
            em(f"ds_read_b32 {vr(vT2)}, {vr(vFLAG)} offset:4")
        if NOCOMP:
            if park:
                poll_bits(em, sr(sREQ), True)
            for T in range(8):
                for op in fin(T, park):
                    em(op)
            return
        em(lsum(2))
        em(pv(0, 2))
        for k in range(3):
            for op in v_read(6, k):
                em(op)
        em(pv(1, 2))
        for k in range(3):
            for op in v_read(7, k):
                em(op)
        em(pv(2, 2))
        em(f"v_rcp_f32 {vr(vT0)}, {vr(vL)}")
        em(pv(3, 2))
        if park:
            poll_bits(em, sr(sREQ), True)
        em(pv(4, 2))
        em(pv(5, 2))
        for op in merge(fin(0, park) + fin(1, park) + fin(2, park), [pv(6, k) for k in range(3)] + [pv(7, k) for k in range(3)]):
            em(op)
        for T in range(3, 8):
            for op in fin(T, park):
                em(op)

    m(f"s_cmp_lg_u32 {sr(sIT)}, 0")
    m("s_cbranch_scc1 L_last")
    b2 = m.fork()
    tail(m, True)
    m(f"s_add_u32 {sr(sT1)}, {sr(sW)}, 8")
    m.wait_lgkm_all()
    set_bit(m, sr(sT1))
    stamp_it(m, 6, 0)
    m(f"s_sub_u32 {sr(sT1)}, {sr(sB2)}, {sr(sB)}")
    m(f"s_lshl_b32 {sr(sSTEP)}, {sr(sT1)}, 12")
    m(f"s_mul_i32 {sr(sSTEPV)}, {sr(sT1)}, {VT}")
    m(f"s_mov_b32 {sr(sB)}, {sr(sB2)}")
    if not NOCOMP:
        k_halo(m, sr(sB))
    m(f"s_add_u32 {sr(sNEED)}, {sr(sX)}, 2")
    m(f"s_min_u32 {sr(sNEED)}, {sr(sNEED)}, 15")
    m(f"s_cmp_gt_u32 {sr(sNEED)}, {HP}")
    m(f"s_addc_u32 {sr(sNEED)}, {sr(sNEED)}, 1")
    m(f"s_add_u32 {sr(sNEEDV)}, {sr(sX)}, 4")
    m(f"s_min_u32 {sr(sNEEDV)}, {sr(sNEEDV)}, 16")
    m(f"s_cmp_gt_u32 {sr(sNEEDV)}, {HP}")
    m(f"s_addc_u32 {sr(sNEEDV)}, {sr(sNEEDV)}, 1")
    m(f"s_mov_b32 {sr(sIT)}, 1")
    m(f"s_cmp_ge_u32 {sr(sW)}, {EW}")
    m.flush()
    m("s_cbranch_scc1 L_block")
    m(f"s_sub_u32 {sr(sT2)}, {sr(sNEED)}, {D + QL2}")
    m(f"s_max_u32 {sr(sT2)}, {sr(sT2)}, {THRMIN}")
    poll(m, sr(sT2))
    q_load(m, sr(sB))
    m("s_branch L_block")
    b2.raw("L_last:")
    tail(b2, False)
    if STAMP and "B6" in PTS:
        b2.wait_lgkm_all()
        stamp_it(b2, 6, 1)
    for u in range(4):
        b2(f"buffer_store_dwordx4 {vr(R + 4 * u, 4)}, {vr(vSO)}, {sr(S_O, 4)}, {sr(sQOFF)} offen offset:{64 * u}{STB}")
    dump_stamps(b2, "m")
    b2("s_endpgm")

    h = c.fork()
    h.raw("L_helper:")
    hS, hO, hK, hV, vM, vA = 44, 56, 92, 124, 156, 1
    hL = hO + 32
    if PRIOH:
        h(f"s_setprio {PRIOH}")
    if CPF and not CPE:
        code_pf_setup(h)
        code_pf(h)
    h(f"v_lshlrev_b32 {vr(vA)}, 4, {vr(vG)}")
    h(f"v_lshl_add_u32 v0, {vr(vN)}, 8, {vr(vA)}")
    for i in range(16):
        h(f"v_mov_b32 {vr(vQR + i)}, 0")
    h("s_mov_b32 exec_lo, 0x00030003")
    h("s_mov_b32 exec_hi, 0x00030003")
    for s in range(4):
        h(f"buffer_load_dwordx4 {vr(vQR + 4 * s, 4)}, v0, {sr(S_Q, 4)}, {sr(sHEADOFF)} offen offset:{64 * s}")
    h("s_mov_b64 exec, -1")
    lane_addrs(h)
    h(f"s_mul_i32 {sr(sPARK)}, {sr(sWAVE)}, 1056")
    h(f"s_add_u32 {sr(sPARK)}, {sr(sPARK)}, {L_MRG - 1056}")
    h(f"v_lshl_add_u32 {vr(vA)}, {vr(vN)}, 9, {vr(vA)}")
    h(f"v_add_u32 {vr(vA)}, {sr(sPARK)}, {vr(vA)}")
    h(f"v_lshlrev_b32 {vr(vSR)}, 3, {vr(vN)}")
    h(f"v_add_u32 {vr(vSR)}, {sr(sPARK)}, {vr(vSR)}")
    h(f"v_lshl_add_u32 {vr(vSO)}, {vr(vG)}, 4, {vr(vN)}")
    h(f"v_lshrrev_b32 {vr(vSW)}, 5, {vr(vSO)}")
    h(f"v_lshlrev_b32 {vr(vSW)}, 3, {vr(vSW)}")
    h(f"v_lshlrev_b32 {vr(vSW0)}, 4, {vr(vSO)}")
    h(f"v_and_b32 {vr(vSW1)}, 7, {vr(vSO)}")
    h(f"v_lshlrev_b32 {vr(vT0)}, 3, {vr(vSW)}")
    h(f"v_lshl_add_u32 {vr(vGK)}, {vr(vSW1)}, 3, {vr(vT0)}")
    h(f"v_lshl_add_u32 {vr(vSW1)}, {vr(vSW1)}, 11, {vr(vT0)}")
    h(f"v_lshlrev_b32 {vr(vSO)}, 3, {vr(vSO)}")
    for i in range(36):
        h(f"v_mov_b32 {vr(hO + i)}, 0")
    h(f"v_mov_b32 {vr(vM)}, {sr(sNEG)}")
    h(f"s_sub_u32 {sr(sW)}, {sr(sWAVE)}, 1")
    h(f"s_lshl_b32 {sr(sT0)}, {sr(sW)}, 1")
    h(f"s_add_u32 {sr(sNEED)}, {sr(sT0)}, 2")
    h(f"s_sub_u32 {sr(sT1)}, 14, {sr(sT0)}")
    h(f"s_cmp_eq_u32 {sr(sDESC)}, 0")
    h(f"s_cselect_b32 {sr(sT0)}, {sr(sT0)}, {sr(sT1)}")
    h(f"s_cselect_b32 {sr(sSTEPV)}, 1, -1")
    h(f"s_mul_i32 {sr(sSTEP)}, {sr(sSTEPV)}, {2 * NH * 4096}")
    h(f"s_mul_i32 {sr(sSTEPV)}, {sr(sSTEPV)}, {2 * NH * VT}")
    h(f"s_lshl_b32 {sr(sT1)}, {sr(sT0)}, 12")
    h(f"s_add_u32 {sr(sT1)}, {sr(sT1)}, {L_K}")
    h(f"s_mul_i32 {sr(sT2)}, {sr(sT0)}, {VT}")
    h(f"s_add_u32 {sr(sT2)}, {sr(sT2)}, {L_V + 2 * VT}")
    tile_addrs(h, sr(sT1), sr(sT2))
    h(f"s_lshl_b32 {sr(sREC)}, {sr(sHEAD)}, 3")
    h(f"s_add_u32 {sr(sREC)}, {sr(sREC)}, {sr(sCHUNK)}")
    h(f"s_lshl_b32 {sr(sREC)}, {sr(sREC)}, 11")
    assert DUAL == "none"
    h(f"s_mov_b32 {sr(sX)}, 1")
    if opt.get("tlbw"):
        h(f"s_lshl_b32 {sr(sT0)}, {sr(sHEAD)}, 14")
        h(f"buffer_load_dword v162, {vr(vSW1)}, {sr(S_WS, 4)}, {sr(sT0)} offen offset:1536")
        h(f"s_add_u32 {sr(sT0)}, {sr(sT0)}, {1 << 20}")
        h(f"buffer_load_dword v163, {vr(vSW1)}, {sr(S_WS, 4)}, {sr(sT0)} offen offset:1536")
    h.wait_vm_all()
    h.label("L_hloop")
    h(f"s_cmp_gt_u32 {sr(sNEED)}, {HP + 1}")
    h(f"s_addc_u32 {sr(sT2)}, {sr(sNEED)}, 0")
    poll(h, sr(sT2))
    h(f"s_lshr_b32 {sr(sT1)}, {sr(sNEED)}, 1")
    h(f"s_add_u32 {sr(sT1)}, {sr(sT1)}, 15")
    h(f"s_add_u32 {sr(sNEEDV)}, {sr(sNEED)}, 1")
    h(f"s_min_u32 {sr(sNEEDV)}, {sr(sNEEDV)}, 16")
    h(f"s_cmp_gt_u32 {sr(sNEEDV)}, {HP}")
    h(f"s_addc_u32 {sr(sNEEDV)}, {sr(sNEEDV)}, 1")
    if not NOCOMP:
        for i in range(8):
            h(f"ds_read_b128 {vr(hK + 4 * i, 4)}, {vr(vKA + i % 4)} offset:{4096 * (i // 4)}")
        hvr = [f"ds_read_b64_tr_b16 {vr(hV + 4 * T + 2 * j, 2)}, {vr(vVA + T // 2)} offset:{VT * j + 32 * (T % 2)}" for T in range(8) for j in range(2)]
        for i in range(8):
            t, s = i // 4, i % 4
            h(mfma(hS + 4 * t, hK + 4 * i, vQR + 4 * s, None if s == 0 else hS + 4 * t))
    set_bit(h, sr(sT1))
    if CPL:
        code_pf(h)
    if not NOCOMP:
        for op in max_tree([hS + i for i in range(8)], vT0) + allreduce_ops("v_max_f32", vT0, vT1):
            h(op)
        h(f"v_mul_f32 {vr(vT0)}, {sr(sC)}, {vr(vT0)}")
        h(f"v_max_f32 {vr(vT0)}, {vr(vT0)}, {vr(vM)}")
        h(f"v_sub_f32 {vr(vT1)}, {vr(vM)}, {vr(vT0)}")
        h(f"v_exp_f32 {vr(vT1)}, {vr(vT1)}")
        h(f"v_mov_b32 {vr(vM)}, {vr(vT0)}")
        for i in range(8):
            h(f"v_fma_f32 {vr(hS + i)}, {vr(hS + i)}, {sr(sC)}, -{vr(vT0)}")
        for i in range(8):
            h(f"v_exp_f32 {vr(hS + i)}, {vr(hS + i)}")
        for i in range(33):
            h(f"v_mul_f32 {vr(hO + i)}, {vr(hO + i)}, {vr(vT1)}")
        for k in range(4):
            h(f"v_cvt_pk_bf16_f32 {vr(hS + k)}, {vr(hS + 2 * k)}, {vr(hS + 2 * k + 1)}")
        h(mfma(hL, vONE, hS, hL))
    poll(h, sr(sNEEDV))
    if not NOCOMP:
        for op in hvr:
            h(op)
    tile_addrs(h, sr(sSTEP), sr(sSTEPV))
    if not NOCOMP:
        for T in range(8):
            h(mfma(hO + 4 * T, hV + 4 * T, hS, hO + 4 * T))
    h(f"s_add_u32 {sr(sNEED)}, {sr(sNEED)}, {2 * NH}")
    h(f"s_cmp_le_u32 {sr(sNEED)}, 16")
    h.flush()
    h("s_cbranch_scc1 L_hloop")
    stamp(h, 1)
    if not NOCOMP:
        h(f"v_mov_b32 {vr(vM + 1)}, {vr(hL)}")
        h("s_mov_b32 exec_lo, 0x00030003")
        h("s_mov_b32 exec_hi, 0x00030003")
        for T in range(8):
            h(f"ds_write_b128 {vr(vA)}, {vr(hO + 4 * T, 4)} offset:{64 * T}")
        h("s_mov_b64 exec, 3")
        h(f"ds_write_b64 {vr(vSR)}, {vr(vM, 2)} offset:1024")
        h("s_mov_b64 exec, -1")
        h(f"s_cmp_lg_u32 {sr(sW)}, 0")
        h("s_cbranch_scc1 L_hmerge")
        h0 = h.fork()
        keepq = list(h.ds_q)
        h.wait_lgkm_all()
        set_bit(h, 24)
        h("s_branch L_hdone")
        h.raw("L_hmerge:")
        h.ds_q = keepq
        h(f"s_mov_b32 {sr(sT2)}, {1 << 24}")
        poll_bits(h, sr(sT2))
        cA, cB, cM = 56, 60, 64
        h(f"ds_read_b64 {vr(cM, 2)}, {vr(vSW)} offset:{L_MRG + 1024}")
        h(f"ds_read_b64 {vr(cM + 2, 2)}, {vr(vSW)} offset:{L_MRG + 1056 + 1024}")
        h(f"ds_read_b128 {vr(cA, 4)}, {vr(vSW0)} offset:{L_MRG}")
        h(f"ds_read_b128 {vr(cB, 4)}, {vr(vSW0)} offset:{L_MRG + 1056}")
        h(f"s_lshl_b32 {sr(sT0)}, {sr(sHEAD)}, 2")
        h(f"v_mov_b32 v0, {sr(sX)}")
        h(f"v_max_f32 {vr(vM)}, {vr(cM)}, {vr(cM + 2)}")
        h(f"v_sub_f32 {vr(cM)}, {vr(cM)}, {vr(vM)}")
        h(f"v_sub_f32 {vr(cM + 2)}, {vr(cM + 2)}, {vr(vM)}")
        h(f"v_exp_f32 {vr(cM)}, {vr(cM)}")
        h(f"v_exp_f32 {vr(cM + 2)}, {vr(cM + 2)}")
        for r in range(4):
            h(f"v_mul_f32 {vr(cA + r)}, {vr(cA + r)}, {vr(cM)}")
        h(f"v_mul_f32 {vr(vM + 1)}, {vr(cM + 1)}, {vr(cM)}")
        for r in range(4):
            h(f"v_fmac_f32 {vr(cA + r)}, {vr(cB + r)}, {vr(cM + 2)}")
        h(f"v_fmac_f32 {vr(vM + 1)}, {vr(cM + 3)}, {vr(cM + 2)}")
        h(f"buffer_store_dwordx4 {vr(cA, 4)}, {vr(vSW0)}, {sr(S_WS, 4)}, {sr(sREC)} offen sc1")
        if DUAL != "none":
            h(f"buffer_store_dwordx4 {vr(cA, 4)}, {vr(vSW0)}, {sr(S_WS, 4)}, {sr(sREQ)} offen")
        h("s_mov_b32 exec_lo, 0xff")
        h("s_mov_b32 exec_hi, 0xff")
        h(f"buffer_store_dwordx2 {vr(vM, 2)}, {vr(vGK)}, {sr(S_WS, 4)}, {sr(sREC)} offen offset:1024 sc1")
        if DUAL != "none":
            h(f"buffer_store_dwordx2 {vr(vM, 2)}, {vr(vGK)}, {sr(S_WS, 4)}, {sr(sREQ)} offen offset:1024")
        h("s_mov_b64 exec, 1")
        h(f"v_mov_b32 {vr(vT2)}, {1 << 25}")
        if GATE >= 0 and GATEP:
            h(f"ds_or_b32 {vr(vFLAG)}, {vr(vT2)} offset:4")
        h.wait_vm_all()
        stamp(h, 2)
        h(f"buffer_atomic_add v0, off, {sr(S_DBG, 4)}, {sr(sT0)} sc0")
        if GATE >= 0 and not GATEP:
            h(f"ds_or_b32 {vr(vFLAG)}, {vr(vT2)} offset:4")
        h(f"v_readfirstlane_b32 {sr(sT1)}, v0")
        h("s_mov_b64 exec, -1")
        stamp(h, 3)
        h(f"s_and_b32 {sr(sT2)}, {sr(sT1)}, 31")
        h(f"s_cmp_eq_u32 {sr(sT2)}, 7")
        h.flush()
        h("s_cbranch_scc0 L_hdone")
        cO, cW = 56, 96
        h(f"s_lshl_b32 {sr(sREC)}, {sr(sHEAD)}, 14")

        def rec_loads(mod):
            h.vm_q = []
            h(f"buffer_load_dwordx2 {vr(vM, 2)}, {vr(vSW1)}, {sr(S_WS, 4)}, {sr(sREC)} offen offset:1024{mod}")
            for i in range(8):
                if i % 2 == 0 and i:
                    h(f"s_add_u32 {sr(sREC)}, {sr(sREC)}, 4096")
                h(f"buffer_load_dwordx4 {vr(cO + 4 * i, 4)}, {vr(vSW0)}, {sr(S_WS, 4)}, {sr(sREC)} offen offset:{2048 * (i % 2)}{mod}")
        if DUAL != "none":
            h(f"s_mul_i32 {sr(sX)}, {sr(sX)}, 7")
            h(f"s_cmp_eq_u32 {sr(sX)}, {sr(sT1)}")
            h("s_cbranch_scc0 L_far")
            h(f"s_add_u32 {sr(sREC)}, {sr(sREC)}, {1 << 20}")
            rec_loads("" if DUAL == "plain" else " " + DUAL)
            h("s_branch L_got")
            h.raw("L_far:")
        rec_loads(" sc1")
        h.raw("L_got:")
        SWZ = (0x041F, 0x081F, 0x101F)
        h(f"v_mov_b32 {vr(vT0)}, {vr(vM)}")
        stamp(h, 5)
        for x in SWZ:
            h(f"ds_swizzle_b32 {vr(vT1)}, {vr(vT0)} offset:{x:#x}")
            h(f"v_max_f32 {vr(vT0)}, {vr(vT0)}, {vr(vT1)}")
        h(f"v_sub_f32 {vr(vM)}, {vr(vM)}, {vr(vT0)}")
        h(f"v_exp_f32 {vr(vM)}, {vr(vM)}")
        h(f"v_mul_f32 {vr(vT0)}, {vr(vM)}, {vr(vM + 1)}")
        for i in range(8):
            h(f"ds_swizzle_b32 {vr(cW + i)}, {vr(vM)} offset:{(i << 5) | 0x18:#x}")
        for x in SWZ:
            h(f"ds_swizzle_b32 {vr(vT1)}, {vr(vT0)} offset:{x:#x}")
            h(f"v_add_f32 {vr(vT0)}, {vr(vT0)}, {vr(vT1)}")
        h(f"v_rcp_f32 {vr(vT0)}, {vr(vT0)}")
        if STAMP:
            h.wait_vm_all()
            stamp(h, 4)
        for i in range(8):
            for r in range(4):
                h(f"{'v_fmac_f32' if i else 'v_mul_f32'} {vr(vKA + r)}, {vr(cW + i)}, {vr(cO + 4 * i + r)}")
        for r in range(4):
            h(f"v_mul_f32 {vr(vKA + r)}, {vr(vKA + r)}, {vr(vT0)}")
        h(f"v_cvt_pk_bf16_f32 {vr(vVA)}, {vr(vKA)}, {vr(vKA + 1)}")
        h(f"v_cvt_pk_bf16_f32 {vr(vVA + 1)}, {vr(vKA + 2)}, {vr(vKA + 3)}")
        h(f"buffer_store_dwordx2 {vr(vVA, 2)}, {vr(vSO)}, {sr(S_O, 4)}, {sr(sHEADOFF)} offen sc1")
        h.label("L_hdone")
    dump_stamps(h, "h")
    h.raw("L_end:")
    h("s_endpgm")

    tailtxt = f""".section .rodata,"a"
.p2align 6
.amdhsa_kernel {NAME}_kernel
  .amdhsa_next_free_vgpr 168
  .amdhsa_next_free_sgpr 98
  .amdhsa_accum_offset 168
  .amdhsa_group_segment_fixed_size 0
  .amdhsa_kernarg_size 64
  .amdhsa_user_sgpr_count 2
  .amdhsa_user_sgpr_kernarg_segment_ptr 1
  .amdhsa_system_sgpr_workgroup_id_x 1
.end_amdhsa_kernel
"""
    txt = e.text() + ld.text() + c.text() + m.text() + b2.text() + h.text()
    if not NOCOMP:
        txt += ed.text()
    return txt + "L_codeend:\n" + tailtxt


if __name__ == "__main__":
    out = sys.argv[1]
    opt = {}
    for a in sys.argv[2:]:
        k, _, v = a.partition("=")
        opt[k] = v if v else True
        if k in ("st", "stb", "ld", "qld"):
            opt[k] = (" " + v.replace("+", " ")) if v != "none" else ""
    open(out, "w").write(gen(opt))
```

```python
import sys
import math
import struct
from asmgen import Emitter, vr, sr

NAME = "standalone__global_local_windowed_global_tokens__prompt"

HEADER = """; Kernarg layout for this problem (64 bytes, ptrs only, base s[0:1]):
;   offset   0: d_in[0] q  shape=(1, 32, 2048, 128) dtype=bfloat16 strides=(16777216, 524288, 256, 2) contiguous=True
;   offset   8: d_in[1] k  shape=(1, 32, 2048, 128) dtype=bfloat16 strides=(16777216, 524288, 256, 2) contiguous=True
;   offset  16: d_in[2] v  shape=(1, 32, 2048, 128) dtype=bfloat16 strides=(16777216, 524288, 256, 2) contiguous=True
;   offset  24: d_in[3] window  shape=(1,) dtype=int32 strides=(4,) contiguous=True
;   offset  32: d_in[4] n_global  shape=(1,) dtype=int32 strides=(4,) contiguous=True
;
;   wave 0      streams the chunk's K and V tiles (16 rows each) into LDS by DMA, publishes its progress in
;               an LDS word, and afterwards stores the output tiles that the first round parked in LDS
;   waves 1,2   query rows 0,1 (global rows) against the chunk's 256 keys with a running max; the merged
;               partial (max, sum, O) goes to d_ws, a ticket in d_debug tells the last of a head's 8
;               (16x16x32 MFMA, band masks enter as the accumulator's start value), exact softmax,
;               O^T = V^T P^T with transposing LDS reads, row-contiguous stores through LDS
"""


def f32bits(x):
    return struct.unpack("<I", struct.pack("<f", x))[0]


def merge(a, b):
    out, nb = [], 0
    for i, x in enumerate(a):
        out.append(x)
        want = (i + 1) * len(b) // len(a)
        out += b[nb:want]
        nb = want
    return out + b[nb:]


def gen(opt):
    LD = opt.get("ld", "")
    QLD = opt.get("qld", "")
    ST = opt.get("st", " sc1")
    STB = opt.get("stb", ST)
    NOCOMP = opt.get("nocomp", False)
    PROBE = opt.get("probe", None)
    GPROBE = opt.get("gprobe", None)
    STAMP = opt.get("stamp", False) or PROBE or GPROBE
    D = int(opt.get("depth", 3))
    SLEEP = int(opt.get("sleep", 1))
    WIN = int(opt.get("win", 8 * D))
    HALF = int(opt.get("half", 63))
    assert WIN <= 8 * D
    QLEAD = int(opt.get("qlead", 0))
    QL2 = int(opt.get("ql2", 0))
    THRMIN = int(opt.get("thrmin", 0))
    EW = int(opt.get("ew", 6))
    PST = int(opt.get("pst", 32))
    DUAL = opt.get("dual", "none")
    PRIOW = int(opt.get("priow", 99))
    PRIOH = int(opt.get("prioh", 0))
    ROT = int(opt.get("rot", 6))
    PK = opt.get("pk", False)
    UMASK = int(opt.get("umask", 0))
    SCHED = int(opt.get("sched", 1))
    CPE = opt.get("cpe", False)
    CPL = opt.get("cpl", False)
    QDIR = opt.get("qdir", False)
    HP = int(opt.get("hp", 11))
    assert 11 <= HP <= 14
    GATE = int(opt.get("gate", -1))
    GATEP = opt.get("gatep", False)
    WX = int(opt.get("wx", 0))
    PRIOV = int(opt.get("priov", 2))
    CPF = int(opt.get("cpf", 0))
    PTS = opt.get("pts", "A2,A6,B1,B2,B6").split(",")
    assert len(PTS) == 5 and D >= 2
    assert all(((w + ROT) & 7) < 6 for w in range(EW, 8))

    TB = 32 * 2048 * 256
    HEADB = 2048 * 256
    L_STAGE, L_GK, L_GV, L_FLAG, L_K, L_V = 0, 8192, 9216, 10240, 13824, 79360
    L_MRG = 10368
    VT, VP = 4224, 1056
    NH = 2
    NWAVE = 9 + NH
    NEG = f32bits(-1.0e30)
    CSCALE = f32bits((128 ** -0.5) * math.log2(math.e))

    S_Q, S_K, S_V, S_O, S_DBG, S_WS = 20, 24, 28, 32, 36, 40
    sWAVE, sHEADOFF, sROW0, sT0, sT1, sT2 = 44, 45, 46, 47, 48, 49
    sQOFF, sNEG, sQ0, sHEAD, sCHUNK, sDESC = 50, 51, 52, 53, 54, 55
    sEX = 56
    sC = 58
    sTS = 60
    sB, sIT, sNEED, sX, sCNT, sW, sHI, sREC, sSTEP, sXV, sSTEPV, sPARK, sREQ, sB2 = range(80, 94)
    sNEEDV = 95
    sMASK = 2

    vKA, vVA, vSW0, vSW1, vGK, vN, vG, vG4 = 2, 6, 10, 11, 12, 13, 14, 15
    vFLAG, vSW, vT0, vT1, vONE, vSR, vSO, vT3, vT2 = 16, 17, 18, 19, 20, 24, 25, 26, 27
    vQR, vS, vOX, vPOOL, vGV = 28, 44, 68, 92, 164
    vC = 13

    uid = [0]

    def newid():
        uid[0] += 1
        return uid[0]

    def stamp(em, i):
        if STAMP:
            em(f"s_memrealtime {sr(sTS + 2 * i, 2)}")

    def stamp_it(em, k, only=None):
        if not STAMP:
            return
        for it, nm in ((0, f"A{k}"), (1, f"B{k}")):
            if nm in PTS and only in (None, it):
                if only is None:
                    u = newid()
                    em(f"s_cmp_eq_u32 {sr(sIT)}, {it}")
                    em(f"s_cbranch_scc0 L_sa{u}")
                stamp(em, PTS.index(nm) + 1)
                if only is None:
                    em.raw(f"L_sa{u}:")

    def poll(em, need):
        u = newid()
        em.label(f"L_poll{u}")
        em(f"ds_read_b32 {vr(vT2)}, {vr(vFLAG)}")
        em(f"v_readfirstlane_b32 {sr(sT0)}, {vr(vT2)}")
        em(f"s_cmp_ge_i32 {sr(sT0)}, {need}")
        em(f"s_cbranch_scc1 L_pdone{u}")
        if SLEEP:
            em(f"s_sleep {SLEEP}")
        em(f"s_branch L_poll{u}")
        em.raw(f"L_pdone{u}:")

    def poll_pre(em, need, reg):
        u = newid()
        em(f"v_readfirstlane_b32 {sr(sT0)}, {vr(reg)}")
        em(f"s_cmp_ge_i32 {sr(sT0)}, {need}")
        em(f"s_cbranch_scc1 L_pdone{u}")
        keep = (list(em.ds_q), list(em.hist))
        em.lines.append(f"L_poll{u}:")
        em(f"ds_read_b32 {vr(reg)}, {vr(vFLAG)}")
        em(f"v_readfirstlane_b32 {sr(sT0)}, {vr(reg)}")
        em(f"s_cmp_ge_i32 {sr(sT0)}, {need}")
        em(f"s_cbranch_scc0 L_poll{u}")
        em.raw(f"L_pdone{u}:")
        em.ds_q, em.hist = keep

    def poll_bits(em, smask, first_read_done=False):
        u = newid()
        if first_read_done:
            em(f"v_readfirstlane_b32 {sr(sT0)}, {vr(vT2)}")
            em(f"s_andn2_b32 {sr(sT0)}, {smask}, {sr(sT0)}")
            em(f"s_cbranch_scc0 L_pdone{u}")
            keep = (list(em.ds_q), list(em.hist))
            em.lines.append(f"L_poll{u}:")
        else:
            em.label(f"L_poll{u}")
        em(f"ds_read_b32 {vr(vT2)}, {vr(vFLAG)} offset:4")
        em(f"v_readfirstlane_b32 {sr(sT0)}, {vr(vT2)}")
        em(f"s_andn2_b32 {sr(sT0)}, {smask}, {sr(sT0)}")
        em(f"s_cbranch_scc0 L_pdone{u}")
        if SLEEP:
            em(f"s_sleep {SLEEP}")
        em(f"s_branch L_poll{u}")
        em.raw(f"L_pdone{u}:")
        if first_read_done:
            em.ds_q, em.hist = keep

    def set_bit(em, sbit):
        em(f"s_lshl_b32 {sr(sT0)}, 1, {sbit}")
        em(f"v_mov_b32 {vr(vT2)}, {sr(sT0)}")
        em("s_mov_b64 exec, 1")
        em(f"ds_or_b32 {vr(vFLAG)}, {vr(vT2)} offset:4")
        em("s_mov_b64 exec, -1")

    def park_addr(em, sw, dst):
        em(f"s_sub_u32 {sr(sT1)}, 19, {sw}")
        em(f"s_cmp_eq_u32 {sr(sDESC)}, 0")
        em(f"s_cselect_b32 {sr(sT1)}, {sw}, {sr(sT1)}")
        em(f"s_mul_i32 {sr(sT2)}, {sr(sT1)}, {VT}")
        em(f"s_add_u32 {sr(sT2)}, {sr(sT2)}, {L_V}")
        em(f"s_lshl_b32 {sr(sT1)}, {sr(sT1)}, 12")
        em(f"s_add_u32 {sr(sT1)}, {sr(sT1)}, {L_K - 8192}")
        em(f"s_cmp_lt_u32 {sw}, 2")
        em(f"s_cselect_b32 {dst}, {sr(sT2)}, {sr(sT1)}")

    def stage_read_addrs(em):
        em(f"v_lshrrev_b32 {vr(vT0)}, 2, {vr(vN)}")
        em(f"v_add_u32 {vr(vT2)}, {vr(vG4)}, {vr(vT0)}")
        em(f"v_and_b32 {vr(vT1)}, 3, {vr(vN)}")
        em(f"v_lshlrev_b32 {vr(vSO)}, 4, {vr(vT1)}")
        em(f"v_lshl_add_u32 {vr(vSO)}, {vr(vT2)}, 8, {vr(vSO)}")
        em(f"v_bfe_u32 {vr(vSR)}, {vr(vT2)}, 1, 2")
        em(f"v_xor_b32 {vr(vSR)}, {vr(vSR)}, {vr(vT1)}")
        em(f"v_lshlrev_b32 {vr(vSR)}, 4, {vr(vSR)}")
        em(f"v_lshl_add_u32 {vr(vSR)}, {vr(vT2)}, 6, {vr(vSR)}")

    def dump_stamps(em, tagn):
        if not STAMP:
            return
        stamp(em, 6)
        em("s_waitcnt vmcnt(0)")
        stamp(em, 7)
        em("s_memtime s[78:79]")
        em("s_waitcnt lgkmcnt(0)")
        if GPROBE:
            role, which, fac = GPROBE.split(",")
            which, fac = int(which), int(fac)
            nrep = {"l": 256, "m": 2048 + 256, "h": 512 + 256, "a": 2816}[role]
            em("s_mov_b64 exec, 1")
            if tagn == "l":
                em(f"s_not_b32 {sr(sT0)}, {sr(sTS)}")
                em(f"v_mov_b32 v0, {sr(sT0)}")
                em(f"buffer_atomic_umax v0, off, {sr(S_DBG, 4)}, 0 offset:128")
            if role in (tagn, "a"):
                em(f"v_mov_b32 v1, {sr(sTS + 2 * which)}")
                em(f"buffer_atomic_umax v1, off, {sr(S_DBG, 4)}, 0 offset:132")
            if role in (tagn, "a") or tagn == "l":
                em("v_mov_b32 v2, 1")
                em("s_waitcnt vmcnt(0)")
                em(f"buffer_atomic_add v2, off, {sr(S_DBG, 4)}, 0 offset:136")
            if tagn == "l":
                em(f"s_cmp_eq_u32 {sr(sWG)}, 100")
                em("s_cbranch_scc0 L_gp_done")
                em.label("L_gp1")
                em(f"buffer_load_dwordx4 v[4:7], off, {sr(S_DBG, 4)}, 0 offset:128 sc1")
                em("s_waitcnt vmcnt(0)")
                em(f"v_readfirstlane_b32 {sr(sT0)}, v6")
                em("s_sleep 8")
                em(f"s_cmp_ge_u32 {sr(sT0)}, {nrep}")
                em("s_cbranch_scc0 L_gp1")
                em(f"buffer_load_dwordx4 v[4:7], off, {sr(S_DBG, 4)}, 0 offset:128 sc1")
                em("s_waitcnt vmcnt(0)")
                em(f"v_readfirstlane_b32 {sr(sT2)}, v4")
                em(f"v_readfirstlane_b32 {sr(sT0)}, v5")
                em(f"s_not_b32 {sr(sT2)}, {sr(sT2)}")
                em(f"s_sub_u32 {sr(sT0)}, {sr(sT0)}, {sr(sT2)}")
                em(f"s_min_u32 {sr(sT0)}, {sr(sT0)}, 5000")
                em(f"s_mul_i32 {sr(sT0)}, {sr(sT0)}, {fac}")
                em(f"s_add_u32 {sr(sT0)}, {sr(sT0)}, 15000")
                em.label("L_gp2")
                em("s_memrealtime s[78:79]")
                em("s_waitcnt lgkmcnt(0)")
                em(f"s_sub_u32 {sr(sT1)}, s78, {sr(sT2)}")
                em(f"s_cmp_lt_u32 {sr(sT1)}, {sr(sT0)}")
                em("s_cbranch_scc1 L_gp2")
                em.label("L_gp_done")
            em.vm_q = []
            return
        if PROBE:
            which, fac, pw = (int(x) for x in PROBE.split(","))
            em(f"s_cmp_eq_u32 {sr(sWG)}, 100")
            em(f"s_cbranch_scc0 L_probe_done{tagn}")
            em(f"s_cmp_eq_u32 {sr(sWAVE)}, {pw}")
            em(f"s_cbranch_scc0 L_probe_done{tagn}")
            em(f"s_sub_u32 {sr(sT0)}, {sr(sTS + 2 * which)}, {sr(sTS)}")
            em(f"s_mul_i32 {sr(sT0)}, {sr(sT0)}, {fac}")
            em(f"s_add_u32 {sr(sT0)}, {sr(sT0)}, 5000")
            em.label(f"L_probe{tagn}")
            em("s_memrealtime s[78:79]")
            em("s_waitcnt lgkmcnt(0)")
            em(f"s_sub_u32 {sr(sT1)}, s78, {sr(sTS)}")
            em(f"s_cmp_lt_u32 {sr(sT1)}, {sr(sT0)}")
            em(f"s_cbranch_scc1 L_probe{tagn}")
            em.label(f"L_probe_done{tagn}")
            return
        em("s_sub_u32 s76, s78, s76")
        if tagn == "m":
            em(f"s_mov_b32 {sr(sT1)}, {sr(sW)}")
        else:
            em(f"s_add_u32 {sr(sT1)}, {sr(sWAVE)}, 8")
        em(f"s_mul_i32 {sr(sT0)}, {sr(sWG)}, {NWAVE}")
        em(f"s_add_u32 {sr(sT0)}, {sr(sT0)}, {sr(sT1)}")
        em(f"s_lshl_b32 {sr(sT0)}, {sr(sT0)}, 6")
        em(f"s_add_u32 {sr(sT0)}, {sr(sT0)}, {0x800000}")
        for i in range(9):
            em(f"v_mov_b32 {vr(vPOOL + i)}, {sr(sTS + 2 * i)}")
        em("v_mov_b32 v0, 0")
        em("s_mov_b64 exec, 1")
        em(f"buffer_store_dwordx4 {vr(vPOOL, 4)}, v0, {sr(S_WS, 4)}, {sr(sT0)} offen")
        em(f"buffer_store_dwordx4 {vr(vPOOL + 4, 4)}, v0, {sr(S_WS, 4)}, {sr(sT0)} offen offset:16")
        em(f"buffer_store_dword {vr(vPOOL + 8)}, v0, {sr(S_WS, 4)}, {sr(sT0)} offen offset:32")
        em(f"s_getreg_b32 {sr(sT1)}, hwreg(HW_REG_XCC_ID, 0, 4)")
        em(f"v_mov_b32 {vr(vPOOL + 9)}, {sr(sT1)}")
        em(f"buffer_store_dword {vr(vPOOL + 9)}, v0, {sr(S_WS, 4)}, {sr(sT0)} offen offset:36")

    sWG = 94

    def code_pf_setup(em):
        em("s_getpc_b64 s[18:19]")
        em.raw("L_pc:")
        em(f"v_lshl_add_u32 v158, {vr(vG)}, 4, {vr(vN)}")
        em("v_lshlrev_b32 v158, 7, v158")
        em(f"s_sub_u32 s18, s18, L_pc-{NAME}_kernel")
        em("s_subb_u32 s19, s19, 0")
        em("v_add_u32 v159, 0x2000, v158")
        em(f"v_min_u32 v159, L_codeend-{NAME}_kernel-4, v159")

    def code_pf(em):
        for i in range(2):
            em(f"global_load_dword {vr(160 + i)}, {vr(158 + i)}, s[18:19]")
        em.vm_q = [x for x in em.vm_q if not (x[0] & {("v", 160), ("v", 161)})] + [(set(), None)] * 2

    e = Emitter()
    e.raw(HEADER + f"; @launch grid=(256,1,1) block=({64 * NWAVE},1,1) lds=163840")
    e.raw('.amdgcn_target "amdgcn-amd-amdhsa--gfx950"')
    e.raw(".text")
    e.raw(f".globl {NAME}_kernel")
    e.raw(".p2align 8")
    e.raw(f".type {NAME}_kernel,@function")
    e.raw(f"{NAME}_kernel:")
    e("s_load_dwordx4 s[4:7], s[0:1], 0")
    e("s_load_dwordx2 s[8:9], s[0:1], 16")
    e("s_cmp_ge_u32 s2, 256")
    e("s_cbranch_scc1 L_end")
    stamp(e, 0)
    if STAMP:
        e("s_memtime s[76:77]")
        e(f"s_mov_b32 {sr(sWG)}, s2")
        for i in range(1, 6):
            e(f"s_mov_b64 {sr(sTS + 2 * i, 2)}, 0")
    e(f"v_readfirstlane_b32 {sr(sWAVE)}, v0")
    e(f"v_and_b32 {vr(vN)}, 15, v0")
    e(f"v_bfe_u32 {vr(vG)}, v0, 4, 2")
    if CPE == "2":
        e(f"s_cmp_eq_u32 {sr(sWAVE)}, 64")
        e("s_cbranch_scc0 L_nocp")
        code_pf_setup(e)
        code_pf(e)
        e.raw("L_nocp:")
        e.vm_q = []
    e(f"s_and_b32 {sr(sT0)}, s2, 7")
    e(f"s_lshr_b32 {sr(sT1)}, s2, 6")
    e(f"s_lshl2_add_u32 {sr(sHEAD)}, {sr(sT0)}, {sr(sT1)}")
    e(f"s_bfe_u32 {sr(sCHUNK)}, s2, 0x30003")
    e(f"s_lshl_b32 {sr(sHEADOFF)}, {sr(sHEAD)}, 19")
    e(f"s_lshl_b32 {sr(sT0)}, {sr(sCHUNK)}, 16")
    e(f"s_add_u32 {sr(sROW0)}, {sr(sHEADOFF)}, {sr(sT0)}")
    e(f"s_add_u32 {sr(sHI)}, {sr(sHEADOFF)}, {HEADB - 4096}")
    e(f"s_and_b32 {sr(sDESC)}, {sr(sCHUNK)}, 1")
    e(f"v_lshlrev_b32 {vr(vG4)}, 2, {vr(vG)}")
    e(f"v_mov_b32 {vr(vFLAG)}, {L_FLAG}")
    e(f"s_mov_b32 {sr(S_K + 2)}, {TB}")
    e(f"s_mov_b32 {sr(S_K + 3)}, 0x20000")
    e(f"s_lshr_b32 {sr(sWAVE)}, {sr(sWAVE)}, 6")
    e("s_cbranch_scc1 L_notloader")

    def other_srds(em, which):
        em("s_load_dwordx4 s[12:15], s[0:1], 40")
        em("s_load_dwordx2 s[16:17], s[0:1], 56")
        em(f"s_mov_b32 {sr(S_O + 2)}, {TB}")
        em(f"s_mov_b32 {sr(S_O + 3)}, 0x20000")
        em(f"s_mov_b32 {sr(S_DBG + 2)}, 256")
        em(f"s_mov_b32 {sr(S_DBG + 3)}, 0x20000")
        em(f"s_mov_b32 {sr(S_WS + 2)}, {0x1000000}")
        em(f"s_mov_b32 {sr(S_WS + 3)}, 0x20000")

    def other_srds_done(em):
        em("s_waitcnt lgkmcnt(0)")
        for b, src in ((S_O, 12), (S_DBG, 14), (S_WS, 16)):
            em(f"s_mov_b64 {sr(b, 2)}, {sr(src, 2)}")

    ld = e.fork()
    vKD, vVD, vCNT = 2, 6, 8
    ld(f"v_lshlrev_b32 v0, 8, {vr(vG)}")
    ld(f"v_xor_b32 {vr(vVD)}, {vr(vG4)}, {vr(vN)}")
    ld(f"v_lshl_add_u32 {vr(vVD)}, {vr(vVD)}, 4, v0")
    ld(f"v_xor_b32 {vr(vKD)}, {vr(vG)}, {vr(vN)}")
    ld(f"v_lshl_add_u32 {vr(vKD)}, {vr(vKD)}, 4, v0")
    ld(f"s_mov_b32 {sr(S_V + 2)}, {TB}")
    ld(f"s_mov_b32 {sr(S_V + 3)}, 0x20000")
    if UMASK:
        ld(f"v_mov_b32 {vr(vCNT)}, 64")
        ld(f"v_mov_b32 {vr(vCNT + 1)}, -1")
        ld(f"ds_write_b64 {vr(vFLAG)}, {vr(vCNT, 2)}")
        ld("s_waitcnt lgkmcnt(0)")
        ld("s_barrier")
        ld("s_endpgm")
    ld(f"v_mov_b32 {vr(vCNT)}, 0")
    ld(f"v_mov_b32 {vr(vCNT + 1)}, 0")
    ld(f"s_mov_b32 m0, {L_GK}")
    ld("s_waitcnt lgkmcnt(0)")
    ld(f"s_mov_b64 {sr(S_K, 2)}, s[6:7]")
    ld(f"s_mov_b64 {sr(S_V, 2)}, s[8:9]")

    def v_halo(em, hi_when_desc):
        em(f"s_cmp_eq_u32 {sr(sDESC)}, {1 if hi_when_desc else 0}")
        em(f"s_cselect_b32 {sr(sT0)}, {18 * VT}, 0")
        em(f"s_cselect_b32 {sr(sT1)}, {18 * 4096}, 0")
        em(f"s_add_u32 {sr(sT1)}, {sr(sT1)}, {sr(sROW0)}")
        em(f"s_sub_u32 {sr(sT1)}, {sr(sT1)}, 8192")
        for k in range(2):
            em(f"s_max_i32 {sr(sT2)}, {sr(sT1)}, {sr(sHEADOFF)}")
            em(f"s_min_i32 {sr(sT2)}, {sr(sT2)}, {sr(sHI)}")
            for j in range(4):
                em(f"s_add_u32 m0, {sr(sT0)}, {L_V + VT * k + 32 * j}")
                if k == 0 and j == 0:
                    em(f"s_add_u32 {sr(sT1)}, {sr(sT1)}, 4096")
                em(f"buffer_load_dwordx4 {vr(vVD)}, {sr(S_V, 4)}, {sr(sT2)} offen offset:{1024 * j}{LD} lds")

    ld(f"buffer_load_dwordx4 {vr(vKD)}, {sr(S_K, 4)}, {sr(sHEADOFF)} offen lds")
    stamp(ld, 5)
    ld(f"s_mov_b32 m0, {L_GV}")
    ld(f"buffer_load_dwordx4 {vr(vVD)}, {sr(S_V, 4)}, {sr(sHEADOFF)} offen lds")
    ld(f"ds_write_b64 {vr(vFLAG)}, {vr(vCNT, 2)}")
    v_halo(ld, True)
    for j in range(1, 4):
        ld(f"v_xor_b32 {vr(vKD + j)}, {64 * j}, {vr(vKD)}")
    ld("s_waitcnt lgkmcnt(0)")
    if opt.get("stbar"):
        stamp(ld, 1)
    ld("s_barrier")
    if opt.get("stbar"):
        stamp(ld, 2)
    ld(f"s_mul_i32 {sr(sX)}, {sr(sDESC)}, {15 * 4096}")
    ld(f"s_mul_i32 {sr(sSTEP)}, {sr(sDESC)}, -8192")
    ld(f"s_add_u32 {sr(sSTEP)}, {sr(sSTEP)}, 4096")
    ld(f"s_mul_i32 {sr(sXV)}, {sr(sDESC)}, {15 * VT}")
    ld(f"s_add_u32 {sr(sXV)}, {sr(sXV)}, {L_V + 2 * VT}")
    ld(f"s_mul_i32 {sr(sSTEPV)}, {sr(sDESC)}, {-2 * VT}")
    ld(f"s_add_u32 {sr(sSTEPV)}, {sr(sSTEPV)}, {VT}")
    def k_tile():
        ld(f"s_add_u32 {sr(sT1)}, {sr(sX)}, {sr(sROW0)}")
        ld(f"s_add_u32 m0, {sr(sX)}, {L_K}")
        ld(f"s_add_u32 {sr(sX)}, {sr(sX)}, {sr(sSTEP)}")
        for j in range(4):
            ld(f"buffer_load_dwordx4 {vr(vKD + j)}, {sr(S_K, 4)}, {sr(sT1)} offen offset:{1024 * j}{LD} lds")

    def v_tile():
        for j in range(4):
            ld(f"s_add_u32 m0, {sr(sXV)}, {32 * j}")
            ld(f"buffer_load_dwordx4 {vr(vVD)}, {sr(S_V, 4)}, {sr(sB)} offen offset:{1024 * j}{LD} lds")
        ld(f"s_add_u32 {sr(sXV)}, {sr(sXV)}, {sr(sSTEPV)}")
        ld(f"s_add_u32 {sr(sB)}, {sr(sB)}, {sr(sSTEP)}")

    ld(f"s_add_u32 {sr(sB)}, {sr(sX)}, {sr(sROW0)}")
    k_tile()
    k_tile()
    other_srds(ld, None)
    stage_read_addrs(ld)
    ld(f"s_mov_b32 {sr(sCNT)}, {2 - D}")
    ld.vm_q = []
    ld.label("L_ldloop")
    ld(f"s_cmp_eq_u32 {sr(sCNT)}, {HP + 1 - D}")
    ld("s_cbranch_scc1 L_ldhalo")
    k_tile()
    v_tile()
    ld.raw("L_ldwait:")
    ld(f"s_add_u32 {sr(sCNT)}, {sr(sCNT)}, 1")
    ld(f"v_mov_b32 {vr(vCNT)}, {sr(sCNT)}")
    ld(f"s_cmp_lt_i32 {sr(sCNT)}, {17 - D}")
    ld(f"s_waitcnt vmcnt({WIN})")
    ld(f"ds_write_b32 {vr(vFLAG)}, {vr(vCNT)}")
    ld("s_cbranch_scc1 L_ldloop")
    ld.vm_q = []
    stamp(ld, 1)
    v_tile()
    v_tile()
    stamp(ld, 2)
    hl = Emitter()
    hl.raw("L_ldhalo:")
    v_halo(hl, False)
    hl("s_branch L_ldwait")
    other_srds_done(ld)
    ld(f"s_mul_i32 {sr(sXV)}, {sr(sDESC)}, {19 * VT}")
    ld(f"s_add_u32 {sr(sXV)}, {sr(sXV)}, {L_V}")
    ld(f"s_mul_i32 {sr(sX)}, {sr(sDESC)}, {15 * 4096}")
    ld(f"s_add_u32 {sr(sQOFF)}, {sr(sX)}, {sr(sROW0)}")
    ld(f"s_add_u32 {sr(sX)}, {sr(sX)}, {L_K}")
    ld(f"s_cmp_eq_u32 {sr(sQOFF)}, {sr(sHEADOFF)}")
    ld(f"s_cselect_b32 {sr(sEX)}, 0xffffff00, -1")
    ld(f"s_mov_b32 {sr(sEX + 1)}, -1")
    ld(f"s_mov_b32 {sr(sREQ)}, 0")
    for k in range(D, -1, -1):
        ld(f"v_mov_b32 {vr(vCNT)}, {18 - k}")
        ld(f"s_waitcnt vmcnt({8 * k})")
        ld(f"ds_write_b32 {vr(vFLAG)}, {vr(vCNT)}")
        if k == 1:
            stamp(ld, 3)
    ld.vm_q = []
    stamp(ld, 4)
    def park_fetch(w):
        u = newid()
        ld(f"s_bitcmp1_b32 {sr(sREQ)}, {8 + w}")
        ld(f"s_cbranch_scc1 L_have{u}")
        keep = (list(ld.ds_q), list(ld.hist))
        ld.raw(f"L_poll{u}:")
        ld(f"ds_read_b32 {vr(vT2)}, {vr(vFLAG)} offset:4")
        ld(f"v_readfirstlane_b32 {sr(sREQ)}, {vr(vT2)}")
        ld(f"s_bitcmp1_b32 {sr(sREQ)}, {8 + w}")
        ld(f"s_cbranch_scc1 L_have{u}")
        if SLEEP:
            ld(f"s_sleep {SLEEP}")
        ld(f"s_branch L_poll{u}")
        ld.raw(f"L_have{u}:")
        ld.ds_q, ld.hist = keep
        ld(f"v_add_u32 v0, {sr(sXV if w < 2 else sX)}, {vr(vSR)}")
        if w < 2:
            ld(f"s_add_u32 {sr(sXV)}, {sr(sXV)}, {sr(sSTEPV)}")
        else:
            ld(f"s_add_u32 {sr(sX)}, {sr(sX)}, {sr(sSTEP)}")
        for k in range(4):
            ld(f"ds_read_b128 {vr(vPOOL + 16 * (w % 2) + 4 * k, 4)}, v0 offset:{1024 * k}")

    park_fetch(0)
    for w in range(8):
        if w < 7:
            park_fetch(w + 1)
        if PST < 32 and 4 * w >= PST:
            ld(f"s_waitcnt vmcnt({PST - 4})")
        if w == GATE and not NOCOMP:
            ld(f"s_mov_b32 {sr(sT2)}, {1 << 25}")
            poll_bits(ld, sr(sT2))
        if w == 0:
            ld(f"s_mov_b64 exec, {sr(sEX, 2)}")
        for k in range(4):
            ld(f"buffer_store_dwordx4 {vr(vPOOL + 16 * (w % 2) + 4 * k, 4)}, {vr(vSO)}, {sr(S_O, 4)}, {sr(sQOFF)} offen offset:{64 * k}{ST}")
        if w == 0:
            ld("s_mov_b64 exec, -1")
        ld(f"s_add_u32 {sr(sQOFF)}, {sr(sQOFF)}, {sr(sSTEP)}")
    dump_stamps(ld, "l")
    ld("s_endpgm")
    ld.lines += hl.lines
    ld.raw("L_notloader:")

    c = e.fork()
    if CPF and CPE is True:
        c(f"s_cmp_le_u32 {sr(sWAVE)}, {NH}")
        c("s_cbranch_scc0 L_nocp")
        code_pf_setup(c)
        code_pf(c)
        c.raw("L_nocp:")
    other_srds(c, None)
    c(f"s_mov_b32 {sr(S_Q + 2)}, {TB}")
    c(f"s_mov_b32 {sr(S_Q + 3)}, 0x20000")
    stage_read_addrs(c)
    c("s_barrier")
    other_srds_done(c)
    c(f"s_mov_b64 {sr(S_K, 2)}, s[6:7]")
    c(f"s_mov_b64 {sr(S_Q, 2)}, s[4:5]")
    c(f"s_mov_b32 {sr(sC)}, {CSCALE:#x}")
    c(f"s_mov_b32 {sr(sC + 1)}, {CSCALE:#x}")
    c(f"s_mov_b32 {sr(sNEG)}, {NEG:#x}")
    c(f"s_cmp_le_u32 {sr(sWAVE)}, {NH}")
    c("s_cbranch_scc1 L_helper")

    def lane_addrs(em):
        em(f"v_xor_b32 {vr(vKA)}, {vr(vN)}, {vr(vG)}")
        em(f"v_lshlrev_b32 {vr(vKA)}, 4, {vr(vKA)}")
        em(f"v_lshl_add_u32 {vr(vKA)}, {vr(vN)}, 8, {vr(vKA)}")
        em(f"v_lshrrev_b32 {vr(vT0)}, 2, {vr(vN)}")
        em(f"v_and_b32 {vr(vT1)}, 3, {vr(vN)}")
        em(f"v_mul_u32_u24 {vr(vGV)}, {256 + 64}, {vr(vT0)}")
        em(f"v_lshl_add_u32 {vr(vGV)}, {vr(vT1)}, 3, {vr(vGV)}")
        em(f"v_mul_u32_u24 {vr(vT2)}, {VP}, {vr(vG)}")
        for s in range(1, 4):
            em(f"v_xor_b32 {vr(vKA + s)}, {64 * s}, {vr(vKA)}")
            em(f"v_xor_b32 {vr(vGV + s)}, {64 * s}, {vr(vGV)}")
        for s in range(4):
            em(f"v_add_u32 {vr(vVA + s)}, {vr(vT2)}, {vr(vGV + s)}")
        for i in range(4):
            em(f"v_mov_b32 {vr(vONE + i)}, 0x3f803f80")

    def tile_addrs(em, skoff, svoff):
        for s in range(4):
            em(f"v_add_u32 {vr(vKA + s)}, {skoff}, {vr(vKA + s)}")
            em(f"v_add_u32 {vr(vVA + s)}, {svoff}, {vr(vVA + s)}")

    def allreduce_ops(op, x, y):
        return [f"v_mov_b32 {vr(y)}, {vr(x)}", f"v_permlane32_swap_b32 {vr(x)}, {vr(y)}", f"{op} {vr(x)}, {vr(x)}, {vr(y)}",
                f"v_mov_b32 {vr(y)}, {vr(x)}", f"v_permlane16_swap_b32 {vr(x)}, {vr(y)}", f"{op} {vr(x)}, {vr(x)}, {vr(y)}"]

    def max_tree(vals, dst):
        vals = list(vals)
        ops = [f"v_max3_f32 {vr(dst)}, {vr(vals[0])}, {vr(vals[1])}, {vr(vals[2])}"]
        i = 3
        while i + 1 < len(vals):
            ops.append(f"v_max3_f32 {vr(dst)}, {vr(dst)}, {vr(vals[i])}, {vr(vals[i + 1])}")
            i += 2
        if i < len(vals):
            ops.append(f"v_max_f32 {vr(dst)}, {vr(dst)}, {vr(vals[i])}")
        return ops

    def mfma(d, a, b, cc):
        return f"v_mfma_f32_16x16x32_bf16 {vr(d, 4)}, {vr(a, 4)}, {vr(b, 4)}, {'0' if cc is None else vr(cc, 4)}"

    m = c.fork()
    KQ = [vOX + 4 * i for i in range(6)] + [vPOOL + 4 * i for i in range(18)]
    OACC = [vOX + 4 * i for i in range(5)] + [vS + 12, vS + 16, vS + 20]
    vL = vOX + 20

    def q_load(em, sb):
        if UMASK:
            return
        em(f"s_lshl_b32 {sr(sT1)}, {sb}, 12")
        em(f"s_add_u32 {sr(sT1)}, {sr(sT1)}, {sr(sROW0)}")
        for s in range(4):
            em(f"buffer_load_dwordx4 {vr(vQR + 4 * s, 4)}, {vr(1 if QDIR else vSO)}, {sr(S_Q, 4)}, {sr(sT1)} offen offset:{64 * s}{QLD}")
        em.vm_q = []

    def k_halo(em, sb):
        if UMASK:
            return
        u = newid()
        em(f"s_sub_u32 {sr(sT0)}, {sb}, 2")
        em(f"s_cmp_lt_u32 {sr(sT0)}, 12")
        em.flush()
        em(f"s_cbranch_scc1 L_kh{u}")
        for t in (0, 1, 3, 4):
            em(f"s_add_u32 {sr(sT0)}, {sb}, {t - 2}")
            em(f"s_cmp_lt_u32 {sr(sT0)}, 16")
            em(f"s_cbranch_scc1 L_kh{u}_{t}")
            em(f"s_lshl_b32 {sr(sT0)}, {sr(sT0)}, 12")
            em(f"s_add_u32 {sr(sT0)}, {sr(sT0)}, {sr(sROW0)}")
            em(f"s_max_i32 {sr(sT0)}, {sr(sT0)}, {sr(sHEADOFF)}")
            em(f"s_min_i32 {sr(sT0)}, {sr(sT0)}, {sr(sHI)}")
            for s in range(4):
                em(f"buffer_load_dwordx4 {vr(KQ[4 + 4 * t + s], 4)}, {vr(vSO)}, {sr(S_K, 4)}, {sr(sT0)} offen offset:{64 * s}")
            em.raw(f"L_kh{u}_{t}:")
        em.raw(f"L_kh{u}:")
        em.vm_q = []

    m(f"s_sub_u32 {sr(sW)}, {sr(sWAVE)}, {1 + NH}")
    if WX:
        m(f"s_xor_b32 {sr(sW)}, {sr(sW)}, {WX}")
    m(f"s_mul_i32 {sr(sT2)}, {sr(sDESC)}, 15")
    m(f"s_xor_b32 {sr(sB)}, {sr(sW)}, {sr(sT2)}")
    if QDIR:
        m(f"v_lshlrev_b32 v1, 4, {vr(vG)}")
        m(f"v_lshl_add_u32 v1, {vr(vN)}, 8, v1")
    m(f"s_cmp_gt_u32 {sr(sW)}, {max(1, QLEAD)}")
    m("s_cbranch_scc1 L_qa_later")
    k_halo(m, sr(sB))
    m(f"s_cmp_gt_u32 {sr(sW)}, {QLEAD}")
    m("s_cbranch_scc1 L_qa_later")
    q_load(m, sr(sB))
    m.raw("L_qa_later:")
    if PRIOW < 8:
        m(f"s_cmp_lt_u32 {sr(sW)}, {PRIOW}")
        m("s_cbranch_scc1 L_noprio")
        m(f"s_setprio {PRIOV}")
        m.raw("L_noprio:")
    lane_addrs(m)
    m(f"v_xor_b32 {vr(vGK)}, {vr(vT1)}, {vr(vG)}")
    m(f"v_lshlrev_b32 {vr(vGK)}, 4, {vr(vGK)}")
    m(f"v_lshl_add_u32 {vr(vGK)}, {vr(vT1)}, 8, {vr(vGK)}")
    m(f"v_add_u32 {vr(vGK)}, {L_GK}, {vr(vGK)}")
    for u in range(4):
        m(f"v_add_u32 {vr(vGV + u)}, {L_GV}, {vr(vGV + u)}")
    m(f"s_lshl_b32 {sr(sREQ)}, {sr(sW)}, 10")
    m(f"v_bfe_u32 {vr(vT0)}, {vr(vN)}, 1, 2")
    m(f"v_lshlrev_b32 {vr(vT2)}, 6, {vr(vN)}")
    m(f"v_add_u32 {vr(vT2)}, {sr(sREQ)}, {vr(vT2)}")
    m(f"v_xor_b32 {vr(vSW)}, {vr(vT0)}, {vr(vG)}")
    m(f"v_lshl_add_u32 {vr(vSW)}, {vr(vSW)}, 4, {vr(vT2)}")
    m(f"v_lshrrev_b32 {vr(vSW1)}, 1, {vr(vG)}")
    m(f"v_xor_b32 {vr(vSW0)}, {vr(vT0)}, {vr(vSW1)}")
    m(f"v_lshl_add_u32 {vr(vSW0)}, {vr(vSW0)}, 4, {vr(vT2)}")
    m(f"v_and_b32 {vr(vSW1)}, 1, {vr(vG)}")
    m(f"v_lshl_add_u32 {vr(vSW0)}, {vr(vSW1)}, 3, {vr(vSW0)}")
    m(f"v_xor_b32 {vr(vSW1)}, 32, {vr(vSW0)}")
    m(f"v_add_u32 {vr(vSR)}, {sr(sREQ)}, {vr(vSR)}")
    m(f"v_sub_u32 {vr(vT0)}, {vr(vG4)}, {vr(vN)}")
    for r in range(4):
        m(f"v_cmp_le_i32 {sr(sMASK + 2 * r, 2)}, {-r}, {vr(vT0)}")
        m(f"v_cmp_ge_i32 {sr(sMASK + 8 + 2 * r, 2)}, {-r}, {vr(vT0)}")
    m(f"v_cmp_eq_u32 {sr(sMASK + 16, 2)}, 0, {vr(vG4)}")
    park_addr(m, sr(sW), sr(sPARK))
    m(f"s_sub_u32 {sr(sPARK)}, {sr(sPARK)}, {sr(sREQ)}")
    m(f"s_lshl_b32 {sr(sREQ)}, 15, {sr(sW)}")
    m(f"s_lshr_b32 {sr(sREQ)}, {sr(sREQ)}, 4")
    m(f"s_lshr_b32 {sr(sT1)}, {sr(sW)}, 1")
    m(f"s_lshl_b32 {sr(sT1)}, 0x8000, {sr(sT1)}")
    m(f"s_or_b32 {sr(sREQ)}, {sr(sREQ)}, {sr(sT1)}")
    m(f"s_lshl_b32 {sr(sT1)}, {sr(sW)}, 8")
    m(f"s_cmp_lt_u32 {sr(sW)}, 2")
    m(f"s_cselect_b32 {sr(sREQ)}, {sr(sT1)}, {sr(sREQ)}")
    m(f"s_mov_b32 {sr(sIT)}, 0")
    m(f"v_mov_b32 {vr(vC)}, {sr(sC)}")
    if UMASK:
        m(f"s_mov_b32 {sr(sIT)}, 1")
        m(f"s_mov_b32 {sr(sB)}, 5")
        m(f"s_mov_b32 {sr(sCNT)}, 20")
        m(f"s_lshr_b32 {sr(sT0)}, {UMASK}, {sr(sW)}")
        m(f"s_and_b32 {sr(sT0)}, {sr(sT0)}, 1")
        m("s_cbranch_scc0 L_end")
        for i in range(16):
            m(f"v_mov_b32 {vr(vQR + i)}, 0")
        m("s_memtime s[76:77]")
        m(f"s_memrealtime {sr(sTS, 2)}")
        m("s_waitcnt lgkmcnt(0)")
    m(f"s_add_u32 {sr(sNEED)}, {sr(sW)}, 3")
    m(f"s_add_u32 {sr(sNEEDV)}, {sr(sW)}, 5")
    m(f"s_add_u32 {sr(sX)}, {sr(sW)}, {ROT}")
    m(f"s_and_b32 {sr(sX)}, {sr(sX)}, 7")
    m(f"s_add_u32 {sr(sX)}, {sr(sX)}, 8")
    m(f"s_mul_i32 {sr(sT2)}, {sr(sDESC)}, 15")
    m(f"s_xor_b32 {sr(sB2)}, {sr(sX)}, {sr(sT2)}")
    m(f"s_lshl_b32 {sr(sSTEP)}, {sr(sB)}, 12")
    m(f"s_add_u32 {sr(sSTEP)}, {sr(sSTEP)}, {L_K - 8192}")
    m(f"s_mul_i32 {sr(sSTEPV)}, {sr(sB)}, {VT}")
    m(f"s_add_u32 {sr(sSTEPV)}, {sr(sSTEPV)}, {L_V}")
    m(f"s_cmp_gt_u32 {sr(sW)}, {QLEAD}")
    m("s_cbranch_scc0 L_block")
    m(f"s_sub_u32 {sr(sT2)}, {sr(sW)}, {QLEAD}")
    poll(m, sr(sT2))
    q_load(m, sr(sB))
    m.label("L_block")
    ool = []

    def poll_fast(em, need, reg, read=True):
        u = newid()
        if read:
            em(f"ds_read_b32 {vr(reg)}, {vr(vFLAG)}")
        em(f"v_readfirstlane_b32 {sr(sT0)}, {vr(reg)}")
        em(f"s_cmp_ge_i32 {sr(sT0)}, {need}")
        em(f"s_cbranch_scc0 L_wait{u}")
        em.raw(f"L_back{u}:")
        o = Emitter()
        o.raw(f"L_wait{u}:")
        if SLEEP:
            o(f"s_sleep {SLEEP}")
        o(f"ds_read_b32 {vr(reg)}, {vr(vFLAG)}")
        o(f"v_readfirstlane_b32 {sr(sT0)}, {vr(reg)}")
        o(f"s_cmp_ge_i32 {sr(sT0)}, {need}")
        o(f"s_cbranch_scc0 L_wait{u}")
        o(f"s_branch L_back{u}")
        ool.append(o)

    m(f"ds_read_b32 {vr(vT2)}, {vr(vFLAG)}")
    m(f"s_lshl_b32 {sr(sT0)}, {sr(sB)}, 12")
    m(f"s_add_u32 {sr(sQOFF)}, {sr(sT0)}, {sr(sROW0)}")
    m(f"v_mov_b32 {vr(vT0)}, {sr(sNEG)}")
    tile_addrs(m, sr(sSTEP), sr(sSTEPV))
    m(f"s_lshl_b32 {sr(sQ0)}, {sr(sCHUNK)}, 8")
    m(f"s_lshl_b32 {sr(sT0)}, {sr(sB)}, 4")
    m(f"s_add_u32 {sr(sQ0)}, {sr(sQ0)}, {sr(sT0)}")
    m(f"s_sub_u32 {sr(sQ0)}, {sr(sQ0)}, 34")
    for r in range(4):
        m(f"v_cndmask_b32_e64 {vr(vS + r)}, {vr(vT0)}, 0, {sr(sMASK + 2 * r, 2)}")
        m(f"v_cndmask_b32_e64 {vr(vS + 16 + r)}, {vr(vT0)}, 0, {sr(sMASK + 8 + 2 * r, 2)}")
    m(f"v_cndmask_b32_e64 {vr(vS + 20)}, {vr(vT0)}, 0, {sr(sMASK + 16, 2)}")
    m(f"v_cndmask_b32_e64 {vr(vS + 21)}, {vr(vT0)}, 0, {sr(sMASK + 16, 2)}")
    for s_ in range(1, 4):
        m(f"v_xor_b32 {vr(KQ[s_])}, {64 * s_}, {vr(vGK)}")
    poll_fast(m, sr(sNEED), vT2, read=False)
    stamp_it(m, 1)

    def relayout(em, q):
        em(f"ds_write_b128 {vr(vSR)}, {vr(q, 4)}")
        em(f"ds_read_b128 {vr(q, 4)}, {vr(vSW)}")

    def k_read(em, t):
        for s_ in range(4):
            em(f"ds_read_b128 {vr(KQ[4 + 4 * t + s_], 4)}, {vr(vKA + s_)} offset:{4096 * t}")

    def v_read(T, k):
        u, p = T // 2, T % 2
        q = vPOOL + 12 * (T % 6) + 4 * k
        r = [f"ds_read_b64_tr_b16 {vr(q + 2 * j, 2)}, {vr(vVA + u)} offset:{VT * (2 * k + j) + 32 * p}" for j in range(2)]
        if k == 2:
            r[1] = f"ds_read_b64_tr_b16 {vr(q + 2, 2)}, {vr(vGV + u)} offset:{32 * p}"
        return r

    m(f"s_sub_u32 {sr(sT0)}, {sr(sB)}, 2")
    m(f"s_cmp_lt_u32 {sr(sT0)}, 12")
    for s_ in range(4):
        m(f"ds_read_b128 {vr(KQ[s_], 4)}, {vr(KQ[s_]) if s_ else vr(vGK)}")
    k_read(m, 2)
    m("s_cbranch_scc0 L_halo")
    for t in (0, 1, 3, 4):
        k_read(m, t)
    m.raw("L_kdone:")
    o = Emitter()
    o.raw("L_halo:")
    o("s_waitcnt vmcnt(4)")
    for t in (0, 1, 3, 4):
        o(f"s_add_u32 {sr(sT0)}, {sr(sB)}, {t - 2}")
        o(f"s_cmp_lt_u32 {sr(sT0)}, 16")
        o(f"s_cbranch_scc0 L_rl{t}")
        k_read(o, t)
        o(f"s_branch L_rd{t}")
        o.raw(f"L_rl{t}:")
        o.ds_q = []
        for s_ in range(4):
            relayout(o, KQ[4 + 4 * t + s_])
        o.raw(f"L_rd{t}:")
    o("s_branch L_kdone")
    ool.append(o)
    m("s_waitcnt vmcnt(0)")
    stamp_it(m, 2)
    if QDIR:
        m(f"ds_read_b32 {vr(vT3)}, {vr(vFLAG)}")
        m.wait_lgkm_all()
    else:
        for s_ in range(4):
            relayout(m, vQR + 4 * s_)
        m(f"ds_read_b32 {vr(vT3)}, {vr(vFLAG)}")
    m(f"s_cmp_lt_u32 {sr(sQ0)}, {2001 - 34}")
    for s_ in range(4):
        m(mfma(vS + 20, KQ[s_], vQR + 4 * s_, vS + 20))

    def s_tile(t):
        return [mfma(vS + 4 * t, KQ[4 + 4 * t + s_], vQR + 4 * s_, None if (s_ == 0 and t in (1, 2, 3)) else vS + 4 * t) for s_ in range(4)]

    VR = [op for T in range(6) for k in range(3) for op in v_read(T, k)]
    mx = max_tree([vS + 20, vS + 21] + [vS + i for i in range(20)], vT0)
    m("s_cbranch_scc0 L_edge")
    ed = m.fork()
    t01 = s_tile(0) + s_tile(1)
    for op in t01[:6]:
        m(op)
    poll_fast(m, sr(sNEEDV), vT3, read=False)
    for op in t01[6:] + merge(s_tile(2) + s_tile(3) + s_tile(4), VR[:24]) + VR[24:] + mx:
        m(op)
    m.raw("L_join:")
    ed.raw("L_edge:")
    for t in range(5):
        for op in s_tile(t):
            ed(op)
    ed(f"v_add_u32 {vr(vT1)}, {sr(sQ0)}, {vr(vG4)}")
    ed(f"s_movk_i32 {sr(sT1)}, 2046")
    for t in range(5):
        for r in range(4):
            ed(f"v_add_u32 v0, {16 * t + r}, {vr(vT1)}")
            ed(f"v_cmp_gt_u32 vcc, {sr(sT1)}, v0")
            ed(f"v_cndmask_b32 {vr(vS + 4 * t + r)}, {vr(vT0)}, {vr(vS + 4 * t + r)}, vcc")
    poll_fast(ed, sr(sNEEDV), vT3, read=False)
    for op in VR + mx:
        ed(op)
    ed.flush()
    ed("s_branch L_join")
    ool.append(ed)
    ar = allreduce_ops("v_max_f32", vT0, vT1)
    m(ar[0])
    m(f"s_cmp_eq_u32 {sr(sIT)}, 0")
    m("s_cbranch_scc1 L_first")
    m.raw("L_second:")
    o = Emitter()
    o.raw("L_first:")
    set_bit(o, sr(sW))
    o(f"s_cmp_ge_u32 {sr(sW)}, {EW}")
    o("s_cbranch_scc0 L_second")
    q_load(o, sr(sB2))
    o("s_branch L_second")
    ool.append(o)
    stamp_it(m, 3)

    W = vPOOL + 40
    R = vPOOL + 24

    def p_ops(lo, hi):
        fm = [f"v_fma_f32 {vr(vS + i)}, {vr(vS + i)}, {vr(vC)}, -{vr(vT0)}" for i in range(lo, hi)]
        ex = [f"v_exp_f32 {vr(vS + i)}, {vr(vS + i)}" for i in range(lo, hi)]
        cv = [f"v_cvt_pk_bf16_f32 {vr(vS + i)}, {vr(vS + 2 * i)}, {vr(vS + 2 * i + 1)}" for i in range(lo // 2, hi // 2)]
        seq = fm[:2]
        for j, x in enumerate(ex):
            seq.append(x)
            if j + 2 < len(fm):
                seq.append(fm[j + 2])
            if j >= 2 and j % 2 == 0:
                seq.append(cv[(j - 2) // 2])
        return seq, cv[-1]

    def pv(T, k):
        return mfma(OACC[T], vPOOL + 12 * (T % 6) + 4 * k, vS + 4 * k, None if k == 0 else OACC[T])

    def lsum(k):
        return mfma(vL, vONE, vS + 4 * k, None if k == 0 else vL)

    def fin(T, park):
        u, p = T // 2, T % 2
        o_ = OACC[T]
        w = W + 4 * u + 2 * p
        ops = [f"v_mul_f32 {vr(o_ + r)}, {vr(o_ + r)}, {vr(vT0)}" for r in range(4)]
        ops += [f"v_cvt_pk_bf16_f32 {vr(w)}, {vr(o_)}, {vr(o_ + 1)}", f"v_cvt_pk_bf16_f32 {vr(w + 1)}, {vr(o_ + 2)}, {vr(o_ + 3)}"]
        if park:
            ops.append(f"ds_write_b64 {vr(vT3 if p else 0)}, {vr(w, 2)} offset:{1024 * u}")
        else:
            ops.append(f"ds_write_b64 {vr(vSW1 if p else vSW0)}, {vr(w, 2)}")
            if p:
                ops.append(f"ds_read_b128 {vr(R + 4 * u, 4)}, {vr(vSR)}")
        return ops

    for op in ar[1:]:
        m(op)
    m(f"v_mul_f32 {vr(vT0)}, {vr(vC)}, {vr(vT0)}")
    pa, ca = p_ops(0, 8)
    pb, cb = p_ops(8, 16)
    pc, cc = p_ops(16, 22)
    for op in pa + pb[:2] + [ca]:
        m(op)
    for op in merge(pb[2:] + pc[:2] + [cb], [None, lsum(0)] + [pv(T, 0) for T in range(5)]):
        if op:
            m(op)
    for op in merge(pc[2:] + [f"v_mov_b32 {vr(vS + 11)}, 0", cc], [pv(5, 0), lsum(1)] + [pv(T, 1) for T in range(6)]):
        m(op)
    stamp_it(m, 4)

    def tail(em, park):
        if park:
            em(f"v_add_u32 v0, {sr(sPARK)}, {vr(vSW0)}")
            em(f"v_add_u32 {vr(vT3)}, {sr(sPARK)}, {vr(vSW1)}")
            em(f"ds_read_b32 {vr(vT2)}, {vr(vFLAG)} offset:4")
        rd = [op for T in (6, 7) for k in range(3) for op in v_read(T, k)]
        for op in [lsum(2), pv(0, 2)] + merge([pv(T, 2) for T in range(1, 6)], [None] + rd[:9]) + rd[9:]:
            if op:
                em(op)
        em(f"v_rcp_f32 {vr(vT0)}, {vr(vL)}")
        if park:
            poll_bits(em, sr(sREQ), True)
        F = [fin(T, park) for T in range(8)]
        valu = lambda Ts: [op for T in Ts for op in F[T] if not op.startswith("ds_")]
        ds = lambda Ts: [op for T in Ts for op in F[T] if op.startswith("ds_")]
        for op in merge(valu(range(4)), [pv(6, k) for k in range(3)] + [pv(7, k) for k in range(3)]) + ds(range(4)) + valu(range(4, 8)) + ds(range(4, 8)):
            em(op)

    m(f"s_cmp_eq_u32 {sr(sIT)}, 0")
    m("s_cbranch_scc1 L_park")
    a2 = m.fork()
    tail(m, False)
    if STAMP and "B6" in PTS:
        m.wait_lgkm_all()
        stamp_it(m, 6, 1)
    if UMASK:
        m.wait_lgkm_all()
        m(f"s_mov_b32 {sr(sSTEP)}, 0")
        m(f"s_mov_b32 {sr(sSTEPV)}, 0")
        m(f"s_sub_u32 {sr(sCNT)}, {sr(sCNT)}, 1")
        m(f"s_cmp_lg_u32 {sr(sCNT)}, 0")
        m.flush()
        m("s_cbranch_scc1 L_block")
    for u in range(0 if UMASK else 4):
        m(f"buffer_store_dwordx4 {vr(R + 4 * u, 4)}, {vr(vSO)}, {sr(S_O, 4)}, {sr(sQOFF)} offen offset:{64 * u}{STB}")
    dump_stamps(m, "m")
    m("s_endpgm")
    a2.raw("L_park:")
    tail(a2, True)
    a2(f"s_add_u32 {sr(sT1)}, {sr(sW)}, 8")
    a2.wait_lgkm_all()
    set_bit(a2, sr(sT1))
    stamp_it(a2, 6, 0)
    a2(f"s_sub_u32 {sr(sT1)}, {sr(sB2)}, {sr(sB)}")
    a2(f"s_lshl_b32 {sr(sSTEP)}, {sr(sT1)}, 12")
    a2(f"s_mul_i32 {sr(sSTEPV)}, {sr(sT1)}, {VT}")
    a2(f"s_mov_b32 {sr(sB)}, {sr(sB2)}")
    k_halo(a2, sr(sB))
    a2(f"s_add_u32 {sr(sNEED)}, {sr(sX)}, 2")
    a2(f"s_min_u32 {sr(sNEED)}, {sr(sNEED)}, 15")
    a2(f"s_cmp_gt_u32 {sr(sNEED)}, {HP}")
    a2(f"s_addc_u32 {sr(sNEED)}, {sr(sNEED)}, 1")
    a2(f"s_add_u32 {sr(sNEEDV)}, {sr(sX)}, 4")
    a2(f"s_min_u32 {sr(sNEEDV)}, {sr(sNEEDV)}, 16")
    a2(f"s_cmp_gt_u32 {sr(sNEEDV)}, {HP}")
    a2(f"s_addc_u32 {sr(sNEEDV)}, {sr(sNEEDV)}, 1")
    a2(f"s_mov_b32 {sr(sIT)}, 1")
    a2(f"s_cmp_ge_u32 {sr(sW)}, {EW}")
    a2.flush()
    a2("s_cbranch_scc1 L_block")
    a2(f"s_sub_u32 {sr(sT2)}, {sr(sNEED)}, {D + QL2}")
    a2(f"s_max_u32 {sr(sT2)}, {sr(sT2)}, {THRMIN}")
    poll(a2, sr(sT2))
    q_load(a2, sr(sB))
    a2("s_branch L_block")

    h = c.fork()
    h.raw("L_helper:")
    if UMASK:
        h("s_endpgm")
    hS, hO, hK, hV, vM, vA = 44, 56, 92, 124, 156, 1
    hL = hO + 32
    if PRIOH:
        h(f"s_setprio {PRIOH}")
    if CPF and not CPE:
        code_pf_setup(h)
        code_pf(h)
    h(f"v_lshlrev_b32 {vr(vA)}, 4, {vr(vG)}")
    h(f"v_lshl_add_u32 v0, {vr(vN)}, 8, {vr(vA)}")
    for i in range(16):
        h(f"v_mov_b32 {vr(vQR + i)}, 0")
    h("s_mov_b32 exec_lo, 0x00030003")
    h("s_mov_b32 exec_hi, 0x00030003")
    for s in range(4):
        h(f"buffer_load_dwordx4 {vr(vQR + 4 * s, 4)}, v0, {sr(S_Q, 4)}, {sr(sHEADOFF)} offen offset:{64 * s}")
    h("s_mov_b64 exec, -1")
    lane_addrs(h)
    h(f"s_mul_i32 {sr(sPARK)}, {sr(sWAVE)}, 1056")
    h(f"s_add_u32 {sr(sPARK)}, {sr(sPARK)}, {L_MRG - 1056}")
    h(f"v_lshl_add_u32 {vr(vA)}, {vr(vN)}, 9, {vr(vA)}")
    h(f"v_add_u32 {vr(vA)}, {sr(sPARK)}, {vr(vA)}")
    h(f"v_lshlrev_b32 {vr(vSR)}, 3, {vr(vN)}")
    h(f"v_add_u32 {vr(vSR)}, {sr(sPARK)}, {vr(vSR)}")
    h(f"v_lshl_add_u32 {vr(vSO)}, {vr(vG)}, 4, {vr(vN)}")
    h(f"v_lshrrev_b32 {vr(vSW)}, 5, {vr(vSO)}")
    h(f"v_lshlrev_b32 {vr(vSW)}, 3, {vr(vSW)}")
    h(f"v_lshlrev_b32 {vr(vSW0)}, 4, {vr(vSO)}")
    h(f"v_and_b32 {vr(vSW1)}, 7, {vr(vSO)}")
    h(f"v_lshlrev_b32 {vr(vT0)}, 3, {vr(vSW)}")
    h(f"v_lshl_add_u32 {vr(vGK)}, {vr(vSW1)}, 3, {vr(vT0)}")
    h(f"v_lshl_add_u32 {vr(vSW1)}, {vr(vSW1)}, 11, {vr(vT0)}")
    h(f"v_lshlrev_b32 {vr(vSO)}, 3, {vr(vSO)}")
    for i in range(36):
        h(f"v_mov_b32 {vr(hO + i)}, 0")
    h(f"v_mov_b32 {vr(vM)}, {sr(sNEG)}")
    h(f"s_sub_u32 {sr(sW)}, {sr(sWAVE)}, 1")
    h(f"s_lshl_b32 {sr(sT0)}, {sr(sW)}, 1")
    h(f"s_add_u32 {sr(sNEED)}, {sr(sT0)}, 2")
    h(f"s_sub_u32 {sr(sT1)}, 14, {sr(sT0)}")
    h(f"s_cmp_eq_u32 {sr(sDESC)}, 0")
    h(f"s_cselect_b32 {sr(sT0)}, {sr(sT0)}, {sr(sT1)}")
    h(f"s_cselect_b32 {sr(sSTEPV)}, 1, -1")
    h(f"s_mul_i32 {sr(sSTEP)}, {sr(sSTEPV)}, {2 * NH * 4096}")
    h(f"s_mul_i32 {sr(sSTEPV)}, {sr(sSTEPV)}, {2 * NH * VT}")
    h(f"s_lshl_b32 {sr(sT1)}, {sr(sT0)}, 12")
    h(f"s_add_u32 {sr(sT1)}, {sr(sT1)}, {L_K}")
    h(f"s_mul_i32 {sr(sT2)}, {sr(sT0)}, {VT}")
    h(f"s_add_u32 {sr(sT2)}, {sr(sT2)}, {L_V + 2 * VT}")
    tile_addrs(h, sr(sT1), sr(sT2))
    h(f"s_lshl_b32 {sr(sREC)}, {sr(sHEAD)}, 3")
    h(f"s_add_u32 {sr(sREC)}, {sr(sREC)}, {sr(sCHUNK)}")
    h(f"s_lshl_b32 {sr(sREC)}, {sr(sREC)}, 11")
    assert DUAL == "none"
    h(f"s_mov_b32 {sr(sX)}, 1")
    if opt.get("tlbw"):
        h(f"s_lshl_b32 {sr(sT0)}, {sr(sHEAD)}, 14")
        h(f"buffer_load_dword v162, {vr(vSW1)}, {sr(S_WS, 4)}, {sr(sT0)} offen offset:1536")
        h(f"s_add_u32 {sr(sT0)}, {sr(sT0)}, {1 << 20}")
        h(f"buffer_load_dword v163, {vr(vSW1)}, {sr(S_WS, 4)}, {sr(sT0)} offen offset:1536")
    h.wait_vm_all()
    h.label("L_hloop")
    h(f"s_cmp_gt_u32 {sr(sNEED)}, {HP + 1}")
    h(f"s_addc_u32 {sr(sT2)}, {sr(sNEED)}, 0")
    poll(h, sr(sT2))
    h(f"s_lshr_b32 {sr(sT1)}, {sr(sNEED)}, 1")
    h(f"s_add_u32 {sr(sT1)}, {sr(sT1)}, 15")
    h(f"s_add_u32 {sr(sNEEDV)}, {sr(sNEED)}, 1")
    h(f"s_min_u32 {sr(sNEEDV)}, {sr(sNEEDV)}, 16")
    h(f"s_cmp_gt_u32 {sr(sNEEDV)}, {HP}")
    h(f"s_addc_u32 {sr(sNEEDV)}, {sr(sNEEDV)}, 1")
    if not NOCOMP:
        for i in range(8):
            h(f"ds_read_b128 {vr(hK + 4 * i, 4)}, {vr(vKA + i % 4)} offset:{4096 * (i // 4)}")
        hvr = [f"ds_read_b64_tr_b16 {vr(hV + 4 * T + 2 * j, 2)}, {vr(vVA + T // 2)} offset:{VT * j + 32 * (T % 2)}" for T in range(8) for j in range(2)]
        for i in range(8):
            t, s = i // 4, i % 4
            h(mfma(hS + 4 * t, hK + 4 * i, vQR + 4 * s, None if s == 0 else hS + 4 * t))
    set_bit(h, sr(sT1))
    if CPL:
        code_pf(h)
    if not NOCOMP:
        for op in max_tree([hS + i for i in range(8)], vT0) + allreduce_ops("v_max_f32", vT0, vT1):
            h(op)
        h(f"v_mul_f32 {vr(vT0)}, {sr(sC)}, {vr(vT0)}")
        h(f"v_max_f32 {vr(vT0)}, {vr(vT0)}, {vr(vM)}")
        h(f"v_sub_f32 {vr(vT1)}, {vr(vM)}, {vr(vT0)}")
        h(f"v_exp_f32 {vr(vT1)}, {vr(vT1)}")
        h(f"v_mov_b32 {vr(vM)}, {vr(vT0)}")
        for i in range(8):
            h(f"v_fma_f32 {vr(hS + i)}, {vr(hS + i)}, {sr(sC)}, -{vr(vT0)}")
        for i in range(8):
            h(f"v_exp_f32 {vr(hS + i)}, {vr(hS + i)}")
        for i in range(33):
            h(f"v_mul_f32 {vr(hO + i)}, {vr(hO + i)}, {vr(vT1)}")
        for k in range(4):
            h(f"v_cvt_pk_bf16_f32 {vr(hS + k)}, {vr(hS + 2 * k)}, {vr(hS + 2 * k + 1)}")
        h(mfma(hL, vONE, hS, hL))
    poll(h, sr(sNEEDV))
    if not NOCOMP:
        for op in hvr:
            h(op)
    tile_addrs(h, sr(sSTEP), sr(sSTEPV))
    if not NOCOMP:
        for T in range(8):
            h(mfma(hO + 4 * T, hV + 4 * T, hS, hO + 4 * T))
    h(f"s_add_u32 {sr(sNEED)}, {sr(sNEED)}, {2 * NH}")
    h(f"s_cmp_le_u32 {sr(sNEED)}, 16")
    h.flush()
    h("s_cbranch_scc1 L_hloop")
    stamp(h, 1)
    if not NOCOMP:
        h(f"v_mov_b32 {vr(vM + 1)}, {vr(hL)}")
        h("s_mov_b32 exec_lo, 0x00030003")
        h("s_mov_b32 exec_hi, 0x00030003")
        for T in range(8):
            h(f"ds_write_b128 {vr(vA)}, {vr(hO + 4 * T, 4)} offset:{64 * T}")
        h("s_mov_b64 exec, 3")
        h(f"ds_write_b64 {vr(vSR)}, {vr(vM, 2)} offset:1024")
        h("s_mov_b64 exec, -1")
        h(f"s_cmp_lg_u32 {sr(sW)}, 0")
        h("s_cbranch_scc1 L_hmerge")
        h0 = h.fork()
        keepq = list(h.ds_q)
        h.wait_lgkm_all()
        set_bit(h, 24)
        h("s_branch L_hdone")
        h.raw("L_hmerge:")
        h.ds_q = keepq
        h(f"s_mov_b32 {sr(sT2)}, {1 << 24}")
        poll_bits(h, sr(sT2))
        cA, cB, cM = 56, 60, 64
        h(f"ds_read_b64 {vr(cM, 2)}, {vr(vSW)} offset:{L_MRG + 1024}")
        h(f"ds_read_b64 {vr(cM + 2, 2)}, {vr(vSW)} offset:{L_MRG + 1056 + 1024}")
        h(f"ds_read_b128 {vr(cA, 4)}, {vr(vSW0)} offset:{L_MRG}")
        h(f"ds_read_b128 {vr(cB, 4)}, {vr(vSW0)} offset:{L_MRG + 1056}")
        h(f"s_lshl_b32 {sr(sT0)}, {sr(sHEAD)}, 2")
        h(f"v_mov_b32 v0, {sr(sX)}")
        h(f"v_max_f32 {vr(vM)}, {vr(cM)}, {vr(cM + 2)}")
        h(f"v_sub_f32 {vr(cM)}, {vr(cM)}, {vr(vM)}")
        h(f"v_sub_f32 {vr(cM + 2)}, {vr(cM + 2)}, {vr(vM)}")
        h(f"v_exp_f32 {vr(cM)}, {vr(cM)}")
        h(f"v_exp_f32 {vr(cM + 2)}, {vr(cM + 2)}")
        for r in range(4):
            h(f"v_mul_f32 {vr(cA + r)}, {vr(cA + r)}, {vr(cM)}")
        h(f"v_mul_f32 {vr(vM + 1)}, {vr(cM + 1)}, {vr(cM)}")
        for r in range(4):
            h(f"v_fmac_f32 {vr(cA + r)}, {vr(cB + r)}, {vr(cM + 2)}")
        h(f"v_fmac_f32 {vr(vM + 1)}, {vr(cM + 3)}, {vr(cM + 2)}")
        h(f"buffer_store_dwordx4 {vr(cA, 4)}, {vr(vSW0)}, {sr(S_WS, 4)}, {sr(sREC)} offen sc1")
        if DUAL != "none":
            h(f"buffer_store_dwordx4 {vr(cA, 4)}, {vr(vSW0)}, {sr(S_WS, 4)}, {sr(sREQ)} offen")
        h("s_mov_b32 exec_lo, 0xff")
        h("s_mov_b32 exec_hi, 0xff")
        h(f"buffer_store_dwordx2 {vr(vM, 2)}, {vr(vGK)}, {sr(S_WS, 4)}, {sr(sREC)} offen offset:1024 sc1")
        if DUAL != "none":
            h(f"buffer_store_dwordx2 {vr(vM, 2)}, {vr(vGK)}, {sr(S_WS, 4)}, {sr(sREQ)} offen offset:1024")
        h("s_mov_b64 exec, 1")
        h(f"v_mov_b32 {vr(vT2)}, {1 << 25}")
        if GATE >= 0 and GATEP:
            h(f"ds_or_b32 {vr(vFLAG)}, {vr(vT2)} offset:4")
        h.wait_vm_all()
        stamp(h, 2)
        h(f"buffer_atomic_add v0, off, {sr(S_DBG, 4)}, {sr(sT0)} sc0")
        if GATE >= 0 and not GATEP:
            h(f"ds_or_b32 {vr(vFLAG)}, {vr(vT2)} offset:4")
        h(f"v_readfirstlane_b32 {sr(sT1)}, v0")
        h("s_mov_b64 exec, -1")
        stamp(h, 3)
        h(f"s_and_b32 {sr(sT2)}, {sr(sT1)}, 31")
        h(f"s_cmp_eq_u32 {sr(sT2)}, 7")
        h.flush()
        h("s_cbranch_scc0 L_hdone")
        cO, cW = 56, 96
        h(f"s_lshl_b32 {sr(sREC)}, {sr(sHEAD)}, 14")

        def rec_loads(mod):
            h.vm_q = []
            h(f"buffer_load_dwordx2 {vr(vM, 2)}, {vr(vSW1)}, {sr(S_WS, 4)}, {sr(sREC)} offen offset:1024{mod}")
            for i in range(8):
                if i % 2 == 0 and i:
                    h(f"s_add_u32 {sr(sREC)}, {sr(sREC)}, 4096")
                h(f"buffer_load_dwordx4 {vr(cO + 4 * i, 4)}, {vr(vSW0)}, {sr(S_WS, 4)}, {sr(sREC)} offen offset:{2048 * (i % 2)}{mod}")
        if DUAL != "none":
            h(f"s_mul_i32 {sr(sX)}, {sr(sX)}, 7")
            h(f"s_cmp_eq_u32 {sr(sX)}, {sr(sT1)}")
            h("s_cbranch_scc0 L_far")
            h(f"s_add_u32 {sr(sREC)}, {sr(sREC)}, {1 << 20}")
            rec_loads("" if DUAL == "plain" else " " + DUAL)
            h("s_branch L_got")
            h.raw("L_far:")
        rec_loads(" sc1")
        h.raw("L_got:")
        SWZ = (0x041F, 0x081F, 0x101F)
        h(f"v_mov_b32 {vr(vT0)}, {vr(vM)}")
        stamp(h, 5)
        for x in SWZ:
            h(f"ds_swizzle_b32 {vr(vT1)}, {vr(vT0)} offset:{x:#x}")
            h(f"v_max_f32 {vr(vT0)}, {vr(vT0)}, {vr(vT1)}")
        h(f"v_sub_f32 {vr(vM)}, {vr(vM)}, {vr(vT0)}")
        h(f"v_exp_f32 {vr(vM)}, {vr(vM)}")
        h(f"v_mul_f32 {vr(vT0)}, {vr(vM)}, {vr(vM + 1)}")
        for i in range(8):
            h(f"ds_swizzle_b32 {vr(cW + i)}, {vr(vM)} offset:{(i << 5) | 0x18:#x}")
        for x in SWZ:
            h(f"ds_swizzle_b32 {vr(vT1)}, {vr(vT0)} offset:{x:#x}")
            h(f"v_add_f32 {vr(vT0)}, {vr(vT0)}, {vr(vT1)}")
        h(f"v_rcp_f32 {vr(vT0)}, {vr(vT0)}")
        if STAMP:
            h.wait_vm_all()
            stamp(h, 4)
        for i in range(8):
            for r in range(4):
                h(f"{'v_fmac_f32' if i else 'v_mul_f32'} {vr(vKA + r)}, {vr(cW + i)}, {vr(cO + 4 * i + r)}")
        for r in range(4):
            h(f"v_mul_f32 {vr(vKA + r)}, {vr(vKA + r)}, {vr(vT0)}")
        h(f"v_cvt_pk_bf16_f32 {vr(vVA)}, {vr(vKA)}, {vr(vKA + 1)}")
        h(f"v_cvt_pk_bf16_f32 {vr(vVA + 1)}, {vr(vKA + 2)}, {vr(vKA + 3)}")
        h(f"buffer_store_dwordx2 {vr(vVA, 2)}, {vr(vSO)}, {sr(S_O, 4)}, {sr(sHEADOFF)} offen sc1")
        h.label("L_hdone")
    dump_stamps(h, "h")
    h.raw("L_end:")
    h("s_endpgm")

    tailtxt = f""".section .rodata,"a"
.p2align 6
.amdhsa_kernel {NAME}_kernel
  .amdhsa_next_free_vgpr 168
  .amdhsa_next_free_sgpr 98
  .amdhsa_accum_offset 168
  .amdhsa_group_segment_fixed_size 0
  .amdhsa_kernarg_size 64
  .amdhsa_user_sgpr_count 2
  .amdhsa_user_sgpr_kernarg_segment_ptr 1
  .amdhsa_system_sgpr_workgroup_id_x 1
.end_amdhsa_kernel
"""
    assert not NOCOMP and not PK
    txt = e.text() + ld.text() + c.text() + m.text() + a2.text() + h.text() + "".join(o.text() for o in ool)
    return txt + "L_codeend:\n" + tailtxt


if __name__ == "__main__":
    out = sys.argv[1]
    opt = {}
    for a in sys.argv[2:]:
        k, _, v = a.partition("=")
        opt[k] = v if v else True
        if k in ("st", "stb", "ld", "qld"):
            opt[k] = (" " + v.replace("+", " ")) if v != "none" else ""
    open(out, "w").write(gen(opt))
```

```python
import sys
import math
import struct
from asmgen import Emitter, vr, sr

NAME = "standalone__global_local_windowed_global_tokens__prompt"

HEADER = """; Kernarg layout for this problem (64 bytes, ptrs only, base s[0:1]):
;   offset   0: d_in[0] q  shape=(1, 32, 2048, 128) dtype=bfloat16 strides=(16777216, 524288, 256, 2) contiguous=True
;   offset   8: d_in[1] k  shape=(1, 32, 2048, 128) dtype=bfloat16 strides=(16777216, 524288, 256, 2) contiguous=True
;   offset  16: d_in[2] v  shape=(1, 32, 2048, 128) dtype=bfloat16 strides=(16777216, 524288, 256, 2) contiguous=True
;   offset  24: d_in[3] window  shape=(1,) dtype=int32 strides=(4,) contiguous=True
;   offset  32: d_in[4] n_global  shape=(1,) dtype=int32 strides=(4,) contiguous=True
;
;   wave 0      streams the chunk's K and V tiles (16 rows each) into LDS by DMA, publishes its progress in
;               an LDS word, and afterwards stores the output tiles that the first round parked in LDS
;   waves 1,2   query rows 0,1 (global rows) against the chunk's 256 keys with a running max; the merged
;               partial (max, sum, O) goes to d_ws, a ticket in d_debug tells the last of a head's 8
;               (16x16x32 MFMA, band masks enter as the accumulator's start value), exact softmax,
;               O^T = V^T P^T with transposing LDS reads, row-contiguous stores through LDS
; Waves of a workgroup hand data to each other through two LDS words (stream progress, done bits); the
; only s_sleep instructions are the back-off inside the loops that wait on those words.
"""


def f32bits(x):
    return struct.unpack("<I", struct.pack("<f", x))[0]


def merge(a, b):
    out, nb = [], 0
    for i, x in enumerate(a):
        out.append(x)
        want = (i + 1) * len(b) // len(a)
        out += b[nb:want]
        nb = want
    return out + b[nb:]


def gen(opt):
    LD = opt.get("ld", "")
    LDH = opt.get("ldh", LD)
    QLD = opt.get("qld", "")
    ST = opt.get("st", " sc1")
    STB = opt.get("stb", ST)
    NOCOMP = opt.get("nocomp", False)
    PROBE = opt.get("probe", None)
    GPROBE = opt.get("gprobe", None)
    STAMP = opt.get("stamp", False) or PROBE or GPROBE
    D = int(opt.get("depth", 3))
    SLEEP = int(opt.get("sleep", 1))
    WIN = int(opt.get("win", 8 * D))
    HALF = int(opt.get("half", 63))
    assert WIN <= 8 * D
    QLEAD = int(opt.get("qlead", 0))
    QL2 = int(opt.get("ql2", 0))
    THRMIN = int(opt.get("thrmin", 0))
    EW = int(opt.get("ew", 6))
    PST = int(opt.get("pst", 32))
    DUAL = opt.get("dual", "none")
    PRIOW = int(opt.get("priow", 99))
    PRIOH = int(opt.get("prioh", 0))
    ROT = int(opt.get("rot", 6))
    PK = opt.get("pk", False)
    UMASK = int(opt.get("umask", 0))
    SCHED = int(opt.get("sched", 1))
    CPE = opt.get("cpe", False)
    CPL = opt.get("cpl", False)
    QDIR = opt.get("qdir", False)
    HP = int(opt.get("hp", 11))
    assert 11 <= HP <= 14
    GATE = int(opt.get("gate", -1))
    GATEP = opt.get("gatep", False)
    WX = int(opt.get("wx", 0))
    PRIOV = int(opt.get("priov", 2))
    CPF = int(opt.get("cpf", 0))
    PTS = opt.get("pts", "A2,A6,B1,B2,B6").split(",")
    assert len(PTS) == 5 and D >= 2
    assert all(((w + ROT) & 7) < 6 for w in range(EW, 8))

    TB = 32 * 2048 * 256
    HEADB = 2048 * 256
    L_STAGE, L_GK, L_GV, L_FLAG, L_K, L_V = 0, 8192, 9216, 10240, 13824, 79360
    L_MRG = 10368
    VT, VP = 4224, 1056
    NH = 2
    NWAVE = 9 + NH
    NEG = f32bits(-1.0e30)
    CSCALE = f32bits((128 ** -0.5) * math.log2(math.e))

    S_Q, S_K, S_V, S_O, S_DBG, S_WS = 20, 24, 28, 32, 36, 40
    sWAVE, sHEADOFF, sROW0, sT0, sT1, sT2 = 44, 45, 46, 47, 48, 49
    sQOFF, sNEG, sQ0, sHEAD, sCHUNK, sDESC = 50, 51, 52, 53, 54, 55
    sEX = 56
    sC = 58
    sTS = 60
    sB, sIT, sNEED, sX, sCNT, sW, sHI, sREC, sSTEP, sXV, sSTEPV, sPARK, sREQ, sB2 = range(80, 94)
    sNEEDV = 95
    sMASK = 2

    vKA, vVA, vSW0, vSW1, vGK, vN, vG, vG4 = 2, 6, 10, 11, 12, 13, 14, 15
    vFLAG, vSW, vT0, vT1, vONE, vSR, vSO, vT3, vT2 = 16, 17, 18, 19, 20, 24, 25, 26, 27
    vQR, vS, vOX, vPOOL, vGV = 28, 44, 68, 92, 164
    vC = 13

    uid = [0]

    def newid():
        uid[0] += 1
        return uid[0]

    def stamp(em, i):
        if STAMP:
            em(f"s_memrealtime {sr(sTS + 2 * i, 2)}")

    def stamp_it(em, k, only=None):
        if not STAMP:
            return
        for it, nm in ((0, f"A{k}"), (1, f"B{k}")):
            if nm in PTS and only in (None, it):
                if only is None:
                    u = newid()
                    em(f"s_cmp_eq_u32 {sr(sIT)}, {it}")
                    em(f"s_cbranch_scc0 L_sa{u}")
                stamp(em, PTS.index(nm) + 1)
                if only is None:
                    em.raw(f"L_sa{u}:")

    def poll(em, need):
        u = newid()
        em.label(f"L_poll{u}")
        em(f"ds_read_b32 {vr(vT2)}, {vr(vFLAG)}")
        em(f"v_readfirstlane_b32 {sr(sT0)}, {vr(vT2)}")
        em(f"s_cmp_ge_i32 {sr(sT0)}, {need}")
        em(f"s_cbranch_scc1 L_pdone{u}")
        if SLEEP:
            em(f"s_sleep {SLEEP}")
        em(f"s_branch L_poll{u}")
        em.raw(f"L_pdone{u}:")

    def poll_pre(em, need, reg):
        u = newid()
        em(f"v_readfirstlane_b32 {sr(sT0)}, {vr(reg)}")
        em(f"s_cmp_ge_i32 {sr(sT0)}, {need}")
        em(f"s_cbranch_scc1 L_pdone{u}")
        keep = (list(em.ds_q), list(em.hist))
        em.lines.append(f"L_poll{u}:")
        em(f"ds_read_b32 {vr(reg)}, {vr(vFLAG)}")
        em(f"v_readfirstlane_b32 {sr(sT0)}, {vr(reg)}")
        em(f"s_cmp_ge_i32 {sr(sT0)}, {need}")
        em(f"s_cbranch_scc0 L_poll{u}")
        em.raw(f"L_pdone{u}:")
        em.ds_q, em.hist = keep

    def poll_bits(em, smask, first_read_done=False):
        u = newid()
        if first_read_done:
            em(f"v_readfirstlane_b32 {sr(sT0)}, {vr(vT2)}")
            em(f"s_andn2_b32 {sr(sT0)}, {smask}, {sr(sT0)}")
            em(f"s_cbranch_scc0 L_pdone{u}")
            keep = (list(em.ds_q), list(em.hist))
            em.lines.append(f"L_poll{u}:")
        else:
            em.label(f"L_poll{u}")
        em(f"ds_read_b32 {vr(vT2)}, {vr(vFLAG)} offset:4")
        em(f"v_readfirstlane_b32 {sr(sT0)}, {vr(vT2)}")
        em(f"s_andn2_b32 {sr(sT0)}, {smask}, {sr(sT0)}")
        em(f"s_cbranch_scc0 L_pdone{u}")
        if SLEEP:
            em(f"s_sleep {SLEEP}")
        em(f"s_branch L_poll{u}")
        em.raw(f"L_pdone{u}:")
        if first_read_done:
            em.ds_q, em.hist = keep

    def set_bit(em, sbit):
        em(f"s_lshl_b32 {sr(sT0)}, 1, {sbit}")
        em(f"v_mov_b32 {vr(vT2)}, {sr(sT0)}")
        em("s_mov_b64 exec, 1")
        em(f"ds_or_b32 {vr(vFLAG)}, {vr(vT2)} offset:4")
        em("s_mov_b64 exec, -1")

    def park_addr(em, sw, dst):
        em(f"s_sub_u32 {sr(sT1)}, 19, {sw}")
        em(f"s_cmp_eq_u32 {sr(sDESC)}, 0")
        em(f"s_cselect_b32 {sr(sT1)}, {sw}, {sr(sT1)}")
        em(f"s_mul_i32 {sr(sT2)}, {sr(sT1)}, {VT}")
        em(f"s_add_u32 {sr(sT2)}, {sr(sT2)}, {L_V}")
        em(f"s_lshl_b32 {sr(sT1)}, {sr(sT1)}, 12")
        em(f"s_add_u32 {sr(sT1)}, {sr(sT1)}, {L_K - 8192}")
        em(f"s_cmp_lt_u32 {sw}, 2")
        em(f"s_cselect_b32 {dst}, {sr(sT2)}, {sr(sT1)}")

    def stage_read_addrs(em):
        em(f"v_lshrrev_b32 {vr(vT0)}, 2, {vr(vN)}")
        em(f"v_add_u32 {vr(vT2)}, {vr(vG4)}, {vr(vT0)}")
        em(f"v_and_b32 {vr(vT1)}, 3, {vr(vN)}")
        em(f"v_lshlrev_b32 {vr(vSO)}, 4, {vr(vT1)}")
        em(f"v_lshl_add_u32 {vr(vSO)}, {vr(vT2)}, 8, {vr(vSO)}")
        em(f"v_bfe_u32 {vr(vSR)}, {vr(vT2)}, 1, 2")
        em(f"v_xor_b32 {vr(vSR)}, {vr(vSR)}, {vr(vT1)}")
        em(f"v_lshlrev_b32 {vr(vSR)}, 4, {vr(vSR)}")
        em(f"v_lshl_add_u32 {vr(vSR)}, {vr(vT2)}, 6, {vr(vSR)}")

    def dump_stamps(em, tagn):
        if not STAMP:
            return
        stamp(em, 6)
        em("s_waitcnt vmcnt(0)")
        stamp(em, 7)
        em("s_memtime s[78:79]")
        em("s_waitcnt lgkmcnt(0)")
        if GPROBE:
            role, which, fac = GPROBE.split(",")
            which, fac = int(which), int(fac)
            nrep = {"l": 256, "m": 2048 + 256, "h": 512 + 256, "a": 2816}[role]
            em("s_mov_b64 exec, 1")
            if tagn == "l":
                em(f"s_not_b32 {sr(sT0)}, {sr(sTS)}")
                em(f"v_mov_b32 v0, {sr(sT0)}")
                em(f"buffer_atomic_umax v0, off, {sr(S_DBG, 4)}, 0 offset:128")
            if role in (tagn, "a"):
                em(f"v_mov_b32 v1, {sr(sTS + 2 * which)}")
                em(f"buffer_atomic_umax v1, off, {sr(S_DBG, 4)}, 0 offset:132")
            if role in (tagn, "a") or tagn == "l":
                em("v_mov_b32 v2, 1")
                em("s_waitcnt vmcnt(0)")
                em(f"buffer_atomic_add v2, off, {sr(S_DBG, 4)}, 0 offset:136")
            if tagn == "l":
                em(f"s_cmp_eq_u32 {sr(sWG)}, 100")
                em("s_cbranch_scc0 L_gp_done")
                em.label("L_gp1")
                em(f"buffer_load_dwordx4 v[4:7], off, {sr(S_DBG, 4)}, 0 offset:128 sc1")
                em("s_waitcnt vmcnt(0)")
                em(f"v_readfirstlane_b32 {sr(sT0)}, v6")
                em("s_sleep 8")
                em(f"s_cmp_ge_u32 {sr(sT0)}, {nrep}")
                em("s_cbranch_scc0 L_gp1")
                em(f"buffer_load_dwordx4 v[4:7], off, {sr(S_DBG, 4)}, 0 offset:128 sc1")
                em("s_waitcnt vmcnt(0)")
                em(f"v_readfirstlane_b32 {sr(sT2)}, v4")
                em(f"v_readfirstlane_b32 {sr(sT0)}, v5")
                em(f"s_not_b32 {sr(sT2)}, {sr(sT2)}")
                em(f"s_sub_u32 {sr(sT0)}, {sr(sT0)}, {sr(sT2)}")
                em(f"s_min_u32 {sr(sT0)}, {sr(sT0)}, 5000")
                em(f"s_mul_i32 {sr(sT0)}, {sr(sT0)}, {fac}")
                em(f"s_add_u32 {sr(sT0)}, {sr(sT0)}, 15000")
                em.label("L_gp2")
                em("s_memrealtime s[78:79]")
                em("s_waitcnt lgkmcnt(0)")
                em(f"s_sub_u32 {sr(sT1)}, s78, {sr(sT2)}")
                em(f"s_cmp_lt_u32 {sr(sT1)}, {sr(sT0)}")
                em("s_cbranch_scc1 L_gp2")
                em.label("L_gp_done")
            em.vm_q = []
            return
        if PROBE:
            which, fac, pw = (int(x) for x in PROBE.split(","))
            em(f"s_cmp_eq_u32 {sr(sWG)}, 100")
            em(f"s_cbranch_scc0 L_probe_done{tagn}")
            em(f"s_cmp_eq_u32 {sr(sWAVE)}, {pw}")
            em(f"s_cbranch_scc0 L_probe_done{tagn}")
            em(f"s_sub_u32 {sr(sT0)}, {sr(sTS + 2 * which)}, {sr(sTS)}")
            em(f"s_mul_i32 {sr(sT0)}, {sr(sT0)}, {fac}")
            em(f"s_add_u32 {sr(sT0)}, {sr(sT0)}, 5000")
            em.label(f"L_probe{tagn}")
            em("s_memrealtime s[78:79]")
            em("s_waitcnt lgkmcnt(0)")
            em(f"s_sub_u32 {sr(sT1)}, s78, {sr(sTS)}")
            em(f"s_cmp_lt_u32 {sr(sT1)}, {sr(sT0)}")
            em(f"s_cbranch_scc1 L_probe{tagn}")
            em.label(f"L_probe_done{tagn}")
            return
        em("s_sub_u32 s76, s78, s76")
        if tagn == "m":
            em(f"s_mov_b32 {sr(sT1)}, {sr(sW)}")
        else:
            em(f"s_add_u32 {sr(sT1)}, {sr(sWAVE)}, 8")
        em(f"s_mul_i32 {sr(sT0)}, {sr(sWG)}, {NWAVE}")
        em(f"s_add_u32 {sr(sT0)}, {sr(sT0)}, {sr(sT1)}")
        em(f"s_lshl_b32 {sr(sT0)}, {sr(sT0)}, 6")
        em(f"s_add_u32 {sr(sT0)}, {sr(sT0)}, {0x800000}")
        for i in range(9):
            em(f"v_mov_b32 {vr(vPOOL + i)}, {sr(sTS + 2 * i)}")
        em("v_mov_b32 v0, 0")
        em("s_mov_b64 exec, 1")
        em(f"buffer_store_dwordx4 {vr(vPOOL, 4)}, v0, {sr(S_WS, 4)}, {sr(sT0)} offen")
        em(f"buffer_store_dwordx4 {vr(vPOOL + 4, 4)}, v0, {sr(S_WS, 4)}, {sr(sT0)} offen offset:16")
        em(f"buffer_store_dword {vr(vPOOL + 8)}, v0, {sr(S_WS, 4)}, {sr(sT0)} offen offset:32")
        em(f"s_getreg_b32 {sr(sT1)}, hwreg(HW_REG_XCC_ID, 0, 4)")
        em(f"v_mov_b32 {vr(vPOOL + 9)}, {sr(sT1)}")
        em(f"buffer_store_dword {vr(vPOOL + 9)}, v0, {sr(S_WS, 4)}, {sr(sT0)} offen offset:36")

    sWG = 94

    def code_pf_setup(em):
        em("s_getpc_b64 s[18:19]")
        em.raw("L_pc:")
        em(f"v_lshl_add_u32 v158, {vr(vG)}, 4, {vr(vN)}")
        em("v_lshlrev_b32 v158, 7, v158")
        em(f"s_sub_u32 s18, s18, L_pc-{NAME}_kernel")
        em("s_subb_u32 s19, s19, 0")
        em("v_add_u32 v159, 0x2000, v158")
        em(f"v_min_u32 v159, L_codeend-{NAME}_kernel-4, v159")

    def code_pf(em):
        for i in range(2):
            em(f"global_load_dword {vr(160 + i)}, {vr(158 + i)}, s[18:19]")
        em.vm_q = [x for x in em.vm_q if not (x[0] & {("v", 160), ("v", 161)})] + [(set(), None)] * 2

    e = Emitter()
    e.raw(HEADER + f"; @launch grid=(256,1,1) block=({64 * NWAVE},1,1) lds=163840")
    e.raw('.amdgcn_target "amdgcn-amd-amdhsa--gfx950"')
    e.raw(".text")
    e.raw(f".globl {NAME}_kernel")
    e.raw(".p2align 8")
    e.raw(f".type {NAME}_kernel,@function")
    e.raw(f"{NAME}_kernel:")
    e("s_load_dwordx4 s[4:7], s[0:1], 0")
    e("s_load_dwordx2 s[8:9], s[0:1], 16")
    e("s_cmp_ge_u32 s2, 256")
    e("s_cbranch_scc1 L_end")
    stamp(e, 0)
    if STAMP:
        e("s_memtime s[76:77]")
        e(f"s_mov_b32 {sr(sWG)}, s2")
        for i in range(1, 6):
            e(f"s_mov_b64 {sr(sTS + 2 * i, 2)}, 0")
    e(f"v_readfirstlane_b32 {sr(sWAVE)}, v0")
    e(f"v_and_b32 {vr(vN)}, 15, v0")
    e(f"v_bfe_u32 {vr(vG)}, v0, 4, 2")
    if CPE == "2":
        e(f"s_cmp_eq_u32 {sr(sWAVE)}, 64")
        e("s_cbranch_scc0 L_nocp")
        code_pf_setup(e)
        code_pf(e)
        e.raw("L_nocp:")
        e.vm_q = []
    e(f"s_and_b32 {sr(sT0)}, s2, 7")
    e(f"s_lshr_b32 {sr(sT1)}, s2, 6")
    e(f"s_lshl2_add_u32 {sr(sHEAD)}, {sr(sT0)}, {sr(sT1)}")
    e(f"s_bfe_u32 {sr(sCHUNK)}, s2, 0x30003")
    e(f"s_lshl_b32 {sr(sHEADOFF)}, {sr(sHEAD)}, 19")
    e(f"s_lshl_b32 {sr(sT0)}, {sr(sCHUNK)}, 16")
    e(f"s_add_u32 {sr(sROW0)}, {sr(sHEADOFF)}, {sr(sT0)}")
    e(f"s_add_u32 {sr(sHI)}, {sr(sHEADOFF)}, {HEADB - 4096}")
    e(f"s_and_b32 {sr(sDESC)}, {sr(sCHUNK)}, 1")
    e(f"v_lshlrev_b32 {vr(vG4)}, 2, {vr(vG)}")
    e(f"v_mov_b32 {vr(vFLAG)}, {L_FLAG}")
    e(f"s_mov_b32 {sr(S_K + 2)}, {TB}")
    e(f"s_mov_b32 {sr(S_K + 3)}, 0x20000")
    e(f"s_lshr_b32 {sr(sWAVE)}, {sr(sWAVE)}, 6")
    e("s_cbranch_scc1 L_notloader")

    def other_srds(em, which):
        em("s_load_dwordx4 s[12:15], s[0:1], 40")
        em("s_load_dwordx2 s[16:17], s[0:1], 56")
        em(f"s_mov_b32 {sr(S_O + 2)}, {TB}")
        em(f"s_mov_b32 {sr(S_O + 3)}, 0x20000")
        em(f"s_mov_b32 {sr(S_DBG + 2)}, 256")
        em(f"s_mov_b32 {sr(S_DBG + 3)}, 0x20000")
        em(f"s_mov_b32 {sr(S_WS + 2)}, {0x1000000}")
        em(f"s_mov_b32 {sr(S_WS + 3)}, 0x20000")

    def other_srds_done(em):
        em("s_waitcnt lgkmcnt(0)")
        for b, src in ((S_O, 12), (S_DBG, 14), (S_WS, 16)):
            em(f"s_mov_b64 {sr(b, 2)}, {sr(src, 2)}")

    ld = e.fork()
    vKD, vVD, vCNT = 2, 6, 8
    ld(f"v_lshlrev_b32 v0, 8, {vr(vG)}")
    ld(f"v_xor_b32 {vr(vVD)}, {vr(vG4)}, {vr(vN)}")
    ld(f"v_lshl_add_u32 {vr(vVD)}, {vr(vVD)}, 4, v0")
    ld(f"v_xor_b32 {vr(vKD)}, {vr(vG)}, {vr(vN)}")
    ld(f"v_lshl_add_u32 {vr(vKD)}, {vr(vKD)}, 4, v0")
    ld(f"s_mov_b32 {sr(S_V + 2)}, {TB}")
    ld(f"s_mov_b32 {sr(S_V + 3)}, 0x20000")
    if UMASK:
        ld(f"v_mov_b32 {vr(vCNT)}, 64")
        ld(f"v_mov_b32 {vr(vCNT + 1)}, -1")
        ld(f"ds_write_b64 {vr(vFLAG)}, {vr(vCNT, 2)}")
        ld("s_waitcnt lgkmcnt(0)")
        ld("s_barrier")
        ld("s_endpgm")
    ld(f"v_mov_b32 {vr(vCNT)}, 0")
    ld(f"v_mov_b32 {vr(vCNT + 1)}, 0")
    ld(f"s_mov_b32 m0, {L_GK}")
    ld("s_waitcnt lgkmcnt(0)")
    ld(f"s_mov_b64 {sr(S_K, 2)}, s[6:7]")
    ld(f"s_mov_b64 {sr(S_V, 2)}, s[8:9]")

    def v_halo(em, hi_when_desc):
        em(f"s_cmp_eq_u32 {sr(sDESC)}, {1 if hi_when_desc else 0}")
        em(f"s_cselect_b32 {sr(sT0)}, {18 * VT}, 0")
        em(f"s_cselect_b32 {sr(sT1)}, {18 * 4096}, 0")
        em(f"s_add_u32 {sr(sT1)}, {sr(sT1)}, {sr(sROW0)}")
        em(f"s_sub_u32 {sr(sT1)}, {sr(sT1)}, 8192")
        for k in range(2):
            em(f"s_max_i32 {sr(sT2)}, {sr(sT1)}, {sr(sHEADOFF)}")
            em(f"s_min_i32 {sr(sT2)}, {sr(sT2)}, {sr(sHI)}")
            for j in range(4):
                em(f"s_add_u32 m0, {sr(sT0)}, {L_V + VT * k + 32 * j}")
                if k == 0 and j == 0:
                    em(f"s_add_u32 {sr(sT1)}, {sr(sT1)}, 4096")
                em(f"buffer_load_dwordx4 {vr(vVD)}, {sr(S_V, 4)}, {sr(sT2)} offen offset:{1024 * j}{LDH} lds")

    ld(f"buffer_load_dwordx4 {vr(vKD)}, {sr(S_K, 4)}, {sr(sHEADOFF)} offen lds")
    stamp(ld, 5)
    ld(f"s_mov_b32 m0, {L_GV}")
    ld(f"buffer_load_dwordx4 {vr(vVD)}, {sr(S_V, 4)}, {sr(sHEADOFF)} offen lds")
    ld(f"ds_write_b64 {vr(vFLAG)}, {vr(vCNT, 2)}")
    v_halo(ld, True)
    for j in range(1, 4):
        ld(f"v_xor_b32 {vr(vKD + j)}, {64 * j}, {vr(vKD)}")
    ld("s_waitcnt lgkmcnt(0)")
    if opt.get("stbar"):
        stamp(ld, 1)
    ld("s_barrier")
    if opt.get("stbar"):
        stamp(ld, 2)
    ld(f"s_mul_i32 {sr(sX)}, {sr(sDESC)}, {15 * 4096}")
    ld(f"s_mul_i32 {sr(sSTEP)}, {sr(sDESC)}, -8192")
    ld(f"s_add_u32 {sr(sSTEP)}, {sr(sSTEP)}, 4096")
    ld(f"s_mul_i32 {sr(sXV)}, {sr(sDESC)}, {15 * VT}")
    ld(f"s_add_u32 {sr(sXV)}, {sr(sXV)}, {L_V + 2 * VT}")
    ld(f"s_mul_i32 {sr(sSTEPV)}, {sr(sDESC)}, {-2 * VT}")
    ld(f"s_add_u32 {sr(sSTEPV)}, {sr(sSTEPV)}, {VT}")
    def k_tile(LD=LD):
        ld(f"s_add_u32 {sr(sT1)}, {sr(sX)}, {sr(sROW0)}")
        ld(f"s_add_u32 m0, {sr(sX)}, {L_K}")
        ld(f"s_add_u32 {sr(sX)}, {sr(sX)}, {sr(sSTEP)}")
        for j in range(4):
            ld(f"buffer_load_dwordx4 {vr(vKD + j)}, {sr(S_K, 4)}, {sr(sT1)} offen offset:{1024 * j}{LD} lds")

    def v_tile():
        for j in range(4):
            ld(f"s_add_u32 m0, {sr(sXV)}, {32 * j}")
            ld(f"buffer_load_dwordx4 {vr(vVD)}, {sr(S_V, 4)}, {sr(sB)} offen offset:{1024 * j}{LD} lds")
        ld(f"s_add_u32 {sr(sXV)}, {sr(sXV)}, {sr(sSTEPV)}")
        ld(f"s_add_u32 {sr(sB)}, {sr(sB)}, {sr(sSTEP)}")

    ld(f"s_add_u32 {sr(sB)}, {sr(sX)}, {sr(sROW0)}")
    k_tile(LDH)
    k_tile(LDH)
    other_srds(ld, None)
    stage_read_addrs(ld)
    ld(f"s_mov_b32 {sr(sCNT)}, {2 - D}")
    ld.vm_q = []
    ld.label("L_ldloop")
    ld(f"s_cmp_eq_u32 {sr(sCNT)}, {HP + 1 - D}")
    ld("s_cbranch_scc1 L_ldhalo")
    k_tile()
    v_tile()
    ld.raw("L_ldwait:")
    ld(f"s_add_u32 {sr(sCNT)}, {sr(sCNT)}, 1")
    ld(f"v_mov_b32 {vr(vCNT)}, {sr(sCNT)}")
    ld(f"s_cmp_lt_i32 {sr(sCNT)}, {17 - D}")
    ld(f"s_waitcnt vmcnt({WIN})")
    ld(f"ds_write_b32 {vr(vFLAG)}, {vr(vCNT)}")
    ld("s_cbranch_scc1 L_ldloop")
    ld.vm_q = []
    stamp(ld, 1)
    v_tile()
    v_tile()
    stamp(ld, 2)
    hl = Emitter()
    hl.raw("L_ldhalo:")
    v_halo(hl, False)
    hl("s_branch L_ldwait")
    other_srds_done(ld)
    ld(f"s_mul_i32 {sr(sXV)}, {sr(sDESC)}, {19 * VT}")
    ld(f"s_add_u32 {sr(sXV)}, {sr(sXV)}, {L_V}")
    ld(f"s_mul_i32 {sr(sX)}, {sr(sDESC)}, {15 * 4096}")
    ld(f"s_add_u32 {sr(sQOFF)}, {sr(sX)}, {sr(sROW0)}")
    ld(f"s_add_u32 {sr(sX)}, {sr(sX)}, {L_K}")
    ld(f"s_cmp_eq_u32 {sr(sQOFF)}, {sr(sHEADOFF)}")
    ld(f"s_cselect_b32 {sr(sEX)}, 0xffffff00, -1")
    ld(f"s_mov_b32 {sr(sEX + 1)}, -1")
    ld(f"s_mov_b32 {sr(sREQ)}, 0")
    for k in range(D, -1, -1):
        ld(f"v_mov_b32 {vr(vCNT)}, {18 - k}")
        ld(f"s_waitcnt vmcnt({8 * k})")
        ld(f"ds_write_b32 {vr(vFLAG)}, {vr(vCNT)}")
        if k == 1:
            stamp(ld, 3)
    ld.vm_q = []
    stamp(ld, 4)
    def park_fetch(w):
        u = newid()
        ld(f"s_bitcmp1_b32 {sr(sREQ)}, {8 + w}")
        ld(f"s_cbranch_scc1 L_have{u}")
        keep = (list(ld.ds_q), list(ld.hist))
        ld.raw(f"L_poll{u}:")
        ld(f"ds_read_b32 {vr(vT2)}, {vr(vFLAG)} offset:4")
        ld(f"v_readfirstlane_b32 {sr(sREQ)}, {vr(vT2)}")
        ld(f"s_bitcmp1_b32 {sr(sREQ)}, {8 + w}")
        ld(f"s_cbranch_scc1 L_have{u}")
        if SLEEP:
            ld(f"s_sleep {SLEEP}")
        ld(f"s_branch L_poll{u}")
        ld.raw(f"L_have{u}:")
        ld.ds_q, ld.hist = keep
        ld(f"v_add_u32 v0, {sr(sXV if w < 2 else sX)}, {vr(vSR)}")
        if w < 2:
            ld(f"s_add_u32 {sr(sXV)}, {sr(sXV)}, {sr(sSTEPV)}")
        else:
            ld(f"s_add_u32 {sr(sX)}, {sr(sX)}, {sr(sSTEP)}")
        for k in range(4):
            ld(f"ds_read_b128 {vr(vPOOL + 16 * (w % 2) + 4 * k, 4)}, v0 offset:{1024 * k}")

    park_fetch(0)
    for w in range(8):
        if w < 7:
            park_fetch(w + 1)
        if PST < 32 and 4 * w >= PST:
            ld(f"s_waitcnt vmcnt({PST - 4})")
        if w == GATE and not NOCOMP:
            ld(f"s_mov_b32 {sr(sT2)}, {1 << 25}")
            poll_bits(ld, sr(sT2))
        if w == 0:
            ld(f"s_mov_b64 exec, {sr(sEX, 2)}")
        for k in range(4):
            ld(f"buffer_store_dwordx4 {vr(vPOOL + 16 * (w % 2) + 4 * k, 4)}, {vr(vSO)}, {sr(S_O, 4)}, {sr(sQOFF)} offen offset:{64 * k}{ST}")
        if w == 0:
            ld("s_mov_b64 exec, -1")
        ld(f"s_add_u32 {sr(sQOFF)}, {sr(sQOFF)}, {sr(sSTEP)}")
    dump_stamps(ld, "l")
    ld("s_endpgm")
    ld.lines += hl.lines
    ld.raw("L_notloader:")

    c = e.fork()
    if CPF and CPE is True:
        c(f"s_cmp_le_u32 {sr(sWAVE)}, {NH}")
        c("s_cbranch_scc0 L_nocp")
        code_pf_setup(c)
        code_pf(c)
        c.raw("L_nocp:")
    other_srds(c, None)
    c(f"s_mov_b32 {sr(S_Q + 2)}, {TB}")
    c(f"s_mov_b32 {sr(S_Q + 3)}, 0x20000")
    stage_read_addrs(c)
    c("s_barrier")
    other_srds_done(c)
    c(f"s_mov_b64 {sr(S_K, 2)}, s[6:7]")
    c(f"s_mov_b64 {sr(S_Q, 2)}, s[4:5]")
    c(f"s_mov_b32 {sr(sC)}, {CSCALE:#x}")
    c(f"s_mov_b32 {sr(sC + 1)}, {CSCALE:#x}")
    c(f"s_mov_b32 {sr(sNEG)}, {NEG:#x}")
    c(f"s_cmp_le_u32 {sr(sWAVE)}, {NH}")
    c("s_cbranch_scc1 L_helper")

    def lane_addrs(em):
        em(f"v_xor_b32 {vr(vKA)}, {vr(vN)}, {vr(vG)}")
        em(f"v_lshlrev_b32 {vr(vKA)}, 4, {vr(vKA)}")
        em(f"v_lshl_add_u32 {vr(vKA)}, {vr(vN)}, 8, {vr(vKA)}")
        em(f"v_lshrrev_b32 {vr(vT0)}, 2, {vr(vN)}")
        em(f"v_and_b32 {vr(vT1)}, 3, {vr(vN)}")
        em(f"v_mul_u32_u24 {vr(vGV)}, {256 + 64}, {vr(vT0)}")
        em(f"v_lshl_add_u32 {vr(vGV)}, {vr(vT1)}, 3, {vr(vGV)}")
        em(f"v_mul_u32_u24 {vr(vT2)}, {VP}, {vr(vG)}")
        for s in range(1, 4):
            em(f"v_xor_b32 {vr(vKA + s)}, {64 * s}, {vr(vKA)}")
            em(f"v_xor_b32 {vr(vGV + s)}, {64 * s}, {vr(vGV)}")
        for s in range(4):
            em(f"v_add_u32 {vr(vVA + s)}, {vr(vT2)}, {vr(vGV + s)}")
        for i in range(4):
            em(f"v_mov_b32 {vr(vONE + i)}, 0x3f803f80")

    def tile_addrs(em, skoff, svoff):
        for s in range(4):
            em(f"v_add_u32 {vr(vKA + s)}, {skoff}, {vr(vKA + s)}")
            em(f"v_add_u32 {vr(vVA + s)}, {svoff}, {vr(vVA + s)}")

    def allreduce_ops(op, x, y):
        return [f"v_mov_b32 {vr(y)}, {vr(x)}", f"v_permlane32_swap_b32 {vr(x)}, {vr(y)}", f"{op} {vr(x)}, {vr(x)}, {vr(y)}",
                f"v_mov_b32 {vr(y)}, {vr(x)}", f"v_permlane16_swap_b32 {vr(x)}, {vr(y)}", f"{op} {vr(x)}, {vr(x)}, {vr(y)}"]

    def max_tree(vals, dst):
        vals = list(vals)
        ops = [f"v_max3_f32 {vr(dst)}, {vr(vals[0])}, {vr(vals[1])}, {vr(vals[2])}"]
        i = 3
        while i + 1 < len(vals):
            ops.append(f"v_max3_f32 {vr(dst)}, {vr(dst)}, {vr(vals[i])}, {vr(vals[i + 1])}")
            i += 2
        if i < len(vals):
            ops.append(f"v_max_f32 {vr(dst)}, {vr(dst)}, {vr(vals[i])}")
        return ops

    def mfma(d, a, b, cc):
        return f"v_mfma_f32_16x16x32_bf16 {vr(d, 4)}, {vr(a, 4)}, {vr(b, 4)}, {'0' if cc is None else vr(cc, 4)}"

    m = c.fork()
    KQ = [vOX + 4 * i for i in range(6)] + [vPOOL + 4 * i for i in range(18)]
    OACC = [vOX + 4 * i for i in range(5)] + [vS + 12, vS + 16, vS + 20]
    vL = vOX + 20

    def q_load(em, sb):
        if UMASK:
            return
        em(f"s_lshl_b32 {sr(sT1)}, {sb}, 12")
        em(f"s_add_u32 {sr(sT1)}, {sr(sT1)}, {sr(sROW0)}")
        for s in range(4):
            em(f"buffer_load_dwordx4 {vr(vQR + 4 * s, 4)}, {vr(1 if QDIR else vSO)}, {sr(S_Q, 4)}, {sr(sT1)} offen offset:{64 * s}{QLD}")
        em.vm_q = []

    def k_halo(em, sb):
        if UMASK:
            return
        u = newid()
        em(f"s_sub_u32 {sr(sT0)}, {sb}, 2")
        em(f"s_cmp_lt_u32 {sr(sT0)}, 12")
        em.flush()
        em(f"s_cbranch_scc1 L_kh{u}")
        for t in (0, 1, 3, 4):
            em(f"s_add_u32 {sr(sT0)}, {sb}, {t - 2}")
            em(f"s_cmp_lt_u32 {sr(sT0)}, 16")
            em(f"s_cbranch_scc1 L_kh{u}_{t}")
            em(f"s_lshl_b32 {sr(sT0)}, {sr(sT0)}, 12")
            em(f"s_add_u32 {sr(sT0)}, {sr(sT0)}, {sr(sROW0)}")
            em(f"s_max_i32 {sr(sT0)}, {sr(sT0)}, {sr(sHEADOFF)}")
            em(f"s_min_i32 {sr(sT0)}, {sr(sT0)}, {sr(sHI)}")
            for s in range(4):
                em(f"buffer_load_dwordx4 {vr(KQ[4 + 4 * t + s], 4)}, {vr(vSO)}, {sr(S_K, 4)}, {sr(sT0)} offen offset:{64 * s}")
            em.raw(f"L_kh{u}_{t}:")
        em.raw(f"L_kh{u}:")
        em.vm_q = []

    m(f"s_sub_u32 {sr(sW)}, {sr(sWAVE)}, {1 + NH}")
    if WX:
        m(f"s_xor_b32 {sr(sW)}, {sr(sW)}, {WX}")
    m(f"s_mul_i32 {sr(sT2)}, {sr(sDESC)}, 15")
    m(f"s_xor_b32 {sr(sB)}, {sr(sW)}, {sr(sT2)}")
    if QDIR:
        m(f"v_lshlrev_b32 v1, 4, {vr(vG)}")
        m(f"v_lshl_add_u32 v1, {vr(vN)}, 8, v1")
    m(f"s_cmp_gt_u32 {sr(sW)}, {max(1, QLEAD)}")
    m("s_cbranch_scc1 L_qa_later")
    k_halo(m, sr(sB))
    m(f"s_cmp_gt_u32 {sr(sW)}, {QLEAD}")
    m("s_cbranch_scc1 L_qa_later")
    q_load(m, sr(sB))
    m.raw("L_qa_later:")
    if PRIOW < 8:
        m(f"s_cmp_lt_u32 {sr(sW)}, {PRIOW}")
        m("s_cbranch_scc1 L_noprio")
        m(f"s_setprio {PRIOV}")
        m.raw("L_noprio:")
    lane_addrs(m)
    m(f"v_xor_b32 {vr(vGK)}, {vr(vT1)}, {vr(vG)}")
    m(f"v_lshlrev_b32 {vr(vGK)}, 4, {vr(vGK)}")
    m(f"v_lshl_add_u32 {vr(vGK)}, {vr(vT1)}, 8, {vr(vGK)}")
    m(f"v_add_u32 {vr(vGK)}, {L_GK}, {vr(vGK)}")
    for u in range(4):
        m(f"v_add_u32 {vr(vGV + u)}, {L_GV}, {vr(vGV + u)}")
    m(f"s_lshl_b32 {sr(sREQ)}, {sr(sW)}, 10")
    m(f"v_bfe_u32 {vr(vT0)}, {vr(vN)}, 1, 2")
    m(f"v_lshlrev_b32 {vr(vT2)}, 6, {vr(vN)}")
    m(f"v_add_u32 {vr(vT2)}, {sr(sREQ)}, {vr(vT2)}")
    m(f"v_xor_b32 {vr(vSW)}, {vr(vT0)}, {vr(vG)}")
    m(f"v_lshl_add_u32 {vr(vSW)}, {vr(vSW)}, 4, {vr(vT2)}")
    m(f"v_lshrrev_b32 {vr(vSW1)}, 1, {vr(vG)}")
    m(f"v_xor_b32 {vr(vSW0)}, {vr(vT0)}, {vr(vSW1)}")
    m(f"v_lshl_add_u32 {vr(vSW0)}, {vr(vSW0)}, 4, {vr(vT2)}")
    m(f"v_and_b32 {vr(vSW1)}, 1, {vr(vG)}")
    m(f"v_lshl_add_u32 {vr(vSW0)}, {vr(vSW1)}, 3, {vr(vSW0)}")
    m(f"v_xor_b32 {vr(vSW1)}, 32, {vr(vSW0)}")
    m(f"v_add_u32 {vr(vSR)}, {sr(sREQ)}, {vr(vSR)}")
    m(f"v_sub_u32 {vr(vT0)}, {vr(vG4)}, {vr(vN)}")
    for r in range(4):
        m(f"v_cmp_le_i32 {sr(sMASK + 2 * r, 2)}, {-r}, {vr(vT0)}")
        m(f"v_cmp_ge_i32 {sr(sMASK + 8 + 2 * r, 2)}, {-r}, {vr(vT0)}")
    m(f"v_cmp_eq_u32 {sr(sMASK + 16, 2)}, 0, {vr(vG4)}")
    park_addr(m, sr(sW), sr(sPARK))
    m(f"s_sub_u32 {sr(sPARK)}, {sr(sPARK)}, {sr(sREQ)}")
    m(f"s_lshl_b32 {sr(sREQ)}, 15, {sr(sW)}")
    m(f"s_lshr_b32 {sr(sREQ)}, {sr(sREQ)}, 4")
    m(f"s_lshr_b32 {sr(sT1)}, {sr(sW)}, 1")
    m(f"s_lshl_b32 {sr(sT1)}, 0x8000, {sr(sT1)}")
    m(f"s_or_b32 {sr(sREQ)}, {sr(sREQ)}, {sr(sT1)}")
    m(f"s_lshl_b32 {sr(sT1)}, {sr(sW)}, 8")
    m(f"s_cmp_lt_u32 {sr(sW)}, 2")
    m(f"s_cselect_b32 {sr(sREQ)}, {sr(sT1)}, {sr(sREQ)}")
    m(f"s_mov_b32 {sr(sIT)}, 0")
    m(f"v_mov_b32 {vr(vC)}, {sr(sC)}")
    if UMASK:
        m(f"s_mov_b32 {sr(sIT)}, 1")
        m(f"s_mov_b32 {sr(sB)}, 5")
        m(f"s_mov_b32 {sr(sCNT)}, 20")
        m(f"s_lshr_b32 {sr(sT0)}, {UMASK}, {sr(sW)}")
        m(f"s_and_b32 {sr(sT0)}, {sr(sT0)}, 1")
        m("s_cbranch_scc0 L_end")
        for i in range(16):
            m(f"v_mov_b32 {vr(vQR + i)}, 0")
        m("s_memtime s[76:77]")
        m(f"s_memrealtime {sr(sTS, 2)}")
        m("s_waitcnt lgkmcnt(0)")
    m(f"s_add_u32 {sr(sNEED)}, {sr(sW)}, 3")
    m(f"s_add_u32 {sr(sNEEDV)}, {sr(sW)}, 5")
    m(f"s_add_u32 {sr(sX)}, {sr(sW)}, {ROT}")
    m(f"s_and_b32 {sr(sX)}, {sr(sX)}, 7")
    m(f"s_add_u32 {sr(sX)}, {sr(sX)}, 8")
    m(f"s_mul_i32 {sr(sT2)}, {sr(sDESC)}, 15")
    m(f"s_xor_b32 {sr(sB2)}, {sr(sX)}, {sr(sT2)}")
    m(f"s_lshl_b32 {sr(sSTEP)}, {sr(sB)}, 12")
    m(f"s_add_u32 {sr(sSTEP)}, {sr(sSTEP)}, {L_K - 8192}")
    m(f"s_mul_i32 {sr(sSTEPV)}, {sr(sB)}, {VT}")
    m(f"s_add_u32 {sr(sSTEPV)}, {sr(sSTEPV)}, {L_V}")
    m(f"s_cmp_gt_u32 {sr(sW)}, {QLEAD}")
    m("s_cbranch_scc0 L_block")
    m(f"s_sub_u32 {sr(sT2)}, {sr(sW)}, {QLEAD}")
    poll(m, sr(sT2))
    q_load(m, sr(sB))
    m.label("L_block")
    ool = []

    def poll_fast(em, need, reg, read=True):
        u = newid()
        if read:
            em(f"ds_read_b32 {vr(reg)}, {vr(vFLAG)}")
        em(f"v_readfirstlane_b32 {sr(sT0)}, {vr(reg)}")
        em(f"s_cmp_ge_i32 {sr(sT0)}, {need}")
        em(f"s_cbranch_scc0 L_wait{u}")
        em.raw(f"L_back{u}:")
        o = Emitter()
        o.raw(f"L_wait{u}:")
        if SLEEP:
            o(f"s_sleep {SLEEP}")
        o(f"ds_read_b32 {vr(reg)}, {vr(vFLAG)}")
        o(f"v_readfirstlane_b32 {sr(sT0)}, {vr(reg)}")
        o(f"s_cmp_ge_i32 {sr(sT0)}, {need}")
        o(f"s_cbranch_scc0 L_wait{u}")
        o(f"s_branch L_back{u}")
        ool.append(o)

    m(f"ds_read_b32 {vr(vT2)}, {vr(vFLAG)}")
    m(f"s_lshl_b32 {sr(sT0)}, {sr(sB)}, 12")
    m(f"s_add_u32 {sr(sQOFF)}, {sr(sT0)}, {sr(sROW0)}")
    m(f"v_mov_b32 {vr(vT0)}, {sr(sNEG)}")
    tile_addrs(m, sr(sSTEP), sr(sSTEPV))
    m(f"s_lshl_b32 {sr(sQ0)}, {sr(sCHUNK)}, 8")
    m(f"s_lshl_b32 {sr(sT0)}, {sr(sB)}, 4")
    m(f"s_add_u32 {sr(sQ0)}, {sr(sQ0)}, {sr(sT0)}")
    m(f"s_sub_u32 {sr(sQ0)}, {sr(sQ0)}, 34")
    for r in range(4):
        m(f"v_cndmask_b32_e64 {vr(vS + r)}, {vr(vT0)}, 0, {sr(sMASK + 2 * r, 2)}")
        m(f"v_cndmask_b32_e64 {vr(vS + 16 + r)}, {vr(vT0)}, 0, {sr(sMASK + 8 + 2 * r, 2)}")
    m(f"v_cndmask_b32_e64 {vr(vS + 20)}, {vr(vT0)}, 0, {sr(sMASK + 16, 2)}")
    m(f"v_cndmask_b32_e64 {vr(vS + 21)}, {vr(vT0)}, 0, {sr(sMASK + 16, 2)}")
    for s_ in range(1, 4):
        m(f"v_xor_b32 {vr(KQ[s_])}, {64 * s_}, {vr(vGK)}")
    poll_fast(m, sr(sNEED), vT2, read=False)
    stamp_it(m, 1)

    def relayout(em, q):
        em(f"ds_write_b128 {vr(vSR)}, {vr(q, 4)}")
        em(f"ds_read_b128 {vr(q, 4)}, {vr(vSW)}")

    def k_read(em, t):
        for s_ in range(4):
            em(f"ds_read_b128 {vr(KQ[4 + 4 * t + s_], 4)}, {vr(vKA + s_)} offset:{4096 * t}")

    def v_read(T, k):
        u, p = T // 2, T % 2
        q = vPOOL + 12 * (T % 6) + 4 * k
        r = [f"ds_read_b64_tr_b16 {vr(q + 2 * j, 2)}, {vr(vVA + u)} offset:{VT * (2 * k + j) + 32 * p}" for j in range(2)]
        if k == 2:
            r[1] = f"ds_read_b64_tr_b16 {vr(q + 2, 2)}, {vr(vGV + u)} offset:{32 * p}"
        return r

    m(f"s_sub_u32 {sr(sT0)}, {sr(sB)}, 2")
    m(f"s_cmp_lt_u32 {sr(sT0)}, 12")
    for s_ in range(4):
        m(f"ds_read_b128 {vr(KQ[s_], 4)}, {vr(KQ[s_]) if s_ else vr(vGK)}")
    k_read(m, 2)
    m("s_cbranch_scc0 L_halo")
    for t in (0, 1, 3, 4):
        k_read(m, t)
    m.raw("L_kdone:")
    o = Emitter()
    o.raw("L_halo:")
    o("s_waitcnt vmcnt(4)")
    for t in (0, 1, 3, 4):
        o(f"s_add_u32 {sr(sT0)}, {sr(sB)}, {t - 2}")
        o(f"s_cmp_lt_u32 {sr(sT0)}, 16")
        o(f"s_cbranch_scc0 L_rl{t}")
        k_read(o, t)
        o(f"s_branch L_rd{t}")
        o.raw(f"L_rl{t}:")
        o.ds_q = []
        for s_ in range(4):
            relayout(o, KQ[4 + 4 * t + s_])
        o.raw(f"L_rd{t}:")
    o("s_branch L_kdone")
    ool.append(o)
    m("s_waitcnt vmcnt(0)")
    stamp_it(m, 2)
    if QDIR:
        m(f"ds_read_b32 {vr(vT3)}, {vr(vFLAG)}")
        m.wait_lgkm_all()
    else:
        for s_ in range(4):
            relayout(m, vQR + 4 * s_)
        m(f"ds_read_b32 {vr(vT3)}, {vr(vFLAG)}")
    m(f"s_cmp_lt_u32 {sr(sQ0)}, {2001 - 34}")
    for s_ in range(4):
        m(mfma(vS + 20, KQ[s_], vQR + 4 * s_, vS + 20))

    def s_tile(t):
        return [mfma(vS + 4 * t, KQ[4 + 4 * t + s_], vQR + 4 * s_, None if (s_ == 0 and t in (1, 2, 3)) else vS + 4 * t) for s_ in range(4)]

    VR = [op for T in range(6) for k in range(3) for op in v_read(T, k)]
    mx = max_tree([vS + 20, vS + 21] + [vS + i for i in range(20)], vT0)
    m("s_cbranch_scc0 L_edge")
    ed = m.fork()
    t01 = s_tile(0) + s_tile(1)
    for op in t01[:6]:
        m(op)
    poll_fast(m, sr(sNEEDV), vT3, read=False)
    for op in t01[6:] + merge(s_tile(2) + s_tile(3) + s_tile(4), VR[:24]) + VR[24:] + mx:
        m(op)
    m.raw("L_join:")
    ed.raw("L_edge:")
    for t in range(5):
        for op in s_tile(t):
            ed(op)
    ed(f"v_add_u32 {vr(vT1)}, {sr(sQ0)}, {vr(vG4)}")
    ed(f"s_movk_i32 {sr(sT1)}, 2046")
    for t in range(5):
        for r in range(4):
            ed(f"v_add_u32 v0, {16 * t + r}, {vr(vT1)}")
            ed(f"v_cmp_gt_u32 vcc, {sr(sT1)}, v0")
            ed(f"v_cndmask_b32 {vr(vS + 4 * t + r)}, {vr(vT0)}, {vr(vS + 4 * t + r)}, vcc")
    poll_fast(ed, sr(sNEEDV), vT3, read=False)
    for op in VR + mx:
        ed(op)
    ed.flush()
    ed("s_branch L_join")
    ool.append(ed)
    ar = allreduce_ops("v_max_f32", vT0, vT1)
    m(ar[0])
    m(f"s_cmp_eq_u32 {sr(sIT)}, 0")
    m("s_cbranch_scc1 L_first")
    m.raw("L_second:")
    o = Emitter()
    o.raw("L_first:")
    set_bit(o, sr(sW))
    o(f"s_cmp_ge_u32 {sr(sW)}, {EW}")
    o("s_cbranch_scc0 L_second")
    q_load(o, sr(sB2))
    o("s_branch L_second")
    ool.append(o)
    stamp_it(m, 3)

    W = vPOOL + 40
    R = vPOOL + 24

    def p_ops(lo, hi):
        fm = [f"v_fma_f32 {vr(vS + i)}, {vr(vS + i)}, {vr(vC)}, -{vr(vT0)}" for i in range(lo, hi)]
        ex = [f"v_exp_f32 {vr(vS + i)}, {vr(vS + i)}" for i in range(lo, hi)]
        cv = [f"v_cvt_pk_bf16_f32 {vr(vS + i)}, {vr(vS + 2 * i)}, {vr(vS + 2 * i + 1)}" for i in range(lo // 2, hi // 2)]
        seq = fm[:2]
        for j, x in enumerate(ex):
            seq.append(x)
            if j + 2 < len(fm):
                seq.append(fm[j + 2])
            if j >= 2 and j % 2 == 0:
                seq.append(cv[(j - 2) // 2])
        return seq, cv[-1]

    def pv(T, k):
        return mfma(OACC[T], vPOOL + 12 * (T % 6) + 4 * k, vS + 4 * k, None if k == 0 else OACC[T])

    def lsum(k):
        return mfma(vL, vONE, vS + 4 * k, None if k == 0 else vL)

    def fin(T, park):
        u, p = T // 2, T % 2
        o_ = OACC[T]
        w = W + 4 * u + 2 * p
        ops = [f"v_mul_f32 {vr(o_ + r)}, {vr(o_ + r)}, {vr(vT0)}" for r in range(4)]
        ops += [f"v_cvt_pk_bf16_f32 {vr(w)}, {vr(o_)}, {vr(o_ + 1)}", f"v_cvt_pk_bf16_f32 {vr(w + 1)}, {vr(o_ + 2)}, {vr(o_ + 3)}"]
        if park:
            ops.append(f"ds_write_b64 {vr(vT3 if p else 0)}, {vr(w, 2)} offset:{1024 * u}")
        else:
            ops.append(f"ds_write_b64 {vr(vSW1 if p else vSW0)}, {vr(w, 2)}")
            if p:
                ops.append(f"ds_read_b128 {vr(R + 4 * u, 4)}, {vr(vSR)}")
        return ops

    for op in ar[1:]:
        m(op)
    m(f"v_mul_f32 {vr(vT0)}, {vr(vC)}, {vr(vT0)}")
    pa, ca = p_ops(0, 8)
    pb, cb = p_ops(8, 16)
    pc, cc = p_ops(16, 22)
    for op in pa + pb[:2] + [ca]:
        m(op)
    for op in merge(pb[2:] + pc[:2] + [cb], [None, lsum(0)] + [pv(T, 0) for T in range(5)]):
        if op:
            m(op)
    for op in merge(pc[2:] + [f"v_mov_b32 {vr(vS + 11)}, 0", cc], [pv(5, 0), lsum(1)] + [pv(T, 1) for T in range(6)]):
        m(op)
    stamp_it(m, 4)

    def tail(em, park):
        if park:
            em(f"v_add_u32 v0, {sr(sPARK)}, {vr(vSW0)}")
            em(f"v_add_u32 {vr(vT3)}, {sr(sPARK)}, {vr(vSW1)}")
            em(f"ds_read_b32 {vr(vT2)}, {vr(vFLAG)} offset:4")
        rd = [op for T in (6, 7) for k in range(3) for op in v_read(T, k)]
        for op in [lsum(2), pv(0, 2)] + merge([pv(T, 2) for T in range(1, 6)], [None] + rd[:9]) + rd[9:]:
            if op:
                em(op)
        em(f"v_rcp_f32 {vr(vT0)}, {vr(vL)}")
        if park:
            poll_bits(em, sr(sREQ), True)
        F = [fin(T, park) for T in range(8)]
        valu = lambda Ts: [op for T in Ts for op in F[T] if not op.startswith("ds_")]
        ds = lambda Ts: [op for T in Ts for op in F[T] if op.startswith("ds_")]
        for op in merge(valu(range(4)), [pv(6, k) for k in range(3)] + [pv(7, k) for k in range(3)]) + ds(range(4)) + valu(range(4, 8)) + ds(range(4, 8)):
            em(op)

    m(f"s_cmp_eq_u32 {sr(sIT)}, 0")
    m("s_cbranch_scc1 L_park")
    a2 = m.fork()
    tail(m, False)
    if STAMP and "B6" in PTS:
        m.wait_lgkm_all()
        stamp_it(m, 6, 1)
    if UMASK:
        m.wait_lgkm_all()
        m(f"s_mov_b32 {sr(sSTEP)}, 0")
        m(f"s_mov_b32 {sr(sSTEPV)}, 0")
        m(f"s_sub_u32 {sr(sCNT)}, {sr(sCNT)}, 1")
        m(f"s_cmp_lg_u32 {sr(sCNT)}, 0")
        m.flush()
        m("s_cbranch_scc1 L_block")
    for u in range(0 if UMASK else 4):
        m(f"buffer_store_dwordx4 {vr(R + 4 * u, 4)}, {vr(vSO)}, {sr(S_O, 4)}, {sr(sQOFF)} offen offset:{64 * u}{STB}")
    dump_stamps(m, "m")
    m("s_endpgm")
    a2.raw("L_park:")
    tail(a2, True)
    a2(f"s_add_u32 {sr(sT1)}, {sr(sW)}, 8")
    a2.wait_lgkm_all()
    set_bit(a2, sr(sT1))
    stamp_it(a2, 6, 0)
    a2(f"s_sub_u32 {sr(sT1)}, {sr(sB2)}, {sr(sB)}")
    a2(f"s_lshl_b32 {sr(sSTEP)}, {sr(sT1)}, 12")
    a2(f"s_mul_i32 {sr(sSTEPV)}, {sr(sT1)}, {VT}")
    a2(f"s_mov_b32 {sr(sB)}, {sr(sB2)}")
    k_halo(a2, sr(sB))
    a2(f"s_add_u32 {sr(sNEED)}, {sr(sX)}, 2")
    a2(f"s_min_u32 {sr(sNEED)}, {sr(sNEED)}, 15")
    a2(f"s_cmp_gt_u32 {sr(sNEED)}, {HP}")
    a2(f"s_addc_u32 {sr(sNEED)}, {sr(sNEED)}, 1")
    a2(f"s_add_u32 {sr(sNEEDV)}, {sr(sX)}, 4")
    a2(f"s_min_u32 {sr(sNEEDV)}, {sr(sNEEDV)}, 16")
    a2(f"s_cmp_gt_u32 {sr(sNEEDV)}, {HP}")
    a2(f"s_addc_u32 {sr(sNEEDV)}, {sr(sNEEDV)}, 1")
    a2(f"s_mov_b32 {sr(sIT)}, 1")
    a2(f"s_cmp_ge_u32 {sr(sW)}, {EW}")
    a2.flush()
    a2("s_cbranch_scc1 L_block")
    a2(f"s_sub_u32 {sr(sT2)}, {sr(sNEED)}, {D + QL2}")
    a2(f"s_max_u32 {sr(sT2)}, {sr(sT2)}, {THRMIN}")
    poll(a2, sr(sT2))
    q_load(a2, sr(sB))
    a2("s_branch L_block")

    h = c.fork()
    h.raw("L_helper:")
    if UMASK:
        h("s_endpgm")
    hS, hO, hK, hV, vM, vA = 44, 56, 92, 124, 156, 1
    hL = hO + 32
    if PRIOH:
        h(f"s_setprio {PRIOH}")
    if CPF and not CPE:
        code_pf_setup(h)
        code_pf(h)
    h(f"v_lshlrev_b32 {vr(vA)}, 4, {vr(vG)}")
    h(f"v_lshl_add_u32 v0, {vr(vN)}, 8, {vr(vA)}")
    for i in range(16):
        h(f"v_mov_b32 {vr(vQR + i)}, 0")
    h("s_mov_b32 exec_lo, 0x00030003")
    h("s_mov_b32 exec_hi, 0x00030003")
    for s in range(4):
        h(f"buffer_load_dwordx4 {vr(vQR + 4 * s, 4)}, v0, {sr(S_Q, 4)}, {sr(sHEADOFF)} offen offset:{64 * s}")
    h("s_mov_b64 exec, -1")
    lane_addrs(h)
    h(f"s_mul_i32 {sr(sPARK)}, {sr(sWAVE)}, 1056")
    h(f"s_add_u32 {sr(sPARK)}, {sr(sPARK)}, {L_MRG - 1056}")
    h(f"v_lshl_add_u32 {vr(vA)}, {vr(vN)}, 9, {vr(vA)}")
    h(f"v_add_u32 {vr(vA)}, {sr(sPARK)}, {vr(vA)}")
    h(f"v_lshlrev_b32 {vr(vSR)}, 3, {vr(vN)}")
    h(f"v_add_u32 {vr(vSR)}, {sr(sPARK)}, {vr(vSR)}")
    h(f"v_lshl_add_u32 {vr(vSO)}, {vr(vG)}, 4, {vr(vN)}")
    h(f"v_lshrrev_b32 {vr(vSW)}, 5, {vr(vSO)}")
    h(f"v_lshlrev_b32 {vr(vSW)}, 3, {vr(vSW)}")
    h(f"v_lshlrev_b32 {vr(vSW0)}, 4, {vr(vSO)}")
    h(f"v_and_b32 {vr(vSW1)}, 7, {vr(vSO)}")
    h(f"v_lshlrev_b32 {vr(vT0)}, 3, {vr(vSW)}")
    h(f"v_lshl_add_u32 {vr(vGK)}, {vr(vSW1)}, 3, {vr(vT0)}")
    h(f"v_lshl_add_u32 {vr(vSW1)}, {vr(vSW1)}, 11, {vr(vT0)}")
    h(f"v_lshlrev_b32 {vr(vSO)}, 3, {vr(vSO)}")
    for i in range(36):
        h(f"v_mov_b32 {vr(hO + i)}, 0")
    h(f"v_mov_b32 {vr(vM)}, {sr(sNEG)}")
    h(f"s_sub_u32 {sr(sW)}, {sr(sWAVE)}, 1")
    h(f"s_lshl_b32 {sr(sT0)}, {sr(sW)}, 1")
    h(f"s_add_u32 {sr(sNEED)}, {sr(sT0)}, 2")
    h(f"s_sub_u32 {sr(sT1)}, 14, {sr(sT0)}")
    h(f"s_cmp_eq_u32 {sr(sDESC)}, 0")
    h(f"s_cselect_b32 {sr(sT0)}, {sr(sT0)}, {sr(sT1)}")
    h(f"s_cselect_b32 {sr(sSTEPV)}, 1, -1")
    h(f"s_mul_i32 {sr(sSTEP)}, {sr(sSTEPV)}, {2 * NH * 4096}")
    h(f"s_mul_i32 {sr(sSTEPV)}, {sr(sSTEPV)}, {2 * NH * VT}")
    h(f"s_lshl_b32 {sr(sT1)}, {sr(sT0)}, 12")
    h(f"s_add_u32 {sr(sT1)}, {sr(sT1)}, {L_K}")
    h(f"s_mul_i32 {sr(sT2)}, {sr(sT0)}, {VT}")
    h(f"s_add_u32 {sr(sT2)}, {sr(sT2)}, {L_V + 2 * VT}")
    tile_addrs(h, sr(sT1), sr(sT2))
    h(f"s_lshl_b32 {sr(sREC)}, {sr(sHEAD)}, 3")
    h(f"s_add_u32 {sr(sREC)}, {sr(sREC)}, {sr(sCHUNK)}")
    h(f"s_lshl_b32 {sr(sREC)}, {sr(sREC)}, 11")
    assert DUAL == "none"
    h(f"s_mov_b32 {sr(sX)}, 1")
    if opt.get("tlbw"):
        h(f"s_lshl_b32 {sr(sT0)}, {sr(sHEAD)}, 14")
        h(f"buffer_load_dword v162, {vr(vSW1)}, {sr(S_WS, 4)}, {sr(sT0)} offen offset:1536")
        h(f"s_add_u32 {sr(sT0)}, {sr(sT0)}, {1 << 20}")
        h(f"buffer_load_dword v163, {vr(vSW1)}, {sr(S_WS, 4)}, {sr(sT0)} offen offset:1536")
    h.wait_vm_all()
    h.label("L_hloop")
    h(f"s_cmp_gt_u32 {sr(sNEED)}, {HP + 1}")
    h(f"s_addc_u32 {sr(sT2)}, {sr(sNEED)}, 0")
    poll(h, sr(sT2))
    h(f"s_lshr_b32 {sr(sT1)}, {sr(sNEED)}, 1")
    h(f"s_add_u32 {sr(sT1)}, {sr(sT1)}, 15")
    h(f"s_add_u32 {sr(sNEEDV)}, {sr(sNEED)}, 1")
    h(f"s_min_u32 {sr(sNEEDV)}, {sr(sNEEDV)}, 16")
    h(f"s_cmp_gt_u32 {sr(sNEEDV)}, {HP}")
    h(f"s_addc_u32 {sr(sNEEDV)}, {sr(sNEEDV)}, 1")
    if not NOCOMP:
        for i in range(8):
            h(f"ds_read_b128 {vr(hK + 4 * i, 4)}, {vr(vKA + i % 4)} offset:{4096 * (i // 4)}")
        hvr = [f"ds_read_b64_tr_b16 {vr(hV + 4 * T + 2 * j, 2)}, {vr(vVA + T // 2)} offset:{VT * j + 32 * (T % 2)}" for T in range(8) for j in range(2)]
        for i in range(8):
            t, s = i // 4, i % 4
            h(mfma(hS + 4 * t, hK + 4 * i, vQR + 4 * s, None if s == 0 else hS + 4 * t))
    set_bit(h, sr(sT1))
    if CPL:
        code_pf(h)
    if not NOCOMP:
        for op in max_tree([hS + i for i in range(8)], vT0) + allreduce_ops("v_max_f32", vT0, vT1):
            h(op)
        h(f"v_mul_f32 {vr(vT0)}, {sr(sC)}, {vr(vT0)}")
        h(f"v_max_f32 {vr(vT0)}, {vr(vT0)}, {vr(vM)}")
        h(f"v_sub_f32 {vr(vT1)}, {vr(vM)}, {vr(vT0)}")
        h(f"v_exp_f32 {vr(vT1)}, {vr(vT1)}")
        h(f"v_mov_b32 {vr(vM)}, {vr(vT0)}")
        for i in range(8):
            h(f"v_fma_f32 {vr(hS + i)}, {vr(hS + i)}, {sr(sC)}, -{vr(vT0)}")
        for i in range(8):
            h(f"v_exp_f32 {vr(hS + i)}, {vr(hS + i)}")
        for i in range(33):
            h(f"v_mul_f32 {vr(hO + i)}, {vr(hO + i)}, {vr(vT1)}")
        for k in range(4):
            h(f"v_cvt_pk_bf16_f32 {vr(hS + k)}, {vr(hS + 2 * k)}, {vr(hS + 2 * k + 1)}")
        h(mfma(hL, vONE, hS, hL))
    poll(h, sr(sNEEDV))
    if not NOCOMP:
        for op in hvr:
            h(op)
    tile_addrs(h, sr(sSTEP), sr(sSTEPV))
    if not NOCOMP:
        for T in range(8):
            h(mfma(hO + 4 * T, hV + 4 * T, hS, hO + 4 * T))
    h(f"s_add_u32 {sr(sNEED)}, {sr(sNEED)}, {2 * NH}")
    h(f"s_cmp_le_u32 {sr(sNEED)}, 16")
    h.flush()
    h("s_cbranch_scc1 L_hloop")
    stamp(h, 1)
    if not NOCOMP:
        h(f"v_mov_b32 {vr(vM + 1)}, {vr(hL)}")
        h("s_mov_b32 exec_lo, 0x00030003")
        h("s_mov_b32 exec_hi, 0x00030003")
        for T in range(8):
            h(f"ds_write_b128 {vr(vA)}, {vr(hO + 4 * T, 4)} offset:{64 * T}")
        h("s_mov_b64 exec, 3")
        h(f"ds_write_b64 {vr(vSR)}, {vr(vM, 2)} offset:1024")
        h("s_mov_b64 exec, -1")
        h(f"s_cmp_lg_u32 {sr(sW)}, 0")
        h("s_cbranch_scc1 L_hmerge")
        h0 = h.fork()
        keepq = list(h.ds_q)
        h.wait_lgkm_all()
        set_bit(h, 24)
        h("s_branch L_hdone")
        h.raw("L_hmerge:")
        h.ds_q = keepq
        h(f"s_mov_b32 {sr(sT2)}, {1 << 24}")
        poll_bits(h, sr(sT2))
        cA, cB, cM = 56, 60, 64
        h(f"ds_read_b64 {vr(cM, 2)}, {vr(vSW)} offset:{L_MRG + 1024}")
        h(f"ds_read_b64 {vr(cM + 2, 2)}, {vr(vSW)} offset:{L_MRG + 1056 + 1024}")
        h(f"ds_read_b128 {vr(cA, 4)}, {vr(vSW0)} offset:{L_MRG}")
        h(f"ds_read_b128 {vr(cB, 4)}, {vr(vSW0)} offset:{L_MRG + 1056}")
        h(f"s_lshl_b32 {sr(sT0)}, {sr(sHEAD)}, 2")
        h(f"v_mov_b32 v0, {sr(sX)}")
        h(f"v_max_f32 {vr(vM)}, {vr(cM)}, {vr(cM + 2)}")
        h(f"v_sub_f32 {vr(cM)}, {vr(cM)}, {vr(vM)}")
        h(f"v_sub_f32 {vr(cM + 2)}, {vr(cM + 2)}, {vr(vM)}")
        h(f"v_exp_f32 {vr(cM)}, {vr(cM)}")
        h(f"v_exp_f32 {vr(cM + 2)}, {vr(cM + 2)}")
        for r in range(4):
            h(f"v_mul_f32 {vr(cA + r)}, {vr(cA + r)}, {vr(cM)}")
        h(f"v_mul_f32 {vr(vM + 1)}, {vr(cM + 1)}, {vr(cM)}")
        for r in range(4):
            h(f"v_fmac_f32 {vr(cA + r)}, {vr(cB + r)}, {vr(cM + 2)}")
        h(f"v_fmac_f32 {vr(vM + 1)}, {vr(cM + 3)}, {vr(cM + 2)}")
        h(f"buffer_store_dwordx4 {vr(cA, 4)}, {vr(vSW0)}, {sr(S_WS, 4)}, {sr(sREC)} offen sc1")
        if DUAL != "none":
            h(f"buffer_store_dwordx4 {vr(cA, 4)}, {vr(vSW0)}, {sr(S_WS, 4)}, {sr(sREQ)} offen")
        h("s_mov_b32 exec_lo, 0xff")
        h("s_mov_b32 exec_hi, 0xff")
        h(f"buffer_store_dwordx2 {vr(vM, 2)}, {vr(vGK)}, {sr(S_WS, 4)}, {sr(sREC)} offen offset:1024 sc1")
        if DUAL != "none":
            h(f"buffer_store_dwordx2 {vr(vM, 2)}, {vr(vGK)}, {sr(S_WS, 4)}, {sr(sREQ)} offen offset:1024")
        h("s_mov_b64 exec, 1")
        h(f"v_mov_b32 {vr(vT2)}, {1 << 25}")
        if GATE >= 0 and GATEP:
            h(f"ds_or_b32 {vr(vFLAG)}, {vr(vT2)} offset:4")
        h.wait_vm_all()
        stamp(h, 2)
        h(f"buffer_atomic_add v0, off, {sr(S_DBG, 4)}, {sr(sT0)} sc0")
        if GATE >= 0 and not GATEP:
            h(f"ds_or_b32 {vr(vFLAG)}, {vr(vT2)} offset:4")
        h(f"v_readfirstlane_b32 {sr(sT1)}, v0")
        h("s_mov_b64 exec, -1")
        stamp(h, 3)
        h(f"s_and_b32 {sr(sT2)}, {sr(sT1)}, 31")
        h(f"s_cmp_eq_u32 {sr(sT2)}, 7")
        h.flush()
        h("s_cbranch_scc0 L_hdone")
        cO, cW = 56, 96
        h(f"s_lshl_b32 {sr(sREC)}, {sr(sHEAD)}, 14")

        def rec_loads(mod):
            h.vm_q = []
            h(f"buffer_load_dwordx2 {vr(vM, 2)}, {vr(vSW1)}, {sr(S_WS, 4)}, {sr(sREC)} offen offset:1024{mod}")
            for i in range(8):
                if i % 2 == 0 and i:
                    h(f"s_add_u32 {sr(sREC)}, {sr(sREC)}, 4096")
                h(f"buffer_load_dwordx4 {vr(cO + 4 * i, 4)}, {vr(vSW0)}, {sr(S_WS, 4)}, {sr(sREC)} offen offset:{2048 * (i % 2)}{mod}")
        if DUAL != "none":
            h(f"s_mul_i32 {sr(sX)}, {sr(sX)}, 7")
            h(f"s_cmp_eq_u32 {sr(sX)}, {sr(sT1)}")
            h("s_cbranch_scc0 L_far")
            h(f"s_add_u32 {sr(sREC)}, {sr(sREC)}, {1 << 20}")
            rec_loads("" if DUAL == "plain" else " " + DUAL)
            h("s_branch L_got")
            h.raw("L_far:")
        rec_loads(" sc1")
        h.raw("L_got:")
        SWZ = (0x041F, 0x081F, 0x101F)
        h(f"v_mov_b32 {vr(vT0)}, {vr(vM)}")
        stamp(h, 5)
        for x in SWZ:
            h(f"ds_swizzle_b32 {vr(vT1)}, {vr(vT0)} offset:{x:#x}")
            h(f"v_max_f32 {vr(vT0)}, {vr(vT0)}, {vr(vT1)}")
        h(f"v_sub_f32 {vr(vM)}, {vr(vM)}, {vr(vT0)}")
        h(f"v_exp_f32 {vr(vM)}, {vr(vM)}")
        h(f"v_mul_f32 {vr(vT0)}, {vr(vM)}, {vr(vM + 1)}")
        for i in range(8):
            h(f"ds_swizzle_b32 {vr(cW + i)}, {vr(vM)} offset:{(i << 5) | 0x18:#x}")
        for x in SWZ:
            h(f"ds_swizzle_b32 {vr(vT1)}, {vr(vT0)} offset:{x:#x}")
            h(f"v_add_f32 {vr(vT0)}, {vr(vT0)}, {vr(vT1)}")
        h(f"v_rcp_f32 {vr(vT0)}, {vr(vT0)}")
        if STAMP:
            h.wait_vm_all()
            stamp(h, 4)
        for i in range(8):
            for r in range(4):
                h(f"{'v_fmac_f32' if i else 'v_mul_f32'} {vr(vKA + r)}, {vr(cW + i)}, {vr(cO + 4 * i + r)}")
        for r in range(4):
            h(f"v_mul_f32 {vr(vKA + r)}, {vr(vKA + r)}, {vr(vT0)}")
        h(f"v_cvt_pk_bf16_f32 {vr(vVA)}, {vr(vKA)}, {vr(vKA + 1)}")
        h(f"v_cvt_pk_bf16_f32 {vr(vVA + 1)}, {vr(vKA + 2)}, {vr(vKA + 3)}")
        h(f"buffer_store_dwordx2 {vr(vVA, 2)}, {vr(vSO)}, {sr(S_O, 4)}, {sr(sHEADOFF)} offen sc1")
        h.label("L_hdone")
    dump_stamps(h, "h")
    h.raw("L_end:")
    h("s_endpgm")

    tailtxt = f""".section .rodata,"a"
.p2align 6
.amdhsa_kernel {NAME}_kernel
  .amdhsa_next_free_vgpr 168
  .amdhsa_next_free_sgpr 98
  .amdhsa_accum_offset 168
  .amdhsa_group_segment_fixed_size 0
  .amdhsa_kernarg_size 64
  .amdhsa_user_sgpr_count 2
  .amdhsa_user_sgpr_kernarg_segment_ptr 1
  .amdhsa_system_sgpr_workgroup_id_x 1
.end_amdhsa_kernel
"""
    assert not NOCOMP and not PK
    txt = e.text() + ld.text() + c.text() + m.text() + a2.text() + h.text() + "".join(o.text() for o in ool)
    return txt + "L_codeend:\n" + tailtxt


if __name__ == "__main__":
    out = sys.argv[1]
    opt = {}
    for a in sys.argv[2:]:
        k, _, v = a.partition("=")
        opt[k] = v if v else True
        if k in ("st", "stb", "ld", "ldh", "qld"):
            opt[k] = (" " + v.replace("+", " ")) if v != "none" else ""
    open(out, "w").write(gen(opt))
```
